```python
import torch

def _softmax(x, axis=-1):
    return torch.softmax(x, dim=axis)
def _gelu(x):
    return torch.nn.functional.gelu(x, approximate="tanh")
def _silu(x):
    return torch.nn.functional.silu(x)
def _sigmoid(x):
    return torch.sigmoid(x)
def _layernorm(x, axis=-1, eps=1e-5):
    m = x.mean(dim=axis, keepdim=True)
    v = x.var(dim=axis, keepdim=True, unbiased=False)
    return (x - m) / torch.sqrt(v + eps)
def _scatter_add(tgt, idx, src, axis=0):
    return tgt.clone().index_add_(axis, idx, src)
def _segment_sum(src, seg, n):
    out = torch.zeros((n,) + src.shape[1:], dtype=src.dtype)
    return out.index_add_(0, seg, src)
def _pad(x, pw):
    flat = tuple(v for pair in reversed(pw) for v in pair)
    return torch.nn.functional.pad(x, flat)

kernel_name = 'gated_mix__mha_block__linear_kernel_hedgehog__prompt'

def setup_inputs():

    _w = (lambda a: (lambda t: t.to(torch.bfloat16) if t.is_floating_point() else t)(torch.as_tensor(a)))
    def _A_setup():
        B, S, D, H = 1, 2048, 512, 32
        return {
            "x": _w((lambda *s: torch.randn(*s, dtype=torch.bfloat16) * 0.05)(B, S, D)),
            "wqkv": _w((lambda *s: torch.randn(*s, dtype=torch.bfloat16) * 0.8)(D, 3 * D)),
            "wo": _w((lambda *s: torch.randn(*s, dtype=torch.bfloat16) * 0.05)(D, D)),
        }
    _A_in = _A_setup()

    def _B_setup():
        B, S, D, H = 1, 2048, 512, 32
        Dh = D // H
        return {
            "x": _w((lambda *s: torch.randn(*s, dtype=torch.bfloat16) * 0.05)(B, S, D)),
            "wqkv": _w((lambda *s: torch.randn(*s, dtype=torch.bfloat16) * 1.6)(D, 3 * D)),
            "w_phi": _w((lambda *s: torch.randn(*s, dtype=torch.bfloat16) * 1.6)(H, Dh, Dh) * (Dh ** -0.5)),
            "wo": _w((lambda *s: torch.randn(*s, dtype=torch.bfloat16) * 0.05)(D, D)),
        }
    _B_in = _B_setup()

    return {
        "A_x": _A_in["x"],
        "A_wqkv": _A_in["wqkv"],
        "A_wo": _A_in["wo"],
        "B_x": _B_in["x"],
        "B_wqkv": _B_in["wqkv"],
        "B_w_phi": _B_in["w_phi"],
        "B_wo": _B_in["wo"],
        "gate_w": _w((lambda *s: torch.randn(*s, dtype=torch.bfloat16) * 0.05)(512) * 16.0),
    }

def reference(A_x, A_wqkv, A_wo, B_x, B_wqkv, B_w_phi, B_wo, gate_w):
    def _A_ref(x, wqkv, wo):
        B, S, D = x.shape
        H = 32
        Dh = D // H
        qkv = (lambda x, *d: x.permute(*d))((x @ wqkv).reshape(B, S, 3, H, Dh), 2, 0, 3, 1, 4)
        q, k, v = qkv[0], qkv[1], qkv[2]
        scores = torch.einsum("bhqd,bhkd->bhqk", q, k) * (Dh ** -0.5)
        p = _softmax(scores, axis=-1)
        o = torch.einsum("bhqk,bhkd->bhqd", p, v)
        return (lambda x, *d: x.permute(*d))(o, 0, 2, 1, 3).reshape(B, S, D) @ wo

    def _B_ref(x, wqkv, w_phi, wo):
        B, S, D = x.shape
        H = 32; Dh = D // H
        qkv = (lambda x, *d: x.permute(*d))((x @ wqkv).reshape(B, S, 3, H, Dh), 2, 0, 3, 1, 4)
        q, k, v = qkv[0], qkv[1], qkv[2]
        pq = torch.einsum("bhsd,hdf->bhsf", q, w_phi)
        pk = torch.einsum("bhsd,hdf->bhsf", k, w_phi)
        phi_q = torch.concatenate([_softmax(pq, axis=-1), _softmax(-pq, axis=-1)], axis=-1)
        phi_k = torch.concatenate([_softmax(pk, axis=-1), _softmax(-pk, axis=-1)], axis=-1)
        kv = torch.einsum("bhsf,bhsd->bhfd", phi_k, v)
        z  = torch.einsum("bhsf->bhf", phi_k)
        num = torch.einsum("bhqf,bhfd->bhqd", phi_q, kv)
        den = torch.einsum("bhqf,bhf->bhq", phi_q, z)[..., None] + 1e-6
        o = num / den
        return (lambda x, *d: x.permute(*d))(o, 0, 2, 1, 3).reshape(B, S, D) @ wo

    x = A_x
    g = _sigmoid((x * gate_w).sum(-1, keepdims=True))
    a = _A_ref(x, A_wqkv, A_wo)
    b = _B_ref(x, B_wqkv, B_w_phi, B_wo)
    return g * a + (1 - g) * b
```

```python
class Asm:
    def __init__(self):
        self.lines = []
    def __call__(self, s):
        for l in s.split("\n"):
            l = l.strip()
            if not l:
                continue
            if l.endswith(":") or l.startswith("."):
                self.lines.append(l)
            else:
                self.lines.append("    " + l)
    def emit(self, lst):
        for s in lst:
            self(s)
    def text(self):
        return "\n".join(self.lines) + "\n"

def v(i, n=1):
    return f"v{i}" if n == 1 else f"v[{i}:{i+n-1}]"
def s(i, n=1):
    return f"s{i}" if n == 1 else f"s[{i}:{i+n-1}]"

def rr(*streams):
    out = []
    n = max(len(x) for x in streams)
    for i in range(n):
        for x in streams:
            if i < len(x):
                out.append(x[i])
    return out

def srd(a, dst, lo, hi, nbytes):
    a(f"s_mov_b32 s{dst}, s{lo}")
    a(f"s_mov_b32 s{dst+1}, s{hi}")
    a(f"s_mov_b32 s{dst+2}, {nbytes:#x}")
    a(f"s_mov_b32 s{dst+3}, 0x20000")

def kd(name, vgpr, sgpr=96):
    acc = (vgpr + 3) // 4 * 4
    return f""".section .rodata,"a"
.p2align 6
.amdhsa_kernel {name}
  .amdhsa_next_free_vgpr {vgpr}
  .amdhsa_next_free_sgpr {sgpr}
  .amdhsa_accum_offset {acc}
  .amdhsa_group_segment_fixed_size 0
  .amdhsa_kernarg_size 88
  .amdhsa_user_sgpr_count 2
  .amdhsa_user_sgpr_kernarg_segment_ptr 1
  .amdhsa_system_sgpr_workgroup_id_x 1
.end_amdhsa_kernel
"""
```

```python
import sys, struct
from asmlib import *

LOG2E = 1.4426950408889634
def f2u(x): return struct.unpack("<I", struct.pack("<f", x))[0]

WS_QF  = 0
WS_KV  = 2 << 20
WS_PHQ = 6 << 20
WS_KVP = 10 << 20
WS_OF  = 12 << 20
WS_G   = 16 << 20
WS_SIZE = (16 << 20) + 8192

S_X, S_WA, S_WB, S_WS, S_MISC = 28, 32, 36, 40, 44
S_WAVE, S_HP, S_TB = 48, 49, 50

def prologue(a, name):
    a(f""".text
.globl {name}
.p2align 8
.type {name},@function
{name}:
s_cmp_ge_u32 s2, 256
s_cbranch_scc1 {name}_end
s_load_dwordx16 s[4:19], s[0:1], 0
s_load_dwordx4 s[20:23], s[0:1], 64
s_load_dwordx2 s[24:25], s[0:1], 80
v_lshrrev_b32 v1, 6, v0
v_and_b32 v0, 63, v0
v_readfirstlane_b32 s{S_WAVE}, v1
s_and_b32 s{S_HP}, s2, 7
s_lshl_b32 s{S_HP}, s{S_HP}, 1
s_bfe_u32 s3, s2, 0x10003
s_or_b32 s{S_HP}, s{S_HP}, s3
s_lshr_b32 s{S_TB}, s2, 4
""")

def softmax16(b, t, sL):
    o = []
    o.append(f"v_max3_f32 v{t}, v{b}, v{b+1}, v{b+2}")
    for i in range(3, 15, 2):
        o.append(f"v_max3_f32 v{t}, v{t}, v{b+i}, v{b+i+1}")
    o.append(f"v_max_f32 v{t}, v{t}, v{b+15}")
    o.append(f"v_mul_f32 v{t}, {f2u(-LOG2E):#x}, v{t}")
    for i in range(0, 16, 2):
        o.append(f"v_pk_fma_f32 {v(b+i,2)}, {v(b+i,2)}, {s(sL,2)}, {v(t,2)} op_sel_hi:[1,0,0]")
    for i in range(16):
        o.append(f"v_exp_f32 v{b+i}, v{b+i}")
    o.append(f"v_pk_add_f32 {v(t+2,2)}, {v(b,2)}, {v(b+2,2)}")
    for i in range(4, 16, 2):
        o.append(f"v_pk_add_f32 {v(t+2,2)}, {v(t+2,2)}, {v(b+i,2)}")
    o.append(f"v_add_f32 v{t}, v{t+2}, v{t+3}")
    o.append(f"v_rcp_f32 v{t}, v{t}")
    o.append("s_nop 0")
    for i in range(0, 16, 2):
        o.append(f"v_pk_mul_f32 {v(b+i,2)}, {v(b+i,2)}, {v(t,2)} op_sel_hi:[1,0]")
    for i in range(8):
        o.append(f"v_cvt_pk_bf16_f32 v{b+i}, v{b+2*i}, v{b+2*i+1}")
    return o

SLOT = 40960
def k1(a):
    name = "proj_kernel"
    prologue(a, name)
    a(f"s_cmp_ge_u32 s{S_WAVE}, 4")
    a(f"s_cbranch_scc0 k1_compute")
    HW, XO, WO, MB, CNT, T0 = 51, 52, 53, 54, 55, 56
    a(f"""
s_sub_u32 s{HW}, s{S_WAVE}, 4
v_lshrrev_b32 v1, 3, v0
v_lshlrev_b32 v1, 10, v1
v_and_b32 v2, 7, v0
v_lshrrev_b32 v3, 4, v0
v_xor_b32 v2, v2, v3
v_lshl_add_u32 v4, v2, 4, v1
v_xor_b32 v5, 64, v4
v_lshrrev_b32 v1, 2, v0
v_mul_u32_u24 v1, 3072, v1
v_and_b32 v2, 3, v0
v_lshl_add_u32 v6, v2, 4, v1
v_xor_b32 v7, 32, v6
""")
    a(f"""
s_lshl_b32 s{XO}, s{S_TB}, 17
s_lshl_b32 s{T0}, s{HW}, 15
s_add_u32 s{XO}, s{XO}, s{T0}
s_mul_i32 s{WO}, s{HW}, {16*3072}
s_lshl_b32 s{T0}, s{S_HP}, 6
s_add_u32 s{WO}, s{WO}, s{T0}
s_mov_b32 s{CNT}, 0
s_lshl_b32 s{T0+1}, s{HW}, 12
s_lshl_b32 s{T0+2}, s{HW}, 10
s_add_u32 s{T0+2}, s{T0+2}, 16384
s_waitcnt lgkmcnt(0)
""")
    srd(a, S_X, 4, 5, 2048*512*2)
    srd(a, S_WA, 6, 7, 512*1536*2)
    srd(a, S_WB, 12, 13, 512*1536*2)
    a(f"""
s_mov_b32 s{MB}, 0
k1_hloop:
s_cmp_lt_u32 s{CNT}, 4
s_cbranch_scc1 k1_hissue
s_cmp_eq_u32 s{CNT}, 4
s_cbranch_scc0 k1_hw20
s_waitcnt vmcnt(30)
s_barrier
k1_hw20:
s_waitcnt vmcnt(20)
s_barrier
k1_hissue:
s_add_u32 s{T0+3}, s{MB}, s{T0+1}
s_add_u32 s{T0+4}, s{MB}, s{T0+2}
""")
    for j in range(4):
        a(f"s_add_u32 m0, s{T0+3}, {j*1024}")
        a(f"s_add_u32 s{T0}, s{XO}, {j*8192}")
        a(f"buffer_load_dwordx4 v{4+(j&1)}, {s(S_X,4)}, s{T0} offen lds")
    segs = [(S_WA, 0), (S_WA, 512), (S_WB, 0), (S_WB, 512), (S_WA, 1024), (S_WB, 1024)]
    for sg, (srdr, col) in enumerate(segs):
        a(f"s_add_u32 m0, s{T0+4}, {sg*4096}")
        a(f"s_add_u32 s{T0}, s{WO}, {col*2}")
        a(f"buffer_load_dwordx4 v{6+(sg&1)}, {s(srdr,4)}, s{T0} offen lds")
    a(f"""
s_add_u32 s{XO}, s{XO}, 128
s_add_u32 s{WO}, s{WO}, {64*3072}
s_add_u32 s{MB}, s{MB}, {SLOT}
s_cmp_eq_u32 s{MB}, {4*SLOT}
s_cselect_b32 s{MB}, 0, s{MB}
s_add_u32 s{CNT}, s{CNT}, 1
s_cmp_lt_u32 s{CNT}, 8
s_cbranch_scc1 k1_hloop
""")
    srd(a, S_MISC, 18, 19, 1024)
    srd(a, S_WS, 24, 25, WS_SIZE)
    a(f"""
s_lshl_b32 s{T0}, s{S_TB}, 7
s_lshl_b32 s{T0+1}, s{S_HP}, 3
s_add_u32 s{T0}, s{T0}, s{T0+1}
s_lshl_b32 s{T0+1}, s{HW}, 1
s_add_u32 s{T0}, s{T0}, s{T0+1}
s_lshl_b32 s{T0+1}, s{T0}, 10
v_lshlrev_b32 v1, 5, v0
v_and_b32 v2, 0x3ff, v1
buffer_load_dwordx4 v[8:11], v1, {s(S_X,4)}, s{T0+1} offen
buffer_load_dwordx4 v[12:15], v1, {s(S_X,4)}, s{T0+1} offen offset:16
buffer_load_dwordx4 v[16:19], v2, {s(S_MISC,4)}, 0 offen
buffer_load_dwordx4 v[20:23], v2, {s(S_MISC,4)}, 0 offen offset:16
s_waitcnt vmcnt(24)
s_barrier
s_waitcnt vmcnt(14)
s_barrier
s_waitcnt vmcnt(4)
s_barrier
s_barrier
s_waitcnt vmcnt(0)
v_mov_b32 v24, 0
""")
    for i in range(8):
        a(f"v_dot2_f32_bf16 v24, v{8+i}, v{16+i}, v24")
    a(f"""
s_nop 3
v_add_f32_dpp v24, v24, v24 quad_perm:[1,0,3,2] row_mask:0xf bank_mask:0xf
s_nop 1
v_add_f32_dpp v24, v24, v24 quad_perm:[2,3,0,1] row_mask:0xf bank_mask:0xf
s_nop 1
v_add_f32_dpp v24, v24, v24 row_half_mirror row_mask:0xf bank_mask:0xf
s_nop 1
v_add_f32_dpp v24, v24, v24 row_mirror row_mask:0xf bank_mask:0xf
v_mov_b32 v25, v24
s_nop 1
v_permlane16_swap_b32 v24, v25
s_nop 1
v_add_f32 v24, v24, v25
v_mul_f32 v24, {f2u(-LOG2E):#x}, v24
v_exp_f32 v24, v24
s_nop 0
v_add_f32 v24, 1.0, v24
v_rcp_f32 v24, v24
v_lshrrev_b32 v1, 5, v0
v_lshlrev_b32 v1, 2, v1
s_lshl_b32 s{T0}, s{T0}, 2
s_add_u32 s{T0}, s{T0}, {WS_G}
s_mov_b32 exec_lo, 1
s_mov_b32 exec_hi, 1
buffer_store_dword v24, v1, {s(S_WS,4)}, s{T0} offen
s_endpgm
""")
    HD, TH, H, DL, CNT, T0, SL = 51, 52, 53, 54, 55, 56, 60
    XA = [2, 3, 4, 5]; WAD = 6
    SETS = [16, 36]
    ACC = 64
    def acc(tt, j): return ACC + (tt * 3 + j) * 16
    WPHI = 8
    a(f"""
k1_compute:
s_and_b32 s{HD}, s{S_WAVE}, 1
s_lshr_b32 s{TH}, s{S_WAVE}, 1
s_lshl_b32 s{H}, s{S_HP}, 1
s_add_u32 s{H}, s{H}, s{HD}
v_and_b32 v12, 31, v0
v_lshrrev_b32 v13, 5, v0
""")
    a(f"""
v_lshrrev_b32 v14, 3, v12
v_lshlrev_b32 v14, 3, v14
v_and_b32 v15, 3, v12
v_lshl_add_u32 v14, v15, 1, v14
v_lshl_add_u32 v14, v13, 7, v14
s_lshl_b32 s{T0}, s{H}, 9
s_waitcnt lgkmcnt(0)
""")
    srd(a, S_MISC, 14, 15, 32*512)
    srd(a, S_WS, 24, 25, WS_SIZE)
    for jj in range(8):
        a(f"buffer_load_ushort v{56+jj}, v14, {s(S_MISC,4)}, s{T0} offen offset:{(8*(jj//4)+jj%4)*32}")
    a(f"""
s_lshl_b32 s{T0}, s{TH}, 13
v_lshlrev_b32 v1, 7, v12
v_add_u32 v1, s{T0}, v1
v_bfe_u32 v14, v12, 1, 3
v_xor_b32 v14, v14, v13
v_lshl_add_u32 v{XA[0]}, v14, 4, v1
v_xor_b32 v{XA[1]}, 32, v{XA[0]}
v_xor_b32 v{XA[2]}, 64, v{XA[0]}
v_xor_b32 v{XA[3]}, 96, v{XA[0]}
""")
    a(f"""
v_bfe_u32 v14, v0, 4, 1
v_lshlrev_b32 v1, 12, v14
v_xor_b32 v14, s{HD}, v14
v_lshl_add_u32 v1, v14, 5, v1
v_lshl_add_u32 v1, v13, 9, v1
v_bfe_u32 v14, v0, 2, 2
v_lshl_add_u32 v1, v14, 6, v1
v_and_b32 v14, 3, v0
v_lshl_add_u32 v1, v14, 3, v1
v_add_u32 v{WAD}, 16384, v1
""")
    for i in range(96):
        a(f"v_mov_b32 v{ACC+i}, 0")
    def reads(st, step):
        b = SETS[st]
        o = [f"ds_read_b128 {v(b,4)}, v{XA[step]}"]
        for j in range(3):
            for rd in range(2):
                o.append(f"ds_read_b64_tr_b16 {v(b+8+4*j+2*rd,2)}, v{WAD} offset:{j*8192+step*1024+rd*256}")
            if j == 0:
                o.append(f"ds_read_b128 {v(b+4,4)}, v{XA[step]} offset:4096")
        return o
    def mfmas(st):
        b = SETS[st]
        o = []
        for j in range(3):
            for tt in range(2):
                x = v(b+4*tt,4); w = v(b+8+4*j,4); c = v(acc(tt,j),16)
                if j < 2: o.append(f"v_mfma_f32_32x32x16_bf16 {c}, {w}, {x}, {c}")
                else:     o.append(f"v_mfma_f32_32x32x16_bf16 {c}, {x}, {w}, {c}")
        return o
    a(f"""
s_mov_b32 s{CNT}, 0
s_barrier
""")
    a.emit(reads(0, 0))
    a("k1_cloop:")
    for step in range(4):
        a("s_waitcnt lgkmcnt(0)")
        if step == 3:
            a(f"""
s_barrier
s_and_b32 s{T0}, s{CNT}, 3
s_cmp_eq_u32 s{T0}, 3
s_mov_b32 s{DL}, {SLOT}
s_cmov_b32 s{DL}, {(-3*SLOT) & 0xffffffff:#x}
""")
            for r_ in XA + [WAD]:
                a(f"v_add_u32 v{r_}, s{DL}, v{r_}")
        m = mfmas(step & 1); r_ = reads((step + 1) & 1, (step + 1) & 3)
        for i in range(6):
            a(m[i])
            a.emit(r_[2*i:2*i+2])
    a(f"""
s_add_u32 s{CNT}, s{CNT}, 1
s_cmp_lt_u32 s{CNT}, 8
s_cbranch_scc1 k1_cloop
s_waitcnt lgkmcnt(0) vmcnt(0)
""")
    a(f"""
v_lshl_or_b32 v{WPHI}, v57, 16, v56
v_lshl_or_b32 v{WPHI+1}, v59, 16, v58
v_lshl_or_b32 v{WPHI+2}, v61, 16, v60
v_lshl_or_b32 v{WPHI+3}, v63, 16, v62
v_bfe_u32 v14, v0, 2, 1
s_mov_b32 s{T0}, 0x80008000
v_mul_lo_u32 v14, v14, s{T0}
v_xor_b32 v{WPHI}, v14, v{WPHI}
v_xor_b32 v{WPHI+1}, v14, v{WPHI+1}
v_xor_b32 v{WPHI+2}, v14, v{WPHI+2}
v_xor_b32 v{WPHI+3}, v14, v{WPHI+3}
""")
    a(f"""
v_lshlrev_b32 v1, 4, v0
v_and_b32 v2, 0x33, v0
v_bfe_u32 v14, v0, 2, 1
v_lshl_or_b32 v2, v14, 3, v2
v_bfe_u32 v14, v0, 3, 1
v_lshl_or_b32 v2, v14, 2, v2
v_lshlrev_b32 v2, 4, v2
s_lshl_b32 s{T0}, s{S_TB}, 2
s_lshl_b32 s{T0+1}, s{TH}, 1
s_add_u32 s{T0}, s{T0}, s{T0+1}
s_lshl_b32 s{T0+1}, s{H}, 6
s_add_u32 s{T0}, s{T0}, s{T0+1}
s_lshl_b32 s{T0+1}, s{T0}, 10
s_lshl_b32 s{T0+2}, s{T0}, 11
s_add_u32 s{T0+3}, s{T0+2}, {WS_PHQ}
s_add_u32 s{T0+2}, s{T0+2}, {WS_KV}
s_mov_b32 s{SL}, {f2u(LOG2E):#x}
s_mov_b32 s{SL+1}, {f2u(0.25*LOG2E):#x}
s_mov_b32 s{SL+2}, 0x0000ffff
s_mov_b32 s{SL+3}, 0x0000ffff
s_nop 4
""")
    QO, KO, PO = T0+1, T0+2, T0+3
    PK = 160
    for tt in range(2):
        p = PK + 24*tt
        c0, c1, c2 = acc(tt,0), acc(tt,1), acc(tt,2)
        for i in range(4):
            a(f"v_cvt_pk_bf16_f32 v{p+4+i}, v{c0+8+2*i}, v{c0+9+2*i}")
        for i in range(8):
            a(f"v_cvt_pk_bf16_f32 v{p+8+i}, v{c2+2*i}, v{c2+1+2*i}")
        a(f"buffer_store_dwordx4 {v(p+4,4)}, v2, {s(S_WS,4)}, s{KO} offen offset:{tt*2048}")
        a(f"s_mov_b64 exec, {s(SL+2,2)}")
        a(f"buffer_store_dwordx4 {v(p+8,4)}, v1, {s(S_WS,4)}, s{KO} offen offset:{tt*2048+1024}")
        a(f"buffer_store_dwordx4 {v(p+12,4)}, v1, {s(S_WS,4)}, s{KO} offen offset:{tt*2048+1024+256}")
        a("s_mov_b64 exec, -1")
        for i in range(8):
            a(f"v_mul_f32 v{c0+i}, s{SL+1}, v{c0+i}")
        for i in range(4):
            a(f"v_cvt_pk_bf16_f32 v{p+i}, v{c0+2*i}, v{c0+1+2*i}")
        a(f"buffer_store_dwordx4 {v(p,4)}, v1, {s(S_WS,4)}, s{QO} offen offset:{tt*1024}")
        for i in range(8):
            a(f"v_cvt_pk_bf16_f32 v{p+16+i}, v{c1+2*i}, v{c1+1+2*i}")
    a("s_nop 1")
    for tt in range(2):
        p = PK + 24*tt
        a(f"v_mfma_f32_32x32x16_bf16 {v(acc(tt,1),16)}, {v(WPHI,4)}, {v(p+20,4)}, 0")
    for tt in range(2):
        p = PK + 24*tt
        a(f"v_mfma_f32_32x32x16_bf16 {v(acc(tt,0),16)}, {v(WPHI,4)}, {v(p+16,4)}, 0")
    a(f"s_mov_b64 exec, {s(SL+2,2)}")
    for tt in range(2):
        for i in range(8):
            a(f"v_mov_b32 v{PK+24*tt+8+i}, 0x3f803f80")
    a("s_mov_b64 exec, -1")
    a(f"""
s_lshl_b32 s{T0}, s{S_WAVE}, 12
v_lshlrev_b32 v3, 6, v12
v_lshl_add_u32 v3, v13, 5, v3
v_add_u32 v3, s{T0}, v3
""")
    a(f"""
v_bfe_u32 v14, v0, 2, 2
v_lshlrev_b32 v4, 6, v14
v_lshl_add_u32 v4, v13, 8, v4
v_and_b32 v14, 1, v0
v_lshl_add_u32 v4, v14, 5, v4
v_bfe_u32 v14, v0, 4, 1
v_lshl_add_u32 v4, v14, 4, v4
v_bfe_u32 v14, v0, 1, 1
v_lshl_add_u32 v4, v14, 3, v4
v_add_u32 v4, s{T0}, v4
""")
    a.emit(rr(softmax16(acc(0,1), 16, SL), softmax16(acc(1,1), 20, SL)))
    for tt in range(2):
        a(f"ds_write_b128 v3, {v(acc(tt,1),4)} offset:{tt*2048}")
        a(f"ds_write_b128 v3, {v(acc(tt,1)+4,4)} offset:{tt*2048+16}")
    a("s_waitcnt lgkmcnt(0)")
    for tt in range(2):
        for sx in range(2):
            for rd in range(2):
                a(f"ds_read_b64_tr_b16 {v(24+8*tt+4*sx+2*rd,2)}, v4 offset:{tt*2048+(16*sx+8*rd)*64}")
    a.emit(rr(softmax16(acc(0,0), 16, SL), softmax16(acc(1,0), 20, SL)))
    for tt in range(2):
        a(f"buffer_store_dwordx4 {v(acc(tt,0),4)}, v1, {s(S_WS,4)}, s{PO} offen offset:{tt*2048}")
        a(f"buffer_store_dwordx4 {v(acc(tt,0)+4,4)}, v1, {s(S_WS,4)}, s{PO} offen offset:{tt*2048+1024}")
    a("s_waitcnt lgkmcnt(0)")
    KVA = 40
    first = True
    for tt in range(2):
        for sx in range(2):
            c = "0" if first else v(KVA,16)
            first = False
            a(f"v_mfma_f32_32x32x16_bf16 {v(KVA,16)}, {v(24+8*tt+4*sx,4)}, {v(PK+24*tt+8+4*sx,4)}, {c}")
    a(f"""
s_lshl_b32 s{T0}, s{HD}, 12
s_add_u32 s{T0}, s{T0}, 16384
v_add_u32 v3, s{T0}, v1
s_nop 15
s_cmp_eq_u32 s{TH}, 0
s_cbranch_scc1 k1_comb0
""")
    for q in range(4):
        a(f"ds_write_b128 v3, {v(KVA+4*q,4)} offset:{q*1024}")
    a(f"""
s_waitcnt lgkmcnt(0)
s_barrier
s_endpgm
k1_comb0:
s_barrier
""")
    for q in range(4):
        a(f"ds_read_b128 {v(16+4*q,4)}, v3 offset:{q*1024}")
    a(f"""
s_lshl_b32 s{T0}, s{H}, 4
s_add_u32 s{T0}, s{T0}, s{S_TB}
s_lshl_b32 s{T0}, s{T0}, 12
s_add_u32 s{T0}, s{T0}, {WS_KVP}
s_waitcnt lgkmcnt(0)
""")
    for i in range(16):
        a(f"v_add_f32 v{KVA+i}, v{KVA+i}, v{16+i}")
    for q in range(4):
        a(f"buffer_store_dwordx4 {v(KVA+4*q,4)}, v1, {s(S_WS,4)}, s{T0} offen offset:{q*1024}")
    a(f"""
{name}_end:
s_endpgm
""")
    return kd(name, 208)

def k2(a):
    name = "attn_kernel"
    prologue(a, name)
    H, RB, QG, KH, CNT, T0, MODE, EM = 51, 52, 53, 54, 55, 56, 62, 64
    QA, QB, KS, VS, IDX, ADDR = 4, 8, [12, 16], [20, 28], 36, 37
    NMA, NMB, SA, SB, OA, OB = 48, 64, 80, 96, 112, 128
    KP = 144
    PQ = 208
    L_FLAG, L_EX, L_KVB = 130*1024, 132*1024, 156*1024
    a(f"""
s_lshr_b32 s{T0}, s{S_TB}, 3
s_lshl_b32 s{H}, s{S_HP}, 1
s_add_u32 s{H}, s{H}, s{T0}
s_and_b32 s{RB}, s{S_TB}, 7
s_and_b32 s{QG}, s{S_WAVE}, 3
s_lshr_b32 s{KH}, s{S_WAVE}, 2
v_lshlrev_b32 v1, 4, v0
s_lshl_b32 s{T0}, s{H}, 6
s_lshl_b32 s{T0+1}, s{RB}, 3
s_add_u32 s{T0}, s{T0}, s{T0+1}
s_lshl_b32 s{T0+1}, s{QG}, 1
s_add_u32 s{T0}, s{T0}, s{T0+1}
s_lshl_b32 s{T0}, s{T0}, 10
s_lshl_b32 s{T0+1}, s{KH}, 16
s_lshl_b32 s{T0+2}, s{QG}, 10
s_add_u32 s{T0+1}, s{T0+1}, s{T0+2}
s_lshl_b32 s{T0+2}, s{H}, 17
s_add_u32 s{T0+2}, s{T0+2}, s{T0+1}
s_add_u32 s{T0+2}, s{T0+2}, {WS_KV}
s_waitcnt lgkmcnt(0)
""")
    srd(a, S_WS, 24, 25, WS_SIZE)
    a(f"buffer_load_dwordx4 {v(QA,4)}, v1, {s(S_WS,4)}, s{T0} offen")
    a(f"buffer_load_dwordx4 {v(QB,4)}, v1, {s(S_WS,4)}, s{T0} offen offset:1024")
    for n in range(16):
        a(f"s_add_u32 m0, s{T0+1}, {n*4096}")
        a(f"s_add_u32 s{T0+3}, s{T0+2}, {n*4096}")
        a(f"buffer_load_dwordx4 v1, {s(S_WS,4)}, s{T0+3} offen lds")
    a(f"""
s_mov_b32 s{MODE}, 0
s_mov_b32 s{EM}, 0x0000ffff
s_mov_b32 s{EM+1}, 0x0000ffff
v_mov_b32 v{IDX}, 0xdddddddd
v_mov_b32 v2, {L_FLAG}
v_mov_b32 v3, 0
ds_write_b32 v2, v3
""")
    for i in range(16):
        a(f"v_mov_b32 v{VS[0]+i}, 0x3f803f80")
    a(f"""
s_waitcnt vmcnt(13) lgkmcnt(0)
s_barrier
ds_read_b128 {v(KS[0],4)}, v1
s_waitcnt lgkmcnt(0)
v_mfma_f32_32x32x16_bf16 {v(SA,16)}, {v(KS[0],4)}, {v(QA,4)}, 0
v_mfma_f32_32x32x16_bf16 {v(SB,16)}, {v(KS[0],4)}, {v(QB,4)}, 0
s_nop 15
""")
    def maxtree(dst, b, init=None):
        o = []
        if init is None:
            o.append(f"v_max3_f32 v{dst}, v{b}, v{b+1}, v{b+2}")
            for i in range(3, 15, 2):
                o.append(f"v_max3_f32 v{dst}, v{dst}, v{b+i}, v{b+i+1}")
            o.append(f"v_max_f32 v{dst}, v{dst}, v{b+15}")
        else:
            for i in range(0, 16, 2):
                o.append(f"v_max3_f32 v{dst}, v{dst}, v{b+i}, v{b+i+1}")
        return o
    a.emit(rr(maxtree(38, SA), maxtree(39, SB)))
    a("k2_setmax:")
    a(f"""
s_nop 1
v_permlane32_swap_b32 v38, v39
s_nop 1
v_max_f32 v38, v38, v39
v_sub_f32 v38, 0, v38
v_mov_b32 v39, v38
s_nop 1
v_permlane32_swap_b32 v38, v39
s_nop 1
""")
    for i in range(16):
        a(f"v_mov_b32 v{NMA+i}, v38")
        a(f"v_mov_b32 v{NMB+i}, v39")
    for i in range(16):
        a(f"v_mov_b32 v{OA+i}, 0")
        a(f"v_mov_b32 v{OB+i}, 0")
    for i in range(8, 16):
        a(f"v_mov_b32 v{SB+i}, 0")
    a(f"""
s_lshl_b32 s{T0}, s{KH}, 16
v_add_u32 v{ADDR}, s{T0}, v1
s_mov_b32 s{CNT}, 0
ds_read_b128 {v(KS[0],4)}, v{ADDR}
s_mov_b64 exec, {s(EM,2)}
ds_read_b128 {v(VS[0],4)}, v{ADDR} offset:1024
ds_read_b128 {v(VS[0]+4,4)}, v{ADDR} offset:1280
ds_read_b128 {v(VS[1]+4,4)}, v{ADDR} offset:1280
s_mov_b64 exec, -1
s_waitcnt lgkmcnt(0)
v_mfma_f32_32x32x16_bf16 {v(SA,16)}, {v(KS[0],4)}, {v(QA,4)}, {v(NMA,16)}
s_nop 15
""")
    a(".p2align 6")
    a("k2_loop:")
    a(f"""
s_cmp_eq_u32 s{CNT}, 2
s_cbranch_scc0 k2_nobar
s_cmp_eq_u32 s{MODE}, 0
s_cbranch_scc0 k2_nobar
s_waitcnt vmcnt(0)
s_barrier
""")
    a(f"""
s_and_b32 s{T0}, s{S_WAVE}, 1
s_lshl_b32 s{T0+1}, s{S_HP}, 1
s_add_u32 s{T0}, s{T0}, s{T0+1}
s_lshl_b32 s{T0+1}, s{T0}, 16
s_lshr_b32 s{T0+2}, s{S_WAVE}, 1
s_lshl_b32 s{T0+3}, s{T0+2}, 10
s_add_u32 s{T0+1}, s{T0+1}, s{T0+3}
s_add_u32 s{T0+1}, s{T0+1}, {WS_KVP}
""")
    for p in range(16):
        a(f"buffer_load_dwordx4 {v(KP+4*p,4)}, v1, {s(S_WS,4)}, s{T0+1} offen")
        a(f"s_add_u32 s{T0+1}, s{T0+1}, 4096")
    a(f"""
s_lshl_b32 s{T0}, s{T0}, 6
s_lshl_b32 s{T0+1}, s{S_TB}, 2
s_add_u32 s{T0}, s{T0}, s{T0+1}
s_and_b32 s{T0+1}, s{S_WAVE}, 2
s_add_u32 s{T0}, s{T0}, s{T0+1}
s_lshl_b32 s{T0}, s{T0}, 11
s_add_u32 s{T0}, s{T0}, {WS_PHQ}
""")
    for q in range(4):
        a(f"buffer_load_dwordx4 {v(PQ+4*q,4)}, v1, {s(S_WS,4)}, s{T0} offen offset:{q*1024}")
    a("k2_nobar:")
    def e(b, i): return f"v_exp_f32 v{b+i}, v{b+i}"
    def sm(o, vv, p): return f"v_smfmac_f32_32x32x32_bf16 {v(o,16)}, {v(vv,4)}, {v(p,8)}, v{IDX}"
    for c in range(2):
        n = c ^ 1
        off = (c + 1) * 2048
        a(f"ds_read_b128 {v(KS[n],4)}, v{ADDR} offset:{off}")
        a(e(SA,0)); a(e(SA,1))
        a(sm(OB, VS[n]+4, SB+8))
        a(f"s_mov_b64 exec, {s(EM,2)}")
        a(f"ds_read_b128 {v(VS[n],4)}, v{ADDR} offset:{off+1024}")
        a(f"ds_read_b128 {v(VS[n]+4,4)}, v{ADDR} offset:{off+1280}")
        a("s_mov_b64 exec, -1")
        a(e(SA,2)); a(e(SA,3))
        a(f"v_mfma_f32_32x32x16_bf16 {v(SB,16)}, {v(KS[c],4)}, {v(QB,4)}, {v(NMB,16)}")
        for i in range(4, 10): a(e(SA,i))
        a(sm(OA, VS[c], SA))
        for i in range(10, 16): a(e(SA,i))
        a(e(SB,0)); a(e(SB,1))
        a(sm(OA, VS[c]+4, SA+8))
        a(e(SB,2)); a(e(SB,3))
        a("s_waitcnt lgkmcnt(0)")
        a(f"v_mfma_f32_32x32x16_bf16 {v(SA,16)}, {v(KS[n],4)}, {v(QA,4)}, {v(NMA,16)}")
        for i in range(4, 10): a(e(SB,i))
        a(sm(OB, VS[c], SB))
        if c == 1:
            a(f"v_add_u32 v{ADDR}, 4096, v{ADDR}")
            a(f"s_add_u32 s{CNT}, s{CNT}, 1")
            a(f"s_cmp_lt_u32 s{CNT}, 16")
        for i in range(10, 16): a(e(SB,i))
    a(f"""
s_cbranch_scc1 k2_loop
s_nop 1
""")
    a(sm(OB, VS[1]+4, SB+8))
    a("s_nop 15")
    def chk(dst, o):
        r = [f"v_add_f32 v{dst}, abs(v{o}), abs(v{o+8})"]
        for i in range(1, 8):
            r.append(f"v_add_f32 v{dst}, v{dst}, abs(v{o+i})")
        return r
    a.emit(rr(chk(38, OA), chk(39, OB)))
    a(f"""
v_add_f32 v38, v38, v39
s_mov_b32 s{T0}, 0x7b800000
v_cmp_nlt_f32 vcc, v38, s{T0}
""".replace(f"v_cmp_nlt_f32 vcc, v38, s{T0}", f"v_cmp_ngt_f32 vcc, s{T0}, v38"))
    a(f"""
s_mul_i32 s{T0}, s{S_WAVE}, 3072
s_add_u32 s{T0}, s{T0}, {L_EX}
v_add_u32 v40, s{T0}, v1
s_xor_b32 s{T0+1}, s{S_WAVE}, 4
s_mul_i32 s{T0+1}, s{T0+1}, 3072
s_add_u32 s{T0+1}, s{T0+1}, {L_EX}
v_add_u32 v41, s{T0+1}, v1
s_cbranch_vccz k2_ok
v_mov_b32 v3, 1
ds_write_b32 v2, v3
k2_ok:
s_cmp_eq_u32 s{KH}, 0
s_cbranch_scc1 k2_send_b
""")
    for q in range(3):
        a(f"ds_write_b128 v40, {v(OA+4*q,4)} offset:{q*1024}")
    a("s_branch k2_sent")
    a("k2_send_b:")
    for q in range(3):
        a(f"ds_write_b128 v40, {v(OB+4*q,4)} offset:{q*1024}")
    a("k2_sent:")
    a("s_waitcnt vmcnt(0)")
    for i in range(4):
        a(f"v_add_f32 v{44+i}, v{KP+i}, v{KP+4+i}")
    for p in range(2, 16):
        for i in range(4):
            a(f"v_add_f32 v{44+i}, v{44+i}, v{KP+4*p+i}")
    a(f"""
v_cvt_pk_bf16_f32 v44, v44, v45
v_cvt_pk_bf16_f32 v45, v46, v47
s_and_b32 s{T0}, s{S_WAVE}, 1
s_lshl_b32 s{T0}, s{T0}, 11
s_add_u32 s{T0}, s{T0}, {L_KVB}
v_lshlrev_b32 v42, 5, v0
v_add_u32 v42, s{T0}, v42
s_lshr_b32 s{T0+1}, s{S_WAVE}, 1
s_lshl_b32 s{T0+1}, s{T0+1}, 3
v_add_u32 v43, s{T0+1}, v42
ds_write_b64 v43, v[44:45]
s_waitcnt lgkmcnt(0)
s_barrier
ds_read_b32 v3, v2
""")
    for q in range(3):
        a(f"ds_read_b128 {v(SA+4*q,4)}, v41 offset:{q*1024}")
    a(f"""
ds_read_b128 {v(KS[0],4)}, v42
ds_read_b128 {v(KS[1],4)}, v42 offset:16
s_waitcnt lgkmcnt(0)
v_readfirstlane_b32 s{T0}, v3
s_cmp_eq_u32 s{MODE}, 0
s_cselect_b32 s{T0}, s{T0}, 0
s_cmp_lg_u32 s{T0}, 0
s_cbranch_scc1 k2_slow
""")
    a(f"s_cmp_eq_u32 s{KH}, 0")
    a("s_cbranch_scc1 k2_keep_a")
    for i in range(9):
        a(f"v_add_f32 v{OA+i}, v{OB+i}, v{SA+i}")
    a("s_branch k2_kept")
    a("k2_keep_a:")
    for i in range(9):
        a(f"v_add_f32 v{OA+i}, v{OA+i}, v{SA+i}")
    a("k2_kept:")
    a(f"v_rcp_f32 v{OA+8}, v{OA+8}")
    a(f"""
s_lshl_b32 s{T0}, s{RB}, 3
s_lshl_b32 s{T0+1}, s{QG}, 1
s_add_u32 s{T0}, s{T0}, s{T0+1}
s_add_u32 s{T0}, s{T0}, s{KH}
s_lshl_b32 s{T0}, s{T0}, 5
s_add_u32 s{T0}, s{T0}, s{H}
s_lshl_b32 s{T0}, s{T0}, 10
s_add_u32 s{T0}, s{T0}, {WS_OF}
""")
    for i in range(8):
        a(f"v_mul_f32 v{OA+i}, v{OA+i}, v{OA+8}")
    for i in range(4):
        a(f"v_cvt_pk_bf16_f32 v{OA+i}, v{OA+2*i}, v{OA+2*i+1}")
    a(f"buffer_store_dwordx4 {v(OA,4)}, v1, {s(S_WS,4)}, s{T0} offen")
    a(f"""
s_cmp_ge_u32 s{S_WAVE}, 4
s_cbranch_scc1 {name}_end
""")
    for tt in range(2):
        d = v(SA if tt == 0 else SB, 16)
        a(f"v_mfma_f32_32x32x16_bf16 {d}, {v(KS[0],4)}, {v(PQ+8*tt,4)}, 0")
        a(f"v_mfma_f32_32x32x16_bf16 {d}, {v(KS[1],4)}, {v(PQ+8*tt+4,4)}, {d}")
    a(f"""
s_and_b32 s{T0}, s{S_WAVE}, 1
s_lshl_b32 s{T0+1}, s{S_HP}, 1
s_add_u32 s{T0}, s{T0}, s{T0+1}
s_lshl_b32 s{T0+1}, s{S_TB}, 2
s_and_b32 s{T0+2}, s{S_WAVE}, 2
s_add_u32 s{T0+1}, s{T0+1}, s{T0+2}
s_add_u32 s{T0+1}, s{T0+1}, 64
s_lshl_b32 s{T0+1}, s{T0+1}, 5
s_add_u32 s{T0}, s{T0}, s{T0+1}
s_lshl_b32 s{T0}, s{T0}, 10
s_add_u32 s{T0}, s{T0}, {WS_OF}
s_add_u32 s{T0+1}, s{T0}, 32768
s_nop 15
""")
    for tt in range(2):
        b = SA if tt == 0 else SB
        a(f"v_add_f32 v{b}, {f2u(1e-6):#x}, v{b}")
        a(f"v_rcp_f32 v{b}, v{b}")
        a("s_nop 0")
        for i in range(8):
            a(f"v_mul_f32 v{b+8+i}, v{b+8+i}, v{b}")
        for i in range(4):
            a(f"v_cvt_pk_bf16_f32 v{b+4+i}, v{b+8+2*i}, v{b+9+2*i}")
        a(f"buffer_store_dwordx4 {v(b+4,4)}, v1, {s(S_WS,4)}, s{T0+tt} offen")
    a("s_endpgm")
    a(f"""
k2_slow:
s_barrier
s_mov_b32 s{MODE}, 1
s_mov_b32 s{CNT}, 0
v_mov_b32 v{ADDR}, v1
v_mov_b32 v38, 0xff800000
v_mov_b32 v39, 0xff800000
k2_mloop:
ds_read_b128 {v(KS[0],4)}, v{ADDR}
s_waitcnt lgkmcnt(0)
v_mfma_f32_32x32x16_bf16 {v(SA,16)}, {v(KS[0],4)}, {v(QA,4)}, 0
v_mfma_f32_32x32x16_bf16 {v(SB,16)}, {v(KS[0],4)}, {v(QB,4)}, 0
s_nop 15
""")
    a.emit(rr(maxtree(38, SA, 1), maxtree(39, SB, 1)))
    a(f"""
v_add_u32 v{ADDR}, 2048, v{ADDR}
s_add_u32 s{CNT}, s{CNT}, 1
s_cmp_lt_u32 s{CNT}, 64
s_cbranch_scc1 k2_mloop
s_branch k2_setmax
{name}_end:
s_endpgm
""")
    return kd(name, 224)

def k3(a):
    name = "outp_kernel"
    prologue(a, name)
    TB64, CB, TT, KQ, T0 = 51, 52, 53, 54, 56
    S_OUT = S_X
    OF = [16, 48]
    ACC = {(0,0): 80, (0,1): 96, (1,0): 112, (1,1): 128}
    WF = [144, 152]
    G = 8
    a(f"""
s_and_b32 s{TB64}, s2, 31
s_lshr_b32 s{CB}, s2, 5
s_and_b32 s{TT}, s{S_WAVE}, 1
s_lshr_b32 s{KQ}, s{S_WAVE}, 1
v_lshlrev_b32 v1, 4, v0
v_lshrrev_b32 v2, 3, v0
v_lshlrev_b32 v3, 10, v2
v_and_b32 v4, 7, v0
v_bfe_u32 v5, v0, 4, 1
v_lshlrev_b32 v5, 2, v5
v_xor_b32 v4, v4, v5
v_lshl_add_u32 v3, v4, 4, v3
""")
    a(f"""
s_lshl_b32 s{T0}, s{S_WAVE}, 16
s_lshl_b32 s{T0+1}, s{CB}, 7
s_add_u32 s{T0}, s{T0}, s{T0+1}
s_lshl_b32 s{T0+1}, s{S_WAVE}, 13
s_lshl_b32 s{T0+2}, s{TB64}, 1
s_add_u32 s{T0+2}, s{T0+2}, s{TT}
s_lshl_b32 s{T0+4}, s{T0+2}, 7
s_add_u32 s{T0+4}, s{T0+4}, {WS_G}
s_lshl_b32 s{T0+2}, s{T0+2}, 5
s_lshl_b32 s{T0+3}, s{KQ}, 3
s_add_u32 s{T0+2}, s{T0+2}, s{T0+3}
s_lshl_b32 s{T0+2}, s{T0+2}, 10
s_add_u32 s{T0+2}, s{T0+2}, {WS_OF}
s_waitcnt lgkmcnt(0)
""")
    srd(a, S_WA, 8, 9, 512*512*2)
    srd(a, S_WB, 16, 17, 512*512*2)
    srd(a, S_WS, 24, 25, WS_SIZE)
    srd(a, S_OUT, 20, 21, 2048*512*2)
    for br in (1, 0):
        srdr = S_WB if br else S_WA
        for j in range(8):
            a(f"s_add_u32 m0, s{T0+1}, {br*65536 + j*1024}")
            a(f"s_add_u32 s{T0+3}, s{T0}, {j*8192}")
            a(f"buffer_load_dwordx4 v3, {s(srdr,4)}, s{T0+3} offen lds")
        a(f"s_add_u32 s{T0+3}, s{T0+2}, {br*64*32*1024}")
        for j in range(8):
            if j == 4: a(f"s_add_u32 s{T0+3}, s{T0+3}, 4096")
            a(f"buffer_load_dwordx4 {v(OF[br]+4*j,4)}, v1, {s(S_WS,4)}, s{T0+3} offen offset:{(j&3)*1024}")
    a(f"""
v_and_b32 v12, 31, v0
v_lshrrev_b32 v13, 5, v0
v_lshlrev_b32 v6, 2, v12
buffer_load_dword v{G}, v6, {s(S_WS,4)}, s{T0+4} offen
""")
    a(f"""
v_bfe_u32 v14, v0, 2, 2
v_lshlrev_b32 v7, 7, v14
v_lshl_add_u32 v7, v13, 9, v7
v_bfe_u32 v14, v0, 3, 1
v_lshl_add_u32 v7, v14, 6, v7
v_and_b32 v14, 1, v0
v_lshl_add_u32 v7, v14, 5, v7
v_bfe_u32 v14, v0, 4, 1
v_lshl_add_u32 v7, v14, 4, v7
v_bfe_u32 v14, v0, 1, 1
v_lshl_add_u32 v7, v14, 3, v7
s_lshl_b32 s{T0}, s{KQ}, 14
v_add_u32 v7, s{T0}, v7
v_xor_b32 v9, 64, v7
v_add_u32 v10, 0x10000, v7
v_add_u32 v11, 0x10000, v9
""")
    def wreads(br, i, st):
        o = []
        for ct in range(2):
            ad = (7, 9)[ct] if br == 0 else (10, 11)[ct]
            for rd in range(2):
                o.append(f"ds_read_b64_tr_b16 {v(WF[st]+4*ct+2*rd,2)}, v{ad} offset:{i*2048+rd*1024}")
        return o
    for br in (1, 0):
        a(f"s_waitcnt vmcnt({17 if br else 0})")
        a("s_barrier")
        a.emit(wreads(br, 0, 0))
        for i in range(8):
            if i < 7:
                a.emit(wreads(br, i+1, (i+1)&1))
                a("s_waitcnt lgkmcnt(4)")
            else:
                a("s_waitcnt lgkmcnt(0)")
            for ct in range(2):
                c = v(ACC[(br,ct)],16)
                a(f"v_mfma_f32_32x32x16_bf16 {c}, {v(WF[i&1]+4*ct,4)}, {v(OF[br]+4*i,4)}, {'0' if i==0 else c}")
    a(f"""
s_lshl_b32 s{T0}, s{KQ}, 14
s_lshl_b32 s{T0+1}, s{TT}, 13
s_add_u32 s{T0}, s{T0}, s{T0+1}
s_add_u32 s{T0}, s{T0}, 0x10000
v_lshlrev_b32 v2, 8, v12
v_add_u32 v2, s{T0}, v2
v_and_b32 v14, 7, v0
v_lshlrev_b32 v15, 2, v13
v_xor_b32 v14, v14, v15
v_lshl_add_u32 v2, v14, 4, v2
v_xor_b32 v3, 16, v2
v_xor_b32 v4, 32, v2
v_xor_b32 v5, 48, v2
s_nop 7
""")
    for ct in range(2):
        A_, B_ = ACC[(0,ct)], ACC[(1,ct)]
        for i in range(16):
            a(f"v_sub_f32 v{A_+i}, v{A_+i}, v{B_+i}")
        for i in range(16):
            a(f"v_fma_f32 v{A_+i}, v{A_+i}, v{G}, v{B_+i}")
        for q in range(4):
            a(f"ds_write_b128 v{2+q}, {v(A_+4*q,4)} offset:{ct*128}")
    a(f"""
v_lshrrev_b32 v14, 3, v0
v_and_b32 v15, 7, v0
v_lshlrev_b32 v6, 1, v15
v_xor_b32 v6, v6, v14
v_lshlrev_b32 v6, 4, v6
v_lshl_add_u32 v6, v14, 8, v6
s_lshl_b32 s{T0}, s{S_WAVE}, 11
s_add_u32 s{T0}, s{T0}, 0x10000
v_add_u32 v6, s{T0}, v6
v_xor_b32 v7, 16, v6
v_lshlrev_b32 v9, 10, v14
v_lshl_add_u32 v9, v15, 4, v9
s_lshl_b32 s{T0}, s{TB64}, 16
s_lshl_b32 s{T0+1}, s{S_WAVE}, 13
s_add_u32 s{T0}, s{T0}, s{T0+1}
s_lshl_b32 s{T0+1}, s{CB}, 7
s_add_u32 s{T0}, s{T0}, s{T0+1}
s_waitcnt lgkmcnt(0)
s_barrier
""")
    for kq in range(4):
        a(f"ds_read_b128 {v(16+8*kq,4)}, v6 offset:{kq*16384}")
        a(f"ds_read_b128 {v(20+8*kq,4)}, v7 offset:{kq*16384}")
    a("s_waitcnt lgkmcnt(0)")
    for kq in range(1, 4):
        for i in range(8):
            a(f"v_add_f32 v{16+i}, v{16+i}, v{16+8*kq+i}")
    for i in range(4):
        a(f"v_cvt_pk_bf16_f32 v{16+i}, v{16+2*i}, v{17+2*i}")
    a(f"""
buffer_store_dwordx4 v[16:19], v9, {s(S_OUT,4)}, s{T0} offen
{name}_end:
s_endpgm
""")
    return kd(name, 160)

HEAD = """; gated mix of softmax attention and hedgehog linear attention -- hand-written gfx950 kernels
; @launch kernel=proj_kernel grid=(256,1,1) block=(512,1,1) lds=163840
; @launch kernel=attn_kernel grid=(256,1,1) block=(512,1,1) lds=163840
; @launch kernel=outp_kernel grid=(256,1,1) block=(512,1,1) lds=131072
.amdgcn_target "amdgcn-amd-amdhsa--gfx950"
"""
if __name__ == "__main__":
    a = Asm()
    kds = [k1(a), k2(a), k3(a)]
    open(sys.argv[1], "w").write(HEAD + a.text() + "".join(kds))
```

```python
import sys, struct
from asmlib import *

NAME = "gated_mix__mha_block__linear_kernel_hedgehog__prompt_kernel"
LOG2E = 1.4426950408889634
def f2u(x): return struct.unpack("<I", struct.pack("<f", x))[0]

WS_QF  = 0
WS_KV  = 2 << 20
WS_PHQ = 6 << 20
WS_KVP = 10 << 20
WS_OF  = 14 << 20
WS_G   = 18 << 20
WS_FL  = (18 << 20) + 8192
WS_SIZE = WS_FL + 24 * 256
WS_ST = 20 << 20

STAMPS = False
MAPMODE = 1
SPIN_MAX = 400000

S_X, S_WA, S_WB, S_WS, S_MISC = 28, 32, 36, 40, 44
S_WAVE, S_HQ, S_TB, S_ROT = 48, 49, 50, 51
S_H, S_RB = 26, 27
T0 = 52
SL = 60
CNT, MODE, EVM, TT, PP = 64, 65, 66, 67, 68

def stamp(a, i):
    if STAMPS:
        a(f"s_memtime s[{70+2*i}:{71+2*i}]")
def stamp_out(a):
    if not STAMPS:
        return
    a("s_mov_b64 exec, -1")
    a("s_memrealtime s[98:99]")
    a("s_waitcnt lgkmcnt(0) vmcnt(0)")
    a("s_memtime s[94:95]")
    a("s_waitcnt lgkmcnt(0)")
    srd(a, 40, 24, 25, WS_ST + (1 << 20))
    a(f"s_lshl_b32 s3, s2, 3")
    a(f"s_add_u32 s3, s3, s{S_WAVE}")
    a(f"s_lshl_b32 s3, s3, 6")
    a(f"s_add_u32 s3, s3, {WS_ST}")
    a("v_mov_b32 v1, 0")
    for i in range(15):
        a(f"v_mov_b32 v2, s{70+2*i}")
        a(f"buffer_store_dword v2, v1, s[40:43], s3 offen offset:{4*i}")
    a("s_waitcnt vmcnt(0)")

def softmax16(b, t):
    o = []
    o.append(f"v_max3_f32 v{t}, v{b}, v{b+1}, v{b+2}")
    for i in range(3, 15, 2):
        o.append(f"v_max3_f32 v{t}, v{t}, v{b+i}, v{b+i+1}")
    o.append(f"v_max_f32 v{t}, v{t}, v{b+15}")
    o.append(f"v_mul_f32 v{t}, {f2u(-LOG2E):#x}, v{t}")
    for i in range(0, 16, 2):
        o.append(f"v_pk_fma_f32 {v(b+i,2)}, {v(b+i,2)}, {s(SL,2)}, {v(t,2)} op_sel_hi:[1,0,0]")
    for i in range(16):
        o.append(f"v_exp_f32 v{b+i}, v{b+i}")
    o.append(f"v_pk_add_f32 {v(t+2,2)}, {v(b,2)}, {v(b+2,2)}")
    for i in range(4, 16, 2):
        o.append(f"v_pk_add_f32 {v(t+2,2)}, {v(t+2,2)}, {v(b+i,2)}")
    o.append(f"v_add_f32 v{t}, v{t+2}, v{t+3}")
    o.append(f"v_rcp_f32 v{t}, v{t}")
    for i in range(0, 16, 2):
        o.append(f"v_pk_mul_f32 {v(b+i,2)}, {v(b+i,2)}, {v(t,2)} op_sel_hi:[1,0]")
    for i in range(8):
        o.append(f"v_cvt_pk_bf16_f32 v{b+i}, v{b+2*i}, v{b+2*i+1}")
    return o

def poll(a, label, soff, target, vz, vt, sleep=4):
    a(f"""
s_mov_b32 s{T0+7}, 0
{label}:
buffer_load_dword v{vt}, v{vz}, {s(S_WS,4)}, s{soff} offen sc1
s_add_u32 s{T0+7}, s{T0+7}, 1
s_waitcnt vmcnt(0)
v_readfirstlane_b32 s{T0+6}, v{vt}
s_cmp_ge_u32 s{T0+6}, {target}
s_cbranch_scc1 {label}_ok
s_sleep {sleep}
s_cmp_lt_u32 s{T0+7}, {SPIN_MAX}
s_cbranch_scc1 {label}
{label}_ok:
""")

def signal(a, soff, vz, vt):
    a(f"""
v_mov_b32 v{vt}, 1
s_mov_b64 exec, 1
buffer_atomic_add v{vt}, v{vz}, {s(S_WS,4)}, s{soff} offen sc1
s_mov_b64 exec, -1
""")

XL = 0
WL = 65536
WSLOT = 24576
L_Q, L_PHK, L_CMB = 128*1024, 136*1024, 144*1024
L_FLAG, L_EX, L_KVX = 130*1024, 132*1024, 136*1024 + 20*1024
SIGCHUNK = 13

QA, QB, KS, VS, IDX, ADDR = 4, 8, [12, 16], [20, 28], 36, 37
NMA, NMB, SA, SB, OA, OB = 48, 64, 80, 96, 112, 128
KT, KACC, PQ = 144, 160, 164
VZ = 3

def gen(a):
    a(f""".text
.globl {NAME}
.p2align 8
.type {NAME},@function
{NAME}:
s_cmp_ge_u32 s2, 256
s_cbranch_scc1 L_end
""")
    if STAMPS:
        for i in range(70, 100): a(f"s_mov_b32 s{i}, 0")
        a("s_memtime s[70:71]")
        a("s_memrealtime s[96:97]")
    a(f"""
s_load_dwordx16 s[4:19], s[0:1], 0
s_load_dwordx4 s[20:23], s[0:1], 64
s_load_dwordx2 s[24:25], s[0:1], 80
v_lshrrev_b32 v1, 6, v0
v_and_b32 v0, 63, v0
v_readfirstlane_b32 s{S_WAVE}, v1
""")
    if MAPMODE == 0:
        a(f"""
s_and_b32 s{S_HQ}, s2, 7
s_lshr_b32 s{S_TB}, s2, 3
s_and_b32 s{S_ROT}, s{S_TB}, 7
""")
    elif MAPMODE == 1:
        a(f"""
s_lshr_b32 s3, s2, 3
s_and_b32 s{S_TB}, s2, 6
s_lshl_b32 s{S_TB}, s{S_TB}, 2
s_and_b32 s{S_ROT}, s3, 7
s_add_u32 s{S_TB}, s{S_TB}, s{S_ROT}
s_lshr_b32 s3, s3, 3
s_and_b32 s{S_HQ}, s2, 1
s_lshl_b32 s{S_HQ}, s{S_HQ}, 2
s_add_u32 s{S_HQ}, s{S_HQ}, s3
s_lshl_b32 s3, s3, 1
s_add_u32 s{S_ROT}, s{S_ROT}, s3
""")
    elif MAPMODE == 2:
        a(f"""
s_lshr_b32 s3, s2, 3
s_and_b32 s{S_TB}, s2, 4
s_lshl_b32 s{S_TB}, s{S_TB}, 2
s_and_b32 s{S_ROT}, s3, 15
s_add_u32 s{S_TB}, s{S_TB}, s{S_ROT}
s_lshr_b32 s3, s3, 4
s_and_b32 s{S_HQ}, s2, 3
s_lshl_b32 s{S_HQ}, s{S_HQ}, 1
s_add_u32 s{S_HQ}, s{S_HQ}, s3
s_lshl_b32 s3, s3, 2
s_add_u32 s{S_ROT}, s{S_ROT}, s3
""")
    a(f"""
s_and_b32 s{S_H}, s2, 7
s_lshl_b32 s{S_H}, s{S_H}, 2
s_lshr_b32 s3, s2, 6
s_add_u32 s{S_H}, s{S_H}, s3
s_bfe_u32 s{S_RB}, s2, 0x30003
v_mov_b32 v{VZ}, 0
s_cmp_ge_u32 s{S_WAVE}, 4
s_cbranch_scc0 L_compute
""")
    LW, XO, WO, XM, WM = 64, 65, 66, 67, 68
    a(f"""
s_sub_u32 s{LW}, s{S_WAVE}, 4
v_lshrrev_b32 v1, 3, v0
v_and_b32 v2, 7, v0
v_lshrrev_b32 v8, 4, v0
v_xor_b32 v9, v2, v8
v_lshlrev_b32 v10, 10, v1
v_lshl_add_u32 v4, v9, 4, v10
v_xor_b32 v5, 64, v4
v_add_u32 v5, {8192-1024}, v5
v_mul_u32_u24 v10, 3072, v1
v_and_b32 v8, 1, v8
v_lshlrev_b32 v8, 2, v8
v_xor_b32 v9, v2, v8
v_lshl_add_u32 v6, v9, 4, v10
v_xor_b32 v7, 32, v6
s_lshl_b32 s{XO}, s{S_TB}, 16
s_lshl_b32 s{T0}, s{LW}, 14
s_add_u32 s{XO}, s{XO}, s{T0}
s_mul_i32 s{WO}, s{LW}, {16*3072}
s_lshl_b32 s{T0}, s{S_HQ}, 7
s_add_u32 s{WO}, s{WO}, s{T0}
s_lshl_b32 s{XM}, s{LW}, 11
s_mul_i32 s{WM}, s{LW}, 6144
s_add_u32 s{WM}, s{WM}, {WL}
s_waitcnt lgkmcnt(0)
""")
    srd(a, S_X, 4, 5, 2048*512*2)
    srd(a, S_WA, 6, 7, 512*1536*2)
    srd(a, S_WB, 12, 13, 512*1536*2)
    srd(a, S_WS, 24, 25, WS_SIZE)
    stamp(a, 1)
    def issue(c):
        W = S_WA if c < 8 else S_WB
        a(f"s_add_u32 s{T0}, s{S_ROT}, {c & 7}")
        a(f"s_and_b32 s{T0}, s{T0}, 7")
        a(f"s_mul_i32 s{T0+1}, s{T0}, {64*3072}")
        a(f"s_add_u32 s{T0+1}, s{T0+1}, s{WO}")
        if c < 8:
            a(f"s_lshl_b32 s{T0}, s{T0}, 7")
            a(f"s_add_u32 m0, s{XM}, {XL + c*8192}")
            a(f"s_add_u32 s{T0}, s{T0}, s{XO}")
            a(f"buffer_load_dwordx4 v4, {s(S_X,4)}, s{T0} offen lds")
            a(f"buffer_load_dwordx4 v5, {s(S_X,4)}, s{T0} offen offset:1024 lds")
        for g in range(2):
            a(f"s_add_u32 m0, s{WM}, {(c & 3)*WSLOT + g*3072}")
            if g: a(f"s_add_u32 s{T0+1}, s{T0+1}, {8*3072}")
            else: a("s_nop 0")
            a(f"buffer_load_dwordx4 v6, {s(W,4)}, s{T0+1} offen lds")
            a(f"buffer_load_dwordx4 v7, {s(W,4)}, s{T0+1} offen offset:1024 lds")
            a(f"buffer_load_dwordx4 v6, {s(W,4)}, s{T0+1} offen offset:2048 lds")
    n = lambda c: 8 if c < 8 else 6
    issued = []
    def wait_for(tag):
        idx = [i for i, (t, _) in enumerate(issued) if t == tag][0]
        cnt = sum(k for _, k in issued[idx+1:])
        a(f"s_waitcnt vmcnt({cnt})")
    for c in range(2):
        issue(c); issued.append((c, n(c)))
    a(f"""
s_or_b32 s{T0}, s2, s{LW}
s_cmp_lg_u32 s{T0}, 0
s_cbranch_scc1 L_noinit
v_lshlrev_b32 v8, 8, v0
s_mov_b32 s{T0}, {WS_FL}
buffer_store_dword v{VZ}, v8, {s(S_WS,4)}, s{T0} offen sc1
s_waitcnt vmcnt(0)
v_mov_b32 v8, 1
s_mov_b64 exec, 1
global_store_dword v{VZ}, v8, s[22:23] sc1
s_mov_b64 exec, -1
s_waitcnt vmcnt(0)
L_noinit:
""")
    for c in range(2, 4):
        issue(c); issued.append((c, n(c)))
    stamp(a, 2)
    for k in range(16):
        wait_for(k)
        if k == 0: stamp(a, 3)
        a("s_barrier")
        if 1 <= k and k + 3 < 16:
            issue(k + 3); issued.append((k + 3, n(k + 3)))
        if k == 12:
            srd(a, S_MISC, 18, 19, 1024)
            a(f"""
s_lshl_b32 s{XO}, s{S_TB}, 6
s_lshl_b32 s{T0+1}, s{S_HQ}, 3
s_add_u32 s{XO}, s{XO}, s{T0+1}
s_lshl_b32 s{T0+1}, s{LW}, 1
s_add_u32 s{XO}, s{XO}, s{T0+1}
s_lshl_b32 s{T0+1}, s{XO}, 10
v_lshlrev_b32 v1, 5, v0
v_and_b32 v2, 0x3ff, v1
buffer_load_dwordx4 v[40:43], v1, {s(S_X,4)}, s{T0+1} offen
buffer_load_dwordx4 v[44:47], v1, {s(S_X,4)}, s{T0+1} offen offset:16
buffer_load_dwordx4 v[48:51], v2, {s(S_MISC,4)}, 0 offen
buffer_load_dwordx4 v[52:55], v2, {s(S_MISC,4)}, 0 offen offset:16
""")
            issued.append(("g", 4))
    stamp(a, 4)
    a("s_waitcnt vmcnt(0)")
    a("v_mov_b32 v24, 0")
    for i in range(8):
        a(f"v_dot2_f32_bf16 v24, v{40+i}, v{48+i}, v24")
    a(f"""
s_nop 3
v_add_f32_dpp v24, v24, v24 quad_perm:[1,0,3,2] row_mask:0xf bank_mask:0xf
s_nop 1
v_add_f32_dpp v24, v24, v24 quad_perm:[2,3,0,1] row_mask:0xf bank_mask:0xf
s_nop 1
v_add_f32_dpp v24, v24, v24 row_half_mirror row_mask:0xf bank_mask:0xf
s_nop 1
v_add_f32_dpp v24, v24, v24 row_mirror row_mask:0xf bank_mask:0xf
v_mov_b32 v25, v24
s_nop 1
v_permlane16_swap_b32 v24, v25
s_nop 1
v_add_f32 v24, v24, v25
v_mul_f32 v24, {f2u(-LOG2E):#x}, v24
v_exp_f32 v24, v24
s_nop 0
v_add_f32 v24, 1.0, v24
v_rcp_f32 v24, v24
v_lshrrev_b32 v1, 5, v0
v_lshlrev_b32 v1, 2, v1
s_lshl_b32 s{T0}, s{XO}, 2
s_add_u32 s{T0}, s{T0}, {WS_G}
s_mov_b32 exec_lo, 1
s_mov_b32 exec_hi, 1
buffer_store_dword v24, v1, {s(S_WS,4)}, s{T0} offen sc1
s_mov_b64 exec, -1
v_lshlrev_b32 v1, 4, v0
s_barrier
""")
    a(f"""
s_lshl_b32 s{XO}, s{S_H}, 17
s_add_u32 s{XO}, s{XO}, {WS_KV}
s_cmp_lg_u32 s{LW}, 0
s_cbranch_scc1 L_ld_barX
s_lshr_b32 s{T0}, s{S_H}, 2
s_lshl_b32 s{T0}, s{T0}, 8
s_add_u32 s{T0}, s{T0}, {WS_FL}
""")
    poll(a, "L_pollF1", T0, 32, VZ, 8)
    stamp(a, 5)
    a(f"""
s_lshl_b32 s{T0}, s{S_H}, 6
s_lshl_b32 s{T0+1}, s{S_RB}, 3
s_add_u32 s{T0}, s{T0}, s{T0+1}
s_lshl_b32 s{T0}, s{T0}, 10
""")
    for g in range(2):
        a(f"s_mov_b32 m0, {L_Q + g*4096}")
        a(f"s_add_u32 s{T0+1}, s{T0}, {g*4096}")
        for i in range(4):
            a(f"buffer_load_dwordx4 v1, {s(S_WS,4)}, s{T0+1} offen offset:{i*1024} sc1 lds")
    for g in range(6):
        a(f"s_mov_b32 m0, {g*4096}")
        a(f"s_add_u32 s{T0+1}, s{XO}, {g*4096}")
        for i in range(4):
            a(f"buffer_load_dwordx4 v1, {s(S_WS,4)}, s{T0+1} offen offset:{i*1024} sc1 lds")
    a(f"""
s_waitcnt vmcnt(0)
L_ld_barX:
s_barrier
""")
    stamp(a, 6)
    a(f"""
s_lshl_b32 s{T0}, s{LW}, 12
s_add_u32 s{T0}, s{T0}, {6*4096}
L_stageB:
s_mov_b32 m0, s{T0}
s_add_u32 s{T0+1}, s{XO}, s{T0}
""")
    for i in range(4):
        a(f"buffer_load_dwordx4 v1, {s(S_WS,4)}, s{T0+1} offen offset:{i*1024} sc1 lds")
    a(f"""
s_add_u32 s{T0}, s{T0}, 16384
s_cmp_lt_u32 s{T0}, {128*1024}
s_cbranch_scc1 L_stageB
s_branch L_attn_init
""")

    XA = [4, 5, 6, 7]; WA0, WA1, WAV = 8, 9, 10
    SETS = [16, 32]
    ACC = [64, 80, 96]
    WPHI = [48, 52]
    RAW = 112
    DX, DW = 69, 59
    a(f"""
L_compute:
s_lshr_b32 s{TT}, s{S_WAVE}, 1
s_and_b32 s{PP}, s{S_WAVE}, 1
v_and_b32 v12, 31, v0
v_lshrrev_b32 v13, 5, v0
v_lshrrev_b32 v14, 3, v12
v_lshlrev_b32 v14, 3, v14
v_and_b32 v15, 3, v12
v_lshl_add_u32 v14, v15, 1, v14
v_lshl_add_u32 v14, v13, 7, v14
s_lshl_b32 s{T0}, s{S_HQ}, 1
s_add_u32 s{T0}, s{T0}, s{PP}
s_lshl_b32 s{T0}, s{T0}, 10
s_waitcnt lgkmcnt(0)
""")
    srd(a, S_MISC, 14, 15, 32*512)
    srd(a, S_WS, 24, 25, WS_SIZE)
    for hd in range(2):
        for jj in range(8):
            a(f"buffer_load_ushort v{RAW+8*hd+jj}, v14, {s(S_MISC,4)}, s{T0} offen offset:{hd*512+(8*(jj//4)+jj%4)*32}")
    a(f"""
s_lshl_b32 s{T0}, s{TT}, 12
v_lshlrev_b32 v1, 7, v12
v_add_u32 v1, s{T0}, v1
v_bfe_u32 v14, v12, 1, 3
v_xor_b32 v14, v14, v13
v_lshl_add_u32 v{XA[0]}, v14, 4, v1
v_xor_b32 v{XA[1]}, 32, v{XA[0]}
v_xor_b32 v{XA[2]}, 64, v{XA[0]}
v_xor_b32 v{XA[3]}, 96, v{XA[0]}
""")
    a(f"""
v_mul_u32_u24 v1, 3072, v13
v_bfe_u32 v14, v0, 2, 2
v_lshl_add_u32 v1, v14, 7, v1
v_bfe_u32 v14, v0, 3, 1
v_xor_b32 v14, s{PP}, v14
v_lshl_add_u32 v1, v14, 6, v1
v_bfe_u32 v14, v0, 4, 1
v_lshl_add_u32 v1, v14, 5, v1
v_and_b32 v15, 3, v0
v_lshl_add_u32 v1, v15, 3, v1
v_add_u32 v{WAV}, {WL+2048}, v1
v_lshl_add_u32 v1, v14, 10, v1
v_add_u32 v{WA0}, {WL}, v1
v_xor_b32 v{WA1}, 32, v{WA0}
""")
    for i in range(48):
        a(f"v_mov_b32 v{ACC[0]+i}, 0")
    a(f"""
v_lshlrev_b32 v1, 4, v0
v_and_b32 v2, 0x33, v0
v_bfe_u32 v14, v0, 2, 1
v_lshl_or_b32 v2, v14, 3, v2
v_bfe_u32 v14, v0, 3, 1
v_lshl_or_b32 v2, v14, 2, v2
v_lshlrev_b32 v2, 4, v2
v_and_b32 v11, 0x2f, v0
v_lshlrev_b32 v11, 4, v11
v_bfe_u32 v14, v0, 4, 1
v_lshl_add_u32 v11, v14, 17, v11
s_mov_b32 s{SL}, {f2u(LOG2E):#x}
s_mov_b32 s{SL+1}, {f2u(0.25*LOG2E):#x}
s_mov_b32 s{CNT}, 0
""")
    def reads(st, step):
        b = SETS[st]
        o = [f"ds_read_b128 {v(b,4)}, v{XA[step]}"]
        for j, ad in enumerate((WA0, WA1, WAV)):
            for rd in range(2):
                o.append(f"ds_read_b64_tr_b16 {v(b+4+4*j+2*rd,2)}, v{ad} offset:{step*6144+rd*512}")
        return o
    def mfmas(st):
        b = SETS[st]
        o = []
        for j in range(3):
            x = v(b,4); w = v(b+4+4*j,4); c = v(ACC[j],16)
            if j < 2: o.append(f"v_mfma_f32_32x32x16_bf16 {c}, {w}, {x}, {c}")
            else:     o.append(f"v_mfma_f32_32x32x16_bf16 {c}, {x}, {w}, {c}")
        return o
    stamp(a, 1)
    a("s_barrier")
    stamp(a, 2)
    a.emit(reads(0, 0))
    a("L_cloop:")
    for step in range(4):
        a("s_waitcnt lgkmcnt(0)")
        if step == 3:
            a(f"""
s_cmp_eq_u32 s{CNT}, {SIGCHUNK-1}
s_cbranch_scc1 L_drain
s_barrier
L_drained:
s_and_b32 s{T0}, s{CNT}, 3
s_cmp_eq_u32 s{T0}, 3
s_mov_b32 s{DW}, {WSLOT}
s_cmov_b32 s{DW}, {(-3*WSLOT) & 0xffffffff:#x}
s_and_b32 s{T0}, s{CNT}, 7
s_cmp_eq_u32 s{T0}, 7
s_mov_b32 s{DX}, 8192
s_cmov_b32 s{DX}, {(-7*8192) & 0xffffffff:#x}
""")
            for r_ in XA: a(f"v_add_u32 v{r_}, s{DX}, v{r_}")
            for r_ in (WA0, WA1, WAV): a(f"v_add_u32 v{r_}, s{DW}, v{r_}")
        m = mfmas(step & 1); r_ = reads((step + 1) & 1, (step + 1) & 3)
        a(m[0]); a.emit(r_[0:3]); a(m[1]); a.emit(r_[3:7]); a(m[2])
    a(f"""
s_add_u32 s{CNT}, s{CNT}, 1
s_and_b32 s{T0}, s{CNT}, 7
s_cmp_lg_u32 s{T0}, 0
s_cbranch_scc1 L_cloop
s_lshl_b32 s{T0}, s{S_HQ}, 1
s_add_u32 s{T0}, s{T0}, s{PP}
s_lshl_b32 s{T0}, s{T0}, 7
s_lshl_b32 s{T0+1}, s{S_TB}, 1
s_add_u32 s{T0}, s{T0}, s{T0+1}
s_add_u32 s{T0}, s{T0}, s{TT}
s_cmp_eq_u32 s{CNT}, 16
s_cbranch_scc1 L_epiB
""")
    stamp(a, 3)
    PK = 128
    a(f"""
s_lshl_b32 s{T0+1}, s{T0}, 10
s_add_u32 s{T0+2}, s{T0+1}, 65536
s_lshl_b32 s{T0+3}, s{T0}, 11
s_add_u32 s{T0+3}, s{T0+3}, {WS_KV}
s_add_u32 s{T0+4}, s{T0+3}, 131072
s_nop 7
""")
    for j in range(2):
        for i in range(4):
            a(f"v_cvt_pk_bf16_f32 v{PK+4*j+i}, v{ACC[j]+8+2*i}, v{ACC[j]+9+2*i}")
        a(f"buffer_store_dwordx4 {v(PK+4*j,4)}, v2, {s(S_WS,4)}, s{T0+3+j} offen sc1")
    for i in range(8):
        a(f"v_cvt_pk_bf16_f32 v{PK+8+i}, v{ACC[2]+2*i}, v{ACC[2]+1+2*i}")
    a(f"buffer_store_dwordx4 {v(PK+8,4)}, v11, {s(S_WS,4)}, s{T0+3} offen offset:1024 sc1")
    a(f"buffer_store_dwordx4 {v(PK+12,4)}, v11, {s(S_WS,4)}, s{T0+3} offen offset:1280 sc1")
    for j in range(2):
        for i in range(8):
            a(f"v_mul_f32 v{ACC[j]+i}, s{SL+1}, v{ACC[j]+i}")
        for i in range(4):
            a(f"v_cvt_pk_bf16_f32 v{PK+16+4*j+i}, v{ACC[j]+2*i}, v{ACC[j]+1+2*i}")
        a(f"buffer_store_dwordx4 {v(PK+16+4*j,4)}, v1, {s(S_WS,4)}, s{T0+1+j} offen sc1")
    a(f"global_load_dword v56, v{VZ}, s[22:23] sc1")
    for i in range(48):
        a(f"v_mov_b32 v{ACC[0]+i}, 0")
    stamp(a, 4)
    a("s_branch L_cloop")
    a(f"""
L_drain:
s_waitcnt vmcnt(0)
s_barrier
s_cmp_lg_u32 s{S_WAVE}, 0
s_cbranch_scc1 L_drained
s_mov_b32 s{T0+7}, 0
L_initpoll:
v_readfirstlane_b32 s{T0+6}, v56
s_cmp_lg_u32 s{T0+6}, 0
s_cbranch_scc1 L_initok
s_sleep 4
global_load_dword v56, v{VZ}, s[22:23] sc1
s_add_u32 s{T0+7}, s{T0+7}, 1
s_waitcnt vmcnt(0)
s_cmp_lt_u32 s{T0+7}, {SPIN_MAX}
s_cbranch_scc1 L_initpoll
L_initok:
s_lshl_b32 s{T0}, s{S_HQ}, 8
s_add_u32 s{T0}, s{T0}, {WS_FL}
""")
    signal(a, T0, VZ, 56)
    a("s_branch L_drained")
    a("L_epiB:")
    stamp(a, 5)
    for hd in range(2):
        for i in range(4):
            a(f"v_lshl_or_b32 v{WPHI[hd]+i}, v{RAW+8*hd+2*i+1}, 16, v{RAW+8*hd+2*i}")
    a(f"""
v_bfe_u32 v14, v0, 2, 1
s_mov_b32 s{T0+1}, 0x80008000
v_mul_lo_u32 v14, v14, s{T0+1}
""")
    for i in range(8):
        a(f"v_xor_b32 v{WPHI[0]+i}, v14, v{WPHI[0]+i}")
    a(f"""
s_lshl_b32 s{T0+3}, s{T0}, 11
s_add_u32 s{T0+3}, s{T0+3}, {WS_PHQ}
s_add_u32 s{T0+4}, s{T0+3}, 131072
""")
    for j in range(2):
        for i in range(8):
            a(f"v_cvt_pk_bf16_f32 v{PK+8*j+i}, v{ACC[j]+2*i}, v{ACC[j]+1+2*i}")
    for i in range(8):
        a(f"v_cvt_pk_bf16_f32 v{PK+16+i}, v{ACC[2]+2*i}, v{ACC[2]+1+2*i}")
    PKB = [64, 80]; PQB = [96, 112]
    for j in range(2):
        a(f"v_mfma_f32_32x32x16_bf16 {v(PKB[j],16)}, {v(WPHI[j],4)}, {v(PK+8*j+4,4)}, 0")
    for j in range(2):
        a(f"v_mfma_f32_32x32x16_bf16 {v(PQB[j],16)}, {v(WPHI[j],4)}, {v(PK+8*j,4)}, 0")
    a(f"""
v_bfe_i32 v14, v0, 4, 1
v_mov_b32 v15, 0x3f803f80
""")
    for i in range(8):
        a(f"v_bfi_b32 v{PK+24+i}, v14, v15, v{PK+16+i}")
        a(f"v_bfi_b32 v{PK+32+i}, v14, v{PK+16+i}, v15")
    a(f"""
s_lshl_b32 s{T0+1}, s{S_WAVE}, 11
s_add_u32 s{T0+1}, s{T0+1}, {L_PHK}
v_lshlrev_b32 v4, 6, v12
v_lshl_add_u32 v4, v13, 5, v4
v_add_u32 v4, s{T0+1}, v4
v_bfe_u32 v14, v0, 2, 2
v_lshlrev_b32 v5, 6, v14
v_lshl_add_u32 v5, v13, 8, v5
v_and_b32 v14, 1, v0
v_lshl_add_u32 v5, v14, 5, v5
v_bfe_u32 v14, v0, 4, 1
v_lshl_add_u32 v5, v14, 4, v5
v_bfe_u32 v14, v0, 1, 1
v_lshl_add_u32 v5, v14, 3, v5
v_add_u32 v5, s{T0+1}, v5
s_waitcnt lgkmcnt(0)
""")
    a.emit(rr(softmax16(PKB[0], 16), softmax16(PKB[1], 20), softmax16(PQB[0], 24), softmax16(PQB[1], 28)))
    AF = 32
    for j in range(2):
        a(f"ds_write_b128 v4, {v(PKB[j],4)}")
        a(f"ds_write_b128 v4, {v(PKB[j]+4,4)} offset:16")
        for sx in range(2):
            for rd in range(2):
                a(f"ds_read_b64_tr_b16 {v(AF+8*j+4*sx+2*rd,2)}, v5 offset:{(16*sx+8*rd)*64}")
    for j in range(2):
        a(f"buffer_store_dwordx4 {v(PQB[j],4)}, v1, {s(S_WS,4)}, s{T0+3+j} offen sc1")
        a(f"buffer_store_dwordx4 {v(PQB[j]+4,4)}, v1, {s(S_WS,4)}, s{T0+3+j} offen offset:1024 sc1")
    KVA = [172, 188]
    a("s_waitcnt lgkmcnt(0)")
    for sx in range(2):
        for j in range(2):
            c = "0" if sx == 0 else v(KVA[j],16)
            a(f"v_mfma_f32_32x32x16_bf16 {v(KVA[j],16)}, {v(AF+8*j+4*sx,4)}, {v(PK+24+8*j+4*sx,4)}, {c}")
    a(f"""
s_lshl_b32 s{T0+1}, s{PP}, 13
s_add_u32 s{T0+1}, s{T0+1}, {L_CMB}
v_add_u32 v4, s{T0+1}, v1
s_lshl_b32 s{T0+1}, s{S_HQ}, 1
s_add_u32 s{T0+1}, s{T0+1}, s{PP}
s_lshl_b32 s{T0+1}, s{T0+1}, 6
s_add_u32 s{T0+1}, s{T0+1}, s{S_TB}
s_lshl_b32 s{T0+1}, s{T0+1}, 12
s_add_u32 s{T0+1}, s{T0+1}, {WS_KVP}
s_add_u32 s{T0+2}, s{T0+1}, 131072
s_nop 7
s_cmp_eq_u32 s{TT}, 0
s_cbranch_scc1 L_comb0
""")
    for q in range(8):
        a(f"ds_write_b128 v4, {v(KVA[0]+4*q,4)} offset:{q*1024}")
    a(f"""
s_waitcnt lgkmcnt(0)
""")
    stamp(a, 6)
    a(f"""
s_barrier
s_branch L_attn_init
L_comb0:
""")
    stamp(a, 6)
    a("s_barrier")
    for q in range(8):
        a(f"ds_read_b128 {v(64+4*q,4)}, v4 offset:{q*1024}")
    a("s_waitcnt lgkmcnt(0)")
    for i in range(0, 32, 2):
        a(f"v_pk_add_f32 {v(KVA[0]+i,2)}, {v(KVA[0]+i,2)}, {v(64+i,2)}")
    for q in range(8):
        a(f"buffer_store_dwordx4 {v(KVA[0]+4*q,4)}, v1, {s(S_WS,4)}, s{T0+1+q//4} offen offset:{(q&3)*1024} sc1")

    QG, KH = TT, PP
    a(f"""
L_attn_init:
s_and_b32 s{QG}, s{S_WAVE}, 3
s_lshr_b32 s{KH}, s{S_WAVE}, 2
s_mov_b32 s{MODE}, 0
s_mov_b32 s{SL+2}, 0x0000ffff
s_mov_b32 s{SL+3}, 0x0000ffff
s_lshl_b32 s{T0}, s{QG}, 11
s_add_u32 s{T0}, s{T0}, {L_Q}
v_add_u32 v38, s{T0}, v1
ds_read_b128 {v(QA,4)}, v38
ds_read_b128 {v(QB,4)}, v38 offset:1024
ds_read_b128 {v(KS[0],4)}, v1
v_mov_b32 v{IDX}, 0xdddddddd
""")
    for i in range(16):
        a(f"v_mov_b32 v{VS[0]+i}, 0x3f803f80")
    for i in range(4):
        a(f"v_mov_b32 v{KACC+i}, 0")
    a(f"""
s_waitcnt lgkmcnt(0)
v_mfma_f32_32x32x16_bf16 {v(SA,16)}, {v(KS[0],4)}, {v(QA,4)}, 0
v_mfma_f32_32x32x16_bf16 {v(SB,16)}, {v(KS[0],4)}, {v(QB,4)}, 0
s_nop 15
""")
    def maxtree(dst, b, init=None):
        o = []
        if init is None:
            o.append(f"v_max3_f32 v{dst}, v{b}, v{b+1}, v{b+2}")
            for i in range(3, 15, 2):
                o.append(f"v_max3_f32 v{dst}, v{dst}, v{b+i}, v{b+i+1}")
            o.append(f"v_max_f32 v{dst}, v{dst}, v{b+15}")
        else:
            for i in range(0, 16, 2):
                o.append(f"v_max3_f32 v{dst}, v{dst}, v{b+i}, v{b+i+1}")
        return o
    a.emit(rr(maxtree(38, SA), maxtree(39, SB)))
    EV0 = (1 << 4) | (1 << 8) | (0x3f << 10)
    EV1 = (1 << 8) | (0x3f << 10)
    a(f"""
s_cmp_eq_u32 s{KH}, 0
s_cselect_b32 s{EVM}, {EV0:#x}, s{KH}
s_cbranch_scc1 L_setmax
s_mov_b32 s{EVM}, {EV1:#x}
s_waitcnt vmcnt(0)
s_barrier
""")
    stamp(a, 7)
    a(f"""
s_cmp_lg_u32 s{S_WAVE}, 4
s_cbranch_scc1 L_setmax
s_lshl_b32 s{T0}, s{S_HQ}, 8
s_add_u32 s{T0}, s{T0}, {WS_FL + 8*256}
""")
    signal(a, T0, VZ, 40)
    a(f"""
L_setmax:
s_setprio 3
s_nop 1
v_permlane32_swap_b32 v38, v39
s_nop 1
v_max_f32 v38, v38, v39
v_sub_f32 v38, 0, v38
v_mov_b32 v39, v38
s_nop 1
v_permlane32_swap_b32 v38, v39
s_lshl_b32 s{T0}, s{KH}, 16
v_add_u32 v{ADDR}, s{T0}, v1
s_mov_b32 s{CNT}, 0
ds_read_b128 {v(KS[0],4)}, v{ADDR}
s_mov_b64 exec, {s(SL+2,2)}
ds_read_b128 {v(VS[0],4)}, v{ADDR} offset:1024
ds_read_b128 {v(VS[0]+4,4)}, v{ADDR} offset:1280
ds_read_b128 {v(VS[1]+4,4)}, v{ADDR} offset:1280
s_mov_b64 exec, -1
""")
    for i in range(16):
        a(f"v_mov_b32 v{NMA+i}, v38")
    a(f"""
s_waitcnt lgkmcnt(0)
s_nop 0
v_mfma_f32_32x32x16_bf16 {v(SA,16)}, {v(KS[0],4)}, {v(QA,4)}, {v(NMA,16)}
""")
    for i in range(16):
        a(f"v_mov_b32 v{NMB+i}, v39")
    for i in range(16):
        a(f"v_mov_b32 v{OA+i}, 0")
        a(f"v_mov_b32 v{OB+i}, 0")
    for i in range(8, 16):
        a(f"v_mov_b32 v{SB+i}, 0")
    stamp(a, 8)
    a(".p2align 6")
    a("L_loop:")
    a(f"""
s_bitcmp1_b32 s{EVM}, s{CNT}
s_cbranch_scc1 L_event
L_loop_body:
""")
    def e(b, i): return f"v_exp_f32 v{b+i}, v{b+i}"
    def sm(o, vv, p): return f"v_smfmac_f32_32x32x32_bf16 {v(o,16)}, {v(vv,4)}, {v(p,8)}, v{IDX}"
    for c in range(2):
        n = c ^ 1
        off = (c + 1) * 2048
        a(f"ds_read_b128 {v(KS[n],4)}, v{ADDR} offset:{off}")
        a(e(SA,0)); a(e(SA,1))
        a(sm(OB, VS[n]+4, SB+8))
        a(f"s_mov_b64 exec, {s(SL+2,2)}")
        a(f"ds_read_b128 {v(VS[n],4)}, v{ADDR} offset:{off+1024}")
        a(f"ds_read_b128 {v(VS[n]+4,4)}, v{ADDR} offset:{off+1280}")
        a("s_mov_b64 exec, -1")
        a(e(SA,2)); a(e(SA,3))
        a(f"v_mfma_f32_32x32x16_bf16 {v(SB,16)}, {v(KS[c],4)}, {v(QB,4)}, {v(NMB,16)}")
        for i in range(4, 10): a(e(SA,i))
        a(sm(OA, VS[c], SA))
        for i in range(10, 16): a(e(SA,i))
        a(e(SB,0)); a(e(SB,1))
        a(sm(OA, VS[c]+4, SA+8))
        a(e(SB,2)); a(e(SB,3))
        a("s_waitcnt lgkmcnt(0)")
        a(f"v_mfma_f32_32x32x16_bf16 {v(SA,16)}, {v(KS[n],4)}, {v(QA,4)}, {v(NMA,16)}")
        for i in range(4, 10): a(e(SB,i))
        a(sm(OB, VS[c], SB))
        if c == 1:
            a(f"v_add_u32 v{ADDR}, 4096, v{ADDR}")
            a(f"s_add_u32 s{CNT}, s{CNT}, 1")
            a(f"s_cmp_lt_u32 s{CNT}, 16")
        for i in range(10, 16): a(e(SB,i))
    a(f"""
s_cbranch_scc1 L_loop
s_nop 1
""")
    a(sm(OB, VS[1]+4, SB+8))
    stamp(a, 9)
    a(f"""
s_setprio 0
s_mul_i32 s{T0}, s{S_WAVE}, 3072
s_add_u32 s{T0}, s{T0}, {L_EX}
v_add_u32 v40, s{T0}, v1
s_xor_b32 s{T0+1}, s{S_WAVE}, 4
s_mul_i32 s{T0+1}, s{T0+1}, 3072
s_add_u32 s{T0+1}, s{T0+1}, {L_EX}
v_add_u32 v41, s{T0+1}, v1
s_lshl_b32 s{T0}, s{S_WAVE}, 2
s_add_u32 s{T0}, s{T0}, {L_FLAG}
v_mov_b32 v2, s{T0}
s_mov_b32 s{T0}, 0x7b800000
s_nop 7
""")
    def chk(dst, o):
        r = [f"v_add_f32 v{dst}, abs(v{o}), abs(v{o+8})"]
        for i in range(1, 8):
            r.append(f"v_add_f32 v{dst}, v{dst}, abs(v{o+i})")
        return r
    a.emit(rr(chk(38, OA), chk(39, OB)))
    a(f"""
v_add_f32 v38, v38, v39
v_cmp_ngt_f32 vcc, s{T0}, v38
s_cmp_eq_u32 s{KH}, 0
s_cbranch_scc1 L_send_b
""")
    for q in range(3):
        a(f"ds_write_b128 v40, {v(OA+4*q,4)} offset:{q*1024}")
    a("s_branch L_sent")
    a("L_send_b:")
    for q in range(3):
        a(f"ds_write_b128 v40, {v(OB+4*q,4)} offset:{q*1024}")
    a(f"""
L_sent:
s_or_b32 s{T0}, vcc_lo, vcc_hi
v_mov_b32 v42, s{T0}
ds_write_b32 v2, v42
v_and_b32 v2, 7, v0
v_lshlrev_b32 v2, 2, v2
v_add_u32 v2, {L_FLAG}, v2
""")
    a(f"""
s_lshl_b32 s{T0}, s{QG}, 10
s_add_u32 s{T0}, s{T0}, {L_KVX}
v_add_u32 v42, s{T0}, v1
s_cmp_eq_u32 s{KH}, 0
s_cbranch_scc1 L_kvx0
ds_write_b128 v42, {v(KACC,4)}
L_kvx0:
s_waitcnt lgkmcnt(0)
s_barrier
""")
    stamp(a, 10)
    a(f"ds_read_b32 v43, v2")
    for q in range(3):
        a(f"ds_read_b128 {v(SA+4*q,4)}, v41 offset:{q*1024}")
    a(f"""
ds_read_b128 v[44:47], v42
s_waitcnt lgkmcnt(0)
v_cmp_ne_u32 vcc, 0, v43
s_cmp_lg_u32 s{MODE}, 0
s_cbranch_scc1 L_fine
s_nop 2
s_cbranch_vccnz L_slow
L_fine:
""")
    TB64, CB = 69, 66
    srd(a, S_WA, 8, 9, 512*512*2)
    srd(a, S_WB, 16, 17, 512*512*2)
    srd(a, S_X, 20, 21, 2048*512*2)
    a(f"""
s_cmp_eq_u32 s{KH}, 0
s_cbranch_scc1 L_keep_a
""")
    for i in range(9):
        a(f"v_add_f32 v{OA+i}, v{OB+i}, v{SA+i}")
    a("s_branch L_kept")
    a("L_keep_a:")
    for i in range(9):
        a(f"v_add_f32 v{OA+i}, v{OA+i}, v{SA+i}")
    a(f"""
v_pk_add_f32 v[44:45], v[44:45], {v(KACC,2)}
v_pk_add_f32 v[46:47], v[46:47], {v(KACC+2,2)}
v_cvt_pk_bf16_f32 v44, v44, v45
v_cvt_pk_bf16_f32 v45, v46, v47
s_lshl_b32 s{T0}, s{QG}, 3
s_add_u32 s{T0}, s{T0}, {L_Q}
v_lshlrev_b32 v43, 5, v0
v_add_u32 v43, s{T0}, v43
ds_write_b64 v43, v[44:45]
L_kept:
v_rcp_f32 v{OA+8}, v{OA+8}
s_lshl_b32 s{T0}, s{S_RB}, 3
s_lshl_b32 s{T0+1}, s{QG}, 1
s_add_u32 s{T0}, s{T0}, s{T0+1}
s_add_u32 s{T0}, s{T0}, s{KH}
s_lshl_b32 s{T0}, s{T0}, 5
s_add_u32 s{T0}, s{T0}, s{S_H}
s_lshl_b32 s{T0}, s{T0}, 10
s_add_u32 s{T0}, s{T0}, {WS_OF}
""")
    for i in range(8):
        a(f"v_mul_f32 v{OA+i}, v{OA+i}, v{OA+8}")
    for i in range(4):
        a(f"v_cvt_pk_bf16_f32 v{OA+i}, v{OA+2*i}, v{OA+2*i+1}")
    a(f"""
buffer_store_dwordx4 {v(OA,4)}, v1, {s(S_WS,4)}, s{T0} offen sc1
s_waitcnt lgkmcnt(0)
s_barrier
v_lshlrev_b32 v43, 5, v0
v_add_u32 v43, {L_Q}, v43
ds_read_b128 {v(KS[0],4)}, v43
ds_read_b128 {v(KS[1],4)}, v43 offset:16
s_add_u32 s{T0}, s{T0}, {64*32*1024}
s_waitcnt lgkmcnt(0) vmcnt(1)
v_mfma_f32_32x32x16_bf16 {v(SA,16)}, {v(KS[0],4)}, {v(PQ,4)}, 0
v_mfma_f32_32x32x16_bf16 {v(SA,16)}, {v(KS[1],4)}, {v(PQ+4,4)}, {v(SA,16)}
""")
    TT3, KQ = 64, 65
    a(f"""
s_and_b32 s{TB64}, s2, 31
s_lshr_b32 s{CB}, s2, 5
s_and_b32 s{TT3}, s{S_WAVE}, 1
s_lshr_b32 s{KQ}, s{S_WAVE}, 1
v_lshrrev_b32 v2, 3, v0
v_lshlrev_b32 v38, 10, v2
v_and_b32 v4, 7, v0
v_bfe_u32 v5, v0, 4, 1
v_lshlrev_b32 v5, 2, v5
v_xor_b32 v4, v4, v5
v_lshl_add_u32 v38, v4, 4, v38
s_nop 4
s_bitcmp1_b32 s{S_H}, 0
s_cbranch_scc1 L_ob_odd
v_add_f32 v{SA+8}, {f2u(1e-6):#x}, v{SA+8}
v_rcp_f32 v{SA+8}, v{SA+8}
s_nop 0
""")
    for i in range(8):
        a(f"v_mul_f32 v{SB+i}, v{SA+i}, v{SA+8}")
    a(f"""
s_branch L_ob_done
L_ob_odd:
v_add_f32 v{SA}, {f2u(1e-6):#x}, v{SA}
v_rcp_f32 v{SA}, v{SA}
s_nop 0
""")
    for i in range(8):
        a(f"v_mul_f32 v{SB+i}, v{SA+8+i}, v{SA}")
    a("L_ob_done:")
    for i in range(4):
        a(f"v_cvt_pk_bf16_f32 v{SB+i}, v{SB+2*i}, v{SB+2*i+1}")
    a(f"buffer_store_dwordx4 {v(SB,4)}, v1, {s(S_WS,4)}, s{T0} offen sc1")
    a(f"""
s_lshl_b32 s{T0}, s{S_WAVE}, 16
s_lshl_b32 s{T0+1}, s{CB}, 7
s_add_u32 s{T0}, s{T0}, s{T0+1}
s_lshl_b32 s{T0+1}, s{S_WAVE}, 13
""")
    def wo_dma(br, lo, hi):
        srdr = S_WB if br else S_WA
        for j in range(lo, hi):
            a(f"s_add_u32 m0, s{T0+1}, {br*65536 + j*1024}")
            a(f"s_add_u32 s{T0+3}, s{T0}, {j*8192}")
            a(f"buffer_load_dwordx4 v38, {s(srdr,4)}, s{T0+3} offen lds")
    wo_dma(1, 0, 4)
    a("s_waitcnt vmcnt(4)")
    a("s_barrier")
    a(f"""
s_cmp_lg_u32 s{S_WAVE}, 0
s_cbranch_scc1 L_nosig3
s_lshl_b32 s{T0+3}, s{S_RB}, 8
s_add_u32 s{T0+3}, s{T0+3}, {WS_FL + 16*256}
""")
    signal(a, T0+3, VZ, 40)
    a("L_nosig3:")
    stamp(a, 11)
    wo_dma(1, 4, 8)
    wo_dma(0, 0, 8)
    OF = [16, 48]
    ACC3 = {(0,0): 80, (0,1): 96, (1,0): 112, (1,1): 128}
    WF = [144, 152]
    G = 8
    a(f"""
v_and_b32 v12, 31, v0
v_lshrrev_b32 v13, 5, v0
v_lshlrev_b32 v6, 2, v12
v_bfe_u32 v14, v0, 2, 2
v_lshlrev_b32 v7, 7, v14
v_lshl_add_u32 v7, v13, 9, v7
v_bfe_u32 v14, v0, 3, 1
v_lshl_add_u32 v7, v14, 6, v7
v_and_b32 v14, 1, v0
v_lshl_add_u32 v7, v14, 5, v7
v_bfe_u32 v14, v0, 4, 1
v_lshl_add_u32 v7, v14, 4, v7
v_bfe_u32 v14, v0, 1, 1
v_lshl_add_u32 v7, v14, 3, v7
s_lshl_b32 s{T0}, s{KQ}, 14
v_add_u32 v7, s{T0}, v7
v_xor_b32 v9, 64, v7
v_add_u32 v10, 0x10000, v7
v_add_u32 v11, 0x10000, v9
s_cmp_lg_u32 s{S_WAVE}, 0
s_cbranch_scc1 L_nopoll3
s_lshr_b32 s{T0}, s{TB64}, 2
s_lshl_b32 s{T0}, s{T0}, 8
s_add_u32 s{T0}, s{T0}, {WS_FL + 16*256}
""")
    poll(a, "L_pollF3", T0, 32, VZ, 40, sleep=8)
    a(f"""
L_nopoll3:
s_waitcnt vmcnt(0)
s_barrier
""")
    stamp(a, 12)
    a(f"""
s_lshl_b32 s{T0+2}, s{TB64}, 1
s_add_u32 s{T0+2}, s{T0+2}, s{TT3}
s_lshl_b32 s{T0+4}, s{T0+2}, 7
s_add_u32 s{T0+4}, s{T0+4}, {WS_G}
s_lshl_b32 s{T0+2}, s{T0+2}, 5
s_lshl_b32 s{T0+3}, s{KQ}, 3
s_add_u32 s{T0+2}, s{T0+2}, s{T0+3}
s_lshl_b32 s{T0+2}, s{T0+2}, 10
s_add_u32 s{T0+2}, s{T0+2}, {WS_OF}
""")
    for br in (1, 0):
        a(f"s_add_u32 s{T0+3}, s{T0+2}, {br*64*32*1024}")
        for j in range(8):
            if j == 4: a(f"s_add_u32 s{T0+3}, s{T0+3}, 4096")
            a(f"buffer_load_dwordx4 {v(OF[br]+4*j,4)}, v1, {s(S_WS,4)}, s{T0+3} offen offset:{(j&3)*1024} sc1")
    a(f"buffer_load_dword v{G}, v6, {s(S_WS,4)}, s{T0+4} offen sc1")
    def wreads(br, i, st):
        o = []
        for ct in range(2):
            ad = (7, 9)[ct] if br == 0 else (10, 11)[ct]
            for rd in range(2):
                o.append(f"ds_read_b64_tr_b16 {v(WF[st]+4*ct+2*rd,2)}, v{ad} offset:{i*2048+rd*1024}")
        return o
    if STAMPS: a("s_waitcnt lgkmcnt(0)")
    seq = [(1, i) for i in range(8)] + [(0, i) for i in range(8)]
    a.emit(wreads(1, 0, 0))
    for k, (br, i) in enumerate(seq):
        if k < 15:
            a.emit(wreads(seq[k+1][0], seq[k+1][1], (k+1)&1))
            a(f"s_waitcnt lgkmcnt(4) vmcnt({16-k})")
        else:
            a("s_waitcnt lgkmcnt(0) vmcnt(0)")
        for ct in range(2):
            c = v(ACC3[(br,ct)],16)
            a(f"v_mfma_f32_32x32x16_bf16 {c}, {v(WF[k&1]+4*ct,4)}, {v(OF[br]+4*i,4)}, {'0' if i==0 else c}")
    a(f"""
s_barrier
s_lshl_b32 s{T0}, s{KQ}, 14
s_lshl_b32 s{T0+1}, s{TT3}, 13
s_add_u32 s{T0}, s{T0}, s{T0+1}
v_lshlrev_b32 v2, 8, v12
v_add_u32 v2, s{T0}, v2
v_and_b32 v14, 7, v0
v_lshlrev_b32 v15, 2, v13
v_xor_b32 v14, v14, v15
v_lshl_add_u32 v2, v14, 4, v2
v_xor_b32 v3, 16, v2
v_xor_b32 v4, 32, v2
v_xor_b32 v5, 48, v2
s_nop 7
""")
    for ct in range(2):
        A_, B_ = ACC3[(0,ct)], ACC3[(1,ct)]
        for i in range(16):
            a(f"v_sub_f32 v{A_+i}, v{A_+i}, v{B_+i}")
        for i in range(16):
            a(f"v_fma_f32 v{A_+i}, v{A_+i}, v{G}, v{B_+i}")
        for q in range(4):
            a(f"ds_write_b128 v{2+q}, {v(A_+4*q,4)} offset:{ct*128}")
    a(f"""
v_lshrrev_b32 v14, 3, v0
v_and_b32 v15, 7, v0
v_lshlrev_b32 v6, 1, v15
v_xor_b32 v6, v6, v14
v_lshlrev_b32 v6, 4, v6
v_lshl_add_u32 v6, v14, 8, v6
s_lshl_b32 s{T0}, s{S_WAVE}, 11
v_add_u32 v6, s{T0}, v6
v_xor_b32 v7, 16, v6
v_lshlrev_b32 v9, 10, v14
v_lshl_add_u32 v9, v15, 4, v9
s_lshl_b32 s{T0}, s{TB64}, 16
s_lshl_b32 s{T0+1}, s{S_WAVE}, 13
s_add_u32 s{T0}, s{T0}, s{T0+1}
s_lshl_b32 s{T0+1}, s{CB}, 7
s_add_u32 s{T0}, s{T0}, s{T0+1}
s_waitcnt lgkmcnt(0)
s_barrier
""")
    for kq in range(4):
        a(f"ds_read_b128 {v(16+8*kq,4)}, v6 offset:{kq*16384}")
        a(f"ds_read_b128 {v(20+8*kq,4)}, v7 offset:{kq*16384}")
    a("s_waitcnt lgkmcnt(0)")
    for kq in range(1, 4):
        for i in range(8):
            a(f"v_add_f32 v{16+i}, v{16+i}, v{16+8*kq+i}")
    for i in range(4):
        a(f"v_cvt_pk_bf16_f32 v{16+i}, v{16+2*i}, v{17+2*i}")
    a(f"buffer_store_dwordx4 v[16:19], v9, {s(S_X,4)}, s{T0} offen")
    stamp_out(a)
    a("L_end:")
    a("s_endpgm")

    KPO = 69
    a(f"""
L_event:
s_cmp_eq_u32 s{CNT}, 4
s_cbranch_scc0 L_ev8
s_waitcnt vmcnt(0)
s_barrier
""")
    stamp(a, 7)
    a(f"""
s_branch L_loop_body
L_ev8:
s_cmp_eq_u32 s{CNT}, 8
s_cbranch_scc0 L_ev10
s_setprio 2
s_branch L_loop_body
L_ev10:
s_cmp_eq_u32 s{CNT}, 10
s_cbranch_scc0 L_ev11
s_lshr_b32 s{T0}, s{S_H}, 2
s_lshl_b32 s{T0}, s{T0}, 8
s_add_u32 s{T0}, s{T0}, {WS_FL + 8*256}
buffer_load_dword v40, v{VZ}, {s(S_WS,4)}, s{T0} offen sc1
s_lshl_b32 s{KPO}, s{S_H}, 17
s_lshl_b32 s{T0+1}, s{KH}, 16
s_add_u32 s{KPO}, s{KPO}, s{T0+1}
s_lshl_b32 s{T0+1}, s{QG}, 10
s_add_u32 s{KPO}, s{KPO}, s{T0+1}
s_add_u32 s{KPO}, s{KPO}, {WS_KVP}
s_branch L_loop_body
L_ev11:
s_waitcnt vmcnt(0)
s_cmp_eq_u32 s{CNT}, 11
s_cbranch_scc0 L_evacc
v_readfirstlane_b32 s{T0+6}, v40
s_cmp_ge_u32 s{T0+6}, 32
s_cbranch_scc1 L_evld
""")
    poll(a, "L_pollF2", T0, 32, VZ, 40)
    a("s_branch L_evld")
    a("L_evacc:")
    for p in range(4):
        a(f"v_pk_add_f32 {v(KACC,2)}, {v(KACC,2)}, {v(KT+4*p,2)}")
        a(f"v_pk_add_f32 {v(KACC+2,2)}, {v(KACC+2,2)}, {v(KT+4*p+2,2)}")
    a(f"""
s_cmp_eq_u32 s{CNT}, 12
s_cbranch_scc0 L_ev14
s_setprio 1
L_ev14:
s_cmp_eq_u32 s{CNT}, 15
s_cbranch_scc1 L_ev15
L_evld:
""")
    for p in range(4):
        a(f"buffer_load_dwordx4 {v(KT+4*p,4)}, v1, {s(S_WS,4)}, s{KPO} offen sc1")
        a(f"s_add_u32 s{KPO}, s{KPO}, 4096")
    a(f"""
s_branch L_loop_body
L_ev15:
s_setprio 0
s_lshl_b32 s{T0}, s{S_H}, 6
s_lshl_b32 s{T0+1}, s{S_RB}, 3
s_add_u32 s{T0}, s{T0}, s{T0+1}
s_lshl_b32 s{T0+1}, s{QG}, 1
s_add_u32 s{T0}, s{T0}, s{T0+1}
s_add_u32 s{T0}, s{T0}, s{KH}
s_lshl_b32 s{T0}, s{T0}, 11
s_add_u32 s{T0}, s{T0}, {WS_PHQ}
buffer_load_dwordx4 {v(PQ,4)}, v1, {s(S_WS,4)}, s{T0} offen sc1
buffer_load_dwordx4 {v(PQ+4,4)}, v1, {s(S_WS,4)}, s{T0} offen offset:1024 sc1
s_branch L_loop_body
""")
    a(f"""
L_slow:
s_barrier
s_mov_b32 s{MODE}, 1
s_mov_b32 s{EVM}, 0
s_mov_b32 s{CNT}, 0
v_mov_b32 v{ADDR}, v1
v_mov_b32 v38, 0xff800000
v_mov_b32 v39, 0xff800000
L_mloop:
ds_read_b128 {v(KS[0],4)}, v{ADDR}
s_waitcnt lgkmcnt(0)
v_mfma_f32_32x32x16_bf16 {v(SA,16)}, {v(KS[0],4)}, {v(QA,4)}, 0
v_mfma_f32_32x32x16_bf16 {v(SB,16)}, {v(KS[0],4)}, {v(QB,4)}, 0
s_nop 15
""")
    a.emit(rr(maxtree(38, SA, 1), maxtree(39, SB, 1)))
    a(f"""
v_add_u32 v{ADDR}, 2048, v{ADDR}
s_add_u32 s{CNT}, s{CNT}, 1
s_cmp_lt_u32 s{CNT}, 64
s_cbranch_scc1 L_mloop
s_branch L_setmax
""")
    return kd(NAME, 208, 102)

HEAD = """; gated mix of softmax attention and hedgehog linear attention -- hand-written gfx950 kernel
; @launch grid=(256,1,1) block=(512,1,1) lds=163840
.amdgcn_target "amdgcn-amd-amdhsa--gfx950"
"""
if __name__ == "__main__":
    for o in sys.argv[2:]:
        if o == "st": STAMPS = True
        if o.startswith("map="): MAPMODE = int(o[4:])
        if o.startswith("sig="): SIGCHUNK = int(o[4:])
    a = Asm()
    k = gen(a)
    open(sys.argv[1], "w").write(HEAD + a.text() + k)
```

```python
import sys, struct
from asmlib import *

NAME = "gated_mix__mha_block__linear_kernel_hedgehog__prompt_kernel"
LOG2E = 1.4426950408889634
def f2u(x): return struct.unpack("<I", struct.pack("<f", x))[0]

WS_QF  = 0
WS_KV  = 2 << 20
WS_PHQ = 6 << 20
WS_KVP = 10 << 20
WS_OF  = 14 << 20
WS_G   = 18 << 20
WS_WOF = (18 << 20) + 65536
WS_FL  = WS_WOF + (1 << 20)
WS_SIZE = WS_FL + 24 * 256
WS_ST = 20 << 20

STAMPS = False
MAPMODE = 1
SPIN_MAX = 400000
SIGC = 4
NOROT = False

S_X, S_WA, S_WB, S_WS, S_MISC = 28, 32, 36, 40, 44
S_WAVE, S_HQ, S_TB, S_ROT = 48, 49, 50, 51
S_H, S_RB = 26, 27
T0 = 52
SL = 60
CNT, MODE, EVM, TT, PP, SX = 64, 65, 66, 67, 68, 69

STMODE = 0
def stamp(a, i, mode=0):
    if STAMPS and mode == STMODE:
        a(f"s_memtime s[{70+2*i}:{71+2*i}]")
def stamp_out(a):
    if not STAMPS:
        return
    a("s_mov_b64 exec, -1")
    a("s_memrealtime s[100:101]")
    a("s_waitcnt lgkmcnt(0) vmcnt(0)")
    a("s_memtime s[96:97]")
    a("s_waitcnt lgkmcnt(0)")
    srd(a, 40, 24, 25, WS_ST + (1 << 20))
    a(f"s_lshl_b32 s3, s2, 3")
    a(f"s_add_u32 s3, s3, s{S_WAVE}")
    a(f"s_lshl_b32 s3, s3, 6")
    a(f"s_add_u32 s3, s3, {WS_ST}")
    a("v_mov_b32 v1, 0")
    for i in range(16):
        a(f"v_mov_b32 v2, s{70+2*i}")
        a(f"buffer_store_dword v2, v1, s[40:43], s3 offen offset:{4*i}")
    a("s_waitcnt vmcnt(0)")

def softmax16(b, t):
    o = []
    o.append(f"v_max3_f32 v{t}, v{b}, v{b+1}, v{b+2}")
    for i in range(3, 15, 2):
        o.append(f"v_max3_f32 v{t}, v{t}, v{b+i}, v{b+i+1}")
    o.append(f"v_max_f32 v{t}, v{t}, v{b+15}")
    o.append(f"v_mul_f32 v{t}, {f2u(-LOG2E):#x}, v{t}")
    for i in range(0, 16, 2):
        o.append(f"v_pk_fma_f32 {v(b+i,2)}, {v(b+i,2)}, {s(SL,2)}, {v(t,2)} op_sel_hi:[1,0,0]")
    for i in range(16):
        o.append(f"v_exp_f32 v{b+i}, v{b+i}")
    o.append(f"v_pk_add_f32 {v(t+2,2)}, {v(b,2)}, {v(b+2,2)}")
    for i in range(4, 16, 2):
        o.append(f"v_pk_add_f32 {v(t+2,2)}, {v(t+2,2)}, {v(b+i,2)}")
    o.append(f"v_add_f32 v{t}, v{t+2}, v{t+3}")
    o.append(f"v_rcp_f32 v{t}, v{t}")
    o.append("s_nop 0")
    for i in range(0, 16, 2):
        o.append(f"v_pk_mul_f32 {v(b+i,2)}, {v(b+i,2)}, {v(t,2)} op_sel_hi:[1,0]")
    for i in range(8):
        o.append(f"v_cvt_pk_bf16_f32 v{b+i}, v{b+2*i}, v{b+2*i+1}")
    return o

def poll(a, label, soff, target, vz, vt, sleep=4):
    a(f"""
s_mov_b32 s{T0+7}, 0
{label}:
buffer_load_dword v{vt}, v{vz}, {s(S_WS,4)}, s{soff} offen sc1
s_add_u32 s{T0+7}, s{T0+7}, 1
s_waitcnt vmcnt(0)
v_readfirstlane_b32 s{T0+6}, v{vt}
s_cmp_ge_u32 s{T0+6}, {target}
s_cbranch_scc1 {label}_ok
s_sleep {sleep}
s_cmp_lt_u32 s{T0+7}, {SPIN_MAX}
s_cbranch_scc1 {label}
{label}_ok:
""")

def tr64_addr(a, dst, tmp, base_sgpr):
    a(f"""
v_bfe_u32 v{tmp}, v0, 2, 2
v_lshlrev_b32 v{dst}, 6, v{tmp}
v_lshrrev_b32 v{tmp}, 5, v0
v_lshl_add_u32 v{dst}, v{tmp}, 8, v{dst}
v_and_b32 v{tmp}, 1, v0
v_lshl_add_u32 v{dst}, v{tmp}, 5, v{dst}
v_bfe_u32 v{tmp}, v0, 4, 1
v_lshl_add_u32 v{dst}, v{tmp}, 4, v{dst}
v_bfe_u32 v{tmp}, v0, 1, 1
v_lshl_add_u32 v{dst}, v{tmp}, 3, v{dst}
v_add_u32 v{dst}, s{base_sgpr}, v{dst}
""")

XL = 0
WL = 65536
WSLOT = 24576
L_WOS, L_PHK, L_CMB = 128*1024, 136*1024, 144*1024
L_KVX, L_CNT, L_FLAG, L_EX = 128*1024, 136*1024, 136*1024 + 64, 137*1024
EXS = 2304

QA, QB, KS, VS, IDX, ADDR = 4, 8, [12, 16], [20, 28], 36, 37
NMA, NMB, SA, SB, OA, OB = 48, 64, 80, 96, 112, 128
POOL, ACCB, KACC, PQ, GV = 144, 208, 240, 244, 252
VZ = 3

def of_offset(a, dst, tmp, qg, kh):
    a(f"""
s_lshl_b32 s{dst}, s{S_RB}, 3
s_lshl_b32 s{tmp}, s{qg}, 1
s_add_u32 s{dst}, s{dst}, s{tmp}
s_add_u32 s{dst}, s{dst}, s{kh}
s_lshl_b32 s{dst}, s{dst}, 5
s_add_u32 s{dst}, s{dst}, s{S_H}
s_lshl_b32 s{dst}, s{dst}, 10
s_add_u32 s{dst}, s{dst}, {WS_OF}
""")

def gen(a):
    a(f""".text
.globl {NAME}
.p2align 8
.type {NAME},@function
{NAME}:
s_cmp_ge_u32 s2, 256
s_cbranch_scc1 L_end
""")
    if STAMPS:
        for i in range(70, 102): a(f"s_mov_b32 s{i}, 0")
        a("s_memtime s[70:71]")
        a("s_memrealtime s[98:99]")
    a(f"""
s_load_dwordx16 s[4:19], s[0:1], 0
s_load_dwordx4 s[20:23], s[0:1], 64
s_load_dwordx2 s[24:25], s[0:1], 80
v_lshrrev_b32 v1, 6, v0
v_and_b32 v0, 63, v0
v_readfirstlane_b32 s{S_WAVE}, v1
""")
    if MAPMODE == 0:
        a(f"""
s_and_b32 s{S_HQ}, s2, 7
s_lshr_b32 s{S_TB}, s2, 3
s_and_b32 s{S_ROT}, s{S_TB}, 7
""")
    elif MAPMODE == 1:
        a(f"""
s_lshr_b32 s3, s2, 3
s_and_b32 s{S_TB}, s2, 6
s_lshl_b32 s{S_TB}, s{S_TB}, 2
s_and_b32 s{S_ROT}, s3, 7
s_add_u32 s{S_TB}, s{S_TB}, s{S_ROT}
s_lshr_b32 s3, s3, 3
s_and_b32 s{S_HQ}, s2, 1
s_lshl_b32 s{S_HQ}, s{S_HQ}, 2
s_add_u32 s{S_HQ}, s{S_HQ}, s3
s_lshl_b32 s3, s3, 1
s_add_u32 s{S_ROT}, s{S_ROT}, s3
""")
    elif MAPMODE == 2:
        a(f"""
s_lshr_b32 s3, s2, 3
s_and_b32 s{S_TB}, s2, 4
s_lshl_b32 s{S_TB}, s{S_TB}, 2
s_and_b32 s{S_ROT}, s3, 15
s_add_u32 s{S_TB}, s{S_TB}, s{S_ROT}
s_lshr_b32 s3, s3, 4
s_and_b32 s{S_HQ}, s2, 3
s_lshl_b32 s{S_HQ}, s{S_HQ}, 1
s_add_u32 s{S_HQ}, s{S_HQ}, s3
s_lshl_b32 s3, s3, 2
s_add_u32 s{S_ROT}, s{S_ROT}, s3
""")
    if NOROT: a(f"s_mov_b32 s{S_ROT}, 0")
    a(f"""
s_and_b32 s{S_H}, s2, 7
s_lshl_b32 s{S_H}, s{S_H}, 2
s_lshr_b32 s3, s2, 6
s_add_u32 s{S_H}, s{S_H}, s3
s_bfe_u32 s{S_RB}, s2, 0x30003
v_mov_b32 v{VZ}, 0
s_cmp_ge_u32 s{S_WAVE}, 4
s_cbranch_scc0 L_compute
""")
    LW, XO, WO, XM, WM = 64, 65, 66, 67, 68
    a(f"""
s_sub_u32 s{LW}, s{S_WAVE}, 4
v_lshrrev_b32 v1, 3, v0
v_and_b32 v2, 7, v0
v_lshrrev_b32 v8, 4, v0
v_xor_b32 v9, v2, v8
v_lshlrev_b32 v10, 10, v1
v_lshl_add_u32 v4, v9, 4, v10
v_xor_b32 v5, 64, v4
v_add_u32 v5, {8192-1024}, v5
v_mul_u32_u24 v10, 3072, v1
v_and_b32 v8, 1, v8
v_lshlrev_b32 v8, 2, v8
v_xor_b32 v9, v2, v8
v_lshl_add_u32 v6, v9, 4, v10
v_xor_b32 v7, 32, v6
s_lshl_b32 s{XO}, s{S_TB}, 16
s_lshl_b32 s{T0}, s{LW}, 14
s_add_u32 s{XO}, s{XO}, s{T0}
s_mul_i32 s{WO}, s{LW}, {16*3072}
s_lshl_b32 s{T0}, s{S_HQ}, 7
s_add_u32 s{WO}, s{WO}, s{T0}
s_lshl_b32 s{XM}, s{LW}, 11
s_mul_i32 s{WM}, s{LW}, 6144
s_add_u32 s{WM}, s{WM}, {WL}
s_waitcnt lgkmcnt(0)
""")
    srd(a, S_X, 4, 5, 2048*512*2)
    srd(a, S_WA, 6, 7, 512*1536*2)
    srd(a, S_WB, 12, 13, 512*1536*2)
    srd(a, S_WS, 24, 25, WS_SIZE)
    stamp(a, 1)
    def issue(c):
        W = S_WA if c < 8 else S_WB
        a(f"s_add_u32 s{T0}, s{S_ROT}, {c & 7}")
        a(f"s_and_b32 s{T0}, s{T0}, 7")
        a(f"s_mul_i32 s{T0+1}, s{T0}, {64*3072}")
        a(f"s_add_u32 s{T0+1}, s{T0+1}, s{WO}")
        if c < 8:
            a(f"s_lshl_b32 s{T0}, s{T0}, 7")
            a(f"s_add_u32 m0, s{XM}, {XL + c*8192}")
            a(f"s_add_u32 s{T0}, s{T0}, s{XO}")
            a(f"buffer_load_dwordx4 v4, {s(S_X,4)}, s{T0} offen lds")
            a(f"buffer_load_dwordx4 v5, {s(S_X,4)}, s{T0} offen offset:1024 lds")
        for g in range(2):
            a(f"s_add_u32 m0, s{WM}, {(c & 3)*WSLOT + g*3072}")
            if g: a(f"s_add_u32 s{T0+1}, s{T0+1}, {8*3072}")
            else: a("s_nop 0")
            a(f"buffer_load_dwordx4 v6, {s(W,4)}, s{T0+1} offen lds")
            a(f"buffer_load_dwordx4 v7, {s(W,4)}, s{T0+1} offen offset:1024 lds")
            a(f"buffer_load_dwordx4 v6, {s(W,4)}, s{T0+1} offen offset:2048 lds")
    n = lambda c: 8 if c < 8 else 6
    issued = []
    def wait_for(tag):
        idx = [i for i, (t, _) in enumerate(issued) if t == tag][0]
        cnt = sum(k for _, k in issued[idx+1:])
        a(f"s_waitcnt vmcnt({cnt})")
    def iss(c):
        issue(c); issued.append((c, n(c)))
    iss(0); iss(1); iss(2)
    stamp(a, 2)
    nxt = 3
    for k in range(16):
        wait_for(k)
        if k == 0: stamp(a, 3)
        a("s_barrier")
        while nxt < 16 and nxt <= k + 3:
            iss(nxt); nxt += 1
        if k == 12:
            srd(a, S_MISC, 18, 19, 1024)
            a(f"""
s_lshl_b32 s{XO}, s{S_TB}, 6
s_lshl_b32 s{T0+1}, s{S_HQ}, 3
s_add_u32 s{XO}, s{XO}, s{T0+1}
s_lshl_b32 s{T0+1}, s{LW}, 1
s_add_u32 s{XO}, s{XO}, s{T0+1}
s_lshl_b32 s{T0+1}, s{XO}, 10
v_lshlrev_b32 v1, 5, v0
v_and_b32 v2, 0x3ff, v1
buffer_load_dwordx4 v[40:43], v1, {s(S_X,4)}, s{T0+1} offen
buffer_load_dwordx4 v[44:47], v1, {s(S_X,4)}, s{T0+1} offen offset:16
buffer_load_dwordx4 v[48:51], v2, {s(S_MISC,4)}, 0 offen
buffer_load_dwordx4 v[52:55], v2, {s(S_MISC,4)}, 0 offen offset:16
""")
            issued.append(("g", 4))
            a(f"""
s_cmp_ge_u32 s2, 128
s_cselect_b32 s{S_WA}, s16, s8
s_cselect_b32 s{S_WA+1}, s17, s9
s_mov_b32 s{S_WA+2}, {512*512*2}
s_mov_b32 s{S_WA+3}, 0x20000
v_lshrrev_b32 v4, 2, v0
v_lshlrev_b32 v4, 10, v4
v_and_b32 v5, 3, v0
v_lshl_add_u32 v56, v5, 4, v4
s_lshl_b32 s{XM}, s{LW}, 10
s_add_u32 s{XM}, s{XM}, {L_WOS}
""")
            tr64_addr(a, 57, 4, XM)
            a(f"""
s_lshl_b32 s{T0}, s2, 2
s_add_u32 s{T0}, s{T0}, s{LW}
s_bfe_u32 s{T0+1}, s{T0}, 0x50004
s_and_b32 s{T0+2}, s{T0}, 15
s_lshl_b32 s{WO}, s{T0+1}, 14
s_lshl_b32 s{T0+3}, s{T0+2}, 6
s_add_u32 s{WO}, s{WO}, s{T0+3}
s_lshr_b32 s{T0+3}, s{T0+2}, 1
s_lshl_b32 s{WM}, s{T0+3}, 17
s_lshr_b32 s{T0+3}, s{T0}, 9
s_lshl_b32 s{T0+3}, s{T0+3}, 16
s_add_u32 s{WM}, s{WM}, s{T0+3}
s_lshl_b32 s{T0+3}, s{T0+1}, 11
s_add_u32 s{WM}, s{WM}, s{T0+3}
s_and_b32 s{T0+3}, s{T0+2}, 1
s_lshl_b32 s{T0+3}, s{T0+3}, 10
s_add_u32 s{WM}, s{WM}, s{T0+3}
s_add_u32 s{WM}, s{WM}, {WS_WOF}
""")
    stamp(a, 4)
    a(f"""
s_mov_b32 m0, s{XM}
s_nop 0
buffer_load_dwordx4 v56, {s(S_WA,4)}, s{WO} offen lds
s_barrier
""")
    a("s_waitcnt vmcnt(1)")
    a("v_mov_b32 v24, 0")
    for i in range(8):
        a(f"v_dot2_f32_bf16 v24, v{40+i}, v{48+i}, v24")
    a(f"""
s_lshr_b32 s{T0}, s{S_H}, 2
s_lshl_b32 s{T0}, s{T0}, 8
s_add_u32 s{T0}, s{T0}, {WS_FL}
buffer_load_dword v58, v{VZ}, {s(S_WS,4)}, s{T0} offen sc1
v_add_f32_dpp v24, v24, v24 quad_perm:[1,0,3,2] row_mask:0xf bank_mask:0xf
s_nop 1
v_add_f32_dpp v24, v24, v24 quad_perm:[2,3,0,1] row_mask:0xf bank_mask:0xf
s_nop 1
v_add_f32_dpp v24, v24, v24 row_half_mirror row_mask:0xf bank_mask:0xf
s_nop 1
v_add_f32_dpp v24, v24, v24 row_mirror row_mask:0xf bank_mask:0xf
v_mov_b32 v25, v24
s_nop 1
v_permlane16_swap_b32 v24, v25
s_nop 1
v_add_f32 v24, v24, v25
v_mul_f32 v24, {f2u(-LOG2E):#x}, v24
v_exp_f32 v24, v24
v_lshrrev_b32 v2, 5, v0
v_add_f32 v24, 1.0, v24
v_rcp_f32 v59, v24
v_lshlrev_b32 v2, 2, v2
v_lshlrev_b32 v1, 4, v0
s_lshl_b32 s{XO}, s{XO}, 2
s_add_u32 s{XO}, s{XO}, {WS_G}
s_waitcnt vmcnt(0)
ds_read_b64_tr_b16 v[40:41], v57
ds_read_b64_tr_b16 v[42:43], v57 offset:512
v_readfirstlane_b32 s{T0+6}, v58
s_cmp_ge_u32 s{T0+6}, 32
s_cbranch_scc1 L_pollF1_ok
""")
    poll(a, "L_pollF1", T0, 32, VZ, 58)
    stamp(a, 5)
    a(f"""
s_lshl_b32 s{T0}, s{S_H}, 6
s_lshl_b32 s{T0+1}, s{S_RB}, 3
s_add_u32 s{T0}, s{T0}, s{T0+1}
s_lshl_b32 s{T0+1}, s{LW}, 1
s_add_u32 s{T0}, s{T0}, s{T0+1}
s_lshl_b32 s{T0}, s{T0}, 10
s_lshl_b32 s{T0+1}, s{S_H}, 17
s_add_u32 s{T0+1}, s{T0+1}, {WS_KV}
buffer_load_dwordx4 {v(QA,4)}, v1, {s(S_WS,4)}, s{T0} offen sc1
buffer_load_dwordx4 {v(QB,4)}, v1, {s(S_WS,4)}, s{T0} offen offset:1024 sc1
buffer_load_dwordx4 {v(KS[0],4)}, v1, {s(S_WS,4)}, s{T0+1} offen sc1
s_mul_i32 s{T0+2}, s{LW}, 6144
s_mov_b32 m0, s{T0+2}
s_add_u32 s{T0+1}, s{T0+1}, s{T0+2}
""")
    for i in range(3):
        a(f"buffer_load_dwordx4 v1, {s(S_WS,4)}, s{T0+1} offen offset:{i*1024} sc1 lds")
    a(f"s_add_u32 m0, s{T0+2}, 3072")
    a(f"s_add_u32 s{T0+1}, s{T0+1}, 3072")
    for i in range(3):
        a(f"buffer_load_dwordx4 v1, {s(S_WS,4)}, s{T0+1} offen offset:{i*1024} sc1 lds")
    a(f"""
s_waitcnt lgkmcnt(0)
buffer_store_dwordx4 v[40:43], v1, {s(S_WS,4)}, s{WM} offen sc1
s_mov_b32 exec_lo, 1
s_mov_b32 exec_hi, 1
buffer_store_dword v59, v2, {s(S_WS,4)}, s{XO} offen sc1
s_mov_b64 exec, -1
s_mov_b32 s{TT}, s{LW}
s_mov_b32 s{PP}, 0
v_mov_b32 v44, -1
v_mov_b32 v45, -1
v_mov_b32 v46, -1
v_mov_b32 v47, -1
""")
    of_offset(a, SX, T0, TT, PP)
    a(f"""
s_add_u32 s{T0}, s{SX}, {64*32*1024}
buffer_store_dwordx4 v[44:47], v1, {s(S_WS,4)}, s{SX} offen sc1
buffer_store_dwordx4 v[44:47], v1, {s(S_WS,4)}, s{T0} offen sc1
s_waitcnt vmcnt(10)
s_branch L_attn_init
""")

    XA = [4, 5, 6, 7]; WAD = [[8, 9, 10], [56, 57, 58]]
    BUF = [112, 176]
    ACC = [64, 80, 96]
    WPHI = [48, 52]
    RAW = 240
    PASS = 64
    a(f"""
L_compute:
s_lshr_b32 s{TT}, s{S_WAVE}, 1
s_and_b32 s{PP}, s{S_WAVE}, 1
v_and_b32 v12, 31, v0
v_lshrrev_b32 v13, 5, v0
v_lshrrev_b32 v14, 3, v12
v_lshlrev_b32 v14, 3, v14
v_and_b32 v15, 3, v12
v_lshl_add_u32 v14, v15, 1, v14
v_lshl_add_u32 v14, v13, 7, v14
s_lshl_b32 s{T0}, s{S_HQ}, 1
s_add_u32 s{T0}, s{T0}, s{PP}
s_lshl_b32 s{T0}, s{T0}, 10
s_waitcnt lgkmcnt(0)
""")
    srd(a, S_MISC, 14, 15, 32*512)
    srd(a, S_WS, 24, 25, WS_SIZE)
    a(f"""
s_or_b32 s{T0+1}, s2, s{S_WAVE}
s_cmp_lg_u32 s{T0+1}, 0
s_cbranch_scc1 L_noinit
v_lshlrev_b32 v8, 8, v0
s_mov_b32 s{T0+1}, {WS_FL}
buffer_store_dword v{VZ}, v8, {s(S_WS,4)}, s{T0+1} offen sc1
s_waitcnt vmcnt(0)
v_mov_b32 v8, 1
s_mov_b64 exec, 1
global_store_dword v{VZ}, v8, s[22:23] sc1
s_mov_b64 exec, -1
L_noinit:
""")
    for hd in range(2):
        for jj in range(8):
            a(f"buffer_load_ushort v{RAW+8*hd+jj}, v14, {s(S_MISC,4)}, s{T0} offen offset:{hd*512+(8*(jj//4)+jj%4)*32}")
    a(f"""
s_lshl_b32 s{T0}, s{TT}, 12
v_lshlrev_b32 v1, 7, v12
v_add_u32 v1, s{T0}, v1
v_bfe_u32 v14, v12, 1, 3
v_xor_b32 v14, v14, v13
v_lshl_add_u32 v{XA[0]}, v14, 4, v1
v_xor_b32 v{XA[1]}, 32, v{XA[0]}
v_xor_b32 v{XA[2]}, 64, v{XA[0]}
v_xor_b32 v{XA[3]}, 96, v{XA[0]}
v_mul_u32_u24 v1, 3072, v13
v_bfe_u32 v14, v0, 2, 2
v_lshl_add_u32 v1, v14, 7, v1
v_bfe_u32 v14, v0, 3, 1
v_xor_b32 v14, s{PP}, v14
v_lshl_add_u32 v1, v14, 6, v1
v_bfe_u32 v14, v0, 4, 1
v_lshl_add_u32 v1, v14, 5, v1
v_and_b32 v15, 3, v0
v_lshl_add_u32 v1, v15, 3, v1
v_add_u32 v10, {WL+2048}, v1
v_lshl_add_u32 v1, v14, 10, v1
v_add_u32 v8, {WL}, v1
v_xor_b32 v9, 32, v8
v_add_u32 v56, {2*WSLOT}, v8
v_add_u32 v57, {2*WSLOT}, v9
v_add_u32 v58, {2*WSLOT}, v10
v_lshlrev_b32 v1, 4, v0
v_and_b32 v2, 0x33, v0
v_bfe_u32 v14, v0, 2, 1
v_lshl_or_b32 v2, v14, 3, v2
v_bfe_u32 v14, v0, 3, 1
v_lshl_or_b32 v2, v14, 2, v2
v_lshlrev_b32 v2, 4, v2
v_and_b32 v11, 0x2f, v0
v_lshlrev_b32 v11, 4, v11
v_bfe_u32 v14, v0, 4, 1
v_lshl_add_u32 v11, v14, 17, v11
s_mov_b32 s{SL}, {f2u(LOG2E):#x}
s_mov_b32 s{SL+1}, {f2u(0.25*LOG2E):#x}
s_mov_b32 s{PASS}, 0
s_lshl_b32 s{SX}, s{S_HQ}, 1
s_add_u32 s{SX}, s{SX}, s{PP}
s_lshl_b32 s{SX}, s{SX}, 7
s_lshl_b32 s{T0+1}, s{S_TB}, 1
s_add_u32 s{SX}, s{SX}, s{T0+1}
s_add_u32 s{SX}, s{SX}, s{TT}
s_lshl_b32 s{T0+1}, s{S_WAVE}, 11
s_add_u32 s{T0+1}, s{T0+1}, {L_PHK}
v_lshlrev_b32 v60, 6, v12
v_lshl_add_u32 v60, v13, 5, v60
v_add_u32 v60, s{T0+1}, v60
""")
    tr64_addr(a, 61, 14, T0+1)
    a(f"""
v_bfe_i32 v62, v0, 4, 1
v_mov_b32 v63, 0x3f803f80
s_waitcnt vmcnt(0)
""")
    for hd in range(2):
        for i in range(4):
            a(f"v_lshl_or_b32 v{WPHI[hd]+i}, v{RAW+8*hd+2*i+1}, 16, v{RAW+8*hd+2*i}")
    a(f"""
v_bfe_u32 v14, v0, 2, 1
s_mov_b32 s{T0+1}, 0x80008000
v_mul_lo_u32 v14, v14, s{T0+1}
""")
    for i in range(8):
        a(f"v_xor_b32 v{WPHI[0]+i}, v14, v{WPHI[0]+i}")
    def reads(c):
        b0 = BUF[c & 1]
        o = []
        for step in range(4):
            b = b0 + 16*step
            o.append(f"ds_read_b128 {v(b,4)}, v{XA[step]} offset:{c*8192}")
            for j in range(3):
                ad = WAD[(c >> 1) & 1][j]
                for rd in range(2):
                    o.append(f"ds_read_b64_tr_b16 {v(b+4+4*j+2*rd,2)}, v{ad} offset:{(c&1)*WSLOT+step*6144+rd*512}")
        return o
    def mfmas(c):
        o = []
        for step in range(4):
            b = BUF[c & 1] + 16*step
            for j in range(3):
                x = v(b,4); w = v(b+4+4*j,4); d = v(ACC[j],16)
                cc = "0" if (c == 0 and step == 0) else d
                if j < 2: o.append(f"v_mfma_f32_32x32x16_bf16 {d}, {w}, {x}, {cc}")
                else:     o.append(f"v_mfma_f32_32x32x16_bf16 {d}, {x}, {w}, {cc}")
        return o
    stamp(a, 1)
    a("L_pass:")
    a("s_barrier")
    a.emit(reads(0))
    for c in range(7):
        a("s_waitcnt lgkmcnt(0)")
        if c == SIGC:
            a(f"s_cmp_lg_u32 s{PASS}, 0")
            a("s_cbranch_scc1 L_drain")
        a("s_barrier")
        if c == SIGC: a("L_drained:")
        m = mfmas(c); r_ = reads(c + 1)
        for i in range(12):
            a(m[i]); a.emit(r_[4*i:4*i+4])
    a(f"""
s_waitcnt lgkmcnt(0)
s_cmp_eq_u32 s{PASS}, 0
s_cbranch_scc1 L_nobar16
s_barrier
L_nobar16:
""")
    a.emit(mfmas(7))
    a(f"s_cbranch_scc0 L_epiB")
    stamp(a, 3)
    PK = 16
    a(f"""
s_mov_b32 s{PASS}, 1
s_lshl_b32 s{T0+1}, s{SX}, 10
s_add_u32 s{T0+2}, s{T0+1}, 65536
s_lshl_b32 s{T0+3}, s{SX}, 11
s_add_u32 s{T0+3}, s{T0+3}, {WS_KV}
s_add_u32 s{T0+4}, s{T0+3}, 131072
s_nop 7
""")
    for j in range(2):
        for i in range(4):
            a(f"v_cvt_pk_bf16_f32 v{PK+4*j+i}, v{ACC[j]+8+2*i}, v{ACC[j]+9+2*i}")
    for i in range(8):
        a(f"v_cvt_pk_bf16_f32 v{PK+8+i}, v{ACC[2]+2*i}, v{ACC[2]+1+2*i}")
    for j in range(2):
        a(f"buffer_store_dwordx4 {v(PK+4*j,4)}, v2, {s(S_WS,4)}, s{T0+3+j} offen sc1")
    for j in range(2):
        for i in range(0, 8, 2):
            a(f"v_pk_mul_f32 {v(ACC[j]+i,2)}, {v(ACC[j]+i,2)}, {s(SL,2)} op_sel:[0,1] op_sel_hi:[1,1]")
        for i in range(4):
            a(f"v_cvt_pk_bf16_f32 v{PK+16+4*j+i}, v{ACC[j]+2*i}, v{ACC[j]+1+2*i}")
    a(f"buffer_store_dwordx4 {v(PK+8,4)}, v11, {s(S_WS,4)}, s{T0+3} offen offset:1024 sc1")
    a(f"buffer_store_dwordx4 {v(PK+12,4)}, v11, {s(S_WS,4)}, s{T0+3} offen offset:1280 sc1")
    for j in range(2):
        a(f"buffer_store_dwordx4 {v(PK+16+4*j,4)}, v1, {s(S_WS,4)}, s{T0+1+j} offen sc1")
    a(f"global_load_dword v59, v{VZ}, s[22:23] sc1")
    stamp(a, 4)
    a("s_branch L_pass")
    a(f"""
L_drain:
s_waitcnt vmcnt(0)
s_barrier
s_cmp_lg_u32 s{S_WAVE}, 0
s_cbranch_scc1 L_drained
s_mov_b32 s{T0+7}, 0
L_initpoll:
v_readfirstlane_b32 s{T0+6}, v59
s_cmp_lg_u32 s{T0+6}, 0
s_cbranch_scc1 L_initok
s_sleep 4
global_load_dword v59, v{VZ}, s[22:23] sc1
s_add_u32 s{T0+7}, s{T0+7}, 1
s_waitcnt vmcnt(0)
s_cmp_lt_u32 s{T0+7}, {SPIN_MAX}
s_cbranch_scc1 L_initpoll
L_initok:
s_lshl_b32 s{T0}, s{S_HQ}, 8
s_add_u32 s{T0}, s{T0}, {WS_FL}
v_mov_b32 v59, 1
s_mov_b64 exec, 1
buffer_atomic_add v59, v{VZ}, {s(S_WS,4)}, s{T0} offen sc1
s_mov_b64 exec, -1
""")
    stamp(a, 2)
    a("s_branch L_drained")
    a("L_epiB:")
    stamp(a, 5)
    PB = 112
    a(f"""
s_lshl_b32 s{T0+3}, s{SX}, 11
s_add_u32 s{T0+3}, s{T0+3}, {WS_PHQ}
s_add_u32 s{T0+4}, s{T0+3}, 131072
s_lshl_b32 s{T0+1}, s{PP}, 13
s_add_u32 s{T0+1}, s{T0+1}, {L_CMB}
v_add_u32 v4, s{T0+1}, v1
s_lshl_b32 s{T0+1}, s{S_HQ}, 1
s_add_u32 s{T0+1}, s{T0+1}, s{PP}
s_lshl_b32 s{T0+1}, s{T0+1}, 6
s_add_u32 s{T0+1}, s{T0+1}, s{S_TB}
s_lshl_b32 s{T0+1}, s{T0+1}, 12
s_add_u32 s{T0+1}, s{T0+1}, {WS_KVP}
s_add_u32 s{T0+2}, s{T0+1}, 131072
""")
    PKB = [160, 176]; PQB = [192, 208]
    for j in range(2):
        for i in range(4, 8):
            a(f"v_cvt_pk_bf16_f32 v{PB+8*j+i}, v{ACC[j]+2*i}, v{ACC[j]+1+2*i}")
    for j in range(2):
        for i in range(4):
            a(f"v_cvt_pk_bf16_f32 v{PB+8*j+i}, v{ACC[j]+2*i}, v{ACC[j]+1+2*i}")
        a(f"v_mfma_f32_32x32x16_bf16 {v(PKB[j],16)}, {v(WPHI[j],4)}, {v(PB+8*j+4,4)}, 0")
    for j in range(2):
        for i in range(4*j, 4*j+4):
            a(f"v_cvt_pk_bf16_f32 v{PB+16+i}, v{ACC[2]+2*i}, v{ACC[2]+1+2*i}")
        a(f"v_mfma_f32_32x32x16_bf16 {v(PQB[j],16)}, {v(WPHI[j],4)}, {v(PB+8*j,4)}, 0")
    for i in range(8):
        a(f"v_bfi_b32 v{PB+24+i}, v62, v63, v{PB+16+i}")
        a(f"v_bfi_b32 v{PB+32+i}, v62, v{PB+16+i}, v63")
    AF = 32
    KVA = [64, 80]
    a.emit(rr(softmax16(PKB[0], 16), softmax16(PKB[1], 20)))
    for j in range(2):
        a(f"ds_write_b128 v60, {v(PKB[j],4)}")
        a(f"ds_write_b128 v60, {v(PKB[j]+4,4)} offset:16")
        for sx in range(2):
            for rd in range(2):
                a(f"ds_read_b64_tr_b16 {v(AF+8*j+4*sx+2*rd,2)}, v61 offset:{(16*sx+8*rd)*64}")
    sq = rr(softmax16(PQB[0], 24), softmax16(PQB[1], 28))
    kvm = []
    for sx in range(2):
        for j in range(2):
            c = "0" if sx == 0 else v(KVA[j],16)
            kvm.append(f"v_mfma_f32_32x32x16_bf16 {v(KVA[j],16)}, {v(AF+8*j+4*sx,4)}, {v(PB+24+8*j+4*sx,4)}, {c}")
    a.emit(sq[:40])
    a("s_waitcnt lgkmcnt(0)")
    for i in range(4):
        a(kvm[i]); a.emit(sq[40+5*i:45+5*i])
    a.emit(sq[60:80])
    a(f"s_cmp_eq_u32 s{TT}, 0")
    a("s_cbranch_scc1 L_nosend")
    for q in range(8):
        a(f"ds_write_b128 v4, {v(KVA[0]+4*q,4)} offset:{q*1024}")
    a("L_nosend:")
    a.emit(sq[80:])
    a("s_waitcnt lgkmcnt(0)")
    stamp(a, 6)
    a("s_barrier")
    a(f"s_cbranch_scc0 L_norecv")
    for q in range(8):
        a(f"ds_read_b128 {v(112+4*q,4)}, v4 offset:{q*1024}")
    a("L_norecv:")
    QG, KH = TT, PP
    a(f"""
s_setprio 3
s_lshl_b32 s{T0}, s{S_H}, 6
s_lshl_b32 s{T0+5}, s{S_RB}, 3
s_add_u32 s{T0}, s{T0}, s{T0+5}
s_lshl_b32 s{T0+5}, s{S_WAVE}, 1
s_add_u32 s{T0}, s{T0}, s{T0+5}
s_lshl_b32 s{T0}, s{T0}, 10
buffer_load_dwordx4 v[40:43], v1, {s(S_WS,4)}, s{T0} offen sc1
buffer_load_dwordx4 {v(QB,4)}, v1, {s(S_WS,4)}, s{T0} offen offset:1024 sc1
""")
    for j in range(2):
        a(f"buffer_store_dwordx4 {v(PQB[j],4)}, v1, {s(S_WS,4)}, s{T0+3+j} offen sc1")
        a(f"buffer_store_dwordx4 {v(PQB[j]+4,4)}, v1, {s(S_WS,4)}, s{T0+3+j} offen offset:1024 sc1")
    a(f"s_cmp_lg_u32 s{TT}, 0")
    a("s_cbranch_scc1 L_nocomb")
    a("s_waitcnt lgkmcnt(0)")
    for i in range(0, 32, 2):
        a(f"v_pk_add_f32 {v(KVA[0]+i,2)}, {v(KVA[0]+i,2)}, {v(112+i,2)}")
    for q in range(8):
        a(f"buffer_store_dwordx4 {v(KVA[0]+4*q,4)}, v1, {s(S_WS,4)}, s{T0+1+q//4} offen offset:{(q&3)*1024} sc1")
    a(f"""
L_nocomb:
s_mov_b32 s{QG}, s{S_WAVE}
s_mov_b32 s{KH}, 1
v_mov_b32 v44, -1
v_mov_b32 v45, -1
v_mov_b32 v46, -1
v_mov_b32 v47, -1
""")
    of_offset(a, SX, T0, QG, KH)
    a(f"""
s_add_u32 s{T0}, s{SX}, {64*32*1024}
buffer_store_dwordx4 v[44:47], v1, {s(S_WS,4)}, s{SX} offen sc1
buffer_store_dwordx4 v[44:47], v1, {s(S_WS,4)}, s{T0} offen sc1
s_lshl_b32 s{T0+2}, s{S_H}, 17
s_add_u32 s{T0+2}, s{T0+2}, {WS_KV}
s_lshl_b32 s{T0}, s{S_WAVE}, 12
s_add_u32 s{T0}, s{T0}, {6*4096}
L_stageB:
s_mov_b32 m0, s{T0}
s_add_u32 s{T0+1}, s{T0+2}, s{T0}
""")
    for i in range(4):
        a(f"buffer_load_dwordx4 v1, {s(S_WS,4)}, s{T0+1} offen offset:{i*1024} sc1 lds")
    a(f"""
s_add_u32 s{T0}, s{T0}, 16384
s_cmp_lt_u32 s{T0}, {128*1024}
s_cbranch_scc1 L_stageB
v_mov_b32 v38, {L_CNT}
ds_write_b32 v38, v{VZ}
ds_read_b128 {v(KS[0],4)}, v1
s_waitcnt vmcnt(0) lgkmcnt(0)
s_barrier
""")
    stamp(a, 7)
    a(f"""
v_mov_b64 {v(QA,2)}, v[40:41]
v_mov_b64 {v(QA+2,2)}, v[42:43]
s_cmp_lg_u32 s{S_WAVE}, 0
s_cbranch_scc1 L_attn_init
s_lshl_b32 s{T0}, s{S_HQ}, 8
s_add_u32 s{T0}, s{T0}, {WS_FL + 8*256}
s_lshl_b32 s{T0+1}, s{S_RB}, 8
s_add_u32 s{T0+1}, s{T0+1}, {WS_FL + 16*256}
v_mov_b32 v38, 1
s_mov_b64 exec, 1
buffer_atomic_add v38, v{VZ}, {s(S_WS,4)}, s{T0} offen sc1
buffer_atomic_add v38, v{VZ}, {s(S_WS,4)}, s{T0+1} offen sc1
s_mov_b64 exec, -1
""")

    def maxtree(dst, b, init=None):
        o = []
        if init is None:
            o.append(f"v_max3_f32 v{dst}, v{b}, v{b+1}, v{b+2}")
            for i in range(3, 15, 2):
                o.append(f"v_max3_f32 v{dst}, v{dst}, v{b+i}, v{b+i+1}")
            o.append(f"v_max_f32 v{dst}, v{dst}, v{b+15}")
        else:
            for i in range(0, 16, 2):
                o.append(f"v_max3_f32 v{dst}, v{dst}, v{b+i}, v{b+i+1}")
        return o
    EV1 = 0xffe0
    EV0 = 0xfff0
    a(f"""
L_attn_init:
s_nop 1
v_mfma_f32_32x32x16_bf16 {v(SA,16)}, {v(KS[0],4)}, {v(QA,4)}, 0
v_mfma_f32_32x32x16_bf16 {v(SB,16)}, {v(KS[0],4)}, {v(QB,4)}, 0
s_mov_b32 s{MODE}, 0
s_mov_b32 s{SL+2}, 0x0000ffff
s_mov_b32 s{SL+3}, 0x0000ffff
s_cmp_eq_u32 s{KH}, 0
s_mov_b32 s{EVM}, {EV1:#x}
s_cmov_b32 s{EVM}, {EV0:#x}
v_mov_b32 v{IDX}, 0xdddddddd
v_mov_b32 v38, 0x3f803f80
v_mov_b32 v39, 0x3f803f80
""")
    for i in range(0, 16, 2):
        a(f"v_mov_b64 {v(VS[0]+i,2)}, v[38:39]")
    a.emit(rr(maxtree(38, SA), maxtree(39, SB)))
    a(f"""
L_setmax:
s_lshl_b32 s{T0}, s{KH}, 16
v_add_u32 v{ADDR}, s{T0}, v1
v_permlane32_swap_b32 v38, v39
s_mov_b32 s{CNT}, 0
s_nop 0
v_max_f32 v38, v38, v39
v_sub_f32 v38, 0, v38
v_mov_b32 v40, v38
s_nop 1
v_permlane32_swap_b32 v38, v40
s_nop 1
v_mov_b32 v39, v38
v_mov_b32 v41, v40
""")
    for i in range(0, 16, 2):
        a(f"v_mov_b64 {v(NMA+i,2)}, v[38:39]")
        a(f"v_mov_b64 {v(NMB+i,2)}, v[40:41]")
    a(f"""
s_or_b32 s{T0}, s{KH}, s{MODE}
s_cmp_lg_u32 s{T0}, 0
s_cbranch_scc1 L_nobarX
s_waitcnt vmcnt(4)
""")
    stamp(a, 6)
    a(f"""
s_barrier
s_setprio 3
L_nobarX:
ds_read_b128 {v(KS[0],4)}, v{ADDR}
s_mov_b64 exec, {s(SL+2,2)}
ds_read_b128 {v(VS[0],4)}, v{ADDR} offset:1024
ds_read_b128 {v(VS[0]+4,4)}, v{ADDR} offset:1280
ds_read_b128 {v(VS[1]+4,4)}, v{ADDR} offset:1280
s_mov_b64 exec, -1
""")
    for i in range(0, 16, 2):
        a(f"v_mov_b64 {v(OB+i,2)}, 0")
    for i in range(8, 16, 2):
        a(f"v_mov_b64 {v(SB+i,2)}, 0")
    a(f"""
s_waitcnt lgkmcnt(0)
v_mfma_f32_32x32x16_bf16 {v(SA,16)}, {v(KS[0],4)}, {v(QA,4)}, {v(NMA,16)}
""")
    for i in range(0, 16, 2):
        a(f"v_mov_b64 {v(OA+i,2)}, 0")
    a("s_nop 3")
    stamp(a, 8)
    a(".p2align 6")
    a("L_loop:")
    a(f"""
s_bitcmp1_b32 s{EVM}, s{CNT}
s_cbranch_scc1 L_event
L_loop_body:
""")
    def e(b, i): return f"v_exp_f32 v{b+i}, v{b+i}"
    def sm(o, vv, p): return f"v_smfmac_f32_32x32x32_bf16 {v(o,16)}, {v(vv,4)}, {v(p,8)}, v{IDX}"
    for c in range(2):
        n = c ^ 1
        off = (c + 1) * 2048
        a(f"ds_read_b128 {v(KS[n],4)}, v{ADDR} offset:{off}")
        a(e(SA,0)); a(e(SA,1))
        a(sm(OB, VS[n]+4, SB+8))
        a(f"s_mov_b64 exec, {s(SL+2,2)}")
        a(f"ds_read_b128 {v(VS[n],4)}, v{ADDR} offset:{off+1024}")
        a(f"ds_read_b128 {v(VS[n]+4,4)}, v{ADDR} offset:{off+1280}")
        a("s_mov_b64 exec, -1")
        a(e(SA,2)); a(e(SA,3))
        a(f"v_mfma_f32_32x32x16_bf16 {v(SB,16)}, {v(KS[c],4)}, {v(QB,4)}, {v(NMB,16)}")
        for i in range(4, 10): a(e(SA,i))
        a(sm(OA, VS[c], SA))
        for i in range(10, 16): a(e(SA,i))
        a(e(SB,0)); a(e(SB,1))
        a(sm(OA, VS[c]+4, SA+8))
        a(e(SB,2)); a(e(SB,3))
        a("s_waitcnt lgkmcnt(0)")
        a(f"v_mfma_f32_32x32x16_bf16 {v(SA,16)}, {v(KS[n],4)}, {v(QA,4)}, {v(NMA,16)}")
        for i in range(4, 10): a(e(SB,i))
        a(sm(OB, VS[c], SB))
        if c == 1:
            a(f"v_add_u32 v{ADDR}, 4096, v{ADDR}")
            a(f"s_add_u32 s{CNT}, s{CNT}, 1")
            a(f"s_cmp_lt_u32 s{CNT}, 16")
        for i in range(10, 16): a(e(SB,i))
    a(f"""
s_cbranch_scc1 L_loop
s_nop 1
""")
    a(sm(OB, VS[1]+4, SB+8))
    stamp(a, 9)
    a(f"""
s_setprio 3
s_mul_i32 s{T0}, s{S_WAVE}, {EXS}
s_add_u32 s{T0}, s{T0}, {L_EX}
v_add_u32 v40, s{T0}, v1
v_lshlrev_b32 v2, 2, v0
v_add_u32 v42, s{T0}, v2
s_xor_b32 s{T0+1}, s{S_WAVE}, 4
s_mul_i32 s{T0+1}, s{T0+1}, {EXS}
s_add_u32 s{T0+1}, s{T0+1}, {L_EX}
v_add_u32 v41, s{T0+1}, v1
v_add_u32 v43, s{T0+1}, v2
v_and_b32 v2, 28, v2
v_add_u32 v2, {L_FLAG}, v2
s_lshl_b32 s{T0}, s{S_WAVE}, 2
s_add_u32 s{T0}, s{T0}, {L_FLAG}
v_mov_b32 v44, s{T0}
s_mov_b32 s{T0}, 0x7b800000
s_cmp_eq_u32 s{KH}, 0
s_cbranch_scc1 L_send_b
ds_write_b128 v40, {v(OA,4)}
ds_write_b128 v40, {v(OA+4,4)} offset:1024
ds_write_b32 v42, v{OA+8} offset:2048
s_branch L_sent
L_send_b:
ds_write_b128 v40, {v(OB,4)}
ds_write_b128 v40, {v(OB+4,4)} offset:1024
ds_write_b32 v42, v{OB+8} offset:2048
L_sent:
""")
    def chk(dst, o):
        r = [f"v_add_f32 v{dst}, abs(v{o}), abs(v{o+8})"]
        for i in range(1, 8):
            r.append(f"v_add_f32 v{dst}, v{dst}, abs(v{o+i})")
        return r
    a.emit(rr(chk(38, OA), chk(39, OB)))
    a(f"""
v_add_f32 v38, v38, v39
v_cmp_ngt_f32 vcc, s{T0}, v38
s_nop 4
s_or_b32 s{T0}, vcc_lo, vcc_hi
v_mov_b32 v45, s{T0}
ds_write_b32 v44, v45
s_waitcnt lgkmcnt(0)
s_barrier
""")
    stamp(a, 10)
    a(f"""
ds_read_b32 v45, v2
ds_read_b32 v{SA+8}, v43 offset:2048
ds_read_b128 {v(SA,4)}, v41
ds_read_b128 {v(SA+4,4)}, v41 offset:1024
s_cmp_eq_u32 s{KH}, 0
s_cbranch_scc1 L_keep_a
""")
    for i in range(0, 8, 2):
        a(f"v_mov_b64 {v(OA+i,2)}, {v(OB+i,2)}")
    a(f"""
v_mov_b32 v{OA+8}, v{OB+8}
L_keep_a:
s_waitcnt lgkmcnt(0)
v_cmp_ne_u32 vcc, 0, v45
v_add_f32 v{OA+8}, v{OA+8}, v{SA+8}
v_rcp_f32 v{OA+8}, v{OA+8}
""")
    for i in range(0, 8, 2):
        a(f"v_pk_add_f32 {v(OA+i,2)}, {v(OA+i,2)}, {v(SA+i,2)}")
    a(f"""
s_cmp_lg_u32 s{MODE}, 0
s_cbranch_scc1 L_fine
s_cbranch_vccnz L_slow
L_fine:
""")
    for i in range(0, 8, 2):
        a(f"v_pk_mul_f32 {v(OA+i,2)}, {v(OA+i,2)}, {v(OA+8,2)} op_sel_hi:[1,0]")
    for i in range(4):
        a(f"v_cvt_pk_bf16_f32 v{OA+i}, v{OA+2*i}, v{OA+2*i+1}")
    for i in range(4):
        a(f"v_min_u32 v{OA+i}, -2, v{OA+i}")
    a(f"buffer_store_dwordx4 {v(OA,4)}, v1, {s(S_WS,4)}, s{SX} offen sc1")
    stamp(a, 11)
    TB64, CB, TT3, KQ = 64, 65, 66, 67
    OFA = 48
    ACCA = [80, 96]
    a(f"""
s_and_b32 s{TB64}, s2, 31
s_lshr_b32 s{CB}, s2, 5
s_and_b32 s{TT3}, s{S_WAVE}, 1
s_lshr_b32 s{KQ}, s{S_WAVE}, 1
s_lshl_b32 s{T0+2}, s{TB64}, 1
s_add_u32 s{T0+2}, s{T0+2}, s{TT3}
s_lshl_b32 s{T0+2}, s{T0+2}, 5
s_lshl_b32 s{T0+3}, s{KQ}, 3
s_add_u32 s{T0+2}, s{T0+2}, s{T0+3}
s_lshl_b32 s{T0+2}, s{T0+2}, 10
s_add_u32 s{T0+2}, s{T0+2}, {WS_OF}
s_add_u32 s{T0+3}, s{T0+2}, 4096
s_mov_b32 s{T0+7}, 0
""")
    srd(a, S_X, 20, 21, 2048*512*2)
    a(f"""
s_waitcnt vmcnt(1)
v_sub_f32 v38, 1.0, v{GV}
""")
    for i in range(0, 32, 2):
        a(f"v_pk_mul_f32 {v(ACCB+i,2)}, {v(ACCB+i,2)}, v[38:39] op_sel_hi:[1,0]")
    a(f"""
v_and_b32 v12, 31, v0
v_lshrrev_b32 v13, 5, v0
s_lshl_b32 s{T0}, s{KQ}, 14
s_lshl_b32 s{T0+1}, s{TT3}, 13
s_add_u32 s{T0}, s{T0}, s{T0+1}
v_lshlrev_b32 v4, 8, v12
v_add_u32 v4, s{T0}, v4
v_and_b32 v14, 7, v0
v_lshlrev_b32 v15, 2, v13
v_xor_b32 v14, v14, v15
v_lshl_add_u32 v4, v14, 4, v4
v_xor_b32 v5, 16, v4
v_xor_b32 v6, 32, v4
v_xor_b32 v7, 48, v4
v_lshrrev_b32 v14, 3, v0
v_and_b32 v15, 7, v0
v_lshlrev_b32 v8, 1, v15
v_xor_b32 v8, v8, v14
v_lshlrev_b32 v8, 4, v8
v_lshl_add_u32 v8, v14, 8, v8
s_lshl_b32 s{T0}, s{S_WAVE}, 11
v_add_u32 v8, s{T0}, v8
v_xor_b32 v9, 16, v8
v_lshlrev_b32 v10, 10, v14
v_lshl_add_u32 v10, v15, 4, v10
s_lshl_b32 s{T0}, s{TB64}, 16
s_lshl_b32 s{T0+1}, s{S_WAVE}, 13
s_add_u32 s{T0}, s{T0}, s{T0+1}
s_lshl_b32 s{T0+1}, s{CB}, 7
s_add_u32 s{T0}, s{T0}, s{T0+1}
""")
    def oa_load(j):
        return f"buffer_load_dwordx4 {v(OFA+4*j,4)}, v1, {s(S_WS,4)}, s{T0+2+j//4} offen offset:{(j&3)*1024} sc1"
    for j in range(8): a(oa_load(j))
    for j in range(8):
        f = OFA + 4*j
        a(f"""
L_cons{j}:
s_waitcnt vmcnt({7-j})
v_max3_u32 v38, v{f}, v{f+1}, v{f+2}
v_max_u32 v38, v38, v{f+3}
v_cmp_eq_u32 vcc, -1, v38
s_nop 4
s_cbranch_vccnz L_retry{j}
L_go{j}:
""")
        for ct in range(2):
            c = v(ACCA[ct],16)
            a(f"v_mfma_f32_32x32x16_bf16 {c}, {v(POOL+8*j+4*ct,4)}, {v(f,4)}, {'0' if j==0 else c}")
    stamp(a, 12)
    a("s_nop 10")
    for ct in range(2):
        for i in range(0, 16, 2):
            a(f"v_pk_fma_f32 {v(ACCA[ct]+i,2)}, {v(ACCA[ct]+i,2)}, {v(GV,2)}, {v(ACCB+16*ct+i,2)} op_sel_hi:[1,0,1]")
        for q in range(4):
            a(f"ds_write_b128 v{4+q}, {v(ACCA[ct]+4*q,4)} offset:{ct*128}")
    a(f"""
s_waitcnt lgkmcnt(0)
s_barrier
""")
    for kq in range(4):
        a(f"ds_read_b128 {v(16+8*kq,4)}, v8 offset:{kq*16384}")
        a(f"ds_read_b128 {v(20+8*kq,4)}, v9 offset:{kq*16384}")
    for kq in range(1, 4):
        a(f"s_waitcnt lgkmcnt({6-2*kq})")
        for i in range(0, 8, 2):
            a(f"v_pk_add_f32 {v(16+i,2)}, {v(16+i,2)}, {v(16+8*kq+i,2)}")
    for i in range(4):
        a(f"v_cvt_pk_bf16_f32 v{16+i}, v{16+2*i}, v{17+2*i}")
    a(f"buffer_store_dwordx4 v[16:19], v10, {s(S_X,4)}, s{T0} offen")
    stamp_out(a)
    a("L_end:")
    a("s_endpgm")
    for j in range(8):
        a(f"""
L_retry{j}:
s_add_u32 s{T0+7}, s{T0+7}, 1
s_cmp_ge_u32 s{T0+7}, {SPIN_MAX}
s_cbranch_scc1 L_go{j}
""")
        for jj in range(j, 8): a(oa_load(jj))
        a(f"s_branch L_cons{j}")

    KPO = T0 + 2
    a("L_event:")
    for it in range(4, 15):
        a(f"s_cmp_eq_u32 s{CNT}, {it}")
        a(f"s_cbranch_scc1 L_ev{it}")
    a("s_setprio 0")
    a("s_branch L_loop_body")
    a(f"""
L_ev4:
s_waitcnt vmcnt(0)
s_barrier
""")
    stamp(a, 7)
    a(f"""
s_branch L_loop_body
L_ev5:
s_bfe_u32 s{T0}, s2, 0x30002
v_min_u32 v40, 8, v0
v_lshrrev_b32 v41, 3, v40
v_mad_u32_u24 v40, v41, s{T0}, v40
v_lshlrev_b32 v40, 8, v40
s_mov_b32 s{T0}, {WS_FL + 8*256}
buffer_load_dword v41, v40, {s(S_WS,4)}, s{T0} offen sc1
s_lshl_b32 s{KPO}, s{S_H}, 17
s_lshl_b32 s{T0+1}, s{KH}, 16
s_add_u32 s{KPO}, s{KPO}, s{T0+1}
s_lshl_b32 s{T0+1}, s{QG}, 10
s_add_u32 s{KPO}, s{KPO}, s{T0+1}
s_add_u32 s{KPO}, s{KPO}, {WS_KVP}
s_branch L_loop_body
L_ev6:
s_mov_b32 s{T0+7}, 0
L_ev6p:
s_waitcnt vmcnt(0)
v_cmp_gt_u32 vcc, 32, v41
s_add_u32 s{T0+7}, s{T0+7}, 1
s_cmp_ge_u32 s{T0+7}, {SPIN_MAX}
s_cbranch_scc1 L_ev6ok
s_nop 2
s_cbranch_vccz L_ev6ok
s_sleep 4
buffer_load_dword v41, v40, {s(S_WS,4)}, s{T0} offen sc1
s_branch L_ev6p
L_ev6ok:
""")
    for p in range(8):
        a(f"buffer_load_dwordx4 {v(POOL+4*p,4)}, v1, {s(S_WS,4)}, s{KPO} offen sc1")
        a(f"s_add_u32 s{KPO}, s{KPO}, 4096")
    a("s_branch L_loop_body")
    a("L_ev7:")
    for p in range(8, 16):
        a(f"buffer_load_dwordx4 {v(POOL+4*p,4)}, v1, {s(S_WS,4)}, s{KPO} offen sc1")
        a(f"s_add_u32 s{KPO}, s{KPO}, 4096")
    a("s_waitcnt vmcnt(8)")
    a(f"v_pk_add_f32 {v(KACC,2)}, {v(POOL,2)}, {v(POOL+4,2)}")
    a(f"v_pk_add_f32 {v(KACC+2,2)}, {v(POOL+2,2)}, {v(POOL+6,2)}")
    for p in range(2, 8):
        a(f"v_pk_add_f32 {v(KACC,2)}, {v(KACC,2)}, {v(POOL+4*p,2)}")
        a(f"v_pk_add_f32 {v(KACC+2,2)}, {v(KACC+2,2)}, {v(POOL+4*p+2,2)}")
    a("s_branch L_loop_body")
    a(f"""
L_ev8:
s_sub_u32 s{T0}, s{SX}, {WS_OF}
s_lshr_b32 s{T0}, s{T0}, 15
s_lshl_b32 s{T0+1}, s{S_H}, 6
s_add_u32 s{T0}, s{T0}, s{T0+1}
s_lshl_b32 s{T0}, s{T0}, 11
s_add_u32 s{T0}, s{T0}, {WS_PHQ}
buffer_load_dwordx4 {v(PQ,4)}, v1, {s(S_WS,4)}, s{T0} offen sc1
buffer_load_dwordx4 {v(PQ+4,4)}, v1, {s(S_WS,4)}, s{T0} offen offset:1024 sc1
s_lshl_b32 s{T0}, s{S_WAVE}, 10
s_add_u32 s{T0}, s{T0}, {L_KVX}
v_add_u32 v40, s{T0}, v1
v_mov_b32 v41, {L_CNT}
v_mov_b32 v42, 1
s_waitcnt vmcnt(2)
""")
    for p in range(8, 16):
        a(f"v_pk_add_f32 {v(KACC,2)}, {v(KACC,2)}, {v(POOL+4*p,2)}")
        a(f"v_pk_add_f32 {v(KACC+2,2)}, {v(KACC+2,2)}, {v(POOL+4*p+2,2)}")
    a(f"""
ds_write_b128 v40, {v(KACC,4)}
s_waitcnt lgkmcnt(0)
s_mov_b64 exec, 1
ds_add_u32 v41, v42
s_mov_b64 exec, -1
s_setprio 2
s_branch L_loop_body
L_ev9:
s_mov_b32 s{T0+7}, 0
L_ev9p:
ds_read_b32 v42, v41
s_add_u32 s{T0+7}, s{T0+7}, 1
s_waitcnt lgkmcnt(0)
v_readfirstlane_b32 s{T0+6}, v42
s_cmp_ge_u32 s{T0+6}, 8
s_cbranch_scc1 L_ev9ok
s_sleep 2
s_cmp_lt_u32 s{T0+7}, {SPIN_MAX}
s_cbranch_scc1 L_ev9p
L_ev9ok:
v_add_u32 v40, {L_KVX}, v1
""")
    for q in range(8):
        a(f"ds_read_b128 {v(POOL+4*q,4)}, v40 offset:{q*1024}")
    a("s_waitcnt lgkmcnt(0) vmcnt(0)")
    for i in range(0, 16, 2):
        a(f"v_pk_add_f32 {v(POOL+i,2)}, {v(POOL+i,2)}, {v(POOL+16+i,2)}")
    for i in range(8):
        a(f"v_cvt_pk_bf16_f32 v{POOL+32+i}, v{POOL+2*i}, v{POOL+2*i+1}")
    R = POOL + 48
    a(f"""
s_nop 1
v_mfma_f32_32x32x16_bf16 {v(R,16)}, {v(POOL+32,4)}, {v(PQ,4)}, 0
v_mfma_f32_32x32x16_bf16 {v(R,16)}, {v(POOL+36,4)}, {v(PQ+4,4)}, {v(R,16)}
s_branch L_loop_body
L_ev10:
s_bitcmp1_b32 s{S_H}, 0
s_cbranch_scc1 L_ob_odd
v_add_f32 v40, {f2u(1e-6):#x}, v{R+8}
v_rcp_f32 v40, v40
s_nop 0
""")
    for i in range(0, 8, 2):
        a(f"v_pk_mul_f32 {v(R+i,2)}, {v(R+i,2)}, v[40:41] op_sel_hi:[1,0]")
    a(f"""
s_branch L_ob_done
L_ob_odd:
v_add_f32 v40, {f2u(1e-6):#x}, v{R}
v_rcp_f32 v40, v40
s_nop 0
""")
    for i in range(0, 8, 2):
        a(f"v_pk_mul_f32 {v(R+i,2)}, {v(R+8+i,2)}, v[40:41] op_sel_hi:[1,0]")
    a("L_ob_done:")
    for i in range(4):
        a(f"v_cvt_pk_bf16_f32 v{KACC+i}, v{R+2*i}, v{R+2*i+1}")
    for i in range(4):
        a(f"v_min_u32 v{KACC+i}, -2, v{KACC+i}")
    a(f"""
s_add_u32 s{T0}, s{SX}, {64*32*1024}
buffer_store_dwordx4 {v(KACC,4)}, v1, {s(S_WS,4)}, s{T0} offen sc1
s_lshr_b32 s{KPO}, s2, 5
s_lshl_b32 s{KPO}, s{KPO}, 17
s_lshr_b32 s{T0}, s{S_WAVE}, 1
s_lshl_b32 s{T0+1}, s{T0}, 14
s_add_u32 s{KPO}, s{KPO}, s{T0+1}
s_add_u32 s{KPO}, s{KPO}, {WS_WOF}
s_and_b32 s{KPO+1}, s2, 31
s_lshl_b32 s{KPO+1}, s{KPO+1}, 1
s_and_b32 s{T0+1}, s{S_WAVE}, 1
s_add_u32 s{KPO+1}, s{KPO+1}, s{T0+1}
s_lshl_b32 s{KPO+2}, s{KPO+1}, 7
s_add_u32 s{KPO+2}, s{KPO+2}, {WS_G}
s_lshl_b32 s{KPO+1}, s{KPO+1}, 5
s_lshl_b32 s{T0}, s{T0}, 3
s_add_u32 s{KPO+1}, s{KPO+1}, s{T0}
s_lshl_b32 s{KPO+1}, s{KPO+1}, 10
s_add_u32 s{KPO+1}, s{KPO+1}, {WS_OF + 64*32*1024}
""")
    def wo_loads(base_off, dst):
        for g in range(2):
            a(f"s_add_u32 s{T0}, s{KPO}, {base_off + g*4096}")
            for i in range(4):
                a(f"buffer_load_dwordx4 {v(dst+16*g+4*i,4)}, v1, {s(S_WS,4)}, s{T0} offen offset:{i*1024} sc1")
    def ob_loads():
        a(f"s_add_u32 s{T0}, s{KPO+1}, 4096")
        for j in range(8):
            a(f"buffer_load_dwordx4 {v(POOL+32+4*j,4)}, v1, {s(S_WS,4)}, s{KPO+1 if j < 4 else T0} offen offset:{(j&3)*1024} sc1")
    a("s_branch L_loop_body")
    a("L_ev11:")
    wo_loads(65536, POOL)
    a("s_branch L_loop_body")
    a("L_ev12:")
    a("s_setprio 1")
    ob_loads()
    a("s_branch L_loop_body")
    a(f"""
L_ev13:
s_mov_b32 s{T0+7}, 0
L_ev13p:
s_waitcnt vmcnt(0)
v_max3_u32 v40, v{POOL+32}, v{POOL+33}, v{POOL+34}
v_max3_u32 v41, v{POOL+35}, v{POOL+36}, v{POOL+37}
""")
    for i in range(38, 62, 4):
        a(f"v_max3_u32 v40, v40, v{POOL+i}, v{POOL+i+1}")
        a(f"v_max3_u32 v41, v41, v{POOL+i+2}, v{POOL+i+3}")
    a(f"""
v_max3_u32 v40, v40, v{POOL+62}, v{POOL+63}
v_max_u32 v40, v40, v41
v_cmp_eq_u32 vcc, -1, v40
s_add_u32 s{T0+7}, s{T0+7}, 1
s_cmp_ge_u32 s{T0+7}, {SPIN_MAX}
s_cbranch_scc1 L_ev13ok
s_nop 2
s_cbranch_vccz L_ev13ok
s_sleep 4
""")
    ob_loads()
    a("s_branch L_ev13p")
    a("L_ev13ok:")
    def bm(j0):
        for j in range(j0, j0 + 4):
            for ct in range(2):
                c = v(ACCB+16*ct,16)
                a(f"v_mfma_f32_32x32x16_bf16 {c}, {v(POOL+8*(j-j0)+4*ct,4)}, {v(POOL+32+4*j,4)}, {'0' if j==0 else c}")
    bm(0)
    wo_loads(65536 + 8192, POOL)
    a("s_branch L_loop_body")
    a("L_ev14:")
    a("s_waitcnt vmcnt(0)")
    bm(4)
    wo_loads(0, POOL)
    wo_loads(8192, POOL + 32)
    a(f"""
v_and_b32 v40, 31, v0
v_lshlrev_b32 v40, 2, v40
buffer_load_dword v{GV}, v40, {s(S_WS,4)}, s{KPO+2} offen sc1
s_branch L_loop_body
""")
    a(f"""
L_slow:
s_barrier
s_mov_b32 s{MODE}, 1
s_mov_b32 s{EVM}, 0
s_mov_b32 s{CNT}, 0
v_mov_b32 v{ADDR}, v1
v_mov_b32 v38, 0xff800000
v_mov_b32 v39, 0xff800000
L_mloop:
ds_read_b128 {v(KS[0],4)}, v{ADDR}
s_waitcnt lgkmcnt(0)
v_mfma_f32_32x32x16_bf16 {v(SA,16)}, {v(KS[0],4)}, {v(QA,4)}, 0
v_mfma_f32_32x32x16_bf16 {v(SB,16)}, {v(KS[0],4)}, {v(QB,4)}, 0
s_nop 15
""")
    a.emit(rr(maxtree(38, SA, 1), maxtree(39, SB, 1)))
    a(f"""
v_add_u32 v{ADDR}, 2048, v{ADDR}
s_add_u32 s{CNT}, s{CNT}, 1
s_cmp_lt_u32 s{CNT}, 64
s_cbranch_scc1 L_mloop
s_branch L_setmax
""")
    return kd(NAME, 256, 102)

HEAD = """; gated mix of softmax attention and hedgehog linear attention -- hand-written gfx950 kernel
; @launch grid=(256,1,1) block=(512,1,1) lds=163840
.amdgcn_target "amdgcn-amd-amdhsa--gfx950"
"""
if __name__ == "__main__":
    for o in sys.argv[2:]:
        if o == "st": STAMPS = True
        if o.startswith("stm="): STMODE = int(o[4:])
        if o == "norot": NOROT = True
        if o.startswith("map="): MAPMODE = int(o[4:])
        if o.startswith("sig="): SIGC = int(o[4:])
    a = Asm()
    k = gen(a)
    if STAMPS and STMODE in (1, 2):
        out = []; cur = None
        import re
        for l in a.lines:
            m = re.match(r"L_ev(\d+):$", l)
            if m:
                cur = int(m.group(1)); out.append(l)
                if STMODE == 1: out.append(f"    s_memtime s[{70+2*(cur-3)}:{71+2*(cur-3)}]")
                continue
            if l.strip() == "s_branch L_loop_body" and STMODE == 2 and cur is not None:
                out.append(f"    s_memtime s[{70+2*(cur-3)}:{71+2*(cur-3)}]")
            if l.strip() == "s_cbranch_scc1 L_loop":
                out.append(l); out.append("    s_memtime s[94:95]"); continue
            out.append(l)
        a.lines = out
    txt = a.text()
    if "rt" in sys.argv[2:]: txt = txt.replace("s_memtime", "s_memrealtime")
    open(sys.argv[1], "w").write(HEAD + txt + k)
```

```python
import sys, struct
from asmlib import *

NAME = "gated_mix__mha_block__linear_kernel_hedgehog__prompt_kernel"
LOG2E = 1.4426950408889634
def f2u(x): return struct.unpack("<I", struct.pack("<f", x))[0]

WS_QF  = 0
WS_KV  = 2 << 20
WS_PHQ = 6 << 20
WS_KVP = 10 << 20
WS_OF  = 14 << 20
WS_G   = 18 << 20
WS_KVT = (18 << 20) + 65536
WS_WOF = (18 << 20) + 131072
WS_FL  = WS_WOF + (1 << 20)
WS_SIZE = WS_FL + 16 * 256
WS_ST = 20 << 20
OBR = 64 * 32 * 1024

P = dict(STAMPS=0, STMODE=0, SPIN=400000, SIGC=3, LOOK=3, RPG=3, LEAD=2, CPF=1, XAH=1, PSL=2,
         KVS=4, PACE=0, PACK=0, CLS=3, BS=6, BD=4, BA=8, BW=12, DBG=0, ROTC=1, DIAG=0)

S_X, S_WA, S_WB, S_WS, S_MISC = 28, 32, 36, 40, 44
S_WAVE, S_HQ, S_TB, S_ROT = 48, 49, 50, 51
S_H, S_RB = 26, 27
T0 = 52
SL = 60
CNT, MODE, EVM, TT, PP, SX = 64, 65, 66, 67, 68, 69
P_KVG, P_KVB = 66, 67
P_OF, P_F2, P_KVS, P_KVT, P_PHQ, P_WOF, P_WOB, P_OA, P_G, P_WOL, KH = 4, 5, 6, 7, 8, 9, 10, 11, 0, 1, 3

XL, WL, WSLOT = 0, 65536, 24576
L_QH, L_WOS, L_CMB = 128*1024, 130*1024, 136*1024
L_FLAG, L_EX, EXS = 136*1024, 137*1024, 2304

QA, QB, KS, VS, IDX, ADDR = 4, 8, [12, 16], [20, 28], 36, 37
NMA, NMB, SA, SB, OA, OB = 48, 64, 80, 96, 112, 128
POOL, OBF, KACC, PQ, GV = 144, 208, 240, 244, 252
VZ = 3
L = lambda t: [x.strip() for x in t.strip().split("\n") if x.strip()]

def stamp(a, i, mode=0):
    if P["STAMPS"] and mode == P["STMODE"]:
        a(f"s_memtime s[{70+2*i}:{71+2*i}]")
def stamp_out(a):
    if not P["STAMPS"]:
        return
    a("s_mov_b64 exec, -1")
    a("s_memrealtime s[100:101]")
    a("s_waitcnt lgkmcnt(0) vmcnt(0)")
    a("s_memtime s[96:97]")
    a("s_waitcnt lgkmcnt(0)")
    srd(a, 40, 24, 25, WS_ST + (1 << 20))
    a(f"s_lshl_b32 s3, s2, 3")
    a(f"s_add_u32 s3, s3, s{S_WAVE}")
    a(f"s_lshl_b32 s3, s3, 6")
    a(f"s_add_u32 s3, s3, {WS_ST}")
    a("v_mov_b32 v1, 0")
    for i in range(16):
        a(f"v_mov_b32 v2, s{70+2*i}")
        a(f"buffer_store_dword v2, v1, s[40:43], s3 offen offset:{4*i}")
    a("s_waitcnt vmcnt(0)")

def softmax16(b, t):
    o = [f"v_max3_f32 v{t}, v{b}, v{b+1}, v{b+2}"]
    for i in range(3, 15, 2):
        o.append(f"v_max3_f32 v{t}, v{t}, v{b+i}, v{b+i+1}")
    o.append(f"v_max_f32 v{t}, v{t}, v{b+15}")
    o.append(f"v_mul_f32 v{t}, {f2u(-LOG2E):#x}, v{t}")
    for i in range(0, 16, 2):
        o.append(f"v_pk_fma_f32 {v(b+i,2)}, {v(b+i,2)}, {s(SL,2)}, {v(t,2)} op_sel_hi:[1,0,0]")
    for i in range(16):
        o.append(f"v_exp_f32 v{b+i}, v{b+i}")
    o.append(f"v_pk_add_f32 {v(t+2,2)}, {v(b,2)}, {v(b+2,2)}")
    for i in range(4, 16, 2):
        o.append(f"v_pk_add_f32 {v(t+2,2)}, {v(t+2,2)}, {v(b+i,2)}")
    o.append(f"v_add_f32 v{t}, v{t+2}, v{t+3}")
    o.append(f"v_rcp_f32 v{t}, v{t}")
    o.append("s_nop 0")
    for i in range(0, 16, 2):
        o.append(f"v_pk_mul_f32 {v(b+i,2)}, {v(b+i,2)}, {v(t,2)} op_sel_hi:[1,0]")
    for i in range(8):
        o.append(f"v_cvt_pk_bf16_f32 v{b+i}, v{b+2*i}, v{b+2*i+1}")
    return o

def tr64_addr(a, dst, tmp, base_sgpr):
    a(f"""
v_bfe_u32 v{tmp}, v0, 2, 2
v_lshlrev_b32 v{dst}, 6, v{tmp}
v_lshrrev_b32 v{tmp}, 5, v0
v_lshl_add_u32 v{dst}, v{tmp}, 8, v{dst}
v_and_b32 v{tmp}, 1, v0
v_lshl_add_u32 v{dst}, v{tmp}, 5, v{dst}
v_bfe_u32 v{tmp}, v0, 4, 1
v_lshl_add_u32 v{dst}, v{tmp}, 4, v{dst}
v_bfe_u32 v{tmp}, v0, 1, 1
v_lshl_add_u32 v{dst}, v{tmp}, 3, v{dst}
v_add_u32 v{dst}, s{base_sgpr}, v{dst}
""")

def persist(a, kh, R2):
    a(f"""
s_mov_b32 s{KH}, {kh}
s_and_b32 s{T0}, s{S_WAVE}, 3
s_lshl_b32 s{T0+1}, s{S_RB}, 3
s_lshl_b32 s{T0+2}, s{T0}, 1
s_add_u32 s{T0+1}, s{T0+1}, s{T0+2}
s_add_u32 s{T0+1}, s{T0+1}, {kh}
s_lshl_b32 s{P_OF}, s{T0+1}, 5
s_add_u32 s{P_OF}, s{P_OF}, s{S_H}
s_lshl_b32 s{P_OF}, s{P_OF}, 10
s_add_u32 s{P_OF}, s{P_OF}, {WS_OF}
s_lshl_b32 s{P_PHQ}, s{S_H}, 6
s_add_u32 s{P_PHQ}, s{P_PHQ}, s{T0+1}
s_lshl_b32 s{P_PHQ}, s{P_PHQ}, 11
s_add_u32 s{P_PHQ}, s{P_PHQ}, {WS_PHQ}
s_lshr_b32 s{P_F2}, s{S_H}, 2
s_lshl_b32 s{P_F2}, s{P_F2}, 8
s_add_u32 s{P_F2}, s{P_F2}, {WS_FL + 8*256}
s_lshl_b32 s{P_KVS}, s{S_H}, 17
s_lshl_b32 s{T0+2}, s{T0}, 10
s_add_u32 s{P_KVS}, s{P_KVS}, s{T0+2}
s_lshl_b32 s{T0+2}, s{S_RB}, 7
s_add_u32 s{P_KVS}, s{P_KVS}, s{T0+2}
s_add_u32 s{P_KVS}, s{P_KVS}, {WS_KVP}
s_lshl_b32 s{P_KVT}, s{S_H}, 11
s_add_u32 s{P_KVT}, s{P_KVT}, {WS_KVT}
s_lshr_b32 s{P_WOF}, s2, 5
s_lshl_b32 s{P_WOF}, s{P_WOF}, 17
s_add_u32 s{P_WOF}, s{P_WOF}, {WS_WOF}
s_lshr_b32 s{T0+1}, s{S_WAVE}, 1
s_lshl_b32 s{P_WOB}, s{T0+1}, 14
s_add_u32 s{P_WOB}, s{P_WOB}, s{P_WOF}
s_add_u32 s{P_WOB}, s{P_WOB}, 65536
s_lshl_b32 s{T0+2}, s{S_WAVE}, 13
s_add_u32 s{P_WOF}, s{P_WOF}, s{T0+2}
s_and_b32 s{P_OA}, s2, 31
s_lshl_b32 s{P_OA}, s{P_OA}, 1
s_and_b32 s{T0+2}, s{S_WAVE}, 1
s_add_u32 s{P_OA}, s{P_OA}, s{T0+2}
s_lshl_b32 s{P_G}, s{P_OA}, 7
s_add_u32 s{P_G}, s{P_G}, {WS_G}
s_lshl_b32 s{P_OA}, s{P_OA}, 5
s_lshl_b32 s{T0+1}, s{T0+1}, 3
s_add_u32 s{P_OA}, s{P_OA}, s{T0+1}
s_lshl_b32 s{P_OA}, s{P_OA}, 10
s_add_u32 s{P_OA}, s{P_OA}, {WS_OF}
s_lshl_b32 s{P_WOL}, s{T0}, 13
s_add_u32 s{P_WOL}, s{P_WOL}, {R2 if kh == 0 else 0}
""")

def gen(a):
    SPIN, LEAD = P["SPIN"], P["LEAD"]
    NS = 16 + LEAD // 2
    R2 = 2 * NS * 2048
    BD, BA, BW, BS = P["BD"], P["BA"], P["BW"], P["BS"]
    C0 = BS
    assert BW >= LEAD + 8 and BW >= 8
    a(f""".text
.globl {NAME}
.p2align 8
.type {NAME},@function
{NAME}:
s_cmp_ge_u32 s2, 256
s_cbranch_scc1 L_end
""")
    if P["STAMPS"]:
        for i in range(70, 102): a(f"s_mov_b32 s{i}, 0")
        a("s_memtime s[70:71]")
        a("s_memrealtime s[98:99]")
    a(f"""
s_load_dwordx16 s[4:19], s[0:1], 0
s_load_dwordx4 s[20:23], s[0:1], 64
s_load_dwordx2 s[24:25], s[0:1], 80
v_lshrrev_b32 v1, 6, v0
v_and_b32 v0, 63, v0
v_readfirstlane_b32 s{S_WAVE}, v1
s_lshr_b32 s3, s2, 3
s_and_b32 s{S_TB}, s2, 6
s_lshl_b32 s{S_TB}, s{S_TB}, 2
s_and_b32 s{S_ROT}, s3, 7
s_add_u32 s{S_TB}, s{S_TB}, s{S_ROT}
s_lshr_b32 s3, s3, 3
s_and_b32 s{S_HQ}, s2, 1
s_lshl_b32 s{S_HQ}, s{S_HQ}, 2
s_add_u32 s{S_HQ}, s{S_HQ}, s3
s_and_b32 s{S_H}, s2, 7
s_lshl_b32 s{S_H}, s{S_H}, 2
s_add_u32 s{S_H}, s{S_H}, s3
s_lshl_b32 s3, s3, 1
s_add_u32 s{S_ROT}, s{S_ROT}, s3
s_bfe_u32 s{S_RB}, s2, 0x30003
v_mov_b32 v{VZ}, 0
s_cmp_ge_u32 s{S_WAVE}, 4
s_cbranch_scc0 L_compute
""")
    LW, XO, WO, XM, WM = 64, 65, 66, 67, 68
    a(f"""
s_sub_u32 s{LW}, s{S_WAVE}, 4
v_lshrrev_b32 v1, 3, v0
v_and_b32 v2, 7, v0
v_lshrrev_b32 v8, 4, v0
v_xor_b32 v9, v2, v8
v_lshlrev_b32 v10, 10, v1
v_lshl_add_u32 v4, v9, 4, v10
v_xor_b32 v5, 64, v4
v_add_u32 v5, {8192-1024}, v5
v_mul_u32_u24 v10, 3072, v1
v_and_b32 v8, 1, v8
v_lshlrev_b32 v8, 2, v8
v_xor_b32 v9, v2, v8
v_lshl_add_u32 v6, v9, 4, v10
v_xor_b32 v7, 32, v6
s_lshl_b32 s{XO}, s{S_TB}, 16
s_lshl_b32 s{T0}, s{LW}, 14
s_add_u32 s{XO}, s{XO}, s{T0}
s_mul_i32 s{WO}, s{LW}, {16*3072}
s_lshl_b32 s{T0}, s{S_HQ}, 7
s_add_u32 s{WO}, s{WO}, s{T0}
s_lshl_b32 s{XM}, s{LW}, 11
s_mul_i32 s{WM}, s{LW}, 6144
s_add_u32 s{WM}, s{WM}, {WL}
s_mov_b32 s{S_X+2}, {2048*512*2}
s_mov_b32 s{S_X+3}, 0x20000
s_mov_b32 s{S_WA+2}, {512*1536*2}
s_mov_b32 s{S_WA+3}, 0x20000
s_waitcnt lgkmcnt(0)
s_mov_b32 s{S_X}, s4
s_mov_b32 s{S_X+1}, s5
s_mov_b32 s{S_WA}, s6
s_mov_b32 s{S_WA+1}, s7
""")
    stamp(a, 1)
    issued = []
    paced = [False]
    def pace():
        if P["PACE"] and paced[0]: a(f"s_waitcnt vmcnt({P['PACE']})")
    def issx(c):
        a(f"s_add_u32 s{T0}, s{S_ROT}, {c}")
        a(f"s_and_b32 s{T0}, s{T0}, 7")
        a(f"s_lshl_b32 s{T0}, s{T0}, 7")
        a(f"s_add_u32 m0, s{XM}, {XL + c*8192}")
        a(f"s_add_u32 s{T0}, s{T0}, s{XO}")
        pace()
        a(f"buffer_load_dwordx4 v4, {s(S_X,4)}, s{T0} offen lds")
        pace()
        a(f"buffer_load_dwordx4 v5, {s(S_X,4)}, s{T0} offen offset:1024 lds")
        issued.append((("x", c), 2))
    def issw(c):
        W = S_WA if c < 8 else S_WB
        a(f"s_add_u32 s{T0}, s{S_ROT}, {c & 7}")
        a(f"s_and_b32 s{T0}, s{T0}, 7")
        a(f"s_mul_i32 s{T0+1}, s{T0}, {64*3072}")
        for g in range(2):
            a(f"s_add_u32 m0, s{WM}, {(c & 3)*WSLOT + g*3072}")
            a(f"s_add_u32 s{T0+1}, s{T0+1}, " + (f"s{WO}" if g == 0 else f"{8*3072}"))
            pace()
            a(f"buffer_load_dwordx4 v6, {s(W,4)}, s{T0+1} offen lds")
            pace()
            a(f"buffer_load_dwordx4 v7, {s(W,4)}, s{T0+1} offen offset:1024 lds")
            pace()
            a(f"buffer_load_dwordx4 v6, {s(W,4)}, s{T0+1} offen offset:2048 lds")
        issued.append((("w", c), 6))
    nx = [0]
    def iss(c):
        if c < 8 and nx[0] <= c: issx(nx[0]); nx[0] += 1
        issw(c)
        while nx[0] < 8 and nx[0] <= c + P["XAH"]:
            issx(nx[0]); nx[0] += 1
    def wait_for(c):
        idx = max(i for i, (t, _) in enumerate(issued) if t in (("x", c), ("w", c)))
        a(f"s_waitcnt vmcnt({sum(k for _, k in issued[idx+1:])})")
    iss(0)
    srd(a, S_WB, 12, 13, 512*1536*2)
    srd(a, S_WS, 24, 25, WS_SIZE)
    persist(a, 0, R2)
    VINIT = f"""
v_mov_b32 v{IDX}, 0xdddddddd
v_and_b32 v39, 27, v0
v_cmp_eq_u32 vcc, 16, v39
v_mov_b32 v38, 0x3f803f80
v_mov_b64 v[44:45], -1
v_cndmask_b32 v38, 0, v38, vcc
v_mov_b64 v[46:47], -1
v_mov_b32 v39, v38
""" + "\n".join(f"v_mov_b64 {v(VS[0]+i,2)}, v[38:39]" for i in range(0, 16, 2))
    ZERO_O = [f"v_mov_b64 {v(OA+i,2)}, 0" for i in range(0, 32, 2)]
    a(VINIT)
    a.emit(ZERO_O)
    a(f"""
v_lshlrev_b32 v42, 12, v1
v_lshl_add_u32 v42, v2, 4, v42
s_and_b32 s{T0}, s{S_H}, 1
s_lshl_b32 s{T0}, s{T0}, 1
s_xor_b32 s{T0}, s{T0}, s{S_RB}
s_lshl_b32 s{T0}, s{T0}, 7
s_lshr_b32 s{T0+1}, s{LW}, 1
s_lshl_b32 s{T0+1}, s{T0+1}, 10
s_add_u32 s{T0}, s{T0}, s{T0+1}
s_and_b32 s{T0+1}, s{LW}, 1
s_lshl_b32 s{T0+1}, s{T0+1}, 3
s_add_u32 s{T0}, s{T0}, s{T0+1}
v_lshlrev_b32 v43, 4, v2
v_bfe_u32 v8, v0, 4, 1
v_lshl_add_u32 v43, v8, 2, v43
v_add_u32 v43, s{T0}, v43
v_lshlrev_b32 v1, 4, v0
v_mov_b32 v{ADDR}, v1
s_lshl_b32 s{T0}, s{LW}, 9
s_add_u32 s{T0}, s{T0}, {L_QH}
v_lshrrev_b32 v{POOL+11}, 1, v1
v_add_u32 v{POOL+11}, s{T0}, v{POOL+11}
""")
    iss(1)
    paced[0] = True
    stamp(a, 2)
    nxt = 2
    for k in range(16):
        wait_for(k)
        if k == 0: stamp(a, 3)
        if k < 12: stamp(a, k + 1, 2)
        a("s_barrier")
        lim = k + P["LOOK"] if k > 0 else 2
        if k >= 7: lim = k + 3
        if k in (5, 6): lim = min(lim, 8)
        while nxt < 16 and nxt <= lim:
            iss(nxt); nxt += 1
        if k == 7:
            a("s_barrier")
            iss(nxt); nxt += 1
    stamp(a, 4)
    a(f"""
s_sub_u32 s{T0}, s{P_F2}, {8*256}
buffer_load_dword v40, v{VZ}, {s(S_WS,4)}, s{T0} offen sc1
s_sub_u32 s{T0+1}, s{P_PHQ}, {WS_PHQ}
s_lshr_b32 s{T0+1}, s{T0+1}, 1
s_lshl_b32 s{P_KVB}, s{S_H}, 17
s_add_u32 s{P_KVB}, s{P_KVB}, {WS_KV}
s_lshl_b32 s{P_KVG}, s{LW}, 12
s_add_u32 s{T0+3}, s{P_KVG}, {R2 - 4096}
s_cmp_eq_u32 s{LW}, 0
s_cmov_b32 s{T0+3}, 16384
s_mov_b32 s{T0+7}, 0
s_barrier
s_waitcnt vmcnt(0)
v_readfirstlane_b32 s{T0+6}, v40
s_cmp_lt_u32 s{T0+6}, 32
s_cbranch_scc1 L_pollF1
L_pollF1_ok:
""")
    stamp(a, 5); stamp(a, 1, 3)
    G0 = POOL + 12
    a(f"""
buffer_load_dwordx4 {v(QA,4)}, v1, {s(S_WS,4)}, s{T0+1} offen sc1
buffer_load_dwordx4 {v(QB,4)}, v1, {s(S_WS,4)}, s{T0+1} offen offset:1024 sc1
buffer_load_dwordx4 {v(KS[0],4)}, v1, {s(S_WS,4)}, s{P_KVB} offen sc1
""")
    def kvgrp(reg, off):
        o = [[f"s_add_u32 m0, s{reg}, {off}", f"s_add_u32 s{T0+4}, m0, s{P_KVB}"]]
        o += [f"buffer_load_dwordx4 v1, {s(S_WS,4)}, s{T0+4} offen offset:{i*1024} sc1 lds" for i in range(4)]
        return o
    def flat(x):
        o = []
        for g in x: o += g if isinstance(g, list) else [g]
        return o
    a.emit(flat(kvgrp(P_KVG, 0))); a.emit(flat(kvgrp(T0+3, 0)))
    a(f"""
s_setprio 3
s_waitcnt vmcnt(8)
v_mfma_f32_32x32x16_bf16 {v(SA,16)}, {v(KS[0],4)}, {v(QA,4)}, 0
v_mfma_f32_32x32x16_bf16 {v(SB,16)}, {v(KS[0],4)}, {v(QB,4)}, 0
""")
    a(f"""
s_nop 9
s_mov_b32 s{MODE}, 0
s_mov_b32 s{SL+2}, 0x0000ffff
s_mov_b32 s{SL+3}, 0x0000ffff
""")
    def maxtree(dst, b, init=None):
        o = []
        if init is None:
            o.append(f"v_max3_f32 v{dst}, v{b}, v{b+1}, v{b+2}")
            for i in range(3, 15, 2):
                o.append(f"v_max3_f32 v{dst}, v{dst}, v{b+i}, v{b+i+1}")
            o.append(f"v_max_f32 v{dst}, v{dst}, v{b+15}")
        else:
            for i in range(0, 16, 2):
                o.append(f"v_max3_f32 v{dst}, v{dst}, v{b+i}, v{b+i+1}")
        return o
    a.emit(rr(maxtree(38, SA), maxtree(39, SB)))
    NEGM = f"""
v_permlane32_swap_b32 v38, v39
s_nop 1
v_max_f32 v38, v38, v39
v_sub_f32 v38, 0, v38
v_mov_b32 v39, v38
s_nop 1
v_permlane32_swap_b32 v38, v39
"""
    def fill_nm():
        o = [f"v_mov_b32 v40, v38", f"v_mov_b32 v41, v38"]
        o += [f"v_mov_b64 {v(NMA+i,2)}, v[40:41]" for i in range(0, 16, 2)]
        o += [f"v_mov_b32 v38, v39"]
        o += [f"v_mov_b64 {v(NMB+i,2)}, v[38:39]" for i in range(0, 16, 2)]
        return o
    ZSB = [f"v_mov_b64 {v(SB+i,2)}, 0" for i in range(8, 16, 2)]
    a("s_nop 1")
    a(NEGM)
    a(f"""
s_nop 1
v_mov_b64 {v(POOL+14,2)}, v[38:39]
""")
    fm = fill_nm()
    a.emit(fm[:11])
    a.emit(ZSB)
    a(f"v_mfma_f32_32x32x16_bf16 {v(SA,16)}, {v(KS[0],4)}, {v(QA,4)}, {v(NMA,16)}")
    a.emit(fm[11:])
    stamp(a, 2, 3)
    a("s_setprio 0")
    stamp(a, 3, 3)
    a(f"ds_write_b64 v{POOL+11}, {v(POOL+14,2)}")
    a("s_waitcnt vmcnt(0) lgkmcnt(0)")
    stamp(a, 6); stamp(a, 4, 3)
    a(f"""
s_barrier
s_mov_b64 exec, {s(SL+2,2)}
ds_read_b128 {v(VS[0],4)}, v{ADDR} offset:1024
ds_read_b128 {v(VS[0]+4,4)}, v{ADDR} offset:1280
s_mov_b64 exec, -1
""")
    a.emit(flat(kvgrp(P_KVG, 5*4096) + kvgrp(P_KVG, R2 + 3*4096)))
    a("s_waitcnt lgkmcnt(0)")
    stamp(a, 8)
    a("s_branch L_slot0")

    XA = [4, 5, 6, 7]; WAD = [[8, 9, 10], [56, 57, 58]]
    BUF = [112, 176]
    ACC = [64, 80, 96]
    WPHI = [48, 52]
    GO, WD = 36, 37
    a("L_compute:")
    if P["CPF"]:
        a(f"""
s_getpc_b64 s[{T0}:{T0+1}]
L_pc:
s_sub_u32 s{T0}, s{T0}, L_pc-{NAME}
s_subb_u32 s{T0+1}, s{T0+1}, 0
s_lshr_b32 s{T0+2}, s2, 3
s_lshl_b32 s{T0+2}, s{T0+2}, 2
s_add_u32 s{T0+2}, s{T0+2}, s{S_WAVE}
s_lshl_b32 s{T0+2}, s{T0+2}, 8
s_min_u32 s{T0+2}, s{T0+2}, L_codeend-{NAME}-256
s_add_u32 s{T0}, s{T0}, s{T0+2}
s_addc_u32 s{T0+1}, s{T0+1}, 0
s_load_dword s{T0+3}, s[{T0}:{T0+1}], 0
s_load_dword s{T0+4}, s[{T0}:{T0+1}], 64
s_load_dword s{T0+5}, s[{T0}:{T0+1}], 128
s_load_dword s{T0+6}, s[{T0}:{T0+1}], 192
""")
    a(f"""
s_lshr_b32 s{TT}, s{S_WAVE}, 1
s_and_b32 s{PP}, s{S_WAVE}, 1
v_and_b32 v12, 31, v0
v_lshrrev_b32 v13, 5, v0
v_lshlrev_b32 v1, 4, v0
s_waitcnt lgkmcnt(0)
""")
    srd(a, S_MISC, 14, 15, 32*512)
    srd(a, S_WS, 24, 25, WS_SIZE)
    a(f"""
s_or_b32 s{T0+1}, s2, s{S_WAVE}
s_cmp_lg_u32 s{T0+1}, 0
s_cbranch_scc1 L_noinit
v_lshlrev_b32 v8, 8, v0
s_mov_b32 s{T0+1}, {WS_FL}
buffer_store_dword v{VZ}, v8, {s(S_WS,4)}, s{T0+1} offen sc1
s_waitcnt vmcnt(0)
v_mov_b32 v8, 1
s_mov_b64 exec, 1
global_store_dword v{VZ}, v8, s[22:23] sc1
s_mov_b64 exec, -1
L_noinit:
s_lshl_b32 s{T0}, s{S_HQ}, 1
s_add_u32 s{T0}, s{T0}, s{PP}
s_lshl_b32 s{T0}, s{T0}, 10
s_lshl_b32 s{T0+1}, s{S_WAVE}, 10
s_add_u32 s{T0+1}, s{T0+1}, {WL + 3*WSLOT}
s_mov_b32 m0, s{T0+1}
v_bfe_u32 v14, v0, 2, 2
buffer_load_dwordx4 v1, {s(S_MISC,4)}, s{T0} offen lds
s_cmp_ge_u32 s2, 128
s_cselect_b32 s{S_WA}, s16, s8
s_cselect_b32 s{S_WA+1}, s17, s9
s_mov_b32 s{S_WA+2}, {512*512*2}
s_mov_b32 s{S_WA+3}, 0x20000
s_lshl_b32 s{T0+2}, s2, 2
s_add_u32 s{T0+2}, s{T0+2}, s{S_WAVE}
s_bfe_u32 s{T0+3}, s{T0+2}, 0x50004
s_and_b32 s{T0+4}, s{T0+2}, 15
s_lshl_b32 s{T0+5}, s{T0+3}, 14
s_lshl_b32 s{T0+6}, s{T0+4}, 6
s_add_u32 s{T0+5}, s{T0+5}, s{T0+6}
v_lshrrev_b32 v16, 2, v0
v_lshlrev_b32 v16, 10, v16
v_and_b32 v17, 3, v0
v_lshl_add_u32 v16, v17, 4, v16
s_add_u32 m0, s{T0+1}, 4096
s_lshl_b32 s{GO}, s{S_TB}, 6
buffer_load_dwordx4 v16, {s(S_WA,4)}, s{T0+5} offen lds
s_lshl_b32 s{T0+6}, s{S_HQ}, 3
s_add_u32 s{GO}, s{GO}, s{T0+6}
s_lshl_b32 s{T0+6}, s{S_WAVE}, 1
s_add_u32 s{GO}, s{GO}, s{T0+6}
s_lshl_b32 s{T0+6}, s{GO}, 10
v_lshlrev_b32 v17, 5, v0
v_and_b32 v18, 0x3ff, v17
v_add_u32 v17, s{T0+6}, v17
global_load_dwordx4 v[20:23], v17, s[4:5]
global_load_dwordx4 v[24:27], v17, s[4:5] offset:16
global_load_dwordx4 v[28:31], v18, s[18:19]
global_load_dwordx4 v[32:35], v18, s[18:19] offset:16
s_lshl_b32 s{GO}, s{GO}, 2
s_add_u32 s{GO}, s{GO}, {WS_G}
s_lshr_b32 s{T0+6}, s{T0+4}, 1
s_lshl_b32 s{WD}, s{T0+6}, 17
s_lshr_b32 s{T0+6}, s{T0+2}, 9
s_lshl_b32 s{T0+6}, s{T0+6}, 16
s_add_u32 s{WD}, s{WD}, s{T0+6}
s_lshl_b32 s{T0+6}, s{T0+3}, 11
s_add_u32 s{WD}, s{WD}, s{T0+6}
s_and_b32 s{T0+6}, s{T0+4}, 1
s_lshl_b32 s{T0+6}, s{T0+6}, 10
s_add_u32 s{WD}, s{WD}, s{T0+6}
s_add_u32 s{WD}, s{WD}, {WS_WOF}
s_add_u32 s{T0+7}, s{T0+1}, 4096
""")
    tr64_addr(a, 19, 16, T0+7)
    a(f"""
v_lshlrev_b32 v40, 5, v14
v_lshl_add_u32 v40, v13, 7, v40
v_bfe_u32 v14, v0, 4, 1
v_lshl_add_u32 v40, v14, 4, v40
v_bfe_u32 v14, v0, 1, 1
v_lshl_add_u32 v40, v14, 3, v40
v_add_u32 v40, s{T0+1}, v40
s_lshl_b32 s{T0}, s{TT}, 12
v_lshlrev_b32 v15, 7, v12
v_add_u32 v15, s{T0}, v15
v_bfe_u32 v14, v12, 1, 3
v_xor_b32 v14, v14, v13
v_lshl_add_u32 v{XA[0]}, v14, 4, v15
v_xor_b32 v{XA[1]}, 32, v{XA[0]}
v_xor_b32 v{XA[2]}, 64, v{XA[0]}
v_xor_b32 v{XA[3]}, 96, v{XA[0]}
v_mul_u32_u24 v2, 3072, v13
v_bfe_u32 v14, v0, 2, 2
v_lshl_add_u32 v2, v14, 7, v2
v_bfe_u32 v14, v0, 3, 1
v_xor_b32 v14, s{PP}, v14
v_lshl_add_u32 v2, v14, 6, v2
v_bfe_u32 v14, v0, 4, 1
v_lshl_add_u32 v2, v14, 5, v2
v_and_b32 v15, 3, v0
v_lshl_add_u32 v2, v15, 3, v2
v_add_u32 v10, {WL+2048}, v2
v_lshl_add_u32 v2, v14, 10, v2
v_add_u32 v8, {WL}, v2
v_xor_b32 v9, 32, v8
v_add_u32 v56, {2*WSLOT}, v8
v_add_u32 v57, {2*WSLOT}, v9
v_add_u32 v58, {2*WSLOT}, v10
v_and_b32 v2, 0x33, v0
v_bfe_u32 v14, v0, 2, 1
v_lshl_or_b32 v2, v14, 3, v2
v_bfe_u32 v14, v0, 3, 1
v_lshl_or_b32 v2, v14, 2, v2
v_lshlrev_b32 v2, 4, v2
v_and_b32 v11, 0x2f, v0
v_lshlrev_b32 v11, 4, v11
v_bfe_u32 v14, v0, 4, 1
v_lshl_add_u32 v11, v14, 17, v11
s_mov_b32 s{SL}, {f2u(LOG2E):#x}
s_mov_b32 s{SL+1}, {f2u(0.25*LOG2E):#x}
s_mov_b32 s{SL+2}, 0x0000ffff
s_mov_b32 s{SL+3}, 0x0000ffff
s_mov_b32 s{MODE}, 0
s_lshl_b32 s{SX}, s{S_HQ}, 1
s_add_u32 s{SX}, s{SX}, s{PP}
s_lshl_b32 s{SX}, s{SX}, 7
s_lshl_b32 s{T0+1}, s{S_TB}, 1
s_add_u32 s{SX}, s{SX}, s{T0+1}
s_add_u32 s{SX}, s{SX}, s{TT}
s_mul_i32 s{T0+1}, s{S_WAVE}, 6144
s_add_u32 s{T0+1}, s{T0+1}, {L_CMB}
v_lshlrev_b32 v60, 6, v12
v_lshl_add_u32 v60, v13, 5, v60
v_add_u32 v60, s{T0+1}, v60
v_add_u32 v240, s{T0+1}, v1
s_mul_i32 s{T0+1}, s{PP}, 6144
s_add_u32 s{T0+1}, s{T0+1}, {L_CMB}
v_add_u32 v241, s{T0+1}, v1
s_lshl_b32 s{T0+2}, s{TT}, 11
s_add_u32 s{T0+1}, s{T0+1}, s{T0+2}
""")
    tr64_addr(a, 242, 14, T0+1)
    a(f"""
v_bfe_u32 v14, v0, 4, 1
v_xor_b32 v14, s{TT}, v14
v_bfe_i32 v244, v14, 0, 1
v_mov_b32 v245, 0x3f803f80
v_mov_b64 v[42:43], 0
v_bfe_u32 v14, v0, 2, 1
s_mov_b32 s{T0+1}, 0x80008000
v_mul_lo_u32 v41, v14, s{T0+1}
s_lshl_b32 s{T0}, s{S_WAVE}, 9
s_add_u32 s{T0}, s{T0}, {L_QH}
v_lshrrev_b32 v243, 1, v1
v_add_u32 v243, s{T0}, v243
""")
    persist(a, 1, R2)
    def reads(c):
        b0 = BUF[c & 1]
        o = []
        for step in range(4):
            b = b0 + 16*step
            o.append(f"ds_read_b128 {v(b,4)}, v{XA[step]} offset:{c*8192}")
            for j in range(3):
                ad = WAD[(c >> 1) & 1][j]
                for rd in range(2):
                    o.append(f"ds_read_b64_tr_b16 {v(b+4+4*j+2*rd,2)}, v{ad} offset:{(c&1)*WSLOT+step*6144+rd*512}")
        return o
    def mfmas(c):
        o = []
        for step in range(4):
            b = BUF[c & 1] + 16*step
            for j in range(3):
                x = v(b,4); w = v(b+4+4*j,4); d = v(ACC[j],16)
                cc = "0" if (c == 0 and step == 0) else d
                if j < 2: o.append(f"v_mfma_f32_32x32x16_bf16 {d}, {w}, {x}, {cc}")
                else:     o.append(f"v_mfma_f32_32x32x16_bf16 {d}, {x}, {w}, {cc}")
        return o
    RPG = P["RPG"]
    def body(c):
        m = mfmas(c); r_ = reads(c + 1)
        for i in range(12):
            a(m[i]); a.emit(r_[RPG*i:RPG*i+RPG])
    stamp(a, 1)
    a(f"s_mov_b32 s{CNT}, 0")
    a("L_pass:")
    a("s_barrier")
    a.emit(reads(0))
    a(f"s_cmp_eq_u32 s{CNT}, 0")
    for c in range(7):
        if c == 0:
            a("s_cbranch_scc0 L_nophi")
            a("s_waitcnt vmcnt(0)")
            for hd in range(2):
                for rd in range(2):
                    a(f"ds_read_b64_tr_b16 {v(WPHI[hd]+2*rd,2)}, v40 offset:{hd*512+rd*256}")
            a("ds_read_b64_tr_b16 v[36:37], v19")
            a("ds_read_b64_tr_b16 v[38:39], v19 offset:512")
            a("v_mov_b32 v16, 0")
            for i in range(8):
                a(f"v_dot2_f32_bf16 v16, v{20+i}, v{28+i}, v16")
            a(f"""
v_lshlrev_b32 v18, 2, v13
s_nop 2
v_add_f32_dpp v16, v16, v16 quad_perm:[1,0,3,2] row_mask:0xf bank_mask:0xf
s_nop 1
v_add_f32_dpp v16, v16, v16 quad_perm:[2,3,0,1] row_mask:0xf bank_mask:0xf
s_nop 1
v_add_f32_dpp v16, v16, v16 row_half_mirror row_mask:0xf bank_mask:0xf
s_nop 1
v_add_f32_dpp v16, v16, v16 row_mirror row_mask:0xf bank_mask:0xf
v_mov_b32 v17, v16
s_nop 1
v_permlane16_swap_b32 v16, v17
s_nop 1
v_add_f32 v16, v16, v17
v_mul_f32 v16, {f2u(-LOG2E):#x}, v16
v_exp_f32 v16, v16
s_nop 0
v_add_f32 v16, 1.0, v16
v_rcp_f32 v16, v16
s_waitcnt lgkmcnt(0)
buffer_store_dwordx4 v[36:39], v1, {s(S_WS,4)}, s{WD} offen sc1
s_mov_b32 exec_lo, 1
s_mov_b32 exec_hi, 1
buffer_store_dword v16, v18, {s(S_WS,4)}, s{GO} offen sc1
s_mov_b64 exec, -1
""")
            a("L_nophi:")
        if c == P["SIGC"]:
            a("s_cbranch_scc1 L_nodrain")
            a("s_waitcnt vmcnt(0)")
            a("L_nodrain:")
        a("s_waitcnt lgkmcnt(0)")
        a("s_barrier")
        if c == P["SIGC"]:
            assert 1 <= c <= 5
            a(f"s_cmp_eq_u32 s{CNT}, 1")
            a("s_cbranch_scc1 L_sig1")
            a("L_drained:")
        body(c)
    a("s_waitcnt lgkmcnt(0)")
    a("s_barrier")
    a.emit(mfmas(7))
    a(f"s_cmp_lg_u32 s{CNT}, 0")
    a("s_cbranch_scc1 L_epiB")
    stamp(a, 3)
    PK = 16
    a(f"""
s_add_u32 s{CNT}, s{S_WAVE}, 1
s_lshl_b32 s{T0+1}, s{SX}, 10
s_add_u32 s{T0+2}, s{T0+1}, 65536
s_lshl_b32 s{T0+3}, s{SX}, 11
s_add_u32 s{T0+3}, s{T0+3}, {WS_KV}
s_add_u32 s{T0+4}, s{T0+3}, 131072
""")
    for i in range(8):
        a(f"v_xor_b32 v{WPHI[0]+i}, v41, v{WPHI[0]+i}")
    for j in range(2):
        for i in range(4):
            a(f"v_cvt_pk_bf16_f32 v{PK+4*j+i}, v{ACC[j]+8+2*i}, v{ACC[j]+9+2*i}")
    for j in range(2):
        a(f"buffer_store_dwordx4 {v(PK+4*j,4)}, v2, {s(S_WS,4)}, s{T0+3+j} offen sc1")
    for i in range(8):
        a(f"v_cvt_pk_bf16_f32 v{PK+8+i}, v{ACC[2]+2*i}, v{ACC[2]+1+2*i}")
    a(f"buffer_store_dwordx4 {v(PK+8,4)}, v11, {s(S_WS,4)}, s{T0+3} offen offset:1024 sc1")
    a(f"buffer_store_dwordx4 {v(PK+12,4)}, v11, {s(S_WS,4)}, s{T0+3} offen offset:1280 sc1")
    for j in range(2):
        for i in range(0, 8, 2):
            a(f"v_pk_mul_f32 {v(ACC[j]+i,2)}, {v(ACC[j]+i,2)}, {s(SL,2)} op_sel:[0,1] op_sel_hi:[1,1]")
        for i in range(4):
            a(f"v_cvt_pk_bf16_f32 v{PK+16+4*j+i}, v{ACC[j]+2*i}, v{ACC[j]+1+2*i}")
    for j in range(2):
        a(f"buffer_store_dwordx4 {v(PK+16+4*j,4)}, v1, {s(S_WS,4)}, s{T0+1+j} offen sc1")
    a(f"global_load_dword v59, v{VZ}, s[22:23] sc1")
    stamp(a, 4)
    a("s_branch L_pass")
    a("L_epiB:")
    stamp(a, 5); stamp(a, 1, 3)
    PB = 224
    PV = 144
    PKB = [160, 176]; PQB = [192, 208]
    a(f"""
s_lshl_b32 s{T0+3}, s{SX}, 11
s_add_u32 s{T0+3}, s{T0+3}, {WS_PHQ}
s_add_u32 s{T0+4}, s{T0+3}, 131072
s_lshl_b32 s{T0+1}, s{S_HQ}, 1
s_add_u32 s{T0+1}, s{T0+1}, s{PP}
s_lshl_b32 s{T0+1}, s{T0+1}, 1
s_add_u32 s{T0+1}, s{T0+1}, s{TT}
s_lshl_b32 s{T0+1}, s{T0+1}, 5
s_add_u32 s{T0+1}, s{T0+1}, s{S_TB}
s_lshl_b32 s{T0+1}, s{T0+1}, 12
s_add_u32 s{T0+1}, s{T0+1}, {WS_KVP}
""")
    for j in range(2):
        for i in range(4, 8):
            a(f"v_cvt_pk_bf16_f32 v{PB+8*j+i}, v{ACC[j]+2*i}, v{ACC[j]+1+2*i}")
    for j in range(2):
        for i in range(4):
            a(f"v_cvt_pk_bf16_f32 v{PB+8*j+i}, v{ACC[j]+2*i}, v{ACC[j]+1+2*i}")
        a(f"v_mfma_f32_32x32x16_bf16 {v(PKB[j],16)}, {v(WPHI[j],4)}, {v(PB+8*j+4,4)}, 0")
    for j in range(2):
        for i in range(4*j, 4*j+4):
            a(f"v_cvt_pk_bf16_f32 v{PV+i}, v{ACC[2]+2*i}, v{ACC[2]+1+2*i}")
        a(f"v_mfma_f32_32x32x16_bf16 {v(PQB[j],16)}, {v(WPHI[j],4)}, {v(PB+8*j,4)}, 0")
    a(VINIT)
    a.emit(ZSB)
    a(f"v_add_u32 v{ADDR}, {R2}, v1")
    a.emit(ZERO_O)
    stamp(a, 2, 3)
    sq = rr(softmax16(PKB[0], 64), softmax16(PKB[1], 68), softmax16(PQB[0], 72), softmax16(PQB[1], 76))
    a.emit([x for x in sq if x != "s_nop 0"])
    stamp(a, 3, 3)
    for j in range(2):
        a(f"ds_write_b128 v60, {v(PKB[j],4)} offset:{j*2048}")
        a(f"ds_write_b128 v60, {v(PKB[j]+4,4)} offset:{j*2048+16}")
    a(f"ds_write_b128 v240, {v(PV,4)} offset:4096")
    a(f"ds_write_b128 v240, {v(PV+4,4)} offset:5120")
    a(f"""
s_sub_u32 s{T0+2}, s{P_PHQ}, {WS_PHQ + 2048}
s_lshr_b32 s{T0+2}, s{T0+2}, 1
s_add_u32 s{T0}, s{P_OF}, {OBR}
s_lshl_b32 s{P_KVB}, s{S_H}, 17
s_add_u32 s{P_KVB}, s{P_KVB}, {WS_KV}
s_lshl_b32 s{P_KVG}, s{S_WAVE}, 12
s_add_u32 s{P_KVG}, s{P_KVG}, {R2 - LEAD*4096}
s_waitcnt lgkmcnt(0)
""")
    stamp(a, 6); stamp(a, 4, 3)
    AF, VF, KVA = 160, 176, 224
    a(f"""
s_barrier
s_setprio 3
buffer_load_dwordx4 {v(QA,4)}, v1, {s(S_WS,4)}, s{T0+2} offen sc1
buffer_load_dwordx4 {v(QB,4)}, v1, {s(S_WS,4)}, s{T0+2} offen offset:1024 sc1
""")
    for t in range(2):
        for sx in range(2):
            a(f"ds_read_b128 {v(VF+8*t+4*sx,4)}, v241 offset:{t*12288+4096+sx*1024}")
    for t in range(2):
        for sx in range(2):
            for rd in range(2):
                a(f"ds_read_b64_tr_b16 {v(AF+8*t+4*sx+2*rd,2)}, v242 offset:{t*12288+(16*sx+8*rd)*64}")
    a("s_waitcnt lgkmcnt(0)")
    a(f"""
ds_read_b64 v[38:39], v243
ds_read_b128 {v(KS[0],4)}, v{ADDR}
s_mov_b64 exec, {s(SL+2,2)}
ds_read_b128 {v(VS[0],4)}, v{ADDR} offset:1024
ds_read_b128 {v(VS[0]+4,4)}, v{ADDR} offset:1280
s_mov_b64 exec, -1
""")
    for i in range(16):
        a(f"v_bfi_b32 v{VF+i}, v244, v245, v{VF+i}")
        if i in (7, 11, 15):
            k_ = (i - 7) // 4
            a(f"v_mfma_f32_32x32x16_bf16 {v(KVA,16)}, {v(AF+4*k_,4)}, {v(VF+4*k_,4)}, {'0' if k_ == 0 else v(KVA,16)}")
    a(f"""
s_waitcnt lgkmcnt(0)
v_mfma_f32_32x32x16_bf16 {v(KVA,16)}, {v(AF+12,4)}, {v(VF+12,4)}, {v(KVA,16)}
""")
    a.emit(fm)
    a(f"v_subrev_u32 v{ADDR}, {2*LEAD*2048}, v{ADDR}")
    a("s_waitcnt vmcnt(0)")
    a(f"v_mfma_f32_32x32x16_bf16 {v(SA,16)}, {v(KS[0],4)}, {v(QA,4)}, {v(NMA,16)}")
    stamp(a, 7)
    for q in range(4):
        a(f"buffer_store_dwordx4 {v(KVA+4*q,4)}, v1, {s(S_WS,4)}, s{T0+1} offen offset:{q*1024} sc1")
    for j in range(2):
        a(f"buffer_store_dwordx4 {v(PQB[j],4)}, v1, {s(S_WS,4)}, s{T0+3+j} offen sc1")
        a(f"buffer_store_dwordx4 {v(PQB[j]+4,4)}, v1, {s(S_WS,4)}, s{T0+3+j} offen offset:1024 sc1")
    a("s_nop 1")
    stamp(a, 8)
    a(f"s_branch L_slot{LEAD}")

    def e(b, i): return f"v_exp_f32 v{b+i}, v{b+i}"
    def sm(o, vv, p): return f"v_smfmac_f32_32x32x32_bf16 {v(o,16)}, {v(vv,4)}, {v(p,8)}, v{IDX}"
    def slot(base, last=False, bg=None):
        bg = bg or {}
        o = []
        k = [0]
        def ex(b, i):
            o.append(e(b, i))
            o.extend(bg.get(k[0], []))
            k[0] += 1
        for c in range(2):
            n = c ^ 1
            off = base + (c + 1) * 2048
            pf = not (last and c == 1)
            if pf: o.append(f"ds_read_b128 {v(KS[n],4)}, v{ADDR} offset:{off}")
            ex(SA,0); ex(SA,1)
            o.append(sm(OB, VS[n]+4, SB+8))
            if pf:
                o.append(f"s_mov_b64 exec, {s(SL+2,2)}")
                o.append(f"ds_read_b128 {v(VS[n],4)}, v{ADDR} offset:{off+1024}")
                o.append(f"ds_read_b128 {v(VS[n]+4,4)}, v{ADDR} offset:{off+1280}")
                o.append("s_mov_b64 exec, -1")
            ex(SA,2); ex(SA,3)
            o.append(f"v_mfma_f32_32x32x16_bf16 {v(SB,16)}, {v(KS[c],4)}, {v(QB,4)}, {v(NMB,16)}")
            for i in range(4, 10): ex(SA,i)
            o.append(sm(OA, VS[c], SA))
            for i in range(10, 16): ex(SA,i)
            ex(SB,0); ex(SB,1)
            o.append(sm(OA, VS[c]+4, SA+8))
            ex(SB,2); ex(SB,3)
            if pf:
                o.append("s_waitcnt lgkmcnt(0)")
                o.append(f"v_mfma_f32_32x32x16_bf16 {v(SA,16)}, {v(KS[n],4)}, {v(QA,4)}, {v(NMA,16)}")
            for i in range(4, 10): ex(SB,i)
            o.append(sm(OB, VS[c], SB))
            for i in range(10, 16): ex(SB,i)
        return o
    def spread(bg, items, lo, hi):
        n = len(items)
        for i, it in enumerate(items):
            pos = lo + (i * (hi - lo + 1)) // n
            bg.setdefault(pos, []).extend(it if isinstance(it, list) else [it])
    BG = {sl: {} for sl in range(NS)}
    M16 = "0x00ff00ff"
    assert LEAD == 2 and (BD, BA, BW) == (4, 8, 12)
    spread(BG[P["CLS"]], [f"buffer_store_dwordx4 v[44:47], v1, {s(S_WS,4)}, s{P_OF} offen sc1",
        [f"s_add_u32 s{T0}, s{P_OF}, {OBR}", f"buffer_store_dwordx4 v[44:47], v1, {s(S_WS,4)}, s{T0} offen sc1"],
        [f"s_cmp_lg_u32 s{KH}, 0", f"s_cselect_b32 exec_lo, 0, {M16}", "s_mov_b32 exec_hi, 0", f"buffer_store_dword v44, v43, {s(S_WS,4)}, s{P_KVT} offen sc1", "s_mov_b64 exec, -1"]], 10, 56)
    spread(BG[BD], kvgrp(P_KVG, 9*4096), 8, 56)
    spread(BG[BA], kvgrp(P_KVG, 13*4096), 14, 38)
    spread(BG[C0+1], [[f"s_cmp_lg_u32 s{KH}, 0", "s_cbranch_scc1 L_skipA", f"buffer_load_dword v41, v{VZ}, {s(S_WS,4)}, s{P_F2} offen sc1", "L_skipA:"]], 56, 56)
    l1a = [f"s_cmp_lg_u32 s{KH}, 0", "s_cbranch_scc1 L_skipB", "s_waitcnt vmcnt(0)", f"v_readfirstlane_b32 s{T0+6}, v41",
           f"s_add_u32 s{T0}, s{P_KVS}, 32768", f"s_add_u32 s{T0+1}, s{P_KVS}, 65536", f"s_add_u32 s{T0+2}, s{P_KVS}, 98304",
           f"s_cmp_lt_u32 s{T0+6}, 32", "s_cbranch_scc1 L_flagspin", "L_flagok:"]
    for p in range(4):
        l1a.append(f"buffer_load_dwordx4 {v(POOL+4*p,4)}, v42, {s(S_WS,4)}, s{P_KVS if p == 0 else T0+p-1} offen sc1")
    l1a.append("L_skipB:")
    spread(BG[C0+2], [l1a], 10, 10)
    l1b = ["s_waitcnt vmcnt(0)", f"s_cmp_lg_u32 s{KH}, 0", "s_cbranch_scc1 L_skipC"]
    for i in range(4): l1b.append(f"v_add_f32 v{POOL+i}, v{POOL+i}, v{POOL+4+i}")
    for i in range(4): l1b.append(f"v_add_f32 v{POOL+8+i}, v{POOL+8+i}, v{POOL+12+i}")
    for i in range(4): l1b.append(f"v_add_f32 v{POOL+i}, v{POOL+i}, v{POOL+8+i}")
    l1b += L(f"""
v_permlane32_swap_b32 v{POOL}, v{POOL+1}
s_nop 0
v_permlane32_swap_b32 v{POOL+2}, v{POOL+3}
v_add_f32 v{POOL}, v{POOL}, v{POOL+1}
s_nop 0
v_add_f32 v{POOL+2}, v{POOL+2}, v{POOL+3}
s_nop 1
v_permlane16_swap_b32 v{POOL}, v{POOL+2}
s_nop 1
v_add_f32 v{POOL}, v{POOL}, v{POOL+2}
s_nop 1
v_add_f32_dpp v{POOL}, v{POOL}, v{POOL} row_ror:8 row_mask:0xf bank_mask:0xf
v_mov_b32 v{POOL+1}, v{POOL}
s_nop 1
v_permlane32_swap_b32 v{POOL}, v{POOL+1}
s_nop 1
v_cvt_pk_bf16_f32 v40, v{POOL}, v{POOL+1}
v_min_u32 v40, -2, v40
s_mov_b32 exec_lo, {M16}
s_mov_b32 exec_hi, 0
buffer_store_dword v40, v43, {s(S_WS,4)}, s{P_KVT} offen sc1
s_mov_b64 exec, -1
L_skipC:
""")
    spread(BG[C0+3], [l1b], 30, 30)
    if BS == BD: assert C0 + 3 < BA
    CB = C0 + 4
    spread(BG[CB], L(f"""
v_and_b32 v42, 7, v0
v_lshlrev_b32 v42, 8, v42
s_mov_b32 s{T0+5}, {WS_FL + 8*256}
buffer_load_dword v41, v42, {s(S_WS,4)}, s{T0+5} offen sc1
"""), 40, 56)
    KT = OBF
    R = OBF + 16
    ktl = [f"buffer_load_dwordx4 {v(KT,4)}, v1, {s(S_WS,4)}, s{P_KVT} offen sc1",
           f"buffer_load_dwordx4 {v(KT+4,4)}, v1, {s(S_WS,4)}, s{P_KVT} offen offset:1024 sc1"]
    spread(BG[CB+1], [["s_waitcnt vmcnt(0)", "v_cmp_gt_u32 vcc, 32, v41"]], 24, 24)
    spread(BG[CB+1], [["s_cbranch_vccnz L_flag2spin", "L_flag2ok:"],
                      f"buffer_load_dwordx4 {v(PQ,4)}, v1, {s(S_WS,4)}, s{P_PHQ} offen sc1",
                      f"buffer_load_dwordx4 {v(PQ+4,4)}, v1, {s(S_WS,4)}, s{P_PHQ} offen offset:1024 sc1"] + ktl, 28, 60)
    ktc = L(f"""
v_max3_u32 v40, v{KT}, v{KT+1}, v{KT+2}
v_max3_u32 v41, v{KT+3}, v{KT+4}, v{KT+5}
v_max3_u32 v40, v40, v{KT+6}, v{KT+7}
v_max_u32 v40, v40, v41
v_cmp_eq_u32 vcc, -1, v40
""")
    spread(BG[CB+2], [["s_waitcnt vmcnt(0)", ktc[0]]] + ktc[1:], 22, 27)
    spread(BG[CB+2], [["s_cbranch_vccnz L_ktspin", "L_ktok:", f"v_mfma_f32_32x32x16_bf16 {v(R,16)}, {v(KT,4)}, {v(PQ,4)}, 0"]], 30, 30)
    spread(BG[CB+2], [f"v_mfma_f32_32x32x16_bf16 {v(R,16)}, {v(KT+4,4)}, {v(PQ+4,4)}, {v(R,16)}"], 45, 45)
    ob = [f"v_add_f32 v40, {f2u(1e-6):#x}, v{R+8}", "v_rcp_f32 v40, v40"]
    ob += [f"v_mul_f32 v{R+i}, v{R+i}, v40" for i in range(8)]
    ob += [f"v_cvt_pk_bf16_f32 v{KACC+i}, v{R+2*i}, v{R+2*i+1}" for i in range(4)]
    ob += [f"v_min_u32 v{KACC+i}, -2, v{KACC+i}" for i in range(4)]
    ob += [[f"s_add_u32 s{T0}, s{P_OF}, {OBR}", f"buffer_store_dwordx4 {v(KACC,4)}, v1, {s(S_WS,4)}, s{T0} offen sc1"]]
    spread(BG[CB+3], ob, 0, 24)
    wob = []
    for i in range(16):
        g = [f"buffer_load_dwordx4 {v(POOL+4*i,4)}, v1, {s(S_WS,4)}, s{P_WOB} offen offset:{(i&3)*1024} sc1"]
        if i & 3 == 3: g.append(f"s_add_u32 s{P_WOB}, s{P_WOB}, 4096")
        wob.append(g)
    def woa_dma():
        o = []
        for g in range(2):
            o.append([f"s_add_u32 m0, s{P_WOL}, {g*4096}", f"s_add_u32 s{T0+1}, s{P_WOF}, {g*4096}"])
            for i in range(4):
                o.append(f"buffer_load_dwordx4 v1, {s(S_WS,4)}, s{T0+1} offen offset:{i*1024} sc1 lds")
        return o
    if BS == BD:
        spread(BG[CB+3], wob[:4], 30, 60)
        spread(BG[BW], woa_dma(), 2, 60)
        spread(BG[BW+1], wob[4:10], 2, 60)
        spread(BG[BW+2], wob[10:], 2, 60)
        OBS, OBLO, OBHI, PLO, PHI = NS - 2, 4, 60, 4, 40
    else:
        spread(BG[CB+2], wob[:2], 50, 60)
        spread(BG[CB+3], wob[2:7], 28, 60)
        spread(BG[CB+4], wob[7:16], 2, 60)
        spread(BG[CB+5], woa_dma(), 2, 60)
        OBS, OBLO, OBHI, PLO, PHI = NS - 1, 0, 30, 32, 60
    def ob_loads():
        o = [[f"s_add_u32 s{T0}, s{P_OA}, {OBR}", f"s_add_u32 s{T0+1}, s{P_OA}, {OBR+4096}"]]
        for j in range(8):
            o.append(f"buffer_load_dwordx4 {v(OBF+4*j,4)}, v1, {s(S_WS,4)}, s{T0+j//4} offen offset:{(j&3)*1024} sc1")
        return o
    spread(BG[OBS], L(f"""
v_and_b32 v40, 31, v0
v_lshlrev_b32 v40, 2, v40
buffer_load_dword v{GV}, v40, {s(S_WS,4)}, s{P_G} offen sc1
""") + ob_loads(), OBLO, OBHI)
    spread(BG[NS-1], L(f"""
s_mul_i32 s{T0}, s{S_WAVE}, {EXS}
s_add_u32 s{T0}, s{T0}, {L_EX}
v_add_u32 v40, s{T0}, v1
v_lshlrev_b32 v2, 2, v0
v_add_u32 v42, s{T0}, v2
s_xor_b32 s{T0+1}, s{S_WAVE}, 4
s_mul_i32 s{T0+1}, s{T0+1}, {EXS}
s_add_u32 s{T0+1}, s{T0+1}, {L_EX}
v_add_u32 v41, s{T0+1}, v1
v_add_u32 v43, s{T0+1}, v2
v_and_b32 v2, 28, v2
v_add_u32 v2, {L_FLAG}, v2
s_lshl_b32 s{T0}, s{S_WAVE}, 2
s_add_u32 s{T0}, s{T0}, {L_FLAG}
v_mov_b32 v44, s{T0}
"""), PLO, PHI)
    bars = sorted(set([BD, BS, BA, BW, NS]))
    REB = 9
    a(".p2align 6")
    for sl in range(NS):
        a(f"L_slot{sl}:")
        if 1 <= sl - 4 <= 12: stamp(a, sl - 4, 1)
        if sl < 12: stamp(a, sl + 1, 4)
        if sl == BD and BD != BS:
            a(f"s_cmp_lg_u32 s{KH}, 0")
            a("s_cbranch_scc1 L_nowaitD")
            a("s_waitcnt vmcnt(3)" if P["CLS"] < BD else "s_waitcnt vmcnt(0)")
            a("L_nowaitD:")
            a("s_barrier")
        if sl == BS:
            a("s_waitcnt vmcnt(0)")
            a("s_barrier")
            a(f"s_cmp_eq_u32 s{S_WAVE}, 0")
            a("s_cbranch_scc1 L_sig2")
            a("L_sig2done:")
        if sl in (BA, BW):
            a("s_barrier")
        if True:
            nb = min(b for b in bars if b > sl)
            a(f"s_setprio {min(3, nb - sl - 1)}")
        if sl == REB:
            a(f"v_add_u32 v{ADDR}, {REB*4096}, v{ADDR}")
        a.emit(slot((sl - (REB if sl >= REB else 0)) * 4096, sl == NS - 1, BG[sl]))
    a("L_tail:")
    a("s_nop 1")
    a(sm(OB, VS[1]+4, SB+8))
    stamp(a, 9)
    def chk(dst, o):
        r = [f"v_add_f32 v{dst}, abs(v{o}), abs(v{o+8})"]
        for i in range(1, 8):
            r.append(f"v_add_f32 v{dst}, v{dst}, abs(v{o+i})")
        return r
    a(f"""
s_setprio 3
s_mov_b32 s{T0}, 0x7b800000
""")
    a.emit(chk(38, OA))
    a(f"""
s_cmp_eq_u32 s{KH}, 0
s_cbranch_scc1 L_send_b
ds_write_b128 v40, {v(OA,4)}
ds_write_b128 v40, {v(OA+4,4)} offset:1024
ds_write_b32 v42, v{OA+8} offset:2048
s_branch L_sent
L_send_b:
s_nop 1
ds_write_b128 v40, {v(OB,4)}
ds_write_b128 v40, {v(OB+4,4)} offset:1024
ds_write_b32 v42, v{OB+8} offset:2048
L_sent:
""")
    a.emit(chk(39, OB))
    a(f"""
v_add_f32 v38, v38, v39
v_cmp_ngt_f32 vcc, s{T0}, v38
s_nop 4
s_or_b32 s{T0}, vcc_lo, vcc_hi
v_mov_b32 v45, s{T0}
ds_write_b32 v44, v45
s_waitcnt lgkmcnt(0) vmcnt(9)
s_barrier
""")
    stamp(a, 10)
    a(f"""
ds_read_b32 v45, v2
ds_read_b32 v{SA+8}, v43 offset:2048
ds_read_b128 {v(SA,4)}, v41
ds_read_b128 {v(SA+4,4)}, v41 offset:1024
s_cmp_eq_u32 s{KH}, 0
s_cbranch_scc1 L_keep_a
""")
    for i in range(0, 8, 2):
        a(f"v_mov_b64 {v(OA+i,2)}, {v(OB+i,2)}")
    a(f"""
v_mov_b32 v{OA+8}, v{OB+8}
L_keep_a:
s_waitcnt lgkmcnt(0)
v_cmp_ne_u32 vcc, 0, v45
v_add_f32 v{OA+8}, v{OA+8}, v{SA+8}
v_rcp_f32 v{OA+8}, v{OA+8}
""")
    for i in range(0, 8, 2):
        a(f"v_pk_add_f32 {v(OA+i,2)}, {v(OA+i,2)}, {v(SA+i,2)}")
    a(f"""
s_cmp_lg_u32 s{MODE}, 0
s_cbranch_scc1 L_fine
s_cbranch_vccnz L_slow
L_fine:
""")
    for i in range(0, 8, 2):
        a(f"v_pk_mul_f32 {v(OA+i,2)}, {v(OA+i,2)}, {v(OA+8,2)} op_sel_hi:[1,0]")
    for i in range(4):
        a(f"v_cvt_pk_bf16_f32 v{KACC+i}, v{OA+2*i}, v{OA+2*i+1}")
    for i in range(4):
        a(f"v_min_u32 v{KACC+i}, -2, v{KACC+i}")
    a(f"buffer_store_dwordx4 {v(KACC,4)}, v1, {s(S_WS,4)}, s{P_OF} offen sc1")
    stamp(a, 11)
    OFA = 80
    ACCA = [112, 128]
    ACCB = 48
    a(f"""
s_mov_b32 s{T0+7}, 0
s_waitcnt vmcnt(1)
L_obchk:
v_max3_u32 v40, v{OBF}, v{OBF+1}, v{OBF+2}
v_max3_u32 v41, v{OBF+3}, v{OBF+4}, v{OBF+5}
""")
    for i in range(6, 30, 4):
        a(f"v_max3_u32 v40, v40, v{OBF+i}, v{OBF+i+1}")
        a(f"v_max3_u32 v41, v41, v{OBF+i+2}, v{OBF+i+3}")
    a(f"""
v_max3_u32 v40, v40, v{OBF+30}, v{OBF+31}
v_max_u32 v40, v40, v41
v_cmp_eq_u32 vcc, -1, v40
s_bfe_u32 s{T0}, s{S_WAVE}, 0x10001
s_lshl_b32 s{T0}, s{T0}, 14
s_lshr_b32 s{T0+1}, s{S_WAVE}, 2
s_mul_i32 s{T0+1}, s{T0+1}, {R2}
s_add_u32 s{T0}, s{T0}, s{T0+1}
v_add_u32 v39, s{T0}, v1
s_cbranch_vccnz L_obretry
L_obok:
""")
    prep = L(f"""
v_and_b32 v12, 31, v0
v_lshrrev_b32 v13, 5, v0
s_lshl_b32 s{T0}, s{S_WAVE}, 13
v_lshlrev_b32 v4, 8, v12
v_add_u32 v4, s{T0}, v4
v_and_b32 v14, 7, v0
v_lshlrev_b32 v15, 2, v13
v_xor_b32 v14, v14, v15
v_lshl_add_u32 v4, v14, 4, v4
v_xor_b32 v5, 16, v4
v_xor_b32 v6, 32, v4
v_xor_b32 v7, 48, v4
v_lshrrev_b32 v14, 3, v0
v_and_b32 v15, 7, v0
v_lshlrev_b32 v8, 1, v15
v_xor_b32 v8, v8, v14
v_lshlrev_b32 v8, 4, v8
v_lshl_add_u32 v8, v14, 8, v8
s_lshl_b32 s{T0}, s{S_WAVE}, 11
v_add_u32 v8, s{T0}, v8
v_xor_b32 v9, 16, v8
v_lshlrev_b32 v10, 10, v14
v_lshl_add_u32 v10, v15, 4, v10
s_and_b32 s{T0}, s2, 31
s_lshl_b32 s{T0}, s{T0}, 16
s_lshl_b32 s{T0+1}, s{S_WAVE}, 13
s_add_u32 s{T0}, s{T0}, s{T0+1}
s_lshr_b32 s{T0+1}, s2, 5
s_lshl_b32 s{T0+1}, s{T0+1}, 7
s_add_u32 s{T0}, s{T0}, s{T0+1}
s_add_u32 s{T0+2}, s{P_OA}, 4096
v_sub_f32 v38, 1.0, v{GV}
s_mov_b32 s{S_X}, s20
s_mov_b32 s{S_X+1}, s21
s_mov_b32 s{S_X+2}, {2048*512*2}
s_mov_b32 s{S_X+3}, 0x20000
""")
    k = 0
    for j in range(8):
        for ct in range(2):
            c = v(ACCB+16*ct,16)
            a(f"v_mfma_f32_32x32x16_bf16 {c}, {v(POOL+8*j+4*ct,4)}, {v(OBF+4*j,4)}, {'0' if j==0 else c}")
            a(f"ds_read_b128 {v(POOL+8*j+4*ct,4)}, v39 offset:{(2*j+ct)*1024}")
            a.emit(prep[k:k+3]); k += 3
    def oa_load(j):
        return f"buffer_load_dwordx4 {v(OFA+4*j,4)}, v1, {s(S_WS,4)}, s{P_OA if j < 4 else T0+2} offen offset:{(j&3)*1024} sc1"
    for j in range(8): a(oa_load(j))
    a("s_nop 4")
    for i in range(0, 32, 2):
        a(f"v_pk_mul_f32 {v(ACCB+i,2)}, {v(ACCB+i,2)}, v[38:39] op_sel_hi:[1,0]")
    a("s_waitcnt lgkmcnt(0)")
    a("s_barrier")
    for j in range(8):
        f = OFA + 4*j
        a(f"""
L_cons{j}:
s_waitcnt vmcnt({7-j})
v_max3_u32 v38, v{f}, v{f+1}, v{f+2}
v_max_u32 v38, v38, v{f+3}
v_cmp_eq_u32 vcc, -1, v38
s_nop 4
s_cbranch_vccnz L_retry{j}
L_go{j}:
""")
        for ct in range(2):
            c = v(ACCA[ct],16)
            a(f"v_mfma_f32_32x32x16_bf16 {c}, {v(POOL+8*j+4*ct,4)}, {v(f,4)}, {'0' if j==0 else c}")
    stamp(a, 12)
    a("s_nop 10")
    for ct in range(2):
        for i in range(0, 16, 2):
            a(f"v_pk_fma_f32 {v(ACCA[ct]+i,2)}, {v(ACCA[ct]+i,2)}, {v(GV,2)}, {v(ACCB+16*ct+i,2)} op_sel_hi:[1,0,1]")
        for q in range(4):
            a(f"ds_write_b128 v{4+q}, {v(ACCA[ct]+4*q,4)} offset:{ct*128}")
    a(f"""
s_waitcnt lgkmcnt(0)
s_barrier
""")
    for kq in range(4):
        a(f"ds_read_b128 {v(16+8*kq,4)}, v8 offset:{kq*16384}")
        a(f"ds_read_b128 {v(20+8*kq,4)}, v9 offset:{kq*16384}")
    for kq in range(1, 4):
        a(f"s_waitcnt lgkmcnt({6-2*kq})")
        for i in range(0, 8, 2):
            a(f"v_pk_add_f32 {v(16+i,2)}, {v(16+i,2)}, {v(16+8*kq+i,2)}")
    for i in range(4):
        a(f"v_cvt_pk_bf16_f32 v{16+i}, v{16+2*i}, v{17+2*i}")
    a(f"buffer_store_dwordx4 v[16:19], v10, {s(S_X,4)}, s{T0} offen sc1")
    stamp_out(a)
    a("L_end:")
    a("s_endpgm")
    for j in range(8):
        a(f"""
L_retry{j}:
s_add_u32 s{T0+7}, s{T0+7}, 1
s_cmp_ge_u32 s{T0+7}, {SPIN}
s_cbranch_scc1 L_go{j}
""")
        for jj in range(j, 8): a(oa_load(jj))
        a(f"s_branch L_cons{j}")
    a(f"""
L_obretry:
s_add_u32 s{T0+7}, s{T0+7}, 1
s_cmp_ge_u32 s{T0+7}, {SPIN}
s_cbranch_scc1 L_obok
""")
    for g in ob_loads(): a.emit(g if isinstance(g, list) else [g])
    a(f"""
s_waitcnt vmcnt(0)
s_branch L_obchk
L_pollF1:
s_sleep {P["PSL"]}
buffer_load_dword v40, v{VZ}, {s(S_WS,4)}, s{T0} offen sc1
s_add_u32 s{T0+7}, s{T0+7}, 1
s_waitcnt vmcnt(0)
v_readfirstlane_b32 s{T0+6}, v40
s_cmp_ge_u32 s{T0+6}, 32
s_cbranch_scc1 L_pollF1_ok
s_cmp_lt_u32 s{T0+7}, {SPIN}
s_cbranch_scc1 L_pollF1
s_branch L_pollF1_ok
L_sig1:
s_mov_b32 s{T0+7}, 0
L_initpoll:
v_readfirstlane_b32 s{T0+6}, v59
s_cmp_lg_u32 s{T0+6}, 0
s_cbranch_scc1 L_initok
s_sleep 4
global_load_dword v59, v{VZ}, s[22:23] sc1
s_add_u32 s{T0+7}, s{T0+7}, 1
s_waitcnt vmcnt(0)
s_cmp_lt_u32 s{T0+7}, {SPIN}
s_cbranch_scc1 L_initpoll
L_initok:
s_lshl_b32 s{T0}, s{S_HQ}, 8
s_add_u32 s{T0}, s{T0}, {WS_FL}
v_mov_b32 v59, 1
s_mov_b64 exec, 1
buffer_atomic_add v59, v{VZ}, {s(S_WS,4)}, s{T0} offen sc1
s_mov_b64 exec, -1
""")
    stamp(a, 2)
    a(f"""
s_branch L_drained
L_sig2:
s_lshl_b32 s{T0}, s{S_HQ}, 8
s_add_u32 s{T0}, s{T0}, {WS_FL + 8*256}
v_mov_b32 v38, 1
s_mov_b64 exec, 1
buffer_atomic_add v38, v{VZ}, {s(S_WS,4)}, s{T0} offen sc1
s_mov_b64 exec, -1
s_branch L_sig2done
L_flagspin:
s_mov_b32 s{T0+7}, 0
L_flagspin2:
s_sleep 16
buffer_load_dword v41, v{VZ}, {s(S_WS,4)}, s{P_F2} offen sc1
s_add_u32 s{T0+7}, s{T0+7}, 1
s_waitcnt vmcnt(0)
v_readfirstlane_b32 s{T0+6}, v41
s_cmp_ge_u32 s{T0+6}, 32
s_cbranch_scc1 L_flagok
s_cmp_lt_u32 s{T0+7}, {SPIN}
s_cbranch_scc1 L_flagspin2
s_branch L_flagok
L_flag2spin:
s_mov_b32 s{T0+7}, 0
L_flag2spin2:
s_sleep 32
buffer_load_dword v41, v42, {s(S_WS,4)}, s{T0+5} offen sc1
s_add_u32 s{T0+7}, s{T0+7}, 1
s_waitcnt vmcnt(0)
v_cmp_gt_u32 vcc, 32, v41
s_cmp_ge_u32 s{T0+7}, {SPIN}
s_cbranch_scc1 L_flag2ok
s_nop 2
s_cbranch_vccnz L_flag2spin2
s_branch L_flag2ok
L_ktspin:
s_mov_b32 s{T0+7}, 0
L_ktspin2:
s_sleep 8
""")
    a.emit(ktl)
    a(f"""
s_add_u32 s{T0+7}, s{T0+7}, 1
s_waitcnt vmcnt(0)
""")
    a.emit(ktc)
    a(f"""
s_cmp_ge_u32 s{T0+7}, {SPIN}
s_cbranch_scc1 L_ktok
s_nop 2
s_cbranch_vccnz L_ktspin2
s_branch L_ktok
""")
    a(f"""
L_slow:
s_barrier
s_mov_b32 s{MODE}, 1
s_lshl_b32 s{T0+1}, s{S_H}, 17
s_add_u32 s{T0+1}, s{T0+1}, {WS_KV}
s_add_u32 s{T0+1}, s{T0+1}, s{P_WOL}
""")
    for g in range(2):
        a(f"s_add_u32 m0, s{P_WOL}, {g*4096}")
        a(f"s_add_u32 s{T0+1}, s{T0+1}, {g*4096}")
        for i in range(4):
            a(f"buffer_load_dwordx4 v1, {s(S_WS,4)}, s{T0+1} offen offset:{i*1024} sc1 lds")
    a(f"""
s_mov_b32 s{CNT}, 0
v_mov_b32 v{ADDR}, v1
v_mov_b32 v38, 0xff800000
v_mov_b32 v39, 0xff800000
v_mov_b32 v46, v40
v_mov_b32 v47, v41
s_waitcnt vmcnt(0)
s_barrier
L_mloop:
ds_read_b128 {v(KS[0],4)}, v{ADDR}
s_waitcnt lgkmcnt(0)
v_mfma_f32_32x32x16_bf16 {v(SA,16)}, {v(KS[0],4)}, {v(QA,4)}, 0
v_mfma_f32_32x32x16_bf16 {v(SB,16)}, {v(KS[0],4)}, {v(QB,4)}, 0
s_nop 15
""")
    a.emit(rr(maxtree(38, SA, 1), maxtree(39, SB, 1)))
    a(f"""
v_add_u32 v{ADDR}, 2048, v{ADDR}
s_add_u32 s{CNT}, s{CNT}, 1
s_cmp_lt_u32 s{CNT}, 64
s_cbranch_scc1 L_mloop
""")
    a(NEGM)
    a(f"""
s_lshl_b32 s{T0}, s{KH}, 16
v_add_u32 v{ADDR}, s{T0}, v1
s_mov_b32 s{CNT}, 0
ds_read_b128 {v(KS[0],4)}, v{ADDR}
s_mov_b64 exec, {s(SL+2,2)}
ds_read_b128 {v(VS[0],4)}, v{ADDR} offset:1024
ds_read_b128 {v(VS[0]+4,4)}, v{ADDR} offset:1280
s_mov_b64 exec, -1
""")
    a.emit(fm); a.emit(ZERO_O); a.emit(ZSB)
    a(f"""
s_waitcnt lgkmcnt(0)
v_mfma_f32_32x32x16_bf16 {v(SA,16)}, {v(KS[0],4)}, {v(QA,4)}, {v(NMA,16)}
s_nop 15
L_sloop:
""")
    a.emit(slot(0))
    a(f"""
v_add_u32 v{ADDR}, 4096, v{ADDR}
s_add_u32 s{CNT}, s{CNT}, 1
s_cmp_lt_u32 s{CNT}, 16
s_cbranch_scc1 L_sloop
v_mov_b32 v40, v46
v_mov_b32 v41, v47
s_barrier
""")
    for g in woa_dma(): a.emit(g if isinstance(g, list) else [g])
    a("s_waitcnt vmcnt(0)")
    a("s_branch L_tail")
    a("L_codeend:")
    a("s_endpgm")
    return kd(NAME, 256, 102)

HEAD = """; gated mix of softmax attention and hedgehog linear attention -- hand-written gfx950 kernel
; @launch grid=(256,1,1) block=(512,1,1) lds=163840
.amdgcn_target "amdgcn-amd-amdhsa--gfx950"
"""
if __name__ == "__main__":
    rt = False
    for o in sys.argv[2:]:
        if o == "st": P["STAMPS"] = 1
        elif o == "rt": rt = True
        else:
            k_, v_ = o.split("="); assert k_.upper() in P, k_; P[k_.upper()] = int(v_)
    a = Asm()
    k = gen(a)
    txt = a.text()
    if rt: txt = txt.replace("s_memtime", "s_memrealtime")
    open(sys.argv[1], "w").write(HEAD + txt + k)
```

```python
import sys, struct
from asmlib import *

NAME = "gated_mix__mha_block__linear_kernel_hedgehog__prompt_kernel"
LOG2E = 1.4426950408889634
def f2u(x): return struct.unpack("<I", struct.pack("<f", x))[0]

WS_QF  = 0
WS_KV  = 2 << 20
WS_PHQ = 6 << 20
WS_KVP = 10 << 20
WS_OF  = 14 << 20
WS_G   = 18 << 20
WS_KVT = (18 << 20) + 65536
WS_WOF = (18 << 20) + 131072
WS_FL  = WS_WOF + (1 << 20)
WS_SIZE = WS_FL + 32 * 256
WS_ST = 20 << 20
OBR = 64 * 32 * 1024

P = dict(STAMPS=0, STMODE=0, SPIN=400000, SIGC=2, LOOK=3, RPG=3, LEAD=2, CPF=1, XAH=1, PSL=2,
         KVS=4, PACE=0, PACK=0, TLB=0, WF=0, WBT=0, MIX=1, PRE=2, L1=9, RFIRST=1, CLS=3, BS=6, BD=4, BA=8, BW=12, DBG=0, ROTC=1, DIAG=0)

S_X, S_WA, S_WB, S_WS, S_MISC = 28, 32, 36, 40, 44
S_WAVE, S_HQ, S_TB, S_ROT = 48, 49, 50, 51
S_H, S_RB = 26, 27
T0 = 52
SL = 60
CNT, MODE, EVM, TT, PP, SX = 64, 65, 66, 67, 68, 69
P_KVG, P_KVB = 66, 67
P_OF, P_F2, P_KVS, P_KVT, P_PHQ, P_WOF, P_WOB, P_OA, P_G, P_WOL, KH = 4, 5, 6, 7, 8, 9, 10, 11, 0, 1, 3

XL, WL, WSLOT = 0, 65536, 24576
L_QH, L_WOS, L_CMB = 128*1024, 130*1024, 136*1024
L_FLAG, L_EX, EXS = 136*1024, 137*1024, 2304

QA, QB, KS, VS, IDX, ADDR = 4, 8, [12, 16], [20, 28], 36, 37
NMA, NMB, SA, SB, OA, OB = 48, 64, 80, 96, 112, 128
POOL, OBF, KACC, PQ, GV = 144, 208, 240, 244, 252
VZ = 3
L = lambda t: [x.strip() for x in t.strip().split("\n") if x.strip()]

def stamp(a, i, mode=0):
    if P["STAMPS"] and mode == P["STMODE"]:
        a(f"s_memtime s[{70+2*i}:{71+2*i}]")
def stamp_out(a):
    if not P["STAMPS"]:
        return
    a("s_mov_b64 exec, -1")
    a("s_memrealtime s[100:101]")
    a("s_waitcnt lgkmcnt(0) vmcnt(0)")
    a("s_memtime s[96:97]")
    a("s_waitcnt lgkmcnt(0)")
    srd(a, 40, 24, 25, WS_ST + (1 << 20))
    a(f"s_lshl_b32 s3, s2, 3")
    a(f"s_add_u32 s3, s3, s{S_WAVE}")
    a(f"s_lshl_b32 s3, s3, 6")
    a(f"s_add_u32 s3, s3, {WS_ST}")
    a("v_mov_b32 v1, 0")
    for i in range(16):
        a(f"v_mov_b32 v2, s{70+2*i}")
        a(f"buffer_store_dword v2, v1, s[40:43], s3 offen offset:{4*i}")
    a("s_waitcnt vmcnt(0)")

def softmax16(b, t):
    o = [f"v_max3_f32 v{t}, v{b}, v{b+1}, v{b+2}"]
    for i in range(3, 15, 2):
        o.append(f"v_max3_f32 v{t}, v{t}, v{b+i}, v{b+i+1}")
    o.append(f"v_max_f32 v{t}, v{t}, v{b+15}")
    o.append(f"v_mul_f32 v{t}, {f2u(-LOG2E):#x}, v{t}")
    for i in range(0, 16, 2):
        o.append(f"v_pk_fma_f32 {v(b+i,2)}, {v(b+i,2)}, {s(SL,2)}, {v(t,2)} op_sel_hi:[1,0,0]")
    for i in range(16):
        o.append(f"v_exp_f32 v{b+i}, v{b+i}")
    o.append(f"v_pk_add_f32 {v(t+2,2)}, {v(b,2)}, {v(b+2,2)}")
    for i in range(4, 16, 2):
        o.append(f"v_pk_add_f32 {v(t+2,2)}, {v(t+2,2)}, {v(b+i,2)}")
    o.append(f"v_add_f32 v{t}, v{t+2}, v{t+3}")
    o.append(f"v_rcp_f32 v{t}, v{t}")
    o.append("s_nop 0")
    for i in range(0, 16, 2):
        o.append(f"v_pk_mul_f32 {v(b+i,2)}, {v(b+i,2)}, {v(t,2)} op_sel_hi:[1,0]")
    for i in range(8):
        o.append(f"v_cvt_pk_bf16_f32 v{b+i}, v{b+2*i}, v{b+2*i+1}")
    return o

def tr64_addr(a, dst, tmp, base_sgpr):
    a(f"""
v_bfe_u32 v{tmp}, v0, 2, 2
v_lshlrev_b32 v{dst}, 6, v{tmp}
v_lshrrev_b32 v{tmp}, 5, v0
v_lshl_add_u32 v{dst}, v{tmp}, 8, v{dst}
v_and_b32 v{tmp}, 1, v0
v_lshl_add_u32 v{dst}, v{tmp}, 5, v{dst}
v_bfe_u32 v{tmp}, v0, 4, 1
v_lshl_add_u32 v{dst}, v{tmp}, 4, v{dst}
v_bfe_u32 v{tmp}, v0, 1, 1
v_lshl_add_u32 v{dst}, v{tmp}, 3, v{dst}
v_add_u32 v{dst}, s{base_sgpr}, v{dst}
""")

def persist(a, kh, R2, xkb):
    a(f"""
s_mov_b32 s{KH}, {kh}
s_and_b32 s{T0}, s{S_WAVE}, 3
s_lshl_b32 s{T0+1}, s{S_RB}, 3
s_lshl_b32 s{T0+2}, s{T0}, 1
s_add_u32 s{T0+1}, s{T0+1}, s{T0+2}
s_add_u32 s{T0+1}, s{T0+1}, {kh}
s_lshl_b32 s{P_OF}, s{T0+1}, 5
s_add_u32 s{P_OF}, s{P_OF}, s{S_H}
s_lshl_b32 s{P_OF}, s{P_OF}, 10
s_add_u32 s{P_OF}, s{P_OF}, {WS_OF}
s_lshl_b32 s{P_PHQ}, s{S_H}, 6
s_add_u32 s{P_PHQ}, s{P_PHQ}, s{T0+1}
s_lshl_b32 s{P_PHQ}, s{P_PHQ}, 11
s_add_u32 s{P_PHQ}, s{P_PHQ}, {WS_PHQ}
s_lshr_b32 s{P_F2}, s{S_H}, 2
s_xor_b32 s{P_F2}, s{P_F2}, {xkb}
s_lshl_b32 s{P_F2}, s{P_F2}, 8
s_add_u32 s{P_F2}, s{P_F2}, {WS_FL}
s_lshl_b32 s{P_KVS}, s{S_H}, 17
s_lshl_b32 s{T0+2}, s{T0}, 10
s_add_u32 s{P_KVS}, s{P_KVS}, s{T0+2}
s_lshl_b32 s{T0+2}, s{S_RB}, 7
s_add_u32 s{P_KVS}, s{P_KVS}, s{T0+2}
s_add_u32 s{P_KVS}, s{P_KVS}, {WS_KVP}
s_lshl_b32 s{P_KVT}, s{S_H}, 11
s_add_u32 s{P_KVT}, s{P_KVT}, {WS_KVT}
s_lshr_b32 s{P_WOF}, s2, 5
s_lshl_b32 s{P_WOF}, s{P_WOF}, 17
s_add_u32 s{P_WOF}, s{P_WOF}, {WS_WOF}
s_lshr_b32 s{T0+1}, s{S_WAVE}, 1
s_lshl_b32 s{P_WOB}, s{T0+1}, 14
s_add_u32 s{P_WOB}, s{P_WOB}, s{P_WOF}
s_add_u32 s{P_WOB}, s{P_WOB}, 65536
s_lshl_b32 s{T0+2}, s{S_WAVE}, 13
s_add_u32 s{P_WOF}, s{P_WOF}, s{T0+2}
s_and_b32 s{P_OA}, s2, 31
s_lshl_b32 s{P_OA}, s{P_OA}, 1
s_and_b32 s{T0+2}, s{S_WAVE}, 1
s_add_u32 s{P_OA}, s{P_OA}, s{T0+2}
s_lshl_b32 s{P_G}, s{P_OA}, 7
s_add_u32 s{P_G}, s{P_G}, {WS_G}
s_lshl_b32 s{P_OA}, s{P_OA}, 5
s_lshl_b32 s{T0+1}, s{T0+1}, 3
s_add_u32 s{P_OA}, s{P_OA}, s{T0+1}
s_lshl_b32 s{P_OA}, s{P_OA}, 10
s_add_u32 s{P_OA}, s{P_OA}, {WS_OF}
s_lshl_b32 s{P_WOL}, s{T0}, 13
s_add_u32 s{P_WOL}, s{P_WOL}, {R2 if kh == 0 else 0}
""")

def gen(a):
    SPIN, LEAD = P["SPIN"], P["LEAD"]
    XQA, XKA, XVA, XQB, XKB = (1, 0, 2, 0, 3) if P["MIX"] else (0, 0, 0, 0, 0)
    NS = 16 + LEAD // 2
    R2 = 2 * NS * 2048
    BD, BA, BW, BS = P["BD"], P["BA"], P["BW"], P["BS"]
    C0 = BS
    assert BW >= LEAD + 8 and BW >= 8
    a(f""".text
.globl {NAME}
.p2align 8
.type {NAME},@function
{NAME}:
s_cmp_ge_u32 s2, 256
s_cbranch_scc1 L_end
""")
    if P["STAMPS"]:
        for i in range(70, 102): a(f"s_mov_b32 s{i}, 0")
        a("s_memtime s[70:71]")
        a("s_memrealtime s[98:99]")
    a(f"""
s_load_dwordx16 s[4:19], s[0:1], 0
s_load_dwordx4 s[20:23], s[0:1], 64
s_load_dwordx2 s[24:25], s[0:1], 80
v_lshrrev_b32 v1, 6, v0
v_and_b32 v0, 63, v0
v_readfirstlane_b32 s{S_WAVE}, v1
s_lshr_b32 s3, s2, 3
s_and_b32 s{S_TB}, s2, 6
s_lshl_b32 s{S_TB}, s{S_TB}, 2
s_and_b32 s{S_ROT}, s3, 7
s_add_u32 s{S_TB}, s{S_TB}, s{S_ROT}
s_lshr_b32 s3, s3, 3
s_and_b32 s{S_HQ}, s2, 1
s_lshl_b32 s{S_HQ}, s{S_HQ}, 2
s_add_u32 s{S_HQ}, s{S_HQ}, s3
s_and_b32 s{S_H}, s2, 7
s_lshl_b32 s{S_H}, s{S_H}, 2
s_add_u32 s{S_H}, s{S_H}, s3
s_lshl_b32 s3, s3, 1
s_add_u32 s{S_ROT}, s{S_ROT}, s3
s_bfe_u32 s{S_RB}, s2, 0x30003
v_mov_b32 v{VZ}, 0
s_cmp_ge_u32 s{S_WAVE}, 4
s_cbranch_scc0 L_compute
""")
    LW, XO, WO, XM, WM = 64, 65, 66, 67, 68
    a(f"""
s_sub_u32 s{LW}, s{S_WAVE}, 4
v_lshrrev_b32 v1, 3, v0
v_and_b32 v2, 7, v0
v_lshrrev_b32 v8, 4, v0
v_xor_b32 v9, v2, v8
v_lshlrev_b32 v10, 10, v1
v_lshl_add_u32 v4, v9, 4, v10
v_xor_b32 v5, 64, v4
v_add_u32 v5, {8192-1024}, v5
v_mul_u32_u24 v10, 3072, v1
v_and_b32 v8, 1, v8
v_lshlrev_b32 v8, 2, v8
v_xor_b32 v9, v2, v8
v_lshl_add_u32 v6, v9, 4, v10
s_lshl_b32 s{T0}, s{S_HQ}, 7
v_add_u32 v6, s{T0}, v6
v_xor_b32 v11, {XQA*128}, v6
v_xor_b32 v7, {XKA*128+32}, v6
v_xor_b32 v6, {XVA*128}, v6
s_lshl_b32 s{XO}, s{S_TB}, 16
s_lshl_b32 s{T0}, s{LW}, 14
s_add_u32 s{XO}, s{XO}, s{T0}
s_mul_i32 s{WO}, s{LW}, {16*3072}
s_lshl_b32 s{XM}, s{LW}, 11
s_mul_i32 s{WM}, s{LW}, 6144
s_add_u32 s{WM}, s{WM}, {WL}
s_mov_b32 s{S_X+2}, {2048*512*2}
s_mov_b32 s{S_X+3}, 0x20000
s_mov_b32 s{S_WA+2}, {512*1536*2}
s_mov_b32 s{S_WA+3}, 0x20000
s_waitcnt lgkmcnt(0)
s_mov_b32 s{S_X}, s4
s_mov_b32 s{S_X+1}, s5
s_mov_b32 s{S_WA}, s6
s_mov_b32 s{S_WA+1}, s7
""")
    stamp(a, 1)
    issued = []
    paced = [False]
    def pace():
        if P["PACE"] and paced[0]: a(f"s_waitcnt vmcnt({P['PACE']})")
    def issx(c):
        a(f"s_add_u32 s{T0}, s{S_ROT}, {c}")
        a(f"s_and_b32 s{T0}, s{T0}, 7")
        a(f"s_lshl_b32 s{T0}, s{T0}, 7")
        a(f"s_add_u32 m0, s{XM}, {XL + c*8192}")
        a(f"s_add_u32 s{T0}, s{T0}, s{XO}")
        pace()
        a(f"buffer_load_dwordx4 v4, {s(S_X,4)}, s{T0} offen lds")
        pace()
        a(f"buffer_load_dwordx4 v5, {s(S_X,4)}, s{T0} offen offset:1024 lds")
        issued.append((("x", c), 2))
        if c == 0 and P["TLB"]:
            a(f"""
s_lshr_b32 s{T0+2}, s2, 3
s_lshl_b32 s{T0+2}, s{T0+2}, 16
s_min_u32 s{T0+3}, s{T0+2}, {23*65536}
s_load_dword s{T0+4}, s[6:7], s{T0+3}
s_load_dword s{T0+5}, s[12:13], s{T0+3}
s_load_dword s{T0+6}, s[4:5], s{T0+2}
""")
    def issw(c):
        W = S_WA if c < 8 else S_WB
        if c == 8:
            a(f"v_xor_b32 v11, {(XQA^XQB)*128}, v11")
            a(f"v_xor_b32 v7, {(XKA^XKB)*128}, v7")
            a(f"v_xor_b32 v6, {(XVA^XKB)*128}, v6")
        a(f"s_add_u32 s{T0}, s{S_ROT}, {c & 7}")
        a(f"s_and_b32 s{T0}, s{T0}, 7")
        a(f"s_mul_i32 s{T0+1}, s{T0}, {64*3072}")
        for g in range(2):
            a(f"s_add_u32 m0, s{WM}, {(c & 3)*WSLOT + g*3072}")
            a(f"s_add_u32 s{T0+1}, s{T0+1}, " + (f"s{WO}" if g == 0 else f"{8*3072}"))
            pace()
            a(f"buffer_load_dwordx4 v11, {s(W,4)}, s{T0+1} offen lds")
            pace()
            a(f"buffer_load_dwordx4 v7, {s(W,4)}, s{T0+1} offen offset:1024 lds")
            pace()
            a(f"buffer_load_dwordx4 v6, {s(W,4)}, s{T0+1} offen offset:2048 lds")
        issued.append((("w", c), 6))
    nx = [0]
    def iss(c):
        if c == 0 and P["WF"]:
            issw(0); issx(0); nx[0] = 1
        else:
            if c < 8 and nx[0] <= c: issx(nx[0]); nx[0] += 1
            issw(c)
        while nx[0] < 8 and nx[0] <= c + P["XAH"]:
            issx(nx[0]); nx[0] += 1
    def wait_for(c):
        idx = max(i for i, (t, _) in enumerate(issued) if t in (("x", c), ("w", c)))
        a(f"s_waitcnt vmcnt({sum(k for _, k in issued[idx+1:])})")
    iss(0)
    stamp(a, 1, 5)
    srd(a, S_WB, 12, 13, 512*1536*2)
    srd(a, S_WS, 24, 25, WS_SIZE)
    if P["TLB"]: a("s_waitcnt lgkmcnt(0)")
    persist(a, 0, R2, XKB)
    VINIT = f"""
v_mov_b32 v{IDX}, 0xdddddddd
v_and_b32 v39, 27, v0
v_cmp_eq_u32 vcc, 16, v39
v_mov_b32 v38, 0x3f803f80
v_mov_b64 v[44:45], -1
v_cndmask_b32 v38, 0, v38, vcc
v_mov_b64 v[46:47], -1
v_mov_b32 v39, v38
""" + "\n".join(f"v_mov_b64 {v(VS[0]+i,2)}, v[38:39]" for i in range(0, 16, 2))
    ZERO_O = [f"v_mov_b64 {v(OA+i,2)}, 0" for i in range(0, 32, 2)]
    a(VINIT)
    a.emit(ZERO_O)
    a(f"""
v_lshlrev_b32 v42, 12, v1
v_lshl_add_u32 v42, v2, 4, v42
s_and_b32 s{T0}, s{S_H}, 1
s_lshl_b32 s{T0}, s{T0}, 1
s_xor_b32 s{T0}, s{T0}, s{S_RB}
s_lshl_b32 s{T0}, s{T0}, 7
s_lshr_b32 s{T0+1}, s{LW}, 1
s_lshl_b32 s{T0+1}, s{T0+1}, 10
s_add_u32 s{T0}, s{T0}, s{T0+1}
s_and_b32 s{T0+1}, s{LW}, 1
s_lshl_b32 s{T0+1}, s{T0+1}, 3
s_add_u32 s{T0}, s{T0}, s{T0+1}
v_lshlrev_b32 v43, 4, v2
v_bfe_u32 v8, v0, 4, 1
v_lshl_add_u32 v43, v8, 2, v43
v_add_u32 v43, s{T0}, v43
v_lshlrev_b32 v1, 4, v0
v_mov_b32 v{ADDR}, v1
s_lshl_b32 s{T0}, s{LW}, 9
s_add_u32 s{T0}, s{T0}, {L_QH}
v_lshrrev_b32 v{POOL+11}, 1, v1
v_add_u32 v{POOL+11}, s{T0}, v{POOL+11}
""")
    stamp(a, 2, 5)
    if P["PRE"] >= 2: iss(1)
    stamp(a, 3, 5)
    paced[0] = True
    stamp(a, 2)
    nxt = P["PRE"]
    for k in range(16):
        wait_for(k)
        if k < 3: stamp(a, 4 + 3*k, 5)
        if k == 0: stamp(a, 3)
        if k < 12: stamp(a, k + 1, 2)
        a("s_barrier")
        if k < 3: stamp(a, 5 + 3*k, 5)
        lim = k + P["LOOK"] if k > 0 else 2
        if k == 1: lim = min(lim, P["L1"])
        if k == 7 and P["RFIRST"]:
            a("s_barrier")
            lim = 11
        if k >= 7 and not (k == 7 and P["RFIRST"]): lim = k + 3
        if k in (5, 6): lim = min(lim, 8)
        while nxt < 16 and nxt <= lim:
            iss(nxt); nxt += 1
        if k < 3: stamp(a, 6 + 3*k, 5)
        if k == 7 and not P["RFIRST"]:
            a("s_barrier")
            iss(nxt); nxt += 1
    stamp(a, 4)
    a(f"""
s_lshr_b32 s{T0}, s{S_H}, 2
s_lshl_b32 s{T0}, s{T0}, 8
s_add_u32 s{T0}, s{T0}, {WS_FL + 2048}
v_min_u32 v41, {2 if P["MIX"] else 0}, v0
v_lshlrev_b32 v41, 11, v41
buffer_load_dword v40, v41, {s(S_WS,4)}, s{T0} offen sc1
s_sub_u32 s{T0+1}, s{P_PHQ}, {WS_PHQ}
s_lshr_b32 s{T0+1}, s{T0+1}, 1
s_lshl_b32 s{P_KVB}, s{S_H}, 17
s_add_u32 s{P_KVB}, s{P_KVB}, {WS_KV}
s_lshl_b32 s{P_KVG}, s{LW}, 12
s_add_u32 s{T0+3}, s{P_KVG}, {R2 - 4096}
s_cmp_eq_u32 s{LW}, 0
s_cmov_b32 s{T0+3}, 16384
s_mov_b32 s{T0+7}, 0
s_barrier
s_waitcnt vmcnt(0)
v_cmp_gt_u32 vcc, 32, v40
s_nop 4
s_cbranch_vccnz L_pollF1
L_pollF1_ok:
""")
    stamp(a, 5); stamp(a, 1, 3)
    G0 = POOL + 12
    a(f"""
buffer_load_dwordx4 {v(QA,4)}, v1, {s(S_WS,4)}, s{T0+1} offen sc1
buffer_load_dwordx4 {v(QB,4)}, v1, {s(S_WS,4)}, s{T0+1} offen offset:1024 sc1
buffer_load_dwordx4 {v(KS[0],4)}, v1, {s(S_WS,4)}, s{P_KVB} offen sc1
""")
    def kvgrp(reg, off):
        o = [[f"s_add_u32 m0, s{reg}, {off}", f"s_add_u32 s{T0+4}, m0, s{P_KVB}"]]
        o += [f"buffer_load_dwordx4 v1, {s(S_WS,4)}, s{T0+4} offen offset:{i*1024} sc1 lds" for i in range(4)]
        return o
    def flat(x):
        o = []
        for g in x: o += g if isinstance(g, list) else [g]
        return o
    a.emit(flat(kvgrp(P_KVG, 0))); a.emit(flat(kvgrp(T0+3, 0)))
    a(f"""
s_setprio 3
s_waitcnt vmcnt(8)
v_mfma_f32_32x32x16_bf16 {v(SA,16)}, {v(KS[0],4)}, {v(QA,4)}, 0
v_mfma_f32_32x32x16_bf16 {v(SB,16)}, {v(KS[0],4)}, {v(QB,4)}, 0
""")
    a(f"""
s_nop 9
s_mov_b32 s{MODE}, 0
s_mov_b32 s{SL+2}, 0x0000ffff
s_mov_b32 s{SL+3}, 0x0000ffff
""")
    def maxtree(dst, b, init=None):
        o = []
        if init is None:
            o.append(f"v_max3_f32 v{dst}, v{b}, v{b+1}, v{b+2}")
            for i in range(3, 15, 2):
                o.append(f"v_max3_f32 v{dst}, v{dst}, v{b+i}, v{b+i+1}")
            o.append(f"v_max_f32 v{dst}, v{dst}, v{b+15}")
        else:
            for i in range(0, 16, 2):
                o.append(f"v_max3_f32 v{dst}, v{dst}, v{b+i}, v{b+i+1}")
        return o
    a.emit(rr(maxtree(38, SA), maxtree(39, SB)))
    NEGM = f"""
v_permlane32_swap_b32 v38, v39
s_nop 1
v_max_f32 v38, v38, v39
v_sub_f32 v38, 0, v38
v_mov_b32 v39, v38
s_nop 1
v_permlane32_swap_b32 v38, v39
"""
    def fill_nm():
        o = [f"v_mov_b32 v40, v38", f"v_mov_b32 v41, v38"]
        o += [f"v_mov_b64 {v(NMA+i,2)}, v[40:41]" for i in range(0, 16, 2)]
        o += [f"v_mov_b32 v38, v39"]
        o += [f"v_mov_b64 {v(NMB+i,2)}, v[38:39]" for i in range(0, 16, 2)]
        return o
    ZSB = [f"v_mov_b64 {v(SB+i,2)}, 0" for i in range(8, 16, 2)]
    a("s_nop 1")
    a(NEGM)
    a(f"""
s_nop 1
v_mov_b64 {v(POOL+14,2)}, v[38:39]
""")
    fm = fill_nm()
    a.emit(fm[:11])
    a.emit(ZSB)
    a(f"v_mfma_f32_32x32x16_bf16 {v(SA,16)}, {v(KS[0],4)}, {v(QA,4)}, {v(NMA,16)}")
    a.emit(fm[11:])
    stamp(a, 2, 3)
    a("s_setprio 0")
    stamp(a, 3, 3)
    a(f"ds_write_b64 v{POOL+11}, {v(POOL+14,2)}")
    a("s_waitcnt vmcnt(0) lgkmcnt(0)")
    stamp(a, 6); stamp(a, 4, 3)
    a(f"""
s_barrier
s_mov_b64 exec, {s(SL+2,2)}
ds_read_b128 {v(VS[0],4)}, v{ADDR} offset:1024
ds_read_b128 {v(VS[0]+4,4)}, v{ADDR} offset:1280
s_mov_b64 exec, -1
""")
    a.emit(flat(kvgrp(P_KVG, 5*4096) + kvgrp(P_KVG, R2 + 3*4096)))
    a("s_waitcnt lgkmcnt(0)")
    stamp(a, 8)
    a("s_branch L_slot0")

    XA = [4, 5, 6, 7]; WAD = [[8, 9, 10], [56, 57, 58]]
    BUF = [112, 176]
    ACC = [64, 80, 96]
    WPHI = [48, 52]
    WPHQ = [248, 252]
    GO, WD = 36, 37
    a("L_compute:")
    if P["CPF"]:
        a(f"""
s_getpc_b64 s[{T0}:{T0+1}]
L_pc:
s_sub_u32 s{T0}, s{T0}, L_pc-{NAME}
s_subb_u32 s{T0+1}, s{T0+1}, 0
s_lshr_b32 s{T0+2}, s2, 3
s_lshl_b32 s{T0+2}, s{T0+2}, 2
s_add_u32 s{T0+2}, s{T0+2}, s{S_WAVE}
s_lshl_b32 s{T0+2}, s{T0+2}, 8
s_min_u32 s{T0+2}, s{T0+2}, L_codeend-{NAME}-256
s_add_u32 s{T0}, s{T0}, s{T0+2}
s_addc_u32 s{T0+1}, s{T0+1}, 0
s_load_dword s{T0+3}, s[{T0}:{T0+1}], 0
s_load_dword s{T0+4}, s[{T0}:{T0+1}], 64
s_load_dword s{T0+5}, s[{T0}:{T0+1}], 128
s_load_dword s{T0+6}, s[{T0}:{T0+1}], 192
""")
    a(f"""
s_lshr_b32 s{TT}, s{S_WAVE}, 1
s_and_b32 s{PP}, s{S_WAVE}, 1
v_and_b32 v12, 31, v0
v_lshrrev_b32 v13, 5, v0
v_lshlrev_b32 v1, 4, v0
s_waitcnt lgkmcnt(0)
""")
    srd(a, S_MISC, 14, 15, 32*512)
    srd(a, S_WS, 24, 25, WS_SIZE)
    a(f"""
s_or_b32 s{T0+1}, s2, s{S_WAVE}
s_cmp_lg_u32 s{T0+1}, 0
s_cbranch_scc1 L_noinit
v_lshlrev_b32 v8, 8, v0
s_mov_b32 s{T0+1}, {WS_FL}
buffer_store_dword v{VZ}, v8, {s(S_WS,4)}, s{T0+1} offen sc1
s_waitcnt vmcnt(0)
v_mov_b32 v8, 1
s_mov_b64 exec, 1
global_store_dword v{VZ}, v8, s[22:23] sc1
s_mov_b64 exec, -1
L_noinit:
s_lshl_b32 s{T0}, s{S_HQ}, 1
s_add_u32 s{T0}, s{T0}, s{PP}
s_lshl_b32 s{T0}, s{T0}, 10
s_lshl_b32 s{T0+1}, s{S_WAVE}, 10
s_add_u32 s{T0+1}, s{T0+1}, {WL + 3*WSLOT}
s_mov_b32 m0, s{T0+1}
s_xor_b32 s{T0+2}, s{T0}, {XKB*2048}
buffer_load_dwordx4 v1, {s(S_MISC,4)}, s{T0+2} offen lds
s_add_u32 m0, s{T0+1}, 8192
s_xor_b32 s{T0+2}, s{T0}, {XQB*2048}
buffer_load_dwordx4 v1, {s(S_MISC,4)}, s{T0+2} offen lds
v_bfe_u32 v14, v0, 2, 2
s_cmp_ge_u32 s2, 128
s_cselect_b32 s{S_WA}, s16, s8
s_cselect_b32 s{S_WA+1}, s17, s9
s_mov_b32 s{S_WA+2}, {512*512*2}
s_mov_b32 s{S_WA+3}, 0x20000
s_lshl_b32 s{T0+2}, s2, 2
s_add_u32 s{T0+2}, s{T0+2}, s{S_WAVE}
s_bfe_u32 s{T0+3}, s{T0+2}, 0x50004
s_and_b32 s{T0+4}, s{T0+2}, 15
s_lshl_b32 s{T0+5}, s{T0+3}, 14
s_lshl_b32 s{T0+6}, s{T0+4}, 6
s_add_u32 s{T0+5}, s{T0+5}, s{T0+6}
v_lshrrev_b32 v16, 2, v0
v_lshlrev_b32 v16, 10, v16
v_and_b32 v17, 3, v0
v_lshl_add_u32 v16, v17, 4, v16
s_add_u32 m0, s{T0+1}, 4096
s_lshl_b32 s{GO}, s{S_TB}, 6
buffer_load_dwordx4 v16, {s(S_WA,4)}, s{T0+5} offen lds
s_lshl_b32 s{T0+6}, s{S_HQ}, 3
s_add_u32 s{GO}, s{GO}, s{T0+6}
s_lshl_b32 s{T0+6}, s{S_WAVE}, 1
s_add_u32 s{GO}, s{GO}, s{T0+6}
s_lshl_b32 s{T0+6}, s{GO}, 10
v_lshlrev_b32 v17, 5, v0
v_and_b32 v18, 0x3ff, v17
v_add_u32 v17, s{T0+6}, v17
global_load_dwordx4 v[20:23], v17, s[4:5]
global_load_dwordx4 v[24:27], v17, s[4:5] offset:16
global_load_dwordx4 v[28:31], v18, s[18:19]
global_load_dwordx4 v[32:35], v18, s[18:19] offset:16
s_lshl_b32 s{GO}, s{GO}, 2
s_add_u32 s{GO}, s{GO}, {WS_G}
s_lshr_b32 s{T0+6}, s{T0+4}, 1
s_lshl_b32 s{WD}, s{T0+6}, 17
s_lshr_b32 s{T0+6}, s{T0+2}, 9
s_lshl_b32 s{T0+6}, s{T0+6}, 16
s_add_u32 s{WD}, s{WD}, s{T0+6}
s_lshl_b32 s{T0+6}, s{T0+3}, 11
s_add_u32 s{WD}, s{WD}, s{T0+6}
s_and_b32 s{T0+6}, s{T0+4}, 1
s_lshl_b32 s{T0+6}, s{T0+6}, 10
s_add_u32 s{WD}, s{WD}, s{T0+6}
s_add_u32 s{WD}, s{WD}, {WS_WOF}
s_add_u32 s{T0+7}, s{T0+1}, 4096
""")
    tr64_addr(a, 19, 16, T0+7)
    a(f"""
v_lshlrev_b32 v40, 5, v14
v_lshl_add_u32 v40, v13, 7, v40
v_bfe_u32 v14, v0, 4, 1
v_lshl_add_u32 v40, v14, 4, v40
v_bfe_u32 v14, v0, 1, 1
v_lshl_add_u32 v40, v14, 3, v40
v_add_u32 v40, s{T0+1}, v40
s_lshl_b32 s{T0}, s{TT}, 12
v_lshlrev_b32 v15, 7, v12
v_add_u32 v15, s{T0}, v15
v_bfe_u32 v14, v12, 1, 3
v_xor_b32 v14, v14, v13
v_lshl_add_u32 v{XA[0]}, v14, 4, v15
v_xor_b32 v{XA[1]}, 32, v{XA[0]}
v_xor_b32 v{XA[2]}, 64, v{XA[0]}
v_xor_b32 v{XA[3]}, 96, v{XA[0]}
v_mul_u32_u24 v2, 3072, v13
v_bfe_u32 v14, v0, 2, 2
v_lshl_add_u32 v2, v14, 7, v2
v_bfe_u32 v14, v0, 3, 1
v_xor_b32 v14, s{PP}, v14
v_lshl_add_u32 v2, v14, 6, v2
v_bfe_u32 v14, v0, 4, 1
v_lshl_add_u32 v2, v14, 5, v2
v_and_b32 v15, 3, v0
v_lshl_add_u32 v2, v15, 3, v2
v_add_u32 v10, {WL+2048}, v2
v_lshl_add_u32 v2, v14, 10, v2
v_add_u32 v8, {WL}, v2
v_xor_b32 v9, 32, v8
v_add_u32 v56, {2*WSLOT}, v8
v_add_u32 v57, {2*WSLOT}, v9
v_add_u32 v58, {2*WSLOT}, v10
v_and_b32 v2, 0x33, v0
v_bfe_u32 v14, v0, 2, 1
v_lshl_or_b32 v2, v14, 3, v2
v_bfe_u32 v14, v0, 3, 1
v_lshl_or_b32 v2, v14, 2, v2
v_lshlrev_b32 v2, 4, v2
v_and_b32 v11, 0x2f, v0
v_lshlrev_b32 v11, 4, v11
v_bfe_u32 v14, v0, 4, 1
v_lshl_add_u32 v11, v14, 17, v11
s_mov_b32 s{SL}, {f2u(LOG2E):#x}
s_mov_b32 s{SL+1}, {f2u(0.25*LOG2E):#x}
s_mov_b32 s{SL+2}, 0x0000ffff
s_mov_b32 s{SL+3}, 0x0000ffff
s_mov_b32 s{MODE}, 0
s_lshl_b32 s{SX}, s{S_HQ}, 1
s_add_u32 s{SX}, s{SX}, s{PP}
s_lshl_b32 s{SX}, s{SX}, 7
s_lshl_b32 s{T0+1}, s{S_TB}, 1
s_add_u32 s{SX}, s{SX}, s{T0+1}
s_add_u32 s{SX}, s{SX}, s{TT}
s_mul_i32 s{T0+1}, s{S_WAVE}, 6144
s_add_u32 s{T0+1}, s{T0+1}, {L_CMB}
v_lshlrev_b32 v60, 6, v12
v_lshl_add_u32 v60, v13, 5, v60
v_add_u32 v60, s{T0+1}, v60
v_add_u32 v240, s{T0+1}, v1
s_mul_i32 s{T0+1}, s{PP}, 6144
s_add_u32 s{T0+1}, s{T0+1}, {L_CMB}
v_add_u32 v241, s{T0+1}, v1
s_lshl_b32 s{T0+2}, s{TT}, 11
s_add_u32 s{T0+1}, s{T0+1}, s{T0+2}
""")
    tr64_addr(a, 242, 14, T0+1)
    a(f"""
v_bfe_u32 v14, v0, 4, 1
v_xor_b32 v14, s{TT}, v14
v_bfe_i32 v244, v14, 0, 1
v_mov_b32 v245, 0x3f803f80
v_mov_b64 v[42:43], 0
v_xor_b32 v246, s{S_HQ}, v0
v_lshl_add_u32 v246, v0, 3, v246
v_lshlrev_b32 v246, 8, v246
v_bfe_u32 v14, v0, 2, 1
s_mov_b32 s{T0+1}, 0x80008000
v_mul_lo_u32 v41, v14, s{T0+1}
s_lshl_b32 s{T0}, s{S_WAVE}, 9
s_add_u32 s{T0}, s{T0}, {L_QH}
v_lshrrev_b32 v243, 1, v1
v_add_u32 v243, s{T0}, v243
""")
    if P["WBT"]:
        a(f"""
s_and_b32 s{T0}, s{S_ROT}, 7
s_lshl_b32 s{T0}, s{T0}, 2
s_add_u32 s{T0}, s{T0}, s{S_WAVE}
s_mul_i32 s{T0}, s{T0}, {16*3072}
s_lshl_b32 s{T0+1}, s{S_HQ}, 7
s_add_u32 s{T0}, s{T0}, s{T0+1}
v_lshrrev_b32 v14, 2, v0
v_mul_u32_u24 v14, 3072, v14
v_and_b32 v15, 1, v0
v_lshl_add_u32 v14, v15, 6, v14
v_add_u32 v246, s{T0}, v14
v_bfe_u32 v15, v0, 1, 1
v_lshl_add_u32 v247, v15, 10, v246
""")
        WBT = ["global_load_dword v254, v247, s[12:13]", "s_mov_b32 exec_lo, 0x33333333", "s_mov_b32 exec_hi, 0x33333333",
               "global_load_dword v255, v246, s[12:13] offset:2048", "s_mov_b64 exec, -1"]
        if P["WBT"] == 1: a.emit(WBT)
    persist(a, 1, R2, XKB)
    def reads(c):
        b0 = BUF[c & 1]
        o = []
        for step in range(4):
            b = b0 + 16*step
            o.append(f"ds_read_b128 {v(b,4)}, v{XA[step]} offset:{c*8192}")
            for j in range(3):
                ad = WAD[(c >> 1) & 1][j]
                for rd in range(2):
                    o.append(f"ds_read_b64_tr_b16 {v(b+4+4*j+2*rd,2)}, v{ad} offset:{(c&1)*WSLOT+step*6144+rd*512}")
        return o
    def mfmas(c):
        o = []
        for step in range(4):
            b = BUF[c & 1] + 16*step
            for j in range(3):
                x = v(b,4); w = v(b+4+4*j,4); d = v(ACC[j],16)
                cc = "0" if (c == 0 and step == 0) else d
                if j < 2: o.append(f"v_mfma_f32_32x32x16_bf16 {d}, {w}, {x}, {cc}")
                else:     o.append(f"v_mfma_f32_32x32x16_bf16 {d}, {x}, {w}, {cc}")
        return o
    RPG = P["RPG"]
    def body(c):
        m = mfmas(c); r_ = reads(c + 1)
        for i in range(12):
            a(m[i]); a.emit(r_[RPG*i:RPG*i+RPG])
    stamp(a, 1)
    a(f"s_mov_b32 s{CNT}, 0")
    stamp(a, 1, 5)
    a("L_pass:")
    a("s_barrier")
    a.emit(reads(0))
    a(f"s_cmp_eq_u32 s{CNT}, 0")
    for c in range(7):
        if c == 0:
            a("s_cbranch_scc0 L_nophi")
            stamp(a, 2, 5)
            a("s_waitcnt vmcnt(2)" if P["WBT"] == 1 else "s_waitcnt vmcnt(0)")
            stamp(a, 3, 5)
            for hd in range(2):
                for rd in range(2):
                    a(f"ds_read_b64_tr_b16 {v(WPHI[hd]+2*rd,2)}, v40 offset:{hd*512+rd*256}")
                    a(f"ds_read_b64_tr_b16 {v(WPHQ[hd]+2*rd,2)}, v40 offset:{8192+hd*512+rd*256}")
            a("ds_read_b64_tr_b16 v[36:37], v19")
            a("ds_read_b64_tr_b16 v[38:39], v19 offset:512")
            a("v_mov_b32 v16, 0")
            for i in range(8):
                a(f"v_dot2_f32_bf16 v16, v{20+i}, v{28+i}, v16")
            a(f"""
v_lshlrev_b32 v18, 2, v13
s_nop 2
v_add_f32_dpp v16, v16, v16 quad_perm:[1,0,3,2] row_mask:0xf bank_mask:0xf
s_nop 1
v_add_f32_dpp v16, v16, v16 quad_perm:[2,3,0,1] row_mask:0xf bank_mask:0xf
s_nop 1
v_add_f32_dpp v16, v16, v16 row_half_mirror row_mask:0xf bank_mask:0xf
s_nop 1
v_add_f32_dpp v16, v16, v16 row_mirror row_mask:0xf bank_mask:0xf
v_mov_b32 v17, v16
s_nop 1
v_permlane16_swap_b32 v16, v17
s_nop 1
v_add_f32 v16, v16, v17
v_mul_f32 v16, {f2u(-LOG2E):#x}, v16
v_exp_f32 v16, v16
s_nop 0
v_add_f32 v16, 1.0, v16
v_rcp_f32 v16, v16
s_waitcnt lgkmcnt(0)
""")
            for i in range(8):
                a(f"v_xor_b32 v{WPHI[0]+i}, v41, v{WPHI[0]+i}")
                a(f"v_xor_b32 v{WPHQ[0]+i}, v41, v{WPHQ[0]+i}")
            a(f"""
buffer_store_dwordx4 v[36:39], v1, {s(S_WS,4)}, s{WD} offen sc1
s_mov_b32 exec_lo, 1
s_mov_b32 exec_hi, 1
buffer_store_dword v16, v18, {s(S_WS,4)}, s{GO} offen sc1
s_mov_b64 exec, -1
""")
            if P["WBT"] == 2: a.emit(WBT)
            stamp(a, 4, 5)
            a("L_nophi:")
        if c == P["SIGC"]:
            a("s_cbranch_scc1 L_nodrain")
            a("s_waitcnt vmcnt(0)")
            a("L_nodrain:")
        a("s_waitcnt lgkmcnt(0)")
        a("s_barrier")
        if c == P["SIGC"]:
            assert 1 <= c <= 5
            a(f"s_cmp_eq_u32 s{CNT}, 1")
            a("s_cbranch_scc1 L_sig1")
            a("L_drained:")
        body(c)
    a("s_waitcnt lgkmcnt(0)")
    a("s_barrier")
    a.emit(mfmas(7))
    a(f"s_cmp_lg_u32 s{CNT}, 0")
    a("s_cbranch_scc1 L_epiB")
    stamp(a, 3)
    PK = 16
    a(f"""
s_add_u32 s{CNT}, s{S_WAVE}, 1
s_xor_b32 s{T0+1}, s{SX}, {XQA*256}
s_lshl_b32 s{T0+1}, s{T0+1}, 10
s_add_u32 s{T0+2}, s{T0+1}, 65536
s_xor_b32 s{T0+3}, s{SX}, {XKA*256}
s_lshl_b32 s{T0+3}, s{T0+3}, 11
s_add_u32 s{T0+3}, s{T0+3}, {WS_KV}
s_add_u32 s{T0+4}, s{T0+3}, 131072
s_xor_b32 s{T0+5}, s{SX}, {XVA*256}
s_lshl_b32 s{T0+5}, s{T0+5}, 11
s_add_u32 s{T0+5}, s{T0+5}, {WS_KV}
""")
    for j in range(2):
        for i in range(4):
            a(f"v_cvt_pk_bf16_f32 v{PK+4*j+i}, v{ACC[j]+8+2*i}, v{ACC[j]+9+2*i}")
    for j in range(2):
        a(f"buffer_store_dwordx4 {v(PK+4*j,4)}, v2, {s(S_WS,4)}, s{T0+3+j} offen sc1")
    for i in range(8):
        a(f"v_cvt_pk_bf16_f32 v{PK+8+i}, v{ACC[2]+2*i}, v{ACC[2]+1+2*i}")
    a(f"buffer_store_dwordx4 {v(PK+8,4)}, v11, {s(S_WS,4)}, s{T0+5} offen offset:1024 sc1")
    a(f"buffer_store_dwordx4 {v(PK+12,4)}, v11, {s(S_WS,4)}, s{T0+5} offen offset:1280 sc1")
    for j in range(2):
        for i in range(0, 8, 2):
            a(f"v_pk_mul_f32 {v(ACC[j]+i,2)}, {v(ACC[j]+i,2)}, {s(SL,2)} op_sel:[0,1] op_sel_hi:[1,1]")
        for i in range(4):
            a(f"v_cvt_pk_bf16_f32 v{PK+16+4*j+i}, v{ACC[j]+2*i}, v{ACC[j]+1+2*i}")
    for j in range(2):
        a(f"buffer_store_dwordx4 {v(PK+16+4*j,4)}, v1, {s(S_WS,4)}, s{T0+1+j} offen sc1")
    a(f"global_load_dword v59, v{VZ}, s[22:23] sc1")
    stamp(a, 4)
    a("s_branch L_pass")
    a("L_epiB:")
    stamp(a, 5); stamp(a, 1, 3)
    PB = 224
    PV = 144
    PKB = [160, 176]; PQB = [192, 208]
    a(f"""
s_xor_b32 s{T0+3}, s{SX}, {XQB*256}
s_lshl_b32 s{T0+3}, s{T0+3}, 11
s_add_u32 s{T0+3}, s{T0+3}, {WS_PHQ}
s_add_u32 s{T0+4}, s{T0+3}, 131072
s_xor_b32 s{T0+1}, s{S_HQ}, {XKB}
s_lshl_b32 s{T0+1}, s{T0+1}, 1
s_add_u32 s{T0+1}, s{T0+1}, s{PP}
s_lshl_b32 s{T0+1}, s{T0+1}, 1
s_add_u32 s{T0+1}, s{T0+1}, s{TT}
s_lshl_b32 s{T0+1}, s{T0+1}, 5
s_add_u32 s{T0+1}, s{T0+1}, s{S_TB}
s_lshl_b32 s{T0+1}, s{T0+1}, 12
s_add_u32 s{T0+1}, s{T0+1}, {WS_KVP}
""")
    for j in range(2):
        for i in range(4, 8):
            a(f"v_cvt_pk_bf16_f32 v{PB+8*j+i}, v{ACC[j]+2*i}, v{ACC[j]+1+2*i}")
    for j in range(2):
        for i in range(4):
            a(f"v_cvt_pk_bf16_f32 v{PB+8*j+i}, v{ACC[j]+2*i}, v{ACC[j]+1+2*i}")
        a(f"v_mfma_f32_32x32x16_bf16 {v(PKB[j],16)}, {v(WPHI[j],4)}, {v(PB+8*j+4,4)}, 0")
    for j in range(2):
        for i in range(4*j, 4*j+4):
            a(f"v_cvt_pk_bf16_f32 v{PV+i}, v{ACC[2]+2*i}, v{ACC[2]+1+2*i}")
        a(f"v_mfma_f32_32x32x16_bf16 {v(PQB[j],16)}, {v(WPHQ[j],4)}, {v(PB+8*j,4)}, 0")
    a(VINIT)
    a.emit(ZSB)
    a(f"v_add_u32 v{ADDR}, {R2}, v1")
    a.emit(ZERO_O)
    stamp(a, 2, 3)
    sq = rr(softmax16(PKB[0], 64), softmax16(PKB[1], 68), softmax16(PQB[0], 72), softmax16(PQB[1], 76))
    a.emit([x for x in sq if x != "s_nop 0"])
    stamp(a, 3, 3)
    for j in range(2):
        a(f"ds_write_b128 v60, {v(PKB[j],4)} offset:{j*2048}")
        a(f"ds_write_b128 v60, {v(PKB[j]+4,4)} offset:{j*2048+16}")
    a(f"ds_write_b128 v240, {v(PV,4)} offset:4096")
    a(f"ds_write_b128 v240, {v(PV+4,4)} offset:5120")
    a(f"""
s_sub_u32 s{T0+2}, s{P_PHQ}, {WS_PHQ + 2048}
s_lshr_b32 s{T0+2}, s{T0+2}, 1
s_add_u32 s{T0}, s{P_OF}, {OBR}
s_lshl_b32 s{P_KVB}, s{S_H}, 17
s_add_u32 s{P_KVB}, s{P_KVB}, {WS_KV}
s_lshl_b32 s{P_KVG}, s{S_WAVE}, 12
s_add_u32 s{P_KVG}, s{P_KVG}, {R2 - LEAD*4096}
s_waitcnt lgkmcnt(0)
""")
    stamp(a, 6); stamp(a, 4, 3)
    AF, VF, KVA = 160, 176, 224
    a(f"""
s_barrier
s_setprio 3
buffer_load_dwordx4 {v(QA,4)}, v1, {s(S_WS,4)}, s{T0+2} offen sc1
buffer_load_dwordx4 {v(QB,4)}, v1, {s(S_WS,4)}, s{T0+2} offen offset:1024 sc1
""")
    for t in range(2):
        for sx in range(2):
            a(f"ds_read_b128 {v(VF+8*t+4*sx,4)}, v241 offset:{t*12288+4096+sx*1024}")
    for t in range(2):
        for sx in range(2):
            for rd in range(2):
                a(f"ds_read_b64_tr_b16 {v(AF+8*t+4*sx+2*rd,2)}, v242 offset:{t*12288+(16*sx+8*rd)*64}")
    a("s_waitcnt lgkmcnt(0)")
    a(f"""
ds_read_b64 v[38:39], v243
ds_read_b128 {v(KS[0],4)}, v{ADDR}
s_mov_b64 exec, {s(SL+2,2)}
ds_read_b128 {v(VS[0],4)}, v{ADDR} offset:1024
ds_read_b128 {v(VS[0]+4,4)}, v{ADDR} offset:1280
s_mov_b64 exec, -1
""")
    for i in range(16):
        a(f"v_bfi_b32 v{VF+i}, v244, v245, v{VF+i}")
        if i in (7, 11, 15):
            k_ = (i - 7) // 4
            a(f"v_mfma_f32_32x32x16_bf16 {v(KVA,16)}, {v(AF+4*k_,4)}, {v(VF+4*k_,4)}, {'0' if k_ == 0 else v(KVA,16)}")
    a(f"""
s_waitcnt lgkmcnt(0)
v_mfma_f32_32x32x16_bf16 {v(KVA,16)}, {v(AF+12,4)}, {v(VF+12,4)}, {v(KVA,16)}
""")
    a.emit(fm)
    a(f"v_subrev_u32 v{ADDR}, {2*LEAD*2048}, v{ADDR}")
    a("s_waitcnt vmcnt(0)")
    a(f"v_mfma_f32_32x32x16_bf16 {v(SA,16)}, {v(KS[0],4)}, {v(QA,4)}, {v(NMA,16)}")
    stamp(a, 7)
    for q in range(4):
        a(f"buffer_store_dwordx4 {v(KVA+4*q,4)}, v1, {s(S_WS,4)}, s{T0+1} offen offset:{q*1024} sc1")
    for j in range(2):
        a(f"buffer_store_dwordx4 {v(PQB[j],4)}, v1, {s(S_WS,4)}, s{T0+3+j} offen sc1")
        a(f"buffer_store_dwordx4 {v(PQB[j]+4,4)}, v1, {s(S_WS,4)}, s{T0+3+j} offen offset:1024 sc1")
    a("s_nop 1")
    stamp(a, 8)
    a(f"s_branch L_slot{LEAD}")

    def e(b, i): return f"v_exp_f32 v{b+i}, v{b+i}"
    def sm(o, vv, p): return f"v_smfmac_f32_32x32x32_bf16 {v(o,16)}, {v(vv,4)}, {v(p,8)}, v{IDX}"
    def slot(base, last=False, bg=None):
        bg = bg or {}
        o = []
        k = [0]
        def ex(b, i):
            o.append(e(b, i))
            o.extend(bg.get(k[0], []))
            k[0] += 1
        for c in range(2):
            n = c ^ 1
            off = base + (c + 1) * 2048
            pf = not (last and c == 1)
            if pf: o.append(f"ds_read_b128 {v(KS[n],4)}, v{ADDR} offset:{off}")
            ex(SA,0); ex(SA,1)
            o.append(sm(OB, VS[n]+4, SB+8))
            if pf:
                o.append(f"s_mov_b64 exec, {s(SL+2,2)}")
                o.append(f"ds_read_b128 {v(VS[n],4)}, v{ADDR} offset:{off+1024}")
                o.append(f"ds_read_b128 {v(VS[n]+4,4)}, v{ADDR} offset:{off+1280}")
                o.append("s_mov_b64 exec, -1")
            ex(SA,2); ex(SA,3)
            o.append(f"v_mfma_f32_32x32x16_bf16 {v(SB,16)}, {v(KS[c],4)}, {v(QB,4)}, {v(NMB,16)}")
            for i in range(4, 10): ex(SA,i)
            o.append(sm(OA, VS[c], SA))
            for i in range(10, 16): ex(SA,i)
            ex(SB,0); ex(SB,1)
            o.append(sm(OA, VS[c]+4, SA+8))
            ex(SB,2); ex(SB,3)
            if pf:
                o.append("s_waitcnt lgkmcnt(0)")
                o.append(f"v_mfma_f32_32x32x16_bf16 {v(SA,16)}, {v(KS[n],4)}, {v(QA,4)}, {v(NMA,16)}")
            for i in range(4, 10): ex(SB,i)
            o.append(sm(OB, VS[c], SB))
            for i in range(10, 16): ex(SB,i)
        return o
    def spread(bg, items, lo, hi):
        n = len(items)
        for i, it in enumerate(items):
            pos = lo + (i * (hi - lo + 1)) // n
            bg.setdefault(pos, []).extend(it if isinstance(it, list) else [it])
    BG = {sl: {} for sl in range(NS)}
    M16 = "0x00ff00ff"
    assert LEAD == 2 and (BD, BA, BW) == (4, 8, 12)
    spread(BG[P["CLS"]], [f"buffer_store_dwordx4 v[44:47], v1, {s(S_WS,4)}, s{P_OF} offen sc1",
        [f"s_add_u32 s{T0}, s{P_OF}, {OBR}", f"buffer_store_dwordx4 v[44:47], v1, {s(S_WS,4)}, s{T0} offen sc1"],
        [f"s_cmp_lg_u32 s{KH}, 0", f"s_cselect_b32 exec_lo, 0, {M16}", "s_mov_b32 exec_hi, 0", f"buffer_store_dword v44, v43, {s(S_WS,4)}, s{P_KVT} offen sc1", "s_mov_b64 exec, -1"]], 10, 56)
    spread(BG[BD], kvgrp(P_KVG, 9*4096), 8, 56)
    spread(BG[BA], kvgrp(P_KVG, 13*4096), 14, 38)
    spread(BG[C0+1], [[f"s_cmp_lg_u32 s{KH}, 0", "s_cbranch_scc1 L_skipA", f"buffer_load_dword v41, v{VZ}, {s(S_WS,4)}, s{P_F2} offen sc1", "L_skipA:"]], 56, 56)
    l1a = [f"s_cmp_lg_u32 s{KH}, 0", "s_cbranch_scc1 L_skipB", "s_waitcnt vmcnt(0)", f"v_readfirstlane_b32 s{T0+6}, v41",
           f"s_add_u32 s{T0}, s{P_KVS}, 32768", f"s_add_u32 s{T0+1}, s{P_KVS}, 65536", f"s_add_u32 s{T0+2}, s{P_KVS}, 98304",
           f"s_cmp_lt_u32 s{T0+6}, 32", "s_cbranch_scc1 L_flagspin", "L_flagok:"]
    for p in range(4):
        l1a.append(f"buffer_load_dwordx4 {v(POOL+4*p,4)}, v42, {s(S_WS,4)}, s{P_KVS if p == 0 else T0+p-1} offen sc1")
    l1a.append("L_skipB:")
    spread(BG[C0+2], [l1a], 10, 10)
    l1b = ["s_waitcnt vmcnt(0)", f"s_cmp_lg_u32 s{KH}, 0", "s_cbranch_scc1 L_skipC"]
    for i in range(4): l1b.append(f"v_add_f32 v{POOL+i}, v{POOL+i}, v{POOL+4+i}")
    for i in range(4): l1b.append(f"v_add_f32 v{POOL+8+i}, v{POOL+8+i}, v{POOL+12+i}")
    for i in range(4): l1b.append(f"v_add_f32 v{POOL+i}, v{POOL+i}, v{POOL+8+i}")
    l1b += L(f"""
v_permlane32_swap_b32 v{POOL}, v{POOL+1}
s_nop 0
v_permlane32_swap_b32 v{POOL+2}, v{POOL+3}
v_add_f32 v{POOL}, v{POOL}, v{POOL+1}
s_nop 0
v_add_f32 v{POOL+2}, v{POOL+2}, v{POOL+3}
s_nop 1
v_permlane16_swap_b32 v{POOL}, v{POOL+2}
s_nop 1
v_add_f32 v{POOL}, v{POOL}, v{POOL+2}
s_nop 1
v_add_f32_dpp v{POOL}, v{POOL}, v{POOL} row_ror:8 row_mask:0xf bank_mask:0xf
v_mov_b32 v{POOL+1}, v{POOL}
s_nop 1
v_permlane32_swap_b32 v{POOL}, v{POOL+1}
s_nop 1
v_cvt_pk_bf16_f32 v40, v{POOL}, v{POOL+1}
v_min_u32 v40, -2, v40
s_mov_b32 exec_lo, {M16}
s_mov_b32 exec_hi, 0
buffer_store_dword v40, v43, {s(S_WS,4)}, s{P_KVT} offen sc1
s_mov_b64 exec, -1
L_skipC:
""")
    spread(BG[C0+3], [l1b], 30, 30)
    if BS == BD: assert C0 + 3 < BA
    CB = C0 + 4
    spread(BG[CB], L(f"""
v_and_b32 v42, 7, v0
v_lshlrev_b32 v42, 8, v42
s_mov_b32 s{T0+5}, {WS_FL}
buffer_load_dword v41, v42, {s(S_WS,4)}, s{T0+5} offen sc1
"""), 40, 56)
    KT = OBF
    R = OBF + 16
    ktl = [f"buffer_load_dwordx4 {v(KT,4)}, v1, {s(S_WS,4)}, s{P_KVT} offen sc1",
           f"buffer_load_dwordx4 {v(KT+4,4)}, v1, {s(S_WS,4)}, s{P_KVT} offen offset:1024 sc1"]
    spread(BG[CB+1], [["s_waitcnt vmcnt(0)", "v_cmp_gt_u32 vcc, 32, v41"]], 24, 24)
    spread(BG[CB+1], [["s_cbranch_vccnz L_flag2spin", "L_flag2ok:"],
                      f"buffer_load_dwordx4 {v(PQ,4)}, v1, {s(S_WS,4)}, s{P_PHQ} offen sc1",
                      f"buffer_load_dwordx4 {v(PQ+4,4)}, v1, {s(S_WS,4)}, s{P_PHQ} offen offset:1024 sc1"] + ktl, 28, 60)
    ktc = L(f"""
v_max3_u32 v40, v{KT}, v{KT+1}, v{KT+2}
v_max3_u32 v41, v{KT+3}, v{KT+4}, v{KT+5}
v_max3_u32 v40, v40, v{KT+6}, v{KT+7}
v_max_u32 v40, v40, v41
v_cmp_eq_u32 vcc, -1, v40
""")
    spread(BG[CB+2], [["s_waitcnt vmcnt(0)", ktc[0]]] + ktc[1:], 22, 27)
    spread(BG[CB+2], [["s_cbranch_vccnz L_ktspin", "L_ktok:", f"v_mfma_f32_32x32x16_bf16 {v(R,16)}, {v(KT,4)}, {v(PQ,4)}, 0"]], 30, 30)
    spread(BG[CB+2], [f"v_mfma_f32_32x32x16_bf16 {v(R,16)}, {v(KT+4,4)}, {v(PQ+4,4)}, {v(R,16)}"], 45, 45)
    ob = [f"v_add_f32 v40, {f2u(1e-6):#x}, v{R+8}", "v_rcp_f32 v40, v40"]
    ob += [f"v_mul_f32 v{R+i}, v{R+i}, v40" for i in range(8)]
    ob += [f"v_cvt_pk_bf16_f32 v{KACC+i}, v{R+2*i}, v{R+2*i+1}" for i in range(4)]
    ob += [f"v_min_u32 v{KACC+i}, -2, v{KACC+i}" for i in range(4)]
    ob += [[f"s_add_u32 s{T0}, s{P_OF}, {OBR}", f"buffer_store_dwordx4 {v(KACC,4)}, v1, {s(S_WS,4)}, s{T0} offen sc1"]]
    spread(BG[CB+3], ob, 0, 24)
    wob = []
    for i in range(16):
        g = [f"buffer_load_dwordx4 {v(POOL+4*i,4)}, v1, {s(S_WS,4)}, s{P_WOB} offen offset:{(i&3)*1024} sc1"]
        if i & 3 == 3: g.append(f"s_add_u32 s{P_WOB}, s{P_WOB}, 4096")
        wob.append(g)
    def woa_dma():
        o = []
        for g in range(2):
            o.append([f"s_add_u32 m0, s{P_WOL}, {g*4096}", f"s_add_u32 s{T0+1}, s{P_WOF}, {g*4096}"])
            for i in range(4):
                o.append(f"buffer_load_dwordx4 v1, {s(S_WS,4)}, s{T0+1} offen offset:{i*1024} sc1 lds")
        return o
    if BS == BD:
        spread(BG[CB+3], wob[:4], 30, 60)
        spread(BG[BW], woa_dma(), 2, 60)
        spread(BG[BW+1], wob[4:10], 2, 60)
        spread(BG[BW+2], wob[10:], 2, 60)
        OBS, OBLO, OBHI, PLO, PHI = NS - 2, 4, 60, 4, 40
    else:
        spread(BG[CB+2], wob[:2], 50, 60)
        spread(BG[CB+3], wob[2:7], 28, 60)
        spread(BG[CB+4], wob[7:16], 2, 60)
        spread(BG[CB+5], woa_dma(), 2, 60)
        OBS, OBLO, OBHI, PLO, PHI = NS - 1, 0, 30, 32, 60
    def ob_loads():
        o = [[f"s_add_u32 s{T0}, s{P_OA}, {OBR}", f"s_add_u32 s{T0+1}, s{P_OA}, {OBR+4096}"]]
        for j in range(8):
            o.append(f"buffer_load_dwordx4 {v(OBF+4*j,4)}, v1, {s(S_WS,4)}, s{T0+j//4} offen offset:{(j&3)*1024} sc1")
        return o
    spread(BG[OBS], L(f"""
v_and_b32 v40, 31, v0
v_lshlrev_b32 v40, 2, v40
buffer_load_dword v{GV}, v40, {s(S_WS,4)}, s{P_G} offen sc1
""") + ob_loads(), OBLO, OBHI)
    spread(BG[NS-1], L(f"""
s_mul_i32 s{T0}, s{S_WAVE}, {EXS}
s_add_u32 s{T0}, s{T0}, {L_EX}
v_add_u32 v40, s{T0}, v1
v_lshlrev_b32 v2, 2, v0
v_add_u32 v42, s{T0}, v2
s_xor_b32 s{T0+1}, s{S_WAVE}, 4
s_mul_i32 s{T0+1}, s{T0+1}, {EXS}
s_add_u32 s{T0+1}, s{T0+1}, {L_EX}
v_add_u32 v41, s{T0+1}, v1
v_add_u32 v43, s{T0+1}, v2
v_and_b32 v2, 28, v2
v_add_u32 v2, {L_FLAG}, v2
s_lshl_b32 s{T0}, s{S_WAVE}, 2
s_add_u32 s{T0}, s{T0}, {L_FLAG}
v_mov_b32 v44, s{T0}
"""), PLO, PHI)
    bars = sorted(set([BD, BS, BA, BW, NS]))
    REB = 9
    a(".p2align 6")
    for sl in range(NS):
        a(f"L_slot{sl}:")
        if 1 <= sl - 4 <= 12: stamp(a, sl - 4, 1)
        if sl < 12: stamp(a, sl + 1, 4)
        if sl == BD and BD != BS:
            a(f"s_cmp_lg_u32 s{KH}, 0")
            a("s_cbranch_scc1 L_nowaitD")
            a("s_waitcnt vmcnt(3)" if P["CLS"] < BD else "s_waitcnt vmcnt(0)")
            a("L_nowaitD:")
            a("s_barrier")
        if sl == BS:
            a("s_waitcnt vmcnt(0)")
            a("s_barrier")
            a(f"s_cmp_eq_u32 s{S_WAVE}, 0")
            a("s_cbranch_scc1 L_sig2")
            a("L_sig2done:")
        if sl in (BA, BW):
            a("s_barrier")
        if True:
            nb = min(b for b in bars if b > sl)
            a(f"s_setprio {min(3, nb - sl - 1)}")
        if sl == REB:
            a(f"v_add_u32 v{ADDR}, {REB*4096}, v{ADDR}")
        a.emit(slot((sl - (REB if sl >= REB else 0)) * 4096, sl == NS - 1, BG[sl]))
    a("L_tail:")
    a("s_nop 1")
    a(sm(OB, VS[1]+4, SB+8))
    stamp(a, 9)
    def chk(dst, o):
        r = [f"v_add_f32 v{dst}, abs(v{o}), abs(v{o+8})"]
        for i in range(1, 8):
            r.append(f"v_add_f32 v{dst}, v{dst}, abs(v{o+i})")
        return r
    a(f"""
s_setprio 3
s_mov_b32 s{T0}, 0x7b800000
""")
    a.emit(chk(38, OA))
    a(f"""
s_cmp_eq_u32 s{KH}, 0
s_cbranch_scc1 L_send_b
ds_write_b128 v40, {v(OA,4)}
ds_write_b128 v40, {v(OA+4,4)} offset:1024
ds_write_b32 v42, v{OA+8} offset:2048
s_branch L_sent
L_send_b:
s_nop 1
ds_write_b128 v40, {v(OB,4)}
ds_write_b128 v40, {v(OB+4,4)} offset:1024
ds_write_b32 v42, v{OB+8} offset:2048
L_sent:
""")
    a.emit(chk(39, OB))
    a(f"""
v_add_f32 v38, v38, v39
v_cmp_ngt_f32 vcc, s{T0}, v38
s_nop 4
s_or_b32 s{T0}, vcc_lo, vcc_hi
v_mov_b32 v45, s{T0}
ds_write_b32 v44, v45
s_waitcnt lgkmcnt(0) vmcnt(9)
s_barrier
""")
    stamp(a, 10)
    a(f"""
ds_read_b32 v45, v2
ds_read_b32 v{SA+8}, v43 offset:2048
ds_read_b128 {v(SA,4)}, v41
ds_read_b128 {v(SA+4,4)}, v41 offset:1024
s_cmp_eq_u32 s{KH}, 0
s_cbranch_scc1 L_keep_a
""")
    for i in range(0, 8, 2):
        a(f"v_mov_b64 {v(OA+i,2)}, {v(OB+i,2)}")
    a(f"""
v_mov_b32 v{OA+8}, v{OB+8}
L_keep_a:
s_waitcnt lgkmcnt(0)
v_cmp_ne_u32 vcc, 0, v45
v_add_f32 v{OA+8}, v{OA+8}, v{SA+8}
v_rcp_f32 v{OA+8}, v{OA+8}
""")
    for i in range(0, 8, 2):
        a(f"v_pk_add_f32 {v(OA+i,2)}, {v(OA+i,2)}, {v(SA+i,2)}")
    a(f"""
s_cmp_lg_u32 s{MODE}, 0
s_cbranch_scc1 L_fine
s_cbranch_vccnz L_slow
L_fine:
""")
    for i in range(0, 8, 2):
        a(f"v_pk_mul_f32 {v(OA+i,2)}, {v(OA+i,2)}, {v(OA+8,2)} op_sel_hi:[1,0]")
    for i in range(4):
        a(f"v_cvt_pk_bf16_f32 v{KACC+i}, v{OA+2*i}, v{OA+2*i+1}")
    for i in range(4):
        a(f"v_min_u32 v{KACC+i}, -2, v{KACC+i}")
    a(f"buffer_store_dwordx4 {v(KACC,4)}, v1, {s(S_WS,4)}, s{P_OF} offen sc1")
    stamp(a, 11)
    OFA = 80
    ACCA = [112, 128]
    ACCB = 48
    a(f"""
s_mov_b32 s{T0+7}, 0
s_waitcnt vmcnt(1)
L_obchk:
v_max3_u32 v40, v{OBF}, v{OBF+1}, v{OBF+2}
v_max3_u32 v41, v{OBF+3}, v{OBF+4}, v{OBF+5}
""")
    for i in range(6, 30, 4):
        a(f"v_max3_u32 v40, v40, v{OBF+i}, v{OBF+i+1}")
        a(f"v_max3_u32 v41, v41, v{OBF+i+2}, v{OBF+i+3}")
    a(f"""
v_max3_u32 v40, v40, v{OBF+30}, v{OBF+31}
v_max_u32 v40, v40, v41
v_cmp_eq_u32 vcc, -1, v40
s_bfe_u32 s{T0}, s{S_WAVE}, 0x10001
s_lshl_b32 s{T0}, s{T0}, 14
s_lshr_b32 s{T0+1}, s{S_WAVE}, 2
s_mul_i32 s{T0+1}, s{T0+1}, {R2}
s_add_u32 s{T0}, s{T0}, s{T0+1}
v_add_u32 v39, s{T0}, v1
s_cbranch_vccnz L_obretry
L_obok:
""")
    prep = L(f"""
v_and_b32 v12, 31, v0
v_lshrrev_b32 v13, 5, v0
s_lshl_b32 s{T0}, s{S_WAVE}, 13
v_lshlrev_b32 v4, 8, v12
v_add_u32 v4, s{T0}, v4
v_and_b32 v14, 7, v0
v_lshlrev_b32 v15, 2, v13
v_xor_b32 v14, v14, v15
v_lshl_add_u32 v4, v14, 4, v4
v_xor_b32 v5, 16, v4
v_xor_b32 v6, 32, v4
v_xor_b32 v7, 48, v4
v_lshrrev_b32 v14, 3, v0
v_and_b32 v15, 7, v0
v_lshlrev_b32 v8, 1, v15
v_xor_b32 v8, v8, v14
v_lshlrev_b32 v8, 4, v8
v_lshl_add_u32 v8, v14, 8, v8
s_lshl_b32 s{T0}, s{S_WAVE}, 11
v_add_u32 v8, s{T0}, v8
v_xor_b32 v9, 16, v8
v_lshlrev_b32 v10, 10, v14
v_lshl_add_u32 v10, v15, 4, v10
s_and_b32 s{T0}, s2, 31
s_lshl_b32 s{T0}, s{T0}, 16
s_lshl_b32 s{T0+1}, s{S_WAVE}, 13
s_add_u32 s{T0}, s{T0}, s{T0+1}
s_lshr_b32 s{T0+1}, s2, 5
s_lshl_b32 s{T0+1}, s{T0+1}, 7
s_add_u32 s{T0}, s{T0}, s{T0+1}
s_add_u32 s{T0+2}, s{P_OA}, 4096
v_sub_f32 v38, 1.0, v{GV}
s_mov_b32 s{S_X}, s20
s_mov_b32 s{S_X+1}, s21
s_mov_b32 s{S_X+2}, {2048*512*2}
s_mov_b32 s{S_X+3}, 0x20000
""")
    k = 0
    for j in range(8):
        for ct in range(2):
            c = v(ACCB+16*ct,16)
            a(f"v_mfma_f32_32x32x16_bf16 {c}, {v(POOL+8*j+4*ct,4)}, {v(OBF+4*j,4)}, {'0' if j==0 else c}")
            a(f"ds_read_b128 {v(POOL+8*j+4*ct,4)}, v39 offset:{(2*j+ct)*1024}")
            a.emit(prep[k:k+3]); k += 3
    def oa_load(j):
        return f"buffer_load_dwordx4 {v(OFA+4*j,4)}, v1, {s(S_WS,4)}, s{P_OA if j < 4 else T0+2} offen offset:{(j&3)*1024} sc1"
    for j in range(8): a(oa_load(j))
    a("s_nop 4")
    for i in range(0, 32, 2):
        a(f"v_pk_mul_f32 {v(ACCB+i,2)}, {v(ACCB+i,2)}, v[38:39] op_sel_hi:[1,0]")
    a("s_waitcnt lgkmcnt(0)")
    a("s_barrier")
    for j in range(8):
        f = OFA + 4*j
        a(f"""
L_cons{j}:
s_waitcnt vmcnt({7-j})
v_max3_u32 v38, v{f}, v{f+1}, v{f+2}
v_max_u32 v38, v38, v{f+3}
v_cmp_eq_u32 vcc, -1, v38
s_nop 4
s_cbranch_vccnz L_retry{j}
L_go{j}:
""")
        for ct in range(2):
            c = v(ACCA[ct],16)
            a(f"v_mfma_f32_32x32x16_bf16 {c}, {v(POOL+8*j+4*ct,4)}, {v(f,4)}, {'0' if j==0 else c}")
    stamp(a, 12)
    a("s_nop 10")
    for ct in range(2):
        for i in range(0, 16, 2):
            a(f"v_pk_fma_f32 {v(ACCA[ct]+i,2)}, {v(ACCA[ct]+i,2)}, {v(GV,2)}, {v(ACCB+16*ct+i,2)} op_sel_hi:[1,0,1]")
        for q in range(4):
            a(f"ds_write_b128 v{4+q}, {v(ACCA[ct]+4*q,4)} offset:{ct*128}")
    a(f"""
s_waitcnt lgkmcnt(0)
s_barrier
""")
    for kq in range(4):
        a(f"ds_read_b128 {v(16+8*kq,4)}, v8 offset:{kq*16384}")
        a(f"ds_read_b128 {v(20+8*kq,4)}, v9 offset:{kq*16384}")
    for kq in range(1, 4):
        a(f"s_waitcnt lgkmcnt({6-2*kq})")
        for i in range(0, 8, 2):
            a(f"v_pk_add_f32 {v(16+i,2)}, {v(16+i,2)}, {v(16+8*kq+i,2)}")
    for i in range(4):
        a(f"v_cvt_pk_bf16_f32 v{16+i}, v{16+2*i}, v{17+2*i}")
    a(f"buffer_store_dwordx4 v[16:19], v10, {s(S_X,4)}, s{T0} offen sc1")
    stamp_out(a)
    a("L_end:")
    a("s_endpgm")
    for j in range(8):
        a(f"""
L_retry{j}:
s_add_u32 s{T0+7}, s{T0+7}, 1
s_cmp_ge_u32 s{T0+7}, {SPIN}
s_cbranch_scc1 L_go{j}
""")
        for jj in range(j, 8): a(oa_load(jj))
        a(f"s_branch L_cons{j}")
    a(f"""
L_obretry:
s_add_u32 s{T0+7}, s{T0+7}, 1
s_cmp_ge_u32 s{T0+7}, {SPIN}
s_cbranch_scc1 L_obok
""")
    for g in ob_loads(): a.emit(g if isinstance(g, list) else [g])
    a(f"""
s_waitcnt vmcnt(0)
s_branch L_obchk
L_pollF1:
s_sleep {P["PSL"]}
buffer_load_dword v40, v41, {s(S_WS,4)}, s{T0} offen sc1
s_add_u32 s{T0+7}, s{T0+7}, 1
s_waitcnt vmcnt(0)
v_cmp_gt_u32 vcc, 32, v40
s_cmp_ge_u32 s{T0+7}, {SPIN}
s_cbranch_scc1 L_pollF1_ok
s_nop 2
s_cbranch_vccnz L_pollF1
s_branch L_pollF1_ok
L_sig1:
s_mov_b32 s{T0+7}, 0
L_initpoll:
v_readfirstlane_b32 s{T0+6}, v59
s_cmp_lg_u32 s{T0+6}, 0
s_cbranch_scc1 L_initok
s_sleep 4
global_load_dword v59, v{VZ}, s[22:23] sc1
s_add_u32 s{T0+7}, s{T0+7}, 1
s_waitcnt vmcnt(0)
s_cmp_lt_u32 s{T0+7}, {SPIN}
s_cbranch_scc1 L_initpoll
L_initok:
s_mov_b32 s{T0}, {WS_FL + 2048}
v_mov_b32 v59, 1
s_mov_b64 exec, {7 if P["MIX"] else 1}
buffer_atomic_add v59, v246, {s(S_WS,4)}, s{T0} offen sc1
s_mov_b64 exec, -1
""")
    stamp(a, 2)
    a(f"""
s_branch L_drained
L_sig2:
s_lshl_b32 s{T0}, s{S_HQ}, 8
s_add_u32 s{T0}, s{T0}, {WS_FL}
v_mov_b32 v38, 1
s_mov_b64 exec, 1
buffer_atomic_add v38, v{VZ}, {s(S_WS,4)}, s{T0} offen sc1
s_mov_b64 exec, -1
s_branch L_sig2done
L_flagspin:
s_mov_b32 s{T0+7}, 0
L_flagspin2:
s_sleep 16
buffer_load_dword v41, v{VZ}, {s(S_WS,4)}, s{P_F2} offen sc1
s_add_u32 s{T0+7}, s{T0+7}, 1
s_waitcnt vmcnt(0)
v_readfirstlane_b32 s{T0+6}, v41
s_cmp_ge_u32 s{T0+6}, 32
s_cbranch_scc1 L_flagok
s_cmp_lt_u32 s{T0+7}, {SPIN}
s_cbranch_scc1 L_flagspin2
s_branch L_flagok
L_flag2spin:
s_mov_b32 s{T0+7}, 0
L_flag2spin2:
s_sleep 32
buffer_load_dword v41, v42, {s(S_WS,4)}, s{T0+5} offen sc1
s_add_u32 s{T0+7}, s{T0+7}, 1
s_waitcnt vmcnt(0)
v_cmp_gt_u32 vcc, 32, v41
s_cmp_ge_u32 s{T0+7}, {SPIN}
s_cbranch_scc1 L_flag2ok
s_nop 2
s_cbranch_vccnz L_flag2spin2
s_branch L_flag2ok
L_ktspin:
s_mov_b32 s{T0+7}, 0
L_ktspin2:
s_sleep 8
""")
    a.emit(ktl)
    a(f"""
s_add_u32 s{T0+7}, s{T0+7}, 1
s_waitcnt vmcnt(0)
""")
    a.emit(ktc)
    a(f"""
s_cmp_ge_u32 s{T0+7}, {SPIN}
s_cbranch_scc1 L_ktok
s_nop 2
s_cbranch_vccnz L_ktspin2
s_branch L_ktok
""")
    a(f"""
L_slow:
s_barrier
s_mov_b32 s{MODE}, 1
s_lshl_b32 s{T0+1}, s{S_H}, 17
s_add_u32 s{T0+1}, s{T0+1}, {WS_KV}
s_add_u32 s{T0+1}, s{T0+1}, s{P_WOL}
""")
    for g in range(2):
        a(f"s_add_u32 m0, s{P_WOL}, {g*4096}")
        a(f"s_add_u32 s{T0+1}, s{T0+1}, {g*4096}")
        for i in range(4):
            a(f"buffer_load_dwordx4 v1, {s(S_WS,4)}, s{T0+1} offen offset:{i*1024} sc1 lds")
    a(f"""
s_mov_b32 s{CNT}, 0
v_mov_b32 v{ADDR}, v1
v_mov_b32 v38, 0xff800000
v_mov_b32 v39, 0xff800000
v_mov_b32 v46, v40
v_mov_b32 v47, v41
s_waitcnt vmcnt(0)
s_barrier
L_mloop:
ds_read_b128 {v(KS[0],4)}, v{ADDR}
s_waitcnt lgkmcnt(0)
v_mfma_f32_32x32x16_bf16 {v(SA,16)}, {v(KS[0],4)}, {v(QA,4)}, 0
v_mfma_f32_32x32x16_bf16 {v(SB,16)}, {v(KS[0],4)}, {v(QB,4)}, 0
s_nop 15
""")
    a.emit(rr(maxtree(38, SA, 1), maxtree(39, SB, 1)))
    a(f"""
v_add_u32 v{ADDR}, 2048, v{ADDR}
s_add_u32 s{CNT}, s{CNT}, 1
s_cmp_lt_u32 s{CNT}, 64
s_cbranch_scc1 L_mloop
""")
    a(NEGM)
    a(f"""
s_lshl_b32 s{T0}, s{KH}, 16
v_add_u32 v{ADDR}, s{T0}, v1
s_mov_b32 s{CNT}, 0
ds_read_b128 {v(KS[0],4)}, v{ADDR}
s_mov_b64 exec, {s(SL+2,2)}
ds_read_b128 {v(VS[0],4)}, v{ADDR} offset:1024
ds_read_b128 {v(VS[0]+4,4)}, v{ADDR} offset:1280
s_mov_b64 exec, -1
""")
    a.emit(fm); a.emit(ZERO_O); a.emit(ZSB)
    a(f"""
s_waitcnt lgkmcnt(0)
v_mfma_f32_32x32x16_bf16 {v(SA,16)}, {v(KS[0],4)}, {v(QA,4)}, {v(NMA,16)}
s_nop 15
L_sloop:
""")
    a.emit(slot(0))
    a(f"""
v_add_u32 v{ADDR}, 4096, v{ADDR}
s_add_u32 s{CNT}, s{CNT}, 1
s_cmp_lt_u32 s{CNT}, 16
s_cbranch_scc1 L_sloop
v_mov_b32 v40, v46
v_mov_b32 v41, v47
s_barrier
""")
    for g in woa_dma(): a.emit(g if isinstance(g, list) else [g])
    a("s_waitcnt vmcnt(0)")
    a("s_branch L_tail")
    a("L_codeend:")
    a("s_endpgm")
    return kd(NAME, 256, 102)

HEAD = """; gated mix of softmax attention and hedgehog linear attention -- hand-written gfx950 kernel
; @launch grid=(256,1,1) block=(512,1,1) lds=163840
.amdgcn_target "amdgcn-amd-amdhsa--gfx950"
"""
if __name__ == "__main__":
    rt = False
    for o in sys.argv[2:]:
        if o == "st": P["STAMPS"] = 1
        elif o == "rt": rt = True
        else:
            k_, v_ = o.split("="); assert k_.upper() in P, k_; P[k_.upper()] = int(v_)
    a = Asm()
    k = gen(a)
    txt = a.text()
    if rt: txt = txt.replace("s_memtime", "s_memrealtime")
    open(sys.argv[1], "w").write(HEAD + txt + k)
```

```python
import sys, struct
from asmlib import *

NAME = "gated_mix__mha_block__linear_kernel_hedgehog__prompt_kernel"
LOG2E = 1.4426950408889634
def f2u(x): return struct.unpack("<I", struct.pack("<f", x))[0]

WS_QF  = 0
WS_KV  = 2 << 20
WS_PHQ = 6 << 20
WS_KVP = 10 << 20
WS_OF  = 14 << 20
WS_G   = 18 << 20
WS_KVT = (18 << 20) + 65536
WS_WOF = (18 << 20) + 131072
WS_FL  = WS_WOF + (1 << 20)
WS_SIZE = WS_FL + 32 * 256
WS_ST = 20 << 20
OBR = 64 * 32 * 1024

P = dict(STAMPS=0, STMODE=0, SPIN=400000, SIGC=1, LOOK=3, RPG=3, LEAD=2, CPF=1, XAH=1, PSL=2,
         KVS=4, PACE=0, PACK=0, TLB=0, WF=0, WBT=0, MIX=1, NOBD=1, NOBA=1, RLIM=11, EARLYB=0, QLATE=1, PRE=2, L1=9, RFIRST=1, CLS=3, BS=6, BD=4, BA=8, BW=12, DBG=0, ROTC=1, DIAG=0)

S_X, S_WA, S_WB, S_WS, S_MISC = 28, 32, 36, 40, 44
S_WAVE, S_HQ, S_TB, S_ROT = 48, 49, 50, 51
S_H, S_RB = 26, 27
T0 = 52
SL = 60
CNT, MODE, EVM, TT, PP, SX = 64, 65, 66, 67, 68, 69
P_KVG, P_KVB = 66, 67
P_OF, P_F2, P_KVS, P_KVT, P_PHQ, P_WOF, P_WOB, P_OA, P_G, P_WOL, KH = 4, 5, 6, 7, 8, 9, 10, 11, 0, 1, 3

XL, WL, WSLOT = 0, 65536, 24576
L_QH, L_WOS, L_CMB = 128*1024, 130*1024, 136*1024
L_FLAG, L_EX, EXS = 136*1024, 137*1024, 2304

QA, QB, KS, VS, IDX, ADDR = 4, 8, [12, 16], [20, 28], 36, 37
NMA, NMB, SA, SB, OA, OB = 48, 64, 80, 96, 112, 128
POOL, OBF, KACC, PQ, GV = 144, 208, 240, 244, 252
VZ = 3
L = lambda t: [x.strip() for x in t.strip().split("\n") if x.strip()]

def stamp(a, i, mode=0):
    if P["STAMPS"] and mode == P["STMODE"]:
        a(f"s_memtime s[{70+2*i}:{71+2*i}]")
def stamp_out(a):
    if not P["STAMPS"]:
        return
    a("s_mov_b64 exec, -1")
    a("s_memrealtime s[100:101]")
    a("s_waitcnt lgkmcnt(0) vmcnt(0)")
    a("s_memtime s[96:97]")
    a("s_waitcnt lgkmcnt(0)")
    srd(a, 40, 24, 25, WS_ST + (1 << 20))
    a(f"s_lshl_b32 s3, s2, 3")
    a(f"s_add_u32 s3, s3, s{S_WAVE}")
    a(f"s_lshl_b32 s3, s3, 6")
    a(f"s_add_u32 s3, s3, {WS_ST}")
    a("v_mov_b32 v1, 0")
    for i in range(16):
        a(f"v_mov_b32 v2, s{70+2*i}")
        a(f"buffer_store_dword v2, v1, s[40:43], s3 offen offset:{4*i}")
    a("s_waitcnt vmcnt(0)")

def softmax16(b, t):
    o = [f"v_max3_f32 v{t}, v{b}, v{b+1}, v{b+2}"]
    for i in range(3, 15, 2):
        o.append(f"v_max3_f32 v{t}, v{t}, v{b+i}, v{b+i+1}")
    o.append(f"v_max_f32 v{t}, v{t}, v{b+15}")
    o.append(f"v_mul_f32 v{t}, {f2u(-LOG2E):#x}, v{t}")
    for i in range(0, 16, 2):
        o.append(f"v_pk_fma_f32 {v(b+i,2)}, {v(b+i,2)}, {s(SL,2)}, {v(t,2)} op_sel_hi:[1,0,0]")
    for i in range(16):
        o.append(f"v_exp_f32 v{b+i}, v{b+i}")
    o.append(f"v_pk_add_f32 {v(t+2,2)}, {v(b,2)}, {v(b+2,2)}")
    for i in range(4, 16, 2):
        o.append(f"v_pk_add_f32 {v(t+2,2)}, {v(t+2,2)}, {v(b+i,2)}")
    o.append(f"v_add_f32 v{t}, v{t+2}, v{t+3}")
    o.append(f"v_rcp_f32 v{t}, v{t}")
    o.append("s_nop 0")
    for i in range(0, 16, 2):
        o.append(f"v_pk_mul_f32 {v(b+i,2)}, {v(b+i,2)}, {v(t,2)} op_sel_hi:[1,0]")
    for i in range(8):
        o.append(f"v_cvt_pk_bf16_f32 v{b+i}, v{b+2*i}, v{b+2*i+1}")
    return o

def tr64_addr(a, dst, tmp, base_sgpr):
    a(f"""
v_bfe_u32 v{tmp}, v0, 2, 2
v_lshlrev_b32 v{dst}, 6, v{tmp}
v_lshrrev_b32 v{tmp}, 5, v0
v_lshl_add_u32 v{dst}, v{tmp}, 8, v{dst}
v_and_b32 v{tmp}, 1, v0
v_lshl_add_u32 v{dst}, v{tmp}, 5, v{dst}
v_bfe_u32 v{tmp}, v0, 4, 1
v_lshl_add_u32 v{dst}, v{tmp}, 4, v{dst}
v_bfe_u32 v{tmp}, v0, 1, 1
v_lshl_add_u32 v{dst}, v{tmp}, 3, v{dst}
v_add_u32 v{dst}, s{base_sgpr}, v{dst}
""")

def persist(a, kh, R2, xkb):
    a(f"""
s_mov_b32 s{KH}, {kh}
s_and_b32 s{T0}, s{S_WAVE}, 3
s_lshl_b32 s{T0+1}, s{S_RB}, 3
s_lshl_b32 s{T0+2}, s{T0}, 1
s_add_u32 s{T0+1}, s{T0+1}, s{T0+2}
s_add_u32 s{T0+1}, s{T0+1}, {kh}
s_lshl_b32 s{P_OF}, s{T0+1}, 5
s_add_u32 s{P_OF}, s{P_OF}, s{S_H}
s_lshl_b32 s{P_OF}, s{P_OF}, 10
s_add_u32 s{P_OF}, s{P_OF}, {WS_OF}
s_lshl_b32 s{P_PHQ}, s{S_H}, 6
s_add_u32 s{P_PHQ}, s{P_PHQ}, s{T0+1}
s_lshl_b32 s{P_PHQ}, s{P_PHQ}, 11
s_add_u32 s{P_PHQ}, s{P_PHQ}, {WS_PHQ}
s_lshr_b32 s{P_F2}, s{S_H}, 2
s_xor_b32 s{P_F2}, s{P_F2}, {xkb}
s_lshl_b32 s{P_F2}, s{P_F2}, 8
s_add_u32 s{P_F2}, s{P_F2}, {WS_FL}
s_lshl_b32 s{P_KVS}, s{S_H}, 17
s_lshl_b32 s{T0+2}, s{T0}, 10
s_add_u32 s{P_KVS}, s{P_KVS}, s{T0+2}
s_lshl_b32 s{T0+2}, s{S_RB}, 7
s_add_u32 s{P_KVS}, s{P_KVS}, s{T0+2}
s_add_u32 s{P_KVS}, s{P_KVS}, {WS_KVP}
s_lshl_b32 s{P_KVT}, s{S_H}, 11
s_add_u32 s{P_KVT}, s{P_KVT}, {WS_KVT}
s_lshr_b32 s{P_WOF}, s2, 5
s_lshl_b32 s{P_WOF}, s{P_WOF}, 17
s_add_u32 s{P_WOF}, s{P_WOF}, {WS_WOF}
s_lshr_b32 s{T0+1}, s{S_WAVE}, 1
s_lshl_b32 s{P_WOB}, s{T0+1}, 14
s_add_u32 s{P_WOB}, s{P_WOB}, s{P_WOF}
s_add_u32 s{P_WOB}, s{P_WOB}, 65536
s_lshl_b32 s{T0+2}, s{S_WAVE}, 13
s_add_u32 s{P_WOF}, s{P_WOF}, s{T0+2}
s_and_b32 s{P_OA}, s2, 31
s_lshl_b32 s{P_OA}, s{P_OA}, 1
s_and_b32 s{T0+2}, s{S_WAVE}, 1
s_add_u32 s{P_OA}, s{P_OA}, s{T0+2}
s_lshl_b32 s{P_G}, s{P_OA}, 7
s_add_u32 s{P_G}, s{P_G}, {WS_G}
s_lshl_b32 s{P_OA}, s{P_OA}, 5
s_lshl_b32 s{T0+1}, s{T0+1}, 3
s_add_u32 s{P_OA}, s{P_OA}, s{T0+1}
s_lshl_b32 s{P_OA}, s{P_OA}, 10
s_add_u32 s{P_OA}, s{P_OA}, {WS_OF}
s_lshl_b32 s{P_WOL}, s{T0}, 13
s_add_u32 s{P_WOL}, s{P_WOL}, {R2 if kh == 0 else 0}
""")

def gen(a):
    SPIN, LEAD = P["SPIN"], P["LEAD"]
    XQA, XKA, XVA, XQB, XKB = (1, 0, 2, 0, 3) if P["MIX"] else (0, 0, 0, 0, 0)
    NS = 16 + LEAD // 2
    R2 = 2 * NS * 2048
    BD, BA, BW, BS = P["BD"], P["BA"], P["BW"], P["BS"]
    C0 = BS
    assert BW >= LEAD + 8 and BW >= 8
    a(f""".text
.globl {NAME}
.p2align 8
.type {NAME},@function
{NAME}:
s_cmp_ge_u32 s2, 256
s_cbranch_scc1 L_end
""")
    if P["STAMPS"]:
        for i in range(70, 102): a(f"s_mov_b32 s{i}, 0")
        a("s_memtime s[70:71]")
        a("s_memrealtime s[98:99]")
    a(f"""
s_load_dwordx16 s[4:19], s[0:1], 0
s_load_dwordx4 s[20:23], s[0:1], 64
s_load_dwordx2 s[24:25], s[0:1], 80
v_lshrrev_b32 v1, 6, v0
v_and_b32 v0, 63, v0
v_readfirstlane_b32 s{S_WAVE}, v1
s_lshr_b32 s3, s2, 3
s_and_b32 s{S_TB}, s2, 6
s_lshl_b32 s{S_TB}, s{S_TB}, 2
s_and_b32 s{S_ROT}, s3, 7
s_add_u32 s{S_TB}, s{S_TB}, s{S_ROT}
s_lshr_b32 s3, s3, 3
s_and_b32 s{S_HQ}, s2, 1
s_lshl_b32 s{S_HQ}, s{S_HQ}, 2
s_add_u32 s{S_HQ}, s{S_HQ}, s3
s_and_b32 s{S_H}, s2, 7
s_lshl_b32 s{S_H}, s{S_H}, 2
s_add_u32 s{S_H}, s{S_H}, s3
s_lshl_b32 s3, s3, 1
s_add_u32 s{S_ROT}, s{S_ROT}, s3
s_bfe_u32 s{S_RB}, s2, 0x30003
v_mov_b32 v{VZ}, 0
s_cmp_ge_u32 s{S_WAVE}, 4
s_cbranch_scc0 L_compute
""")
    LW, XO, WO, XM, WM = 64, 65, 66, 67, 68
    a(f"""
s_sub_u32 s{LW}, s{S_WAVE}, 4
v_lshrrev_b32 v1, 3, v0
v_and_b32 v2, 7, v0
v_lshrrev_b32 v8, 4, v0
v_xor_b32 v9, v2, v8
v_lshlrev_b32 v10, 10, v1
v_lshl_add_u32 v4, v9, 4, v10
v_xor_b32 v5, 64, v4
v_add_u32 v5, {8192-1024}, v5
v_mul_u32_u24 v10, 3072, v1
v_and_b32 v8, 1, v8
v_lshlrev_b32 v8, 2, v8
v_xor_b32 v9, v2, v8
v_lshl_add_u32 v6, v9, 4, v10
s_lshl_b32 s{T0}, s{S_HQ}, 7
v_add_u32 v6, s{T0}, v6
v_xor_b32 v11, {XQA*128}, v6
v_xor_b32 v7, {XKA*128+32}, v6
v_xor_b32 v6, {XVA*128}, v6
s_lshl_b32 s{XO}, s{S_TB}, 16
s_lshl_b32 s{T0}, s{LW}, 14
s_add_u32 s{XO}, s{XO}, s{T0}
s_mul_i32 s{WO}, s{LW}, {16*3072}
s_lshl_b32 s{XM}, s{LW}, 11
s_mul_i32 s{WM}, s{LW}, 6144
s_add_u32 s{WM}, s{WM}, {WL}
s_mov_b32 s{S_X+2}, {2048*512*2}
s_mov_b32 s{S_X+3}, 0x20000
s_mov_b32 s{S_WA+2}, {512*1536*2}
s_mov_b32 s{S_WA+3}, 0x20000
s_waitcnt lgkmcnt(0)
s_mov_b32 s{S_X}, s4
s_mov_b32 s{S_X+1}, s5
s_mov_b32 s{S_WA}, s6
s_mov_b32 s{S_WA+1}, s7
""")
    stamp(a, 1)
    issued = []
    paced = [False]
    def pace():
        if P["PACE"] and paced[0]: a(f"s_waitcnt vmcnt({P['PACE']})")
    def issx(c):
        a(f"s_add_u32 s{T0}, s{S_ROT}, {c}")
        a(f"s_and_b32 s{T0}, s{T0}, 7")
        a(f"s_lshl_b32 s{T0}, s{T0}, 7")
        a(f"s_add_u32 m0, s{XM}, {XL + c*8192}")
        a(f"s_add_u32 s{T0}, s{T0}, s{XO}")
        pace()
        a(f"buffer_load_dwordx4 v4, {s(S_X,4)}, s{T0} offen lds")
        pace()
        a(f"buffer_load_dwordx4 v5, {s(S_X,4)}, s{T0} offen offset:1024 lds")
        issued.append((("x", c), 2))
        if c == 0 and P["TLB"]:
            a(f"""
s_lshr_b32 s{T0+2}, s2, 3
s_lshl_b32 s{T0+2}, s{T0+2}, 16
s_min_u32 s{T0+3}, s{T0+2}, {23*65536}
s_load_dword s{T0+4}, s[6:7], s{T0+3}
s_load_dword s{T0+5}, s[12:13], s{T0+3}
s_load_dword s{T0+6}, s[4:5], s{T0+2}
""")
    def issw(c):
        W = S_WA if c < 8 else S_WB
        if c == 8:
            a(f"v_xor_b32 v11, {(XQA^XQB)*128}, v11")
            a(f"v_xor_b32 v7, {(XKA^XKB)*128}, v7")
            a(f"v_xor_b32 v6, {(XVA^XKB)*128}, v6")
        a(f"s_add_u32 s{T0}, s{S_ROT}, {c & 7}")
        a(f"s_and_b32 s{T0}, s{T0}, 7")
        a(f"s_mul_i32 s{T0+1}, s{T0}, {64*3072}")
        for g in range(2):
            a(f"s_add_u32 m0, s{WM}, {(c & 3)*WSLOT + g*3072}")
            a(f"s_add_u32 s{T0+1}, s{T0+1}, " + (f"s{WO}" if g == 0 else f"{8*3072}"))
            pace()
            a(f"buffer_load_dwordx4 v11, {s(W,4)}, s{T0+1} offen lds")
            pace()
            a(f"buffer_load_dwordx4 v7, {s(W,4)}, s{T0+1} offen offset:1024 lds")
            pace()
            a(f"buffer_load_dwordx4 v6, {s(W,4)}, s{T0+1} offen offset:2048 lds")
        issued.append((("w", c), 6))
    nx = [0]
    def iss(c):
        if c == 0 and P["WF"]:
            issw(0); issx(0); nx[0] = 1
        else:
            if c < 8 and nx[0] <= c: issx(nx[0]); nx[0] += 1
            issw(c)
        while nx[0] < 8 and nx[0] <= c + P["XAH"]:
            issx(nx[0]); nx[0] += 1
    def wait_for(c):
        idx = max(i for i, (t, _) in enumerate(issued) if t in (("x", c), ("w", c)))
        a(f"s_waitcnt vmcnt({sum(k for _, k in issued[idx+1:])})")
    iss(0)
    stamp(a, 1, 5)
    srd(a, S_WB, 12, 13, 512*1536*2)
    srd(a, S_WS, 24, 25, WS_SIZE)
    if P["TLB"]: a("s_waitcnt lgkmcnt(0)")
    persist(a, 0, R2, XKB)
    VINIT = f"""
v_mov_b32 v{IDX}, 0xdddddddd
v_and_b32 v39, 27, v0
v_cmp_eq_u32 vcc, 16, v39
v_mov_b32 v38, 0x3f803f80
v_mov_b64 v[44:45], -1
v_cndmask_b32 v38, 0, v38, vcc
v_mov_b64 v[46:47], -1
v_mov_b32 v39, v38
""" + "\n".join(f"v_mov_b64 {v(VS[0]+i,2)}, v[38:39]" for i in range(0, 16, 2))
    ZERO_O = [f"v_mov_b64 {v(OA+i,2)}, 0" for i in range(0, 32, 2)]
    a(VINIT)
    a.emit(ZERO_O)
    a(f"""
v_lshlrev_b32 v42, 12, v1
v_lshl_add_u32 v42, v2, 4, v42
s_and_b32 s{T0}, s{S_H}, 1
s_lshl_b32 s{T0}, s{T0}, 1
s_xor_b32 s{T0}, s{T0}, s{S_RB}
s_lshl_b32 s{T0}, s{T0}, 7
s_lshr_b32 s{T0+1}, s{LW}, 1
s_lshl_b32 s{T0+1}, s{T0+1}, 10
s_add_u32 s{T0}, s{T0}, s{T0+1}
s_and_b32 s{T0+1}, s{LW}, 1
s_lshl_b32 s{T0+1}, s{T0+1}, 3
s_add_u32 s{T0}, s{T0}, s{T0+1}
v_lshlrev_b32 v43, 4, v2
v_bfe_u32 v8, v0, 4, 1
v_lshl_add_u32 v43, v8, 2, v43
v_add_u32 v43, s{T0}, v43
v_lshlrev_b32 v1, 4, v0
v_mov_b32 v{ADDR}, v1
s_lshl_b32 s{T0}, s{LW}, 9
s_add_u32 s{T0}, s{T0}, {L_QH}
v_lshrrev_b32 v{POOL+11}, 1, v1
v_add_u32 v{POOL+11}, s{T0}, v{POOL+11}
""")
    stamp(a, 2, 5)
    if P["PRE"] >= 2: iss(1)
    stamp(a, 3, 5)
    paced[0] = True
    stamp(a, 2)
    nxt = P["PRE"]
    for k in range(16):
        wait_for(k)
        if k < 3: stamp(a, 4 + 3*k, 5)
        if k == 0: stamp(a, 3)
        if k < 12: stamp(a, k + 1, 2)
        a("s_barrier")
        if k < 3: stamp(a, 5 + 3*k, 5)
        lim = k + P["LOOK"] if k > 0 else 2
        if k == 1: lim = min(lim, P["L1"])
        if k == 7 and P["RFIRST"]:
            a("s_barrier")
            lim = P["RLIM"]
        if k >= 7 and not (k == 7 and P["RFIRST"]): lim = k + 3
        if k in (5, 6): lim = min(lim, 8)
        while nxt < 16 and nxt <= lim:
            iss(nxt); nxt += 1
        if k < 3: stamp(a, 6 + 3*k, 5)
        if k == 7 and not P["RFIRST"]:
            a("s_barrier")
            iss(nxt); nxt += 1
    stamp(a, 4)
    a(f"""
s_lshr_b32 s{T0}, s{S_H}, 2
s_lshl_b32 s{T0}, s{T0}, 8
s_add_u32 s{T0}, s{T0}, {WS_FL + 2048}
v_min_u32 v41, {2 if P["MIX"] else 0}, v0
v_lshlrev_b32 v41, 11, v41
buffer_load_dword v40, v41, {s(S_WS,4)}, s{T0} offen sc1
s_sub_u32 s{T0+1}, s{P_PHQ}, {WS_PHQ}
s_lshr_b32 s{T0+1}, s{T0+1}, 1
s_lshl_b32 s{P_KVB}, s{S_H}, 17
s_add_u32 s{P_KVB}, s{P_KVB}, {WS_KV}
s_lshl_b32 s{P_KVG}, s{LW}, 12
s_add_u32 s{T0+3}, s{P_KVG}, {R2 - 4096}
s_cmp_eq_u32 s{LW}, 0
s_cmov_b32 s{T0+3}, 16384
s_mov_b32 s{T0+7}, 0
s_barrier
s_waitcnt vmcnt(0)
v_cmp_gt_u32 vcc, 32, v40
s_nop 4
s_cbranch_vccnz L_pollF1
L_pollF1_ok:
""")
    stamp(a, 5); stamp(a, 1, 3)
    G0 = POOL + 12
    a(f"""
buffer_load_dwordx4 {v(QA,4)}, v1, {s(S_WS,4)}, s{T0+1} offen sc1
buffer_load_dwordx4 {v(QB,4)}, v1, {s(S_WS,4)}, s{T0+1} offen offset:1024 sc1
buffer_load_dwordx4 {v(KS[0],4)}, v1, {s(S_WS,4)}, s{P_KVB} offen sc1
""")
    def kvgrp(reg, off):
        o = [[f"s_add_u32 m0, s{reg}, {off}", f"s_add_u32 s{T0+4}, m0, s{P_KVB}"]]
        o += [f"buffer_load_dwordx4 v1, {s(S_WS,4)}, s{T0+4} offen offset:{i*1024} sc1 lds" for i in range(4)]
        return o
    def flat(x):
        o = []
        for g in x: o += g if isinstance(g, list) else [g]
        return o
    a.emit(flat(kvgrp(P_KVG, 0))); a.emit(flat(kvgrp(T0+3, 0)))
    a(f"""
s_setprio 3
s_waitcnt vmcnt(8)
v_mfma_f32_32x32x16_bf16 {v(SA,16)}, {v(KS[0],4)}, {v(QA,4)}, 0
v_mfma_f32_32x32x16_bf16 {v(SB,16)}, {v(KS[0],4)}, {v(QB,4)}, 0
""")
    if P["NOBD"]: a.emit(flat(kvgrp(P_KVG, 5*4096) + kvgrp(P_KVG, R2 + 3*4096)))
    else: a("s_nop 9")
    a(f"""
s_mov_b32 s{MODE}, 0
s_mov_b32 s{SL+2}, 0x0000ffff
s_mov_b32 s{SL+3}, 0x0000ffff
""")
    def maxtree(dst, b, init=None):
        o = []
        if init is None:
            o.append(f"v_max3_f32 v{dst}, v{b}, v{b+1}, v{b+2}")
            for i in range(3, 15, 2):
                o.append(f"v_max3_f32 v{dst}, v{dst}, v{b+i}, v{b+i+1}")
            o.append(f"v_max_f32 v{dst}, v{dst}, v{b+15}")
        else:
            for i in range(0, 16, 2):
                o.append(f"v_max3_f32 v{dst}, v{dst}, v{b+i}, v{b+i+1}")
        return o
    a.emit(rr(maxtree(38, SA), maxtree(39, SB)))
    NEGM = f"""
v_permlane32_swap_b32 v38, v39
s_nop 1
v_max_f32 v38, v38, v39
v_sub_f32 v38, 0, v38
v_mov_b32 v39, v38
s_nop 1
v_permlane32_swap_b32 v38, v39
"""
    def fill_nm():
        o = [f"v_mov_b32 v40, v38", f"v_mov_b32 v41, v38"]
        o += [f"v_mov_b64 {v(NMA+i,2)}, v[40:41]" for i in range(0, 16, 2)]
        o += [f"v_mov_b32 v38, v39"]
        o += [f"v_mov_b64 {v(NMB+i,2)}, v[38:39]" for i in range(0, 16, 2)]
        return o
    ZSB = [f"v_mov_b64 {v(SB+i,2)}, 0" for i in range(8, 16, 2)]
    a("s_nop 1")
    a(NEGM)
    a(f"""
s_nop 1
v_mov_b64 {v(POOL+14,2)}, v[38:39]
""")
    fm = fill_nm()
    a.emit(fm[:11])
    a.emit(ZSB)
    a(f"v_mfma_f32_32x32x16_bf16 {v(SA,16)}, {v(KS[0],4)}, {v(QA,4)}, {v(NMA,16)}")
    a.emit(fm[11:])
    stamp(a, 2, 3)
    a("s_setprio 0")
    stamp(a, 3, 3)
    a(f"ds_write_b64 v{POOL+11}, {v(POOL+14,2)}")
    a("s_waitcnt vmcnt(0) lgkmcnt(0)")
    stamp(a, 6); stamp(a, 4, 3)
    a(f"""
s_barrier
s_mov_b64 exec, {s(SL+2,2)}
ds_read_b128 {v(VS[0],4)}, v{ADDR} offset:1024
ds_read_b128 {v(VS[0]+4,4)}, v{ADDR} offset:1280
s_mov_b64 exec, -1
""")
    a("s_waitcnt lgkmcnt(0)")
    stamp(a, 8)
    a("s_branch L_slot0")

    XA = [4, 5, 6, 7]; WAD = [[8, 9, 10], [56, 57, 58]]
    BUF = [112, 176]
    ACC = [64, 80, 96]
    WPHI = [48, 52]
    WPHQ = [248, 252]
    GO, WD = 36, 37
    a("L_compute:")
    if P["CPF"]:
        a(f"""
s_getpc_b64 s[{T0}:{T0+1}]
L_pc:
s_sub_u32 s{T0}, s{T0}, L_pc-{NAME}
s_subb_u32 s{T0+1}, s{T0+1}, 0
s_lshr_b32 s{T0+2}, s2, 3
s_lshl_b32 s{T0+2}, s{T0+2}, 2
s_add_u32 s{T0+2}, s{T0+2}, s{S_WAVE}
s_lshl_b32 s{T0+2}, s{T0+2}, 8
s_min_u32 s{T0+2}, s{T0+2}, L_codeend-{NAME}-256
s_add_u32 s{T0}, s{T0}, s{T0+2}
s_addc_u32 s{T0+1}, s{T0+1}, 0
s_load_dword s{T0+3}, s[{T0}:{T0+1}], 0
s_load_dword s{T0+4}, s[{T0}:{T0+1}], 64
s_load_dword s{T0+5}, s[{T0}:{T0+1}], 128
s_load_dword s{T0+6}, s[{T0}:{T0+1}], 192
""")
    a(f"""
s_lshr_b32 s{TT}, s{S_WAVE}, 1
s_and_b32 s{PP}, s{S_WAVE}, 1
v_and_b32 v12, 31, v0
v_lshrrev_b32 v13, 5, v0
v_lshlrev_b32 v1, 4, v0
s_waitcnt lgkmcnt(0)
""")
    srd(a, S_MISC, 14, 15, 32*512)
    srd(a, S_WS, 24, 25, WS_SIZE)
    a(f"""
s_or_b32 s{T0+1}, s2, s{S_WAVE}
s_cmp_lg_u32 s{T0+1}, 0
s_cbranch_scc1 L_noinit
v_lshlrev_b32 v8, 8, v0
s_mov_b32 s{T0+1}, {WS_FL}
buffer_store_dword v{VZ}, v8, {s(S_WS,4)}, s{T0+1} offen sc1
s_waitcnt vmcnt(0)
v_mov_b32 v8, 1
s_mov_b64 exec, 1
global_store_dword v{VZ}, v8, s[22:23] sc1
s_mov_b64 exec, -1
L_noinit:
s_lshl_b32 s{T0}, s{S_HQ}, 1
s_add_u32 s{T0}, s{T0}, s{PP}
s_lshl_b32 s{T0}, s{T0}, 10
s_lshl_b32 s{T0+1}, s{S_WAVE}, 10
s_add_u32 s{T0+1}, s{T0+1}, {WL + 3*WSLOT}
s_mov_b32 m0, s{T0+1}
s_xor_b32 s{T0+2}, s{T0}, {XKB*2048}
buffer_load_dwordx4 v1, {s(S_MISC,4)}, s{T0+2} offen lds
s_add_u32 m0, s{T0+1}, 8192
s_xor_b32 s{T0+2}, s{T0}, {XQB*2048}
buffer_load_dwordx4 v1, {s(S_MISC,4)}, s{T0+2} offen lds
v_bfe_u32 v14, v0, 2, 2
s_cmp_ge_u32 s2, 128
s_cselect_b32 s{S_WA}, s16, s8
s_cselect_b32 s{S_WA+1}, s17, s9
s_mov_b32 s{S_WA+2}, {512*512*2}
s_mov_b32 s{S_WA+3}, 0x20000
s_lshl_b32 s{T0+2}, s2, 2
s_add_u32 s{T0+2}, s{T0+2}, s{S_WAVE}
s_bfe_u32 s{T0+3}, s{T0+2}, 0x50004
s_and_b32 s{T0+4}, s{T0+2}, 15
s_lshl_b32 s{T0+5}, s{T0+3}, 14
s_lshl_b32 s{T0+6}, s{T0+4}, 6
s_add_u32 s{T0+5}, s{T0+5}, s{T0+6}
v_lshrrev_b32 v16, 2, v0
v_lshlrev_b32 v16, 10, v16
v_and_b32 v17, 3, v0
v_lshl_add_u32 v16, v17, 4, v16
s_add_u32 m0, s{T0+1}, 4096
s_lshl_b32 s{GO}, s{S_TB}, 6
buffer_load_dwordx4 v16, {s(S_WA,4)}, s{T0+5} offen lds
s_lshl_b32 s{T0+6}, s{S_HQ}, 3
s_add_u32 s{GO}, s{GO}, s{T0+6}
s_lshl_b32 s{T0+6}, s{S_WAVE}, 1
s_add_u32 s{GO}, s{GO}, s{T0+6}
s_lshl_b32 s{T0+6}, s{GO}, 10
v_lshlrev_b32 v17, 5, v0
v_and_b32 v18, 0x3ff, v17
v_add_u32 v17, s{T0+6}, v17
global_load_dwordx4 v[20:23], v17, s[4:5]
global_load_dwordx4 v[24:27], v17, s[4:5] offset:16
global_load_dwordx4 v[28:31], v18, s[18:19]
global_load_dwordx4 v[32:35], v18, s[18:19] offset:16
s_lshl_b32 s{GO}, s{GO}, 2
s_add_u32 s{GO}, s{GO}, {WS_G}
s_lshr_b32 s{T0+6}, s{T0+4}, 1
s_lshl_b32 s{WD}, s{T0+6}, 17
s_lshr_b32 s{T0+6}, s{T0+2}, 9
s_lshl_b32 s{T0+6}, s{T0+6}, 16
s_add_u32 s{WD}, s{WD}, s{T0+6}
s_lshl_b32 s{T0+6}, s{T0+3}, 11
s_add_u32 s{WD}, s{WD}, s{T0+6}
s_and_b32 s{T0+6}, s{T0+4}, 1
s_lshl_b32 s{T0+6}, s{T0+6}, 10
s_add_u32 s{WD}, s{WD}, s{T0+6}
s_add_u32 s{WD}, s{WD}, {WS_WOF}
s_add_u32 s{T0+7}, s{T0+1}, 4096
""")
    tr64_addr(a, 19, 16, T0+7)
    a(f"""
v_lshlrev_b32 v40, 5, v14
v_lshl_add_u32 v40, v13, 7, v40
v_bfe_u32 v14, v0, 4, 1
v_lshl_add_u32 v40, v14, 4, v40
v_bfe_u32 v14, v0, 1, 1
v_lshl_add_u32 v40, v14, 3, v40
v_add_u32 v40, s{T0+1}, v40
s_lshl_b32 s{T0}, s{TT}, 12
v_lshlrev_b32 v15, 7, v12
v_add_u32 v15, s{T0}, v15
v_bfe_u32 v14, v12, 1, 3
v_xor_b32 v14, v14, v13
v_lshl_add_u32 v{XA[0]}, v14, 4, v15
v_xor_b32 v{XA[1]}, 32, v{XA[0]}
v_xor_b32 v{XA[2]}, 64, v{XA[0]}
v_xor_b32 v{XA[3]}, 96, v{XA[0]}
v_mul_u32_u24 v2, 3072, v13
v_bfe_u32 v14, v0, 2, 2
v_lshl_add_u32 v2, v14, 7, v2
v_bfe_u32 v14, v0, 3, 1
v_xor_b32 v14, s{PP}, v14
v_lshl_add_u32 v2, v14, 6, v2
v_bfe_u32 v14, v0, 4, 1
v_lshl_add_u32 v2, v14, 5, v2
v_and_b32 v15, 3, v0
v_lshl_add_u32 v2, v15, 3, v2
v_add_u32 v10, {WL+2048}, v2
v_lshl_add_u32 v2, v14, 10, v2
v_add_u32 v8, {WL}, v2
v_xor_b32 v9, 32, v8
v_add_u32 v56, {2*WSLOT}, v8
v_add_u32 v57, {2*WSLOT}, v9
v_add_u32 v58, {2*WSLOT}, v10
v_and_b32 v2, 0x33, v0
v_bfe_u32 v14, v0, 2, 1
v_lshl_or_b32 v2, v14, 3, v2
v_bfe_u32 v14, v0, 3, 1
v_lshl_or_b32 v2, v14, 2, v2
v_lshlrev_b32 v2, 4, v2
v_and_b32 v11, 0x2f, v0
v_lshlrev_b32 v11, 4, v11
v_bfe_u32 v14, v0, 4, 1
v_lshl_add_u32 v11, v14, 17, v11
s_mov_b32 s{SL}, {f2u(LOG2E):#x}
s_mov_b32 s{SL+1}, {f2u(0.25*LOG2E):#x}
s_mov_b32 s{SL+2}, 0x0000ffff
s_mov_b32 s{SL+3}, 0x0000ffff
s_mov_b32 s{MODE}, 0
s_lshl_b32 s{SX}, s{S_HQ}, 1
s_add_u32 s{SX}, s{SX}, s{PP}
s_lshl_b32 s{SX}, s{SX}, 7
s_lshl_b32 s{T0+1}, s{S_TB}, 1
s_add_u32 s{SX}, s{SX}, s{T0+1}
s_add_u32 s{SX}, s{SX}, s{TT}
s_mul_i32 s{T0+1}, s{S_WAVE}, 6144
s_add_u32 s{T0+1}, s{T0+1}, {L_CMB}
v_lshlrev_b32 v60, 1, v13
v_bfe_u32 v14, v12, 1, 2
v_xor_b32 v60, v60, v14
v_lshlrev_b32 v60, 4, v60
v_lshl_add_u32 v60, v12, 6, v60
v_add_u32 v60, s{T0+1}, v60
v_xor_b32 v61, 16, v60
v_add_u32 v240, s{T0+1}, v1
s_mul_i32 s{T0+1}, s{PP}, 6144
s_add_u32 s{T0+1}, s{T0+1}, {L_CMB}
v_add_u32 v241, s{T0+1}, v1
s_lshl_b32 s{T0+2}, s{TT}, 11
s_add_u32 s{T0+1}, s{T0+1}, s{T0+2}
""")
    tr64_addr(a, 242, 14, T0+1)
    a(f"""
v_lshlrev_b32 v14, 5, v13
v_xor_b32 v242, v242, v14
v_bfe_u32 v14, v0, 3, 1
v_lshlrev_b32 v14, 4, v14
v_xor_b32 v242, v242, v14
""")
    a(f"""
v_bfe_u32 v14, v0, 4, 1
v_xor_b32 v14, s{TT}, v14
v_bfe_i32 v244, v14, 0, 1
v_mov_b32 v245, 0x3f803f80
v_mov_b64 v[42:43], 0
v_xor_b32 v246, s{S_HQ}, v0
v_lshl_add_u32 v246, v0, 3, v246
v_lshlrev_b32 v246, 8, v246
v_bfe_u32 v14, v0, 2, 1
s_mov_b32 s{T0+1}, 0x80008000
v_mul_lo_u32 v41, v14, s{T0+1}
s_lshl_b32 s{T0}, s{S_WAVE}, 9
s_add_u32 s{T0}, s{T0}, {L_QH}
v_lshrrev_b32 v243, 1, v1
v_add_u32 v243, s{T0}, v243
""")
    if P["WBT"]:
        a(f"""
s_and_b32 s{T0}, s{S_ROT}, 7
s_lshl_b32 s{T0}, s{T0}, 2
s_add_u32 s{T0}, s{T0}, s{S_WAVE}
s_mul_i32 s{T0}, s{T0}, {16*3072}
s_lshl_b32 s{T0+1}, s{S_HQ}, 7
s_add_u32 s{T0}, s{T0}, s{T0+1}
v_lshrrev_b32 v14, 2, v0
v_mul_u32_u24 v14, 3072, v14
v_and_b32 v15, 1, v0
v_lshl_add_u32 v14, v15, 6, v14
v_add_u32 v246, s{T0}, v14
v_bfe_u32 v15, v0, 1, 1
v_lshl_add_u32 v247, v15, 10, v246
""")
        WBT = ["global_load_dword v254, v247, s[12:13]", "s_mov_b32 exec_lo, 0x33333333", "s_mov_b32 exec_hi, 0x33333333",
               "global_load_dword v255, v246, s[12:13] offset:2048", "s_mov_b64 exec, -1"]
        if P["WBT"] == 1: a.emit(WBT)
    persist(a, 1, R2, XKB)
    def reads(c):
        b0 = BUF[c & 1]
        o = []
        for step in range(4):
            b = b0 + 16*step
            o.append(f"ds_read_b128 {v(b,4)}, v{XA[step]} offset:{c*8192}")
            for j in range(3):
                ad = WAD[(c >> 1) & 1][j]
                for rd in range(2):
                    o.append(f"ds_read_b64_tr_b16 {v(b+4+4*j+2*rd,2)}, v{ad} offset:{(c&1)*WSLOT+step*6144+rd*512}")
        return o
    def mfmas(c):
        o = []
        for step in range(4):
            b = BUF[c & 1] + 16*step
            for j in range(3):
                x = v(b,4); w = v(b+4+4*j,4); d = v(ACC[j],16)
                cc = "0" if (c == 0 and step == 0) else d
                if j < 2: o.append(f"v_mfma_f32_32x32x16_bf16 {d}, {w}, {x}, {cc}")
                else:     o.append(f"v_mfma_f32_32x32x16_bf16 {d}, {x}, {w}, {cc}")
        return o
    RPG = P["RPG"]
    def body(c):
        m = mfmas(c); r_ = reads(c + 1)
        for i in range(12):
            a(m[i]); a.emit(r_[RPG*i:RPG*i+RPG])
    stamp(a, 1)
    a(f"s_mov_b32 s{CNT}, 0")
    stamp(a, 1, 5)
    a("L_pass:")
    a("s_barrier")
    a.emit(reads(0))
    a("L_pass2:")
    a(f"s_cmp_eq_u32 s{CNT}, 0")
    for c in range(7):
        if c == 0:
            a("s_cbranch_scc0 L_nophi")
            stamp(a, 2, 5)
            a("s_waitcnt vmcnt(2)" if P["WBT"] == 1 else "s_waitcnt vmcnt(0)")
            stamp(a, 3, 5)
            for hd in range(2):
                for rd in range(2):
                    a(f"ds_read_b64_tr_b16 {v(WPHI[hd]+2*rd,2)}, v40 offset:{hd*512+rd*256}")
                    a(f"ds_read_b64_tr_b16 {v(WPHQ[hd]+2*rd,2)}, v40 offset:{8192+hd*512+rd*256}")
            a("ds_read_b64_tr_b16 v[36:37], v19")
            a("ds_read_b64_tr_b16 v[38:39], v19 offset:512")
            a("v_mov_b32 v16, 0")
            for i in range(8):
                a(f"v_dot2_f32_bf16 v16, v{20+i}, v{28+i}, v16")
            a(f"""
v_lshlrev_b32 v18, 2, v13
s_nop 2
v_add_f32_dpp v16, v16, v16 quad_perm:[1,0,3,2] row_mask:0xf bank_mask:0xf
s_nop 1
v_add_f32_dpp v16, v16, v16 quad_perm:[2,3,0,1] row_mask:0xf bank_mask:0xf
s_nop 1
v_add_f32_dpp v16, v16, v16 row_half_mirror row_mask:0xf bank_mask:0xf
s_nop 1
v_add_f32_dpp v16, v16, v16 row_mirror row_mask:0xf bank_mask:0xf
v_mov_b32 v17, v16
s_nop 1
v_permlane16_swap_b32 v16, v17
s_nop 1
v_add_f32 v16, v16, v17
v_mul_f32 v16, {f2u(-LOG2E):#x}, v16
v_exp_f32 v16, v16
s_nop 0
v_add_f32 v16, 1.0, v16
v_rcp_f32 v16, v16
s_waitcnt lgkmcnt(0)
""")
            for i in range(8):
                a(f"v_xor_b32 v{WPHI[0]+i}, v41, v{WPHI[0]+i}")
                a(f"v_xor_b32 v{WPHQ[0]+i}, v41, v{WPHQ[0]+i}")
            a(f"""
buffer_store_dwordx4 v[36:39], v1, {s(S_WS,4)}, s{WD} offen sc1
s_mov_b32 exec_lo, 1
s_mov_b32 exec_hi, 1
buffer_store_dword v16, v18, {s(S_WS,4)}, s{GO} offen sc1
s_mov_b64 exec, -1
""")
            if P["WBT"] == 2: a.emit(WBT)
            stamp(a, 4, 5)
            a("L_nophi:")
        if c == P["SIGC"]:
            a("s_cbranch_scc1 L_nodrain")
            a("s_waitcnt vmcnt(0)")
            a("L_nodrain:")
        a("s_waitcnt lgkmcnt(0)")
        a("s_barrier")
        if c == P["SIGC"]:
            assert 1 <= c <= 5
            a(f"s_cmp_eq_u32 s{CNT}, 1")
            a("s_cbranch_scc1 L_sig1")
            a("L_drained:")
        body(c)
    a("s_waitcnt lgkmcnt(0)")
    a("s_barrier")
    fill = L(VINIT) + ZERO_O + [f"v_add_u32 v{ADDR}, {R2}, v1"]
    m7 = mfmas(7)
    for i in range(12):
        a(m7[i]); a.emit(fill[3*i:3*i+3] if i < 11 else [])
    assert len(fill) <= 33
    a(f"s_cmp_lg_u32 s{CNT}, 0")
    a("s_cbranch_scc1 L_epiB")
    stamp(a, 3)
    PK = 16
    a(f"""
s_add_u32 s{CNT}, s{S_WAVE}, 1
s_xor_b32 s{T0+1}, s{SX}, {XQA*256}
s_lshl_b32 s{T0+1}, s{T0+1}, 10
s_add_u32 s{T0+2}, s{T0+1}, 65536
s_xor_b32 s{T0+3}, s{SX}, {XKA*256}
s_lshl_b32 s{T0+3}, s{T0+3}, 11
s_add_u32 s{T0+3}, s{T0+3}, {WS_KV}
s_add_u32 s{T0+4}, s{T0+3}, 131072
s_xor_b32 s{T0+5}, s{SX}, {XVA*256}
s_lshl_b32 s{T0+5}, s{T0+5}, 11
s_add_u32 s{T0+5}, s{T0+5}, {WS_KV}
""")
    for j in range(2):
        for i in range(4):
            a(f"v_cvt_pk_bf16_f32 v{PK+4*j+i}, v{ACC[j]+8+2*i}, v{ACC[j]+9+2*i}")
    for j in range(2):
        a(f"buffer_store_dwordx4 {v(PK+4*j,4)}, v2, {s(S_WS,4)}, s{T0+3+j} offen sc1")
    for i in range(8):
        a(f"v_cvt_pk_bf16_f32 v{PK+8+i}, v{ACC[2]+2*i}, v{ACC[2]+1+2*i}")
    a(f"buffer_store_dwordx4 {v(PK+8,4)}, v11, {s(S_WS,4)}, s{T0+5} offen offset:1024 sc1")
    a(f"buffer_store_dwordx4 {v(PK+12,4)}, v11, {s(S_WS,4)}, s{T0+5} offen offset:1280 sc1")
    if P["EARLYB"]:
        a("s_barrier")
        a.emit(reads(0))
    for j in range(2):
        for i in range(0, 8, 2):
            a(f"v_pk_mul_f32 {v(ACC[j]+i,2)}, {v(ACC[j]+i,2)}, {s(SL,2)} op_sel:[0,1] op_sel_hi:[1,1]")
        for i in range(4):
            a(f"v_cvt_pk_bf16_f32 v{PK+16+4*j+i}, v{ACC[j]+2*i}, v{ACC[j]+1+2*i}")
    for j in range(2):
        a(f"buffer_store_dwordx4 {v(PK+16+4*j,4)}, v1, {s(S_WS,4)}, s{T0+1+j} offen sc1")
    a(f"global_load_dword v59, v{VZ}, s[22:23] sc1")
    stamp(a, 4)
    a("s_branch L_pass2" if P["EARLYB"] else "s_branch L_pass")
    a("L_epiB:")
    stamp(a, 5); stamp(a, 1, 3)
    PB = 224
    PV = 144
    PKB = [160, 176]; PQB = [192, 208]
    a(f"""
s_xor_b32 s{T0+3}, s{SX}, {XQB*256}
s_lshl_b32 s{T0+3}, s{T0+3}, 11
s_add_u32 s{T0+3}, s{T0+3}, {WS_PHQ}
s_add_u32 s{T0+4}, s{T0+3}, 131072
s_xor_b32 s{T0+1}, s{S_HQ}, {XKB}
s_lshl_b32 s{T0+1}, s{T0+1}, 1
s_add_u32 s{T0+1}, s{T0+1}, s{PP}
s_lshl_b32 s{T0+1}, s{T0+1}, 1
s_add_u32 s{T0+1}, s{T0+1}, s{TT}
s_lshl_b32 s{T0+1}, s{T0+1}, 5
s_add_u32 s{T0+1}, s{T0+1}, s{S_TB}
s_lshl_b32 s{T0+1}, s{T0+1}, 12
s_add_u32 s{T0+1}, s{T0+1}, {WS_KVP}
""")
    for j in range(2):
        for i in range(4, 8):
            a(f"v_cvt_pk_bf16_f32 v{PB+8*j+i}, v{ACC[j]+2*i}, v{ACC[j]+1+2*i}")
    for j in range(2):
        for i in range(4):
            a(f"v_cvt_pk_bf16_f32 v{PB+8*j+i}, v{ACC[j]+2*i}, v{ACC[j]+1+2*i}")
        a(f"v_mfma_f32_32x32x16_bf16 {v(PKB[j],16)}, {v(WPHI[j],4)}, {v(PB+8*j+4,4)}, 0")
    for j in range(2):
        for i in range(4*j, 4*j+4):
            a(f"v_cvt_pk_bf16_f32 v{PV+i}, v{ACC[2]+2*i}, v{ACC[2]+1+2*i}")
        a(f"v_mfma_f32_32x32x16_bf16 {v(PQB[j],16)}, {v(WPHQ[j],4)}, {v(PB+8*j,4)}, 0")
    a.emit(ZSB)
    stamp(a, 2, 3)
    if P["QLATE"]:
        a.emit(rr(softmax16(PKB[0], 64), softmax16(PKB[1], 68)))
        sq = rr(softmax16(PQB[0], 152), softmax16(PQB[1], 156))
    else:
        a("s_nop 9")
        sq = rr(softmax16(PKB[0], 64), softmax16(PKB[1], 68), softmax16(PQB[0], 72), softmax16(PQB[1], 76))
        a.emit([x for x in sq if x != "s_nop 0"])
        sq = []
    stamp(a, 3, 3)
    a(f"ds_write_b128 v240, {v(PV,4)} offset:4096")
    a(f"ds_write_b128 v240, {v(PV+4,4)} offset:5120")
    for j in range(2):
        a(f"ds_write_b128 v60, {v(PKB[j],4)} offset:{j*2048}")
        a(f"ds_write_b128 v61, {v(PKB[j]+4,4)} offset:{j*2048}")
    a(f"""
s_sub_u32 s{T0+2}, s{P_PHQ}, {WS_PHQ + 2048}
s_lshr_b32 s{T0+2}, s{T0+2}, 1
s_add_u32 s{T0}, s{P_OF}, {OBR}
s_lshl_b32 s{P_KVB}, s{S_H}, 17
s_add_u32 s{P_KVB}, s{P_KVB}, {WS_KV}
s_lshl_b32 s{P_KVG}, s{S_WAVE}, 12
s_add_u32 s{P_KVG}, s{P_KVG}, {R2 - LEAD*4096}
s_waitcnt lgkmcnt(0)
""")
    stamp(a, 6); stamp(a, 4, 3)
    AF, VF, KVA = 160, 176, 224
    a(f"""
s_barrier
s_setprio 3
buffer_load_dwordx4 {v(QA,4)}, v1, {s(S_WS,4)}, s{T0+2} offen sc1
buffer_load_dwordx4 {v(QB,4)}, v1, {s(S_WS,4)}, s{T0+2} offen offset:1024 sc1
""")
    for t in range(2):
        for sx in range(2):
            a(f"ds_read_b128 {v(VF+8*t+4*sx,4)}, v241 offset:{t*12288+4096+sx*1024}")
    for t in range(2):
        for sx in range(2):
            for rd in range(2):
                a(f"ds_read_b64_tr_b16 {v(AF+8*t+4*sx+2*rd,2)}, v242 offset:{t*12288+(16*sx+8*rd)*64}")
    a.emit(sq[:36])
    a("s_waitcnt lgkmcnt(0)")
    a(f"""
ds_read_b64 v[38:39], v243
ds_read_b128 {v(KS[0],4)}, v{ADDR}
s_mov_b64 exec, {s(SL+2,2)}
ds_read_b128 {v(VS[0],4)}, v{ADDR} offset:1024
ds_read_b128 {v(VS[0]+4,4)}, v{ADDR} offset:1280
s_mov_b64 exec, -1
""")
    for i in range(16):
        a(f"v_bfi_b32 v{VF+i}, v244, v245, v{VF+i}")
        if i in (7, 11, 15):
            k_ = (i - 7) // 4
            a(f"v_mfma_f32_32x32x16_bf16 {v(KVA,16)}, {v(AF+4*k_,4)}, {v(VF+4*k_,4)}, {'0' if k_ == 0 else v(KVA,16)}")
    a(f"""
s_waitcnt lgkmcnt(0)
v_mfma_f32_32x32x16_bf16 {v(KVA,16)}, {v(AF+12,4)}, {v(VF+12,4)}, {v(KVA,16)}
""")
    a.emit(fm)
    a(f"v_subrev_u32 v{ADDR}, {2*LEAD*2048}, v{ADDR}")
    a("s_waitcnt vmcnt(0)")
    a(f"v_mfma_f32_32x32x16_bf16 {v(SA,16)}, {v(KS[0],4)}, {v(QA,4)}, {v(NMA,16)}")
    stamp(a, 7)
    for q in range(4):
        a(f"buffer_store_dwordx4 {v(KVA+4*q,4)}, v1, {s(S_WS,4)}, s{T0+1} offen offset:{q*1024} sc1")
        a.emit(sq[36+20*q:56+20*q])
    a.emit(sq[116:])
    for j in range(2):
        a(f"buffer_store_dwordx4 {v(PQB[j],4)}, v1, {s(S_WS,4)}, s{T0+3+j} offen sc1")
        a(f"buffer_store_dwordx4 {v(PQB[j]+4,4)}, v1, {s(S_WS,4)}, s{T0+3+j} offen offset:1024 sc1")
    a("s_nop 1")
    stamp(a, 8)
    a(f"s_branch L_slot{LEAD}")

    def e(b, i): return f"v_exp_f32 v{b+i}, v{b+i}"
    def sm(o, vv, p): return f"v_smfmac_f32_32x32x32_bf16 {v(o,16)}, {v(vv,4)}, {v(p,8)}, v{IDX}"
    def slot(base, last=False, bg=None):
        bg = bg or {}
        o = []
        k = [0]
        def ex(b, i):
            o.append(e(b, i))
            o.extend(bg.get(k[0], []))
            k[0] += 1
        for c in range(2):
            n = c ^ 1
            off = base + (c + 1) * 2048
            pf = not (last and c == 1)
            if pf: o.append(f"ds_read_b128 {v(KS[n],4)}, v{ADDR} offset:{off}")
            ex(SA,0); ex(SA,1)
            o.append(sm(OB, VS[n]+4, SB+8))
            if pf:
                o.append(f"s_mov_b64 exec, {s(SL+2,2)}")
                o.append(f"ds_read_b128 {v(VS[n],4)}, v{ADDR} offset:{off+1024}")
                o.append(f"ds_read_b128 {v(VS[n]+4,4)}, v{ADDR} offset:{off+1280}")
                o.append("s_mov_b64 exec, -1")
            ex(SA,2); ex(SA,3)
            o.append(f"v_mfma_f32_32x32x16_bf16 {v(SB,16)}, {v(KS[c],4)}, {v(QB,4)}, {v(NMB,16)}")
            for i in range(4, 10): ex(SA,i)
            o.append(sm(OA, VS[c], SA))
            for i in range(10, 16): ex(SA,i)
            ex(SB,0); ex(SB,1)
            o.append(sm(OA, VS[c]+4, SA+8))
            ex(SB,2); ex(SB,3)
            if pf:
                o.append("s_waitcnt lgkmcnt(0)")
                o.append(f"v_mfma_f32_32x32x16_bf16 {v(SA,16)}, {v(KS[n],4)}, {v(QA,4)}, {v(NMA,16)}")
            for i in range(4, 10): ex(SB,i)
            o.append(sm(OB, VS[c], SB))
            for i in range(10, 16): ex(SB,i)
        return o
    def spread(bg, items, lo, hi):
        n = len(items)
        for i, it in enumerate(items):
            pos = lo + (i * (hi - lo + 1)) // n
            bg.setdefault(pos, []).extend(it if isinstance(it, list) else [it])
    BG = {sl: {} for sl in range(NS)}
    M16 = "0x00ff00ff"
    assert LEAD == 2 and (BD, BA, BW) == (4, 8, 12)
    if not P["NOBD"]: spread(BG[0], kvgrp(P_KVG, 5*4096) + kvgrp(P_KVG, R2 + 3*4096), 0, 19)
    spread(BG[P["CLS"]], [f"buffer_store_dwordx4 v[44:47], v1, {s(S_WS,4)}, s{P_OF} offen sc1",
        [f"s_add_u32 s{T0}, s{P_OF}, {OBR}", f"buffer_store_dwordx4 v[44:47], v1, {s(S_WS,4)}, s{T0} offen sc1"],
        [f"s_cmp_lg_u32 s{KH}, 0", f"s_cselect_b32 exec_lo, 0, {M16}", "s_mov_b32 exec_hi, 0", f"buffer_store_dword v44, v43, {s(S_WS,4)}, s{P_KVT} offen sc1", "s_mov_b64 exec, -1"]], 10, 56)
    spread(BG[BD], kvgrp(P_KVG, 9*4096), 8, 56)
    spread(BG[BA], kvgrp(P_KVG, 13*4096), 14, 38)
    spread(BG[C0+1], [[f"s_cmp_lg_u32 s{KH}, 0", "s_cbranch_scc1 L_skipA", f"buffer_load_dword v41, v{VZ}, {s(S_WS,4)}, s{P_F2} offen sc1", "L_skipA:"]], 56, 56)
    l1a = [f"s_cmp_lg_u32 s{KH}, 0", "s_cbranch_scc1 L_skipB", "s_waitcnt vmcnt(0)", f"v_readfirstlane_b32 s{T0+6}, v41",
           f"s_add_u32 s{T0}, s{P_KVS}, 32768", f"s_add_u32 s{T0+1}, s{P_KVS}, 65536", f"s_add_u32 s{T0+2}, s{P_KVS}, 98304",
           f"s_cmp_lt_u32 s{T0+6}, 32", "s_cbranch_scc1 L_flagspin", "L_flagok:"]
    for p in range(4):
        l1a.append(f"buffer_load_dwordx4 {v(POOL+4*p,4)}, v42, {s(S_WS,4)}, s{P_KVS if p == 0 else T0+p-1} offen sc1")
    l1a.append("L_skipB:")
    spread(BG[C0+2], [l1a], 10, 10)
    l1b = ["s_waitcnt vmcnt(0)", f"s_cmp_lg_u32 s{KH}, 0", "s_cbranch_scc1 L_skipC"]
    for i in range(4): l1b.append(f"v_add_f32 v{POOL+i}, v{POOL+i}, v{POOL+4+i}")
    for i in range(4): l1b.append(f"v_add_f32 v{POOL+8+i}, v{POOL+8+i}, v{POOL+12+i}")
    for i in range(4): l1b.append(f"v_add_f32 v{POOL+i}, v{POOL+i}, v{POOL+8+i}")
    l1b += L(f"""
v_permlane32_swap_b32 v{POOL}, v{POOL+1}
s_nop 0
v_permlane32_swap_b32 v{POOL+2}, v{POOL+3}
v_add_f32 v{POOL}, v{POOL}, v{POOL+1}
s_nop 0
v_add_f32 v{POOL+2}, v{POOL+2}, v{POOL+3}
s_nop 1
v_permlane16_swap_b32 v{POOL}, v{POOL+2}
s_nop 1
v_add_f32 v{POOL}, v{POOL}, v{POOL+2}
s_nop 1
v_add_f32_dpp v{POOL}, v{POOL}, v{POOL} row_ror:8 row_mask:0xf bank_mask:0xf
v_mov_b32 v{POOL+1}, v{POOL}
s_nop 1
v_permlane32_swap_b32 v{POOL}, v{POOL+1}
s_nop 1
v_cvt_pk_bf16_f32 v40, v{POOL}, v{POOL+1}
v_min_u32 v40, -2, v40
s_mov_b32 exec_lo, {M16}
s_mov_b32 exec_hi, 0
buffer_store_dword v40, v43, {s(S_WS,4)}, s{P_KVT} offen sc1
s_mov_b64 exec, -1
L_skipC:
""")
    spread(BG[C0+3], [l1b], 30, 30)
    if BS == BD: assert C0 + 3 < BA
    CB = C0 + 4
    spread(BG[CB], L(f"""
v_and_b32 v42, 7, v0
v_lshlrev_b32 v42, 8, v42
s_mov_b32 s{T0+5}, {WS_FL}
buffer_load_dword v41, v42, {s(S_WS,4)}, s{T0+5} offen sc1
"""), 40, 56)
    KT = OBF
    R = OBF + 16
    ktl = [f"buffer_load_dwordx4 {v(KT,4)}, v1, {s(S_WS,4)}, s{P_KVT} offen sc1",
           f"buffer_load_dwordx4 {v(KT+4,4)}, v1, {s(S_WS,4)}, s{P_KVT} offen offset:1024 sc1"]
    spread(BG[CB+1], [["s_waitcnt vmcnt(0)", "v_cmp_gt_u32 vcc, 32, v41"]], 24, 24)
    spread(BG[CB+1], [["s_cbranch_vccnz L_flag2spin", "L_flag2ok:"],
                      f"buffer_load_dwordx4 {v(PQ,4)}, v1, {s(S_WS,4)}, s{P_PHQ} offen sc1",
                      f"buffer_load_dwordx4 {v(PQ+4,4)}, v1, {s(S_WS,4)}, s{P_PHQ} offen offset:1024 sc1"] + ktl, 28, 60)
    ktc = L(f"""
v_max3_u32 v40, v{KT}, v{KT+1}, v{KT+2}
v_max3_u32 v41, v{KT+3}, v{KT+4}, v{KT+5}
v_max3_u32 v40, v40, v{KT+6}, v{KT+7}
v_max_u32 v40, v40, v41
v_cmp_eq_u32 vcc, -1, v40
""")
    spread(BG[CB+2], [["s_waitcnt vmcnt(0)", ktc[0]]] + ktc[1:], 22, 27)
    spread(BG[CB+2], [["s_cbranch_vccnz L_ktspin", "L_ktok:", f"v_mfma_f32_32x32x16_bf16 {v(R,16)}, {v(KT,4)}, {v(PQ,4)}, 0"]], 30, 30)
    spread(BG[CB+2], [f"v_mfma_f32_32x32x16_bf16 {v(R,16)}, {v(KT+4,4)}, {v(PQ+4,4)}, {v(R,16)}"], 45, 45)
    ob = [f"v_add_f32 v40, {f2u(1e-6):#x}, v{R+8}", "v_rcp_f32 v40, v40"]
    ob += [f"v_mul_f32 v{R+i}, v{R+i}, v40" for i in range(8)]
    ob += [f"v_cvt_pk_bf16_f32 v{KACC+i}, v{R+2*i}, v{R+2*i+1}" for i in range(4)]
    ob += [f"v_min_u32 v{KACC+i}, -2, v{KACC+i}" for i in range(4)]
    ob += [[f"s_add_u32 s{T0}, s{P_OF}, {OBR}", f"buffer_store_dwordx4 {v(KACC,4)}, v1, {s(S_WS,4)}, s{T0} offen sc1"]]
    spread(BG[CB+3], ob, 0, 24)
    wob = []
    for i in range(16):
        g = [f"buffer_load_dwordx4 {v(POOL+4*i,4)}, v1, {s(S_WS,4)}, s{P_WOB} offen offset:{(i&3)*1024} sc1"]
        if i & 3 == 3: g.append(f"s_add_u32 s{P_WOB}, s{P_WOB}, 4096")
        wob.append(g)
    def woa_dma():
        o = []
        for g in range(2):
            o.append([f"s_add_u32 m0, s{P_WOL}, {g*4096}", f"s_add_u32 s{T0+1}, s{P_WOF}, {g*4096}"])
            for i in range(4):
                o.append(f"buffer_load_dwordx4 v1, {s(S_WS,4)}, s{T0+1} offen offset:{i*1024} sc1 lds")
        return o
    if BS == BD:
        spread(BG[CB+3], wob[:4], 30, 60)
        spread(BG[BW], woa_dma(), 2, 60)
        spread(BG[BW+1], wob[4:10], 2, 60)
        spread(BG[BW+2], wob[10:], 2, 60)
        OBS, OBLO, OBHI, PLO, PHI = NS - 2, 4, 60, 4, 40
    else:
        spread(BG[CB+2], wob[:2], 50, 60)
        spread(BG[CB+3], wob[2:7], 28, 60)
        spread(BG[CB+4], wob[7:16], 2, 60)
        spread(BG[CB+5], woa_dma(), 2, 60)
        OBS, OBLO, OBHI, PLO, PHI = NS - 1, 0, 30, 32, 60
    def ob_loads():
        o = [[f"s_add_u32 s{T0}, s{P_OA}, {OBR}", f"s_add_u32 s{T0+1}, s{P_OA}, {OBR+4096}"]]
        for j in range(8):
            o.append(f"buffer_load_dwordx4 {v(OBF+4*j,4)}, v1, {s(S_WS,4)}, s{T0+j//4} offen offset:{(j&3)*1024} sc1")
        return o
    spread(BG[OBS], L(f"""
v_and_b32 v40, 31, v0
v_lshlrev_b32 v40, 2, v40
buffer_load_dword v{GV}, v40, {s(S_WS,4)}, s{P_G} offen sc1
""") + ob_loads(), OBLO, OBHI)
    spread(BG[NS-1], L(f"""
s_mul_i32 s{T0}, s{S_WAVE}, {EXS}
s_add_u32 s{T0}, s{T0}, {L_EX}
v_add_u32 v40, s{T0}, v1
v_lshlrev_b32 v2, 2, v0
v_add_u32 v42, s{T0}, v2
s_xor_b32 s{T0+1}, s{S_WAVE}, 4
s_mul_i32 s{T0+1}, s{T0+1}, {EXS}
s_add_u32 s{T0+1}, s{T0+1}, {L_EX}
v_add_u32 v41, s{T0+1}, v1
v_add_u32 v43, s{T0+1}, v2
v_and_b32 v2, 28, v2
v_add_u32 v2, {L_FLAG}, v2
s_lshl_b32 s{T0}, s{S_WAVE}, 2
s_add_u32 s{T0}, s{T0}, {L_FLAG}
v_mov_b32 v44, s{T0}
"""), PLO, PHI)
    bars = sorted(set([BS, BW, NS] + ([] if P["NOBD"] else [BD]) + ([] if P["NOBA"] else [BA])))
    REB = 9
    a(".p2align 6")
    for sl in range(NS):
        a(f"L_slot{sl}:")
        if 1 <= sl - 4 <= 12: stamp(a, sl - 4, 1)
        if sl < 12: stamp(a, sl + 1, 4)
        if sl == BD and BD != BS and not P["NOBD"]:
            a(f"s_cmp_lg_u32 s{KH}, 0")
            a("s_cbranch_scc1 L_nowaitD")
            a("s_waitcnt vmcnt(3)" if P["CLS"] < BD else "s_waitcnt vmcnt(0)")
            a("L_nowaitD:")
            a("s_barrier")
        if sl == BS:
            a("s_waitcnt vmcnt(0)")
            a("s_barrier")
            a(f"s_cmp_eq_u32 s{S_WAVE}, 0")
            a("s_cbranch_scc1 L_sig2")
            a("L_sig2done:")
        if (sl == BW and not P["DIAG"] & 1) or (sl == BA and not P["NOBA"]):
            a("s_barrier")
        if True:
            nb = min(b for b in bars if b > sl)
            r_ = nb - sl - 1
            pb = max([0] + [b for b in bars if b <= sl])
            pr = min(3, r_) if nb - pb <= 5 else {0: 0, 1: 1, 2: 2, 3: 2, 4: 3, 5: 3}[r_]
            if P["DIAG"] & 1 and sl >= BS: pr = 3 if sl < 10 else 2 if sl < 14 else 1 if sl < 16 else 0
            if P["DIAG"] & 2 and sl >= BW: pr = {12: 3, 13: 2, 14: 2, 15: 1, 16: 0}[sl]
            a(f"s_setprio {pr}")
        if sl == REB:
            a(f"v_add_u32 v{ADDR}, {REB*4096}, v{ADDR}")
        a.emit(slot((sl - (REB if sl >= REB else 0)) * 4096, sl == NS - 1, BG[sl]))
    a("L_tail:")
    a("s_nop 1")
    a(sm(OB, VS[1]+4, SB+8))
    stamp(a, 9)
    def chk(dst, o):
        r = [f"v_add_f32 v{dst}, abs(v{o}), abs(v{o+8})"]
        for i in range(1, 8):
            r.append(f"v_add_f32 v{dst}, v{dst}, abs(v{o+i})")
        return r
    a(f"""
s_setprio 3
s_mov_b32 s{T0}, 0x7b800000
""")
    a.emit(chk(38, OA))
    a(f"""
s_cmp_eq_u32 s{KH}, 0
s_cbranch_scc1 L_send_b
ds_write_b128 v40, {v(OA,4)}
ds_write_b128 v40, {v(OA+4,4)} offset:1024
ds_write_b32 v42, v{OA+8} offset:2048
s_branch L_sent
L_send_b:
s_nop 1
ds_write_b128 v40, {v(OB,4)}
ds_write_b128 v40, {v(OB+4,4)} offset:1024
ds_write_b32 v42, v{OB+8} offset:2048
L_sent:
""")
    a.emit(chk(39, OB))
    a(f"""
v_add_f32 v38, v38, v39
v_cmp_ngt_f32 vcc, s{T0}, v38
s_nop 4
s_or_b32 s{T0}, vcc_lo, vcc_hi
v_mov_b32 v45, s{T0}
ds_write_b32 v44, v45
s_waitcnt lgkmcnt(0) vmcnt(9)
s_barrier
""")
    stamp(a, 10)
    a(f"""
ds_read_b32 v45, v2
ds_read_b32 v{SA+8}, v43 offset:2048
ds_read_b128 {v(SA,4)}, v41
ds_read_b128 {v(SA+4,4)}, v41 offset:1024
s_cmp_eq_u32 s{KH}, 0
s_cbranch_scc1 L_keep_a
""")
    for i in range(0, 8, 2):
        a(f"v_mov_b64 {v(OA+i,2)}, {v(OB+i,2)}")
    a(f"""
v_mov_b32 v{OA+8}, v{OB+8}
L_keep_a:
s_waitcnt lgkmcnt(0)
v_cmp_ne_u32 vcc, 0, v45
v_add_f32 v{OA+8}, v{OA+8}, v{SA+8}
v_rcp_f32 v{OA+8}, v{OA+8}
""")
    for i in range(0, 8, 2):
        a(f"v_pk_add_f32 {v(OA+i,2)}, {v(OA+i,2)}, {v(SA+i,2)}")
    a(f"""
s_cmp_lg_u32 s{MODE}, 0
s_cbranch_scc1 L_fine
s_cbranch_vccnz L_slow
L_fine:
""")
    for i in range(0, 8, 2):
        a(f"v_pk_mul_f32 {v(OA+i,2)}, {v(OA+i,2)}, {v(OA+8,2)} op_sel_hi:[1,0]")
    for i in range(4):
        a(f"v_cvt_pk_bf16_f32 v{KACC+i}, v{OA+2*i}, v{OA+2*i+1}")
    for i in range(4):
        a(f"v_min_u32 v{KACC+i}, -2, v{KACC+i}")
    a(f"buffer_store_dwordx4 {v(KACC,4)}, v1, {s(S_WS,4)}, s{P_OF} offen sc1")
    stamp(a, 11)
    OFA = 80
    ACCA = [112, 128]
    ACCB = 48
    a(f"""
s_mov_b32 s{T0+7}, 0
s_waitcnt vmcnt(1)
L_obchk:
v_max3_u32 v40, v{OBF}, v{OBF+1}, v{OBF+2}
v_max3_u32 v41, v{OBF+3}, v{OBF+4}, v{OBF+5}
""")
    for i in range(6, 30, 4):
        a(f"v_max3_u32 v40, v40, v{OBF+i}, v{OBF+i+1}")
        a(f"v_max3_u32 v41, v41, v{OBF+i+2}, v{OBF+i+3}")
    a(f"""
v_max3_u32 v40, v40, v{OBF+30}, v{OBF+31}
v_max_u32 v40, v40, v41
v_cmp_eq_u32 vcc, -1, v40
s_bfe_u32 s{T0}, s{S_WAVE}, 0x10001
s_lshl_b32 s{T0}, s{T0}, 14
s_lshr_b32 s{T0+1}, s{S_WAVE}, 2
s_mul_i32 s{T0+1}, s{T0+1}, {R2}
s_add_u32 s{T0}, s{T0}, s{T0+1}
v_add_u32 v39, s{T0}, v1
s_cbranch_vccnz L_obretry
L_obok:
""")
    prep = L(f"""
v_and_b32 v12, 31, v0
v_lshrrev_b32 v13, 5, v0
s_lshl_b32 s{T0}, s{S_WAVE}, 13
v_lshlrev_b32 v4, 8, v12
v_add_u32 v4, s{T0}, v4
v_and_b32 v14, 7, v0
v_lshlrev_b32 v15, 2, v13
v_xor_b32 v14, v14, v15
v_lshl_add_u32 v4, v14, 4, v4
v_xor_b32 v5, 16, v4
v_xor_b32 v6, 32, v4
v_xor_b32 v7, 48, v4
v_lshrrev_b32 v14, 3, v0
v_and_b32 v15, 7, v0
v_lshlrev_b32 v8, 1, v15
v_xor_b32 v8, v8, v14
v_lshlrev_b32 v8, 4, v8
v_lshl_add_u32 v8, v14, 8, v8
s_lshl_b32 s{T0}, s{S_WAVE}, 11
v_add_u32 v8, s{T0}, v8
v_xor_b32 v9, 16, v8
v_lshlrev_b32 v10, 10, v14
v_lshl_add_u32 v10, v15, 4, v10
s_and_b32 s{T0}, s2, 31
s_lshl_b32 s{T0}, s{T0}, 16
s_lshl_b32 s{T0+1}, s{S_WAVE}, 13
s_add_u32 s{T0}, s{T0}, s{T0+1}
s_lshr_b32 s{T0+1}, s2, 5
s_lshl_b32 s{T0+1}, s{T0+1}, 7
s_add_u32 s{T0}, s{T0}, s{T0+1}
s_add_u32 s{T0+2}, s{P_OA}, 4096
v_sub_f32 v38, 1.0, v{GV}
s_mov_b32 s{S_X}, s20
s_mov_b32 s{S_X+1}, s21
s_mov_b32 s{S_X+2}, {2048*512*2}
s_mov_b32 s{S_X+3}, 0x20000
""")
    k = 0
    for j in range(8):
        for ct in range(2):
            c = v(ACCB+16*ct,16)
            a(f"v_mfma_f32_32x32x16_bf16 {c}, {v(POOL+8*j+4*ct,4)}, {v(OBF+4*j,4)}, {'0' if j==0 else c}")
            a(f"ds_read_b128 {v(POOL+8*j+4*ct,4)}, v39 offset:{(2*j+ct)*1024}")
            a.emit(prep[k:k+3]); k += 3
    def oa_load(j):
        return f"buffer_load_dwordx4 {v(OFA+4*j,4)}, v1, {s(S_WS,4)}, s{P_OA if j < 4 else T0+2} offen offset:{(j&3)*1024} sc1"
    for j in range(8): a(oa_load(j))
    a("s_nop 4")
    for i in range(0, 32, 2):
        a(f"v_pk_mul_f32 {v(ACCB+i,2)}, {v(ACCB+i,2)}, v[38:39] op_sel_hi:[1,0]")
    a("s_waitcnt lgkmcnt(0)")
    a("s_barrier")
    for j in range(8):
        f = OFA + 4*j
        a(f"""
L_cons{j}:
s_waitcnt vmcnt({7-j})
v_max3_u32 v38, v{f}, v{f+1}, v{f+2}
v_max_u32 v38, v38, v{f+3}
v_cmp_eq_u32 vcc, -1, v38
s_nop 4
s_cbranch_vccnz L_retry{j}
L_go{j}:
""")
        for ct in range(2):
            c = v(ACCA[ct],16)
            a(f"v_mfma_f32_32x32x16_bf16 {c}, {v(POOL+8*j+4*ct,4)}, {v(f,4)}, {'0' if j==0 else c}")
    stamp(a, 12)
    a("s_nop 10")
    for ct in range(2):
        for i in range(0, 16, 2):
            a(f"v_pk_fma_f32 {v(ACCA[ct]+i,2)}, {v(ACCA[ct]+i,2)}, {v(GV,2)}, {v(ACCB+16*ct+i,2)} op_sel_hi:[1,0,1]")
        for q in range(4):
            a(f"ds_write_b128 v{4+q}, {v(ACCA[ct]+4*q,4)} offset:{ct*128}")
    a(f"""
s_waitcnt lgkmcnt(0)
s_barrier
""")
    for kq in range(4):
        a(f"ds_read_b128 {v(16+8*kq,4)}, v8 offset:{kq*16384}")
        a(f"ds_read_b128 {v(20+8*kq,4)}, v9 offset:{kq*16384}")
    for kq in range(1, 4):
        a(f"s_waitcnt lgkmcnt({6-2*kq})")
        for i in range(0, 8, 2):
            a(f"v_pk_add_f32 {v(16+i,2)}, {v(16+i,2)}, {v(16+8*kq+i,2)}")
    for i in range(4):
        a(f"v_cvt_pk_bf16_f32 v{16+i}, v{16+2*i}, v{17+2*i}")
    a(f"buffer_store_dwordx4 v[16:19], v10, {s(S_X,4)}, s{T0} offen sc1")
    stamp_out(a)
    a("L_end:")
    a("s_endpgm")
    for j in range(8):
        a(f"""
L_retry{j}:
s_add_u32 s{T0+7}, s{T0+7}, 1
s_cmp_ge_u32 s{T0+7}, {SPIN}
s_cbranch_scc1 L_go{j}
""")
        for jj in range(j, 8): a(oa_load(jj))
        a(f"s_branch L_cons{j}")
    a(f"""
L_obretry:
s_add_u32 s{T0+7}, s{T0+7}, 1
s_cmp_ge_u32 s{T0+7}, {SPIN}
s_cbranch_scc1 L_obok
""")
    for g in ob_loads(): a.emit(g if isinstance(g, list) else [g])
    a(f"""
s_waitcnt vmcnt(0)
s_branch L_obchk
L_pollF1:
s_sleep {P["PSL"]}
buffer_load_dword v40, v41, {s(S_WS,4)}, s{T0} offen sc1
s_add_u32 s{T0+7}, s{T0+7}, 1
s_waitcnt vmcnt(0)
v_cmp_gt_u32 vcc, 32, v40
s_cmp_ge_u32 s{T0+7}, {SPIN}
s_cbranch_scc1 L_pollF1_ok
s_nop 2
s_cbranch_vccnz L_pollF1
s_branch L_pollF1_ok
L_sig1:
s_mov_b32 s{T0+7}, 0
L_initpoll:
v_readfirstlane_b32 s{T0+6}, v59
s_cmp_lg_u32 s{T0+6}, 0
s_cbranch_scc1 L_initok
s_sleep 4
global_load_dword v59, v{VZ}, s[22:23] sc1
s_add_u32 s{T0+7}, s{T0+7}, 1
s_waitcnt vmcnt(0)
s_cmp_lt_u32 s{T0+7}, {SPIN}
s_cbranch_scc1 L_initpoll
L_initok:
s_mov_b32 s{T0}, {WS_FL + 2048}
v_mov_b32 v59, 1
s_mov_b64 exec, {7 if P["MIX"] else 1}
buffer_atomic_add v59, v246, {s(S_WS,4)}, s{T0} offen sc1
s_mov_b64 exec, -1
""")
    stamp(a, 2)
    a(f"""
s_branch L_drained
L_sig2:
s_lshl_b32 s{T0}, s{S_HQ}, 8
s_add_u32 s{T0}, s{T0}, {WS_FL}
v_mov_b32 v38, 1
s_mov_b64 exec, 1
buffer_atomic_add v38, v{VZ}, {s(S_WS,4)}, s{T0} offen sc1
s_mov_b64 exec, -1
s_branch L_sig2done
L_flagspin:
s_mov_b32 s{T0+7}, 0
L_flagspin2:
s_sleep 16
buffer_load_dword v41, v{VZ}, {s(S_WS,4)}, s{P_F2} offen sc1
s_add_u32 s{T0+7}, s{T0+7}, 1
s_waitcnt vmcnt(0)
v_readfirstlane_b32 s{T0+6}, v41
s_cmp_ge_u32 s{T0+6}, 32
s_cbranch_scc1 L_flagok
s_cmp_lt_u32 s{T0+7}, {SPIN}
s_cbranch_scc1 L_flagspin2
s_branch L_flagok
L_flag2spin:
s_mov_b32 s{T0+7}, 0
L_flag2spin2:
s_sleep 32
buffer_load_dword v41, v42, {s(S_WS,4)}, s{T0+5} offen sc1
s_add_u32 s{T0+7}, s{T0+7}, 1
s_waitcnt vmcnt(0)
v_cmp_gt_u32 vcc, 32, v41
s_cmp_ge_u32 s{T0+7}, {SPIN}
s_cbranch_scc1 L_flag2ok
s_nop 2
s_cbranch_vccnz L_flag2spin2
s_branch L_flag2ok
L_ktspin:
s_mov_b32 s{T0+7}, 0
L_ktspin2:
s_sleep 8
""")
    a.emit(ktl)
    a(f"""
s_add_u32 s{T0+7}, s{T0+7}, 1
s_waitcnt vmcnt(0)
""")
    a.emit(ktc)
    a(f"""
s_cmp_ge_u32 s{T0+7}, {SPIN}
s_cbranch_scc1 L_ktok
s_nop 2
s_cbranch_vccnz L_ktspin2
s_branch L_ktok
""")
    a(f"""
L_slow:
s_barrier
s_mov_b32 s{MODE}, 1
s_lshl_b32 s{T0+1}, s{S_H}, 17
s_add_u32 s{T0+1}, s{T0+1}, {WS_KV}
s_add_u32 s{T0+1}, s{T0+1}, s{P_WOL}
""")
    for g in range(2):
        a(f"s_add_u32 m0, s{P_WOL}, {g*4096}")
        a(f"s_add_u32 s{T0+1}, s{T0+1}, {g*4096}")
        for i in range(4):
            a(f"buffer_load_dwordx4 v1, {s(S_WS,4)}, s{T0+1} offen offset:{i*1024} sc1 lds")
    a(f"""
s_mov_b32 s{CNT}, 0
v_mov_b32 v{ADDR}, v1
v_mov_b32 v38, 0xff800000
v_mov_b32 v39, 0xff800000
v_mov_b32 v46, v40
v_mov_b32 v47, v41
s_waitcnt vmcnt(0)
s_barrier
L_mloop:
ds_read_b128 {v(KS[0],4)}, v{ADDR}
s_waitcnt lgkmcnt(0)
v_mfma_f32_32x32x16_bf16 {v(SA,16)}, {v(KS[0],4)}, {v(QA,4)}, 0
v_mfma_f32_32x32x16_bf16 {v(SB,16)}, {v(KS[0],4)}, {v(QB,4)}, 0
s_nop 15
""")
    a.emit(rr(maxtree(38, SA, 1), maxtree(39, SB, 1)))
    a(f"""
v_add_u32 v{ADDR}, 2048, v{ADDR}
s_add_u32 s{CNT}, s{CNT}, 1
s_cmp_lt_u32 s{CNT}, 64
s_cbranch_scc1 L_mloop
""")
    a(NEGM)
    a(f"""
s_lshl_b32 s{T0}, s{KH}, 16
v_add_u32 v{ADDR}, s{T0}, v1
s_mov_b32 s{CNT}, 0
ds_read_b128 {v(KS[0],4)}, v{ADDR}
s_mov_b64 exec, {s(SL+2,2)}
ds_read_b128 {v(VS[0],4)}, v{ADDR} offset:1024
ds_read_b128 {v(VS[0]+4,4)}, v{ADDR} offset:1280
s_mov_b64 exec, -1
""")
    a.emit(fm); a.emit(ZERO_O); a.emit(ZSB)
    a(f"""
s_waitcnt lgkmcnt(0)
v_mfma_f32_32x32x16_bf16 {v(SA,16)}, {v(KS[0],4)}, {v(QA,4)}, {v(NMA,16)}
s_nop 15
L_sloop:
""")
    a.emit(slot(0))
    a(f"""
v_add_u32 v{ADDR}, 4096, v{ADDR}
s_add_u32 s{CNT}, s{CNT}, 1
s_cmp_lt_u32 s{CNT}, 16
s_cbranch_scc1 L_sloop
v_mov_b32 v40, v46
v_mov_b32 v41, v47
s_barrier
""")
    for g in woa_dma(): a.emit(g if isinstance(g, list) else [g])
    a("s_waitcnt vmcnt(0)")
    a("s_branch L_tail")
    a("L_codeend:")
    a("s_endpgm")
    return kd(NAME, 256, 102)

HEAD = """; gated mix of softmax attention and hedgehog linear attention -- hand-written gfx950 kernel
; @launch grid=(256,1,1) block=(512,1,1) lds=163840
.amdgcn_target "amdgcn-amd-amdhsa--gfx950"
"""
if __name__ == "__main__":
    rt = False
    for o in sys.argv[2:]:
        if o == "st": P["STAMPS"] = 1
        elif o == "rt": rt = True
        else:
            k_, v_ = o.split("="); assert k_.upper() in P, k_; P[k_.upper()] = int(v_)
    a = Asm()
    k = gen(a)
    txt = a.text()
    if rt: txt = txt.replace("s_memtime", "s_memrealtime")
    open(sys.argv[1], "w").write(HEAD + txt + k)
```

```python
import sys, struct
from asmlib import *

NAME = "gated_mix__mha_block__linear_kernel_hedgehog__prompt_kernel"
LOG2E = 1.4426950408889634
def f2u(x): return struct.unpack("<I", struct.pack("<f", x))[0]

WS_QF  = 0
WS_KV  = 2 << 20
WS_PHQ = 6 << 20
WS_KVP = 10 << 20
WS_OF  = 14 << 20
WS_G   = 18 << 20
WS_KVT = (18 << 20) + 65536
WS_WOF = (18 << 20) + 131072
WS_FL  = WS_WOF + (1 << 20)
WS_SIZE = WS_FL + 32 * 256
WS_ST = 20 << 20
OBR = 64 * 32 * 1024

P = dict(STAMPS=0, STMODE=0, SPIN=400000, SIGC=1, LOOK=3, RPG=3, LEAD=2, CPF=1, XAH=1, PSL=2,
         KVS=4, PACE=0, PACK=0, TLB=0, WF=0, WBT=0, MIX=1, RT=0, RSL=4, OAP=8, HOLD=0, XB=40, NOBD=1, NOBA=1, RLIM=11, EARLYB=0, QLATE=1, PRE=2, L1=9, RFIRST=1, CLS=3, BS=6, BD=4, BA=8, BW=12, DBG=0, ROTC=1, DIAG=0)

S_X, S_WA, S_WB, S_WS, S_MISC = 28, 32, 36, 40, 44
S_WAVE, S_HQ, S_TB, S_ROT = 48, 49, 50, 51
S_H, S_RB = 26, 27
T0 = 52
SL = 60
CNT, MODE, EVM, TT, PP, SX = 64, 65, 66, 67, 68, 69
P_KVG, P_KVB = 66, 67
P_OF, P_F2, P_KVS, P_KVT, P_PHQ, P_WOF, P_WOB, P_OA, P_G, P_WOL, KH = 4, 5, 6, 7, 8, 9, 10, 11, 0, 1, 3

XL, WL, WSLOT = 0, 65536, 24576
L_QH, L_WOS, L_CMB = 128*1024, 130*1024, 136*1024
L_FLAG, L_EX, EXS = 136*1024, 137*1024, 4608

QA, QB, KS, VS, IDX, ADDR = 4, 8, [12, 16], [20, 28], 36, 37
NMA, NMB, SA, SB, OA, OB = 48, 64, 80, 96, 112, 128
POOL, OBF, KACC, PQ, GV = 144, 208, 240, 244, 252
VZ = 3
L = lambda t: [x.strip() for x in t.strip().split("\n") if x.strip()]

def stamp(a, i, mode=0):
    if P["STAMPS"] and mode == P["STMODE"]:
        a(f"s_memtime s[{70+2*i}:{71+2*i}]")
def stamp_out(a):
    if not P["STAMPS"]:
        return
    a("s_mov_b64 exec, -1")
    a("s_memrealtime s[100:101]")
    a("s_waitcnt lgkmcnt(0) vmcnt(0)")
    a("s_memtime s[96:97]")
    a("s_waitcnt lgkmcnt(0)")
    srd(a, 40, 24, 25, WS_ST + (1 << 20))
    a(f"s_lshl_b32 s3, s2, 3")
    a(f"s_add_u32 s3, s3, s{S_WAVE}")
    a(f"s_lshl_b32 s3, s3, 6")
    a(f"s_add_u32 s3, s3, {WS_ST}")
    a("v_mov_b32 v1, 0")
    for i in range(16):
        a(f"v_mov_b32 v2, s{70+2*i}")
        a(f"buffer_store_dword v2, v1, s[40:43], s3 offen offset:{4*i}")
    a("s_waitcnt vmcnt(0)")

def softmax16(b, t):
    o = [f"v_max3_f32 v{t}, v{b}, v{b+1}, v{b+2}"]
    for i in range(3, 15, 2):
        o.append(f"v_max3_f32 v{t}, v{t}, v{b+i}, v{b+i+1}")
    o.append(f"v_max_f32 v{t}, v{t}, v{b+15}")
    o.append(f"v_mul_f32 v{t}, {f2u(-LOG2E):#x}, v{t}")
    for i in range(0, 16, 2):
        o.append(f"v_pk_fma_f32 {v(b+i,2)}, {v(b+i,2)}, {s(SL,2)}, {v(t,2)} op_sel_hi:[1,0,0]")
    for i in range(16):
        o.append(f"v_exp_f32 v{b+i}, v{b+i}")
    o.append(f"v_pk_add_f32 {v(t+2,2)}, {v(b,2)}, {v(b+2,2)}")
    for i in range(4, 16, 2):
        o.append(f"v_pk_add_f32 {v(t+2,2)}, {v(t+2,2)}, {v(b+i,2)}")
    o.append(f"v_add_f32 v{t}, v{t+2}, v{t+3}")
    o.append(f"v_rcp_f32 v{t}, v{t}")
    o.append("s_nop 0")
    for i in range(0, 16, 2):
        o.append(f"v_pk_mul_f32 {v(b+i,2)}, {v(b+i,2)}, {v(t,2)} op_sel_hi:[1,0]")
    for i in range(8):
        o.append(f"v_cvt_pk_bf16_f32 v{b+i}, v{b+2*i}, v{b+2*i+1}")
    return o

def tr64_addr(a, dst, tmp, base_sgpr):
    a(f"""
v_bfe_u32 v{tmp}, v0, 2, 2
v_lshlrev_b32 v{dst}, 6, v{tmp}
v_lshrrev_b32 v{tmp}, 5, v0
v_lshl_add_u32 v{dst}, v{tmp}, 8, v{dst}
v_and_b32 v{tmp}, 1, v0
v_lshl_add_u32 v{dst}, v{tmp}, 5, v{dst}
v_bfe_u32 v{tmp}, v0, 4, 1
v_lshl_add_u32 v{dst}, v{tmp}, 4, v{dst}
v_bfe_u32 v{tmp}, v0, 1, 1
v_lshl_add_u32 v{dst}, v{tmp}, 3, v{dst}
v_add_u32 v{dst}, s{base_sgpr}, v{dst}
""")

def persist(a, kh, R2, xkb):
    a(f"""
s_mov_b32 s{KH}, {kh}
s_and_b32 s{T0}, s{S_WAVE}, 3
s_lshl_b32 s{T0+1}, s{S_RB}, 3
s_lshl_b32 s{T0+2}, s{T0}, 1
s_add_u32 s{T0+1}, s{T0+1}, s{T0+2}
s_add_u32 s{T0+1}, s{T0+1}, {kh}
s_lshl_b32 s{P_OF}, s{T0+1}, 5
s_add_u32 s{P_OF}, s{P_OF}, s{S_H}
s_lshl_b32 s{P_OF}, s{P_OF}, 10
s_add_u32 s{P_OF}, s{P_OF}, {WS_OF}
s_lshl_b32 s{P_PHQ}, s{S_H}, 6
s_add_u32 s{P_PHQ}, s{P_PHQ}, s{T0+1}
s_lshl_b32 s{P_PHQ}, s{P_PHQ}, 11
s_add_u32 s{P_PHQ}, s{P_PHQ}, {WS_PHQ}
s_lshr_b32 s{P_F2}, s{S_H}, 2
s_xor_b32 s{P_F2}, s{P_F2}, {xkb}
s_lshl_b32 s{P_F2}, s{P_F2}, 8
s_add_u32 s{P_F2}, s{P_F2}, {WS_FL}
s_lshl_b32 s{P_KVS}, s{S_H}, 17
s_lshl_b32 s{T0+2}, s{T0}, 10
s_add_u32 s{P_KVS}, s{P_KVS}, s{T0+2}
s_lshl_b32 s{T0+2}, s{S_RB}, 7
s_add_u32 s{P_KVS}, s{P_KVS}, s{T0+2}
s_add_u32 s{P_KVS}, s{P_KVS}, {WS_KVP}
s_lshl_b32 s{P_KVT}, s{S_H}, 11
s_add_u32 s{P_KVT}, s{P_KVT}, {WS_KVT}
s_lshr_b32 s{P_WOF}, s2, 5
s_lshl_b32 s{P_WOF}, s{P_WOF}, 17
s_add_u32 s{P_WOF}, s{P_WOF}, {WS_WOF}
s_lshr_b32 s{T0+1}, s{S_WAVE}, 1
s_lshl_b32 s{P_WOB}, s{T0+1}, 14
s_add_u32 s{P_WOB}, s{P_WOB}, s{P_WOF}
s_add_u32 s{P_WOB}, s{P_WOB}, 65536
s_lshl_b32 s{T0+2}, s{S_WAVE}, 13
s_add_u32 s{P_WOF}, s{P_WOF}, s{T0+2}
s_and_b32 s{P_OA}, s2, 31
s_lshl_b32 s{P_OA}, s{P_OA}, 1
s_and_b32 s{T0+2}, s{S_WAVE}, 1
s_add_u32 s{P_OA}, s{P_OA}, s{T0+2}
s_lshl_b32 s{P_G}, s{P_OA}, 7
s_add_u32 s{P_G}, s{P_G}, {WS_G}
s_lshl_b32 s{P_OA}, s{P_OA}, 5
s_lshl_b32 s{T0+1}, s{T0+1}, 3
s_add_u32 s{P_OA}, s{P_OA}, s{T0+1}
s_lshl_b32 s{P_OA}, s{P_OA}, 10
s_add_u32 s{P_OA}, s{P_OA}, {WS_OF}
s_lshl_b32 s{P_WOL}, s{T0}, 13
s_add_u32 s{P_WOL}, s{P_WOL}, {R2 if kh == 0 else 0}
""")

def gen(a):
    SPIN, LEAD = P["SPIN"], P["LEAD"]
    XQA, XKA, XVA, XQB, XKB = (1, 0, 2, 0, 3) if P["MIX"] else (0, 0, 0, 0, 0)
    NS = 16 + LEAD // 2
    R2 = 2 * NS * 2048
    BD, BA, BW, BS = P["BD"], P["BA"], P["BW"], P["BS"]
    C0 = BS
    assert BW >= LEAD + 8 and BW >= 8
    a(f""".text
.globl {NAME}
.p2align 8
.type {NAME},@function
{NAME}:
s_cmp_ge_u32 s2, 256
s_cbranch_scc1 L_end
""")
    if P["STAMPS"]:
        for i in range(70, 102): a(f"s_mov_b32 s{i}, 0")
        a("s_memtime s[70:71]")
        a("s_memrealtime s[98:99]")
    a(f"""
s_load_dwordx16 s[4:19], s[0:1], 0
s_load_dwordx4 s[20:23], s[0:1], 64
s_load_dwordx2 s[24:25], s[0:1], 80
v_lshrrev_b32 v1, 6, v0
v_and_b32 v0, 63, v0
v_readfirstlane_b32 s{S_WAVE}, v1
s_lshr_b32 s3, s2, 3
s_and_b32 s{S_TB}, s2, 6
s_lshl_b32 s{S_TB}, s{S_TB}, 2
s_and_b32 s{S_ROT}, s3, 7
s_add_u32 s{S_TB}, s{S_TB}, s{S_ROT}
s_lshr_b32 s3, s3, 3
s_and_b32 s{S_HQ}, s2, 1
s_lshl_b32 s{S_HQ}, s{S_HQ}, 2
s_add_u32 s{S_HQ}, s{S_HQ}, s3
s_and_b32 s{S_H}, s2, 7
s_lshl_b32 s{S_H}, s{S_H}, 2
s_add_u32 s{S_H}, s{S_H}, s3
s_lshl_b32 s3, s3, 1
s_add_u32 s{S_ROT}, s{S_ROT}, s3
s_bfe_u32 s{S_RB}, s2, 0x30003
v_mov_b32 v{VZ}, 0
s_cmp_ge_u32 s{S_WAVE}, 4
s_cbranch_scc0 L_compute
""")
    LW, XO, WO, XM, WM = 64, 65, 66, 67, 68
    a(f"""
s_sub_u32 s{LW}, s{S_WAVE}, 4
v_lshrrev_b32 v1, 3, v0
v_and_b32 v2, 7, v0
v_lshrrev_b32 v8, 4, v0
v_xor_b32 v9, v2, v8
v_lshlrev_b32 v10, 10, v1
v_lshl_add_u32 v4, v9, 4, v10
v_xor_b32 v5, 64, v4
v_add_u32 v5, {8192-1024}, v5
v_mul_u32_u24 v10, 3072, v1
v_and_b32 v8, 1, v8
v_lshlrev_b32 v8, 2, v8
v_xor_b32 v9, v2, v8
v_lshl_add_u32 v6, v9, 4, v10
s_lshl_b32 s{T0}, s{S_HQ}, 7
v_add_u32 v6, s{T0}, v6
v_xor_b32 v11, {XQA*128}, v6
v_xor_b32 v7, {XKA*128+32}, v6
v_xor_b32 v6, {XVA*128}, v6
s_lshl_b32 s{XO}, s{S_TB}, 16
s_lshl_b32 s{T0}, s{LW}, 14
s_add_u32 s{XO}, s{XO}, s{T0}
s_mul_i32 s{WO}, s{LW}, {16*3072}
s_lshl_b32 s{XM}, s{LW}, 11
s_mul_i32 s{WM}, s{LW}, 6144
s_add_u32 s{WM}, s{WM}, {WL}
s_mov_b32 s{S_X+2}, {2048*512*2}
s_mov_b32 s{S_X+3}, 0x20000
s_mov_b32 s{S_WA+2}, {512*1536*2}
s_mov_b32 s{S_WA+3}, 0x20000
s_waitcnt lgkmcnt(0)
s_mov_b32 s{S_X}, s4
s_mov_b32 s{S_X+1}, s5
s_mov_b32 s{S_WA}, s6
s_mov_b32 s{S_WA+1}, s7
""")
    stamp(a, 1)
    issued = []
    paced = [False]
    def pace():
        if P["PACE"] and paced[0]: a(f"s_waitcnt vmcnt({P['PACE']})")
    def issx(c):
        a(f"s_add_u32 s{T0}, s{S_ROT}, {c}")
        a(f"s_and_b32 s{T0}, s{T0}, 7")
        a(f"s_lshl_b32 s{T0}, s{T0}, 7")
        a(f"s_add_u32 m0, s{XM}, {XL + c*8192}")
        a(f"s_add_u32 s{T0}, s{T0}, s{XO}")
        pace()
        a(f"buffer_load_dwordx4 v4, {s(S_X,4)}, s{T0} offen lds")
        pace()
        a(f"buffer_load_dwordx4 v5, {s(S_X,4)}, s{T0} offen offset:1024 lds")
        issued.append((("x", c), 2))
        if c == 0 and P["TLB"]:
            a(f"""
s_lshr_b32 s{T0+2}, s2, 3
s_lshl_b32 s{T0+2}, s{T0+2}, 16
s_min_u32 s{T0+3}, s{T0+2}, {23*65536}
s_load_dword s{T0+4}, s[6:7], s{T0+3}
s_load_dword s{T0+5}, s[12:13], s{T0+3}
s_load_dword s{T0+6}, s[4:5], s{T0+2}
""")
    def issw(c):
        W = S_WA if c < 8 else S_WB
        if c == 8:
            a(f"v_xor_b32 v11, {(XQA^XQB)*128}, v11")
            a(f"v_xor_b32 v7, {(XKA^XKB)*128}, v7")
            a(f"v_xor_b32 v6, {(XVA^XKB)*128}, v6")
        a(f"s_add_u32 s{T0}, s{S_ROT}, {c & 7}")
        a(f"s_and_b32 s{T0}, s{T0}, 7")
        a(f"s_mul_i32 s{T0+1}, s{T0}, {64*3072}")
        for g in range(2):
            a(f"s_add_u32 m0, s{WM}, {(c & 3)*WSLOT + g*3072}")
            a(f"s_add_u32 s{T0+1}, s{T0+1}, " + (f"s{WO}" if g == 0 else f"{8*3072}"))
            pace()
            a(f"buffer_load_dwordx4 v11, {s(W,4)}, s{T0+1} offen lds")
            pace()
            a(f"buffer_load_dwordx4 v7, {s(W,4)}, s{T0+1} offen offset:1024 lds")
            pace()
            a(f"buffer_load_dwordx4 v6, {s(W,4)}, s{T0+1} offen offset:2048 lds")
        issued.append((("w", c), 6))
    nx = [0]
    def iss(c):
        if c == 0 and P["WF"]:
            issw(0); issx(0); nx[0] = 1
        else:
            if c < 8 and nx[0] <= c: issx(nx[0]); nx[0] += 1
            issw(c)
        while nx[0] < 8 and nx[0] <= c + P["XAH"]:
            issx(nx[0]); nx[0] += 1
    def wait_for(c):
        idx = max(i for i, (t, _) in enumerate(issued) if t in (("x", c), ("w", c)))
        a(f"s_waitcnt vmcnt({sum(k for _, k in issued[idx+1:])})")
    iss(0)
    stamp(a, 1, 5)
    srd(a, S_WB, 12, 13, 512*1536*2)
    srd(a, S_WS, 24, 25, WS_SIZE)
    if P["TLB"]: a("s_waitcnt lgkmcnt(0)")
    persist(a, 0, R2, XKB)
    VINIT = f"""
v_mov_b32 v{IDX}, 0xdddddddd
v_and_b32 v39, 27, v0
v_cmp_eq_u32 vcc, 16, v39
v_mov_b32 v38, 0x3f803f80
v_mov_b64 v[44:45], -1
v_cndmask_b32 v38, 0, v38, vcc
v_mov_b64 v[46:47], -1
v_mov_b32 v39, v38
""" + "\n".join(f"v_mov_b64 {v(VS[0]+i,2)}, v[38:39]" for i in range(0, 16, 2))
    ZERO_O = [f"v_mov_b64 {v(OA+i,2)}, 0" for i in range(0, 32, 2)]
    a(VINIT)
    a.emit(ZERO_O)
    a(f"""
v_lshlrev_b32 v42, 12, v1
v_lshl_add_u32 v42, v2, 4, v42
s_and_b32 s{T0}, s{S_H}, 1
s_lshl_b32 s{T0}, s{T0}, 1
s_xor_b32 s{T0}, s{T0}, s{S_RB}
s_lshl_b32 s{T0}, s{T0}, 7
s_lshr_b32 s{T0+1}, s{LW}, 1
s_lshl_b32 s{T0+1}, s{T0+1}, 10
s_add_u32 s{T0}, s{T0}, s{T0+1}
s_and_b32 s{T0+1}, s{LW}, 1
s_lshl_b32 s{T0+1}, s{T0+1}, 3
s_add_u32 s{T0}, s{T0}, s{T0+1}
v_lshlrev_b32 v43, 4, v2
v_bfe_u32 v8, v0, 4, 1
v_lshl_add_u32 v43, v8, 2, v43
v_add_u32 v43, s{T0}, v43
v_lshlrev_b32 v1, 4, v0
v_mov_b32 v{ADDR}, v1
s_lshl_b32 s{T0}, s{LW}, 9
s_add_u32 s{T0}, s{T0}, {L_QH}
v_lshrrev_b32 v{POOL+11}, 1, v1
v_add_u32 v{POOL+11}, s{T0}, v{POOL+11}
""")
    stamp(a, 2, 5)
    if P["PRE"] >= 2: iss(1)
    stamp(a, 3, 5)
    paced[0] = True
    stamp(a, 2)
    nxt = P["PRE"]
    for k in range(16):
        wait_for(k)
        if k < 3: stamp(a, 4 + 3*k, 5)
        if k == 0: stamp(a, 3)
        if k < 12: stamp(a, k + 1, 2)
        a("s_barrier")
        if k < 3: stamp(a, 5 + 3*k, 5)
        lim = k + P["LOOK"] if k > 0 else 2
        if k == 1: lim = min(lim, P["L1"])
        if k == 7 and P["RFIRST"]:
            a("s_barrier")
            lim = P["RLIM"]
        if k >= 7 and not (k == 7 and P["RFIRST"]): lim = k + 3
        if k in (5, 6) and P['HOLD']: lim = min(lim, 8)
        while nxt < 16 and nxt <= lim:
            iss(nxt); nxt += 1
        if k < 3: stamp(a, 6 + 3*k, 5)
        if k == 7 and not P["RFIRST"]:
            a("s_barrier")
            iss(nxt); nxt += 1
    stamp(a, 4)
    a(f"""
s_lshr_b32 s{T0}, s{S_H}, 2
s_lshl_b32 s{T0}, s{T0}, 8
s_add_u32 s{T0}, s{T0}, {WS_FL + 2048}
v_min_u32 v41, {2 if P["MIX"] else 0}, v0
v_lshlrev_b32 v41, 11, v41
buffer_load_dword v40, v41, {s(S_WS,4)}, s{T0} offen sc1
s_sub_u32 s{T0+1}, s{P_PHQ}, {WS_PHQ}
s_lshr_b32 s{T0+1}, s{T0+1}, 1
s_lshl_b32 s{P_KVB}, s{S_H}, 17
s_add_u32 s{P_KVB}, s{P_KVB}, {WS_KV}
s_lshl_b32 s{P_KVG}, s{LW}, 12
s_add_u32 s{T0+3}, s{P_KVG}, {R2 - 4096}
s_cmp_eq_u32 s{LW}, 0
s_cmov_b32 s{T0+3}, 16384
s_mov_b32 s{T0+7}, 0
s_barrier
s_waitcnt vmcnt(0)
v_cmp_gt_u32 vcc, 32, v40
s_nop 4
s_cbranch_vccnz L_pollF1
L_pollF1_ok:
""")
    stamp(a, 5); stamp(a, 1, 3)
    G0 = POOL + 12
    a(f"""
buffer_load_dwordx4 {v(QA,4)}, v1, {s(S_WS,4)}, s{T0+1} offen sc1
buffer_load_dwordx4 {v(QB,4)}, v1, {s(S_WS,4)}, s{T0+1} offen offset:1024 sc1
buffer_load_dwordx4 {v(KS[0],4)}, v1, {s(S_WS,4)}, s{P_KVB} offen sc1
""")
    def kvgrp(reg, off):
        o = [[f"s_add_u32 m0, s{reg}, {off}", f"s_add_u32 s{T0+4}, m0, s{P_KVB}"]]
        o += [f"buffer_load_dwordx4 v1, {s(S_WS,4)}, s{T0+4} offen offset:{i*1024} sc1 lds" for i in range(4)]
        return o
    def flat(x):
        o = []
        for g in x: o += g if isinstance(g, list) else [g]
        return o
    a.emit(flat(kvgrp(P_KVG, 0))); a.emit(flat(kvgrp(T0+3, 0)))
    a(f"""
s_setprio 3
s_waitcnt vmcnt(8)
v_mfma_f32_32x32x16_bf16 {v(SA,16)}, {v(KS[0],4)}, {v(QA,4)}, 0
v_mfma_f32_32x32x16_bf16 {v(SB,16)}, {v(KS[0],4)}, {v(QB,4)}, 0
""")
    if P["NOBD"]: a.emit(flat(kvgrp(P_KVG, 5*4096) + kvgrp(P_KVG, R2 + 3*4096)))
    else: a("s_nop 9")
    a(f"""
s_mov_b32 s{MODE}, 0
s_mov_b32 s{SL+2}, 0x0000ffff
s_mov_b32 s{SL+3}, 0x0000ffff
""")
    def maxtree(dst, b, init=None):
        o = []
        if init is None:
            o.append(f"v_max3_f32 v{dst}, v{b}, v{b+1}, v{b+2}")
            for i in range(3, 15, 2):
                o.append(f"v_max3_f32 v{dst}, v{dst}, v{b+i}, v{b+i+1}")
            o.append(f"v_max_f32 v{dst}, v{dst}, v{b+15}")
        else:
            for i in range(0, 16, 2):
                o.append(f"v_max3_f32 v{dst}, v{dst}, v{b+i}, v{b+i+1}")
        return o
    a.emit(rr(maxtree(38, SA), maxtree(39, SB)))
    NEGM = f"""
v_permlane32_swap_b32 v38, v39
s_nop 1
v_max_f32 v38, v38, v39
v_sub_f32 v38, 0, v38
v_mov_b32 v39, v38
s_nop 1
v_permlane32_swap_b32 v38, v39
"""
    def fill_nm():
        o = [f"v_mov_b32 v40, v38", f"v_mov_b32 v41, v38"]
        o += [f"v_mov_b64 {v(NMA+i,2)}, v[40:41]" for i in range(0, 16, 2)]
        o += [f"v_mov_b32 v38, v39"]
        o += [f"v_mov_b64 {v(NMB+i,2)}, v[38:39]" for i in range(0, 16, 2)]
        return o
    ZSB = [f"v_mov_b64 {v(SB+i,2)}, 0" for i in range(8, 16, 2)]
    a("s_nop 1")
    a(NEGM)
    a(f"""
s_nop 1
v_mov_b64 {v(POOL+14,2)}, v[38:39]
""")
    fm = fill_nm()
    a.emit(fm[:11])
    a.emit(ZSB)
    a(f"v_mfma_f32_32x32x16_bf16 {v(SA,16)}, {v(KS[0],4)}, {v(QA,4)}, {v(NMA,16)}")
    a.emit(fm[11:])
    stamp(a, 2, 3)
    a("s_setprio 0")
    stamp(a, 3, 3)
    a(f"ds_write_b64 v{POOL+11}, {v(POOL+14,2)}")
    a("s_waitcnt vmcnt(0) lgkmcnt(0)")
    stamp(a, 6); stamp(a, 4, 3)
    a(f"""
s_barrier
s_mov_b64 exec, {s(SL+2,2)}
ds_read_b128 {v(VS[0],4)}, v{ADDR} offset:1024
ds_read_b128 {v(VS[0]+4,4)}, v{ADDR} offset:1280
s_mov_b64 exec, -1
""")
    a("s_waitcnt lgkmcnt(0)")
    stamp(a, 8)
    a("s_branch L_slot0")

    XA = [4, 5, 6, 7]; WAD = [[8, 9, 10], [56, 57, 58]]
    BUF = [112, 176]
    ACC = [64, 80, 96]
    WPHI = [48, 52]
    WPHQ = [248, 252]
    GO, WD = 36, 37
    a("L_compute:")
    if P["CPF"]:
        a(f"""
s_getpc_b64 s[{T0}:{T0+1}]
L_pc:
s_sub_u32 s{T0}, s{T0}, L_pc-{NAME}
s_subb_u32 s{T0+1}, s{T0+1}, 0
s_lshr_b32 s{T0+2}, s2, 3
s_lshl_b32 s{T0+2}, s{T0+2}, 2
s_add_u32 s{T0+2}, s{T0+2}, s{S_WAVE}
s_lshl_b32 s{T0+2}, s{T0+2}, 8
s_min_u32 s{T0+2}, s{T0+2}, L_codeend-{NAME}-256
s_add_u32 s{T0}, s{T0}, s{T0+2}
s_addc_u32 s{T0+1}, s{T0+1}, 0
s_load_dword s{T0+3}, s[{T0}:{T0+1}], 0
s_load_dword s{T0+4}, s[{T0}:{T0+1}], 64
s_load_dword s{T0+5}, s[{T0}:{T0+1}], 128
s_load_dword s{T0+6}, s[{T0}:{T0+1}], 192
""")
    a(f"""
s_lshr_b32 s{TT}, s{S_WAVE}, 1
s_and_b32 s{PP}, s{S_WAVE}, 1
v_and_b32 v12, 31, v0
v_lshrrev_b32 v13, 5, v0
v_lshlrev_b32 v1, 4, v0
s_waitcnt lgkmcnt(0)
""")
    srd(a, S_MISC, 14, 15, 32*512)
    srd(a, S_WS, 24, 25, WS_SIZE)
    a(f"""
s_or_b32 s{T0+1}, s2, s{S_WAVE}
s_cmp_lg_u32 s{T0+1}, 0
s_cbranch_scc1 L_noinit
v_lshlrev_b32 v8, 8, v0
s_mov_b32 s{T0+1}, {WS_FL}
buffer_store_dword v{VZ}, v8, {s(S_WS,4)}, s{T0+1} offen sc1
s_waitcnt vmcnt(0)
v_mov_b32 v8, 1
s_mov_b64 exec, 1
global_store_dword v{VZ}, v8, s[22:23] sc1
s_mov_b64 exec, -1
L_noinit:
s_lshl_b32 s{T0}, s{S_HQ}, 1
s_add_u32 s{T0}, s{T0}, s{PP}
s_lshl_b32 s{T0}, s{T0}, 10
s_lshl_b32 s{T0+1}, s{S_WAVE}, 10
s_add_u32 s{T0+1}, s{T0+1}, {WL + 3*WSLOT}
s_mov_b32 m0, s{T0+1}
s_xor_b32 s{T0+2}, s{T0}, {XKB*2048}
buffer_load_dwordx4 v1, {s(S_MISC,4)}, s{T0+2} offen lds
s_add_u32 m0, s{T0+1}, 8192
s_xor_b32 s{T0+2}, s{T0}, {XQB*2048}
buffer_load_dwordx4 v1, {s(S_MISC,4)}, s{T0+2} offen lds
v_bfe_u32 v14, v0, 2, 2
s_cmp_ge_u32 s2, 128
s_cselect_b32 s{S_WA}, s16, s8
s_cselect_b32 s{S_WA+1}, s17, s9
s_mov_b32 s{S_WA+2}, {512*512*2}
s_mov_b32 s{S_WA+3}, 0x20000
s_lshl_b32 s{T0+2}, s2, 2
s_add_u32 s{T0+2}, s{T0+2}, s{S_WAVE}
s_bfe_u32 s{T0+3}, s{T0+2}, 0x50004
s_and_b32 s{T0+4}, s{T0+2}, 15
s_lshl_b32 s{T0+5}, s{T0+3}, 14
s_lshl_b32 s{T0+6}, s{T0+4}, 6
s_add_u32 s{T0+5}, s{T0+5}, s{T0+6}
v_lshrrev_b32 v16, 2, v0
v_lshlrev_b32 v16, 10, v16
v_and_b32 v17, 3, v0
v_lshl_add_u32 v16, v17, 4, v16
s_add_u32 m0, s{T0+1}, 4096
s_lshl_b32 s{GO}, s{S_TB}, 6
buffer_load_dwordx4 v16, {s(S_WA,4)}, s{T0+5} offen lds
s_lshl_b32 s{T0+6}, s{S_HQ}, 3
s_add_u32 s{GO}, s{GO}, s{T0+6}
s_lshl_b32 s{T0+6}, s{S_WAVE}, 1
s_add_u32 s{GO}, s{GO}, s{T0+6}
s_lshl_b32 s{T0+6}, s{GO}, 10
v_lshlrev_b32 v17, 5, v0
v_and_b32 v18, 0x3ff, v17
v_add_u32 v17, s{T0+6}, v17
global_load_dwordx4 v[20:23], v17, s[4:5]
global_load_dwordx4 v[24:27], v17, s[4:5] offset:16
global_load_dwordx4 v[28:31], v18, s[18:19]
global_load_dwordx4 v[32:35], v18, s[18:19] offset:16
s_lshl_b32 s{GO}, s{GO}, 2
s_add_u32 s{GO}, s{GO}, {WS_G}
s_lshr_b32 s{T0+6}, s{T0+4}, 1
s_lshl_b32 s{WD}, s{T0+6}, 17
s_lshr_b32 s{T0+6}, s{T0+2}, 9
s_lshl_b32 s{T0+6}, s{T0+6}, 16
s_add_u32 s{WD}, s{WD}, s{T0+6}
s_lshl_b32 s{T0+6}, s{T0+3}, 11
s_add_u32 s{WD}, s{WD}, s{T0+6}
s_and_b32 s{T0+6}, s{T0+4}, 1
s_lshl_b32 s{T0+6}, s{T0+6}, 10
s_add_u32 s{WD}, s{WD}, s{T0+6}
s_add_u32 s{WD}, s{WD}, {WS_WOF}
s_add_u32 s{T0+7}, s{T0+1}, 4096
""")
    tr64_addr(a, 19, 16, T0+7)
    a(f"""
v_lshlrev_b32 v40, 5, v14
v_lshl_add_u32 v40, v13, 7, v40
v_bfe_u32 v14, v0, 4, 1
v_lshl_add_u32 v40, v14, 4, v40
v_bfe_u32 v14, v0, 1, 1
v_lshl_add_u32 v40, v14, 3, v40
v_add_u32 v40, s{T0+1}, v40
s_lshl_b32 s{T0}, s{TT}, 12
v_lshlrev_b32 v15, 7, v12
v_add_u32 v15, s{T0}, v15
v_bfe_u32 v14, v12, 1, 3
v_xor_b32 v14, v14, v13
v_lshl_add_u32 v{XA[0]}, v14, 4, v15
v_xor_b32 v{XA[1]}, 32, v{XA[0]}
v_xor_b32 v{XA[2]}, 64, v{XA[0]}
v_xor_b32 v{XA[3]}, 96, v{XA[0]}
v_mul_u32_u24 v2, 3072, v13
v_bfe_u32 v14, v0, 2, 2
v_lshl_add_u32 v2, v14, 7, v2
v_bfe_u32 v14, v0, 3, 1
v_xor_b32 v14, s{PP}, v14
v_lshl_add_u32 v2, v14, 6, v2
v_bfe_u32 v14, v0, 4, 1
v_lshl_add_u32 v2, v14, 5, v2
v_and_b32 v15, 3, v0
v_lshl_add_u32 v2, v15, 3, v2
v_add_u32 v10, {WL+2048}, v2
v_lshl_add_u32 v2, v14, 10, v2
v_add_u32 v8, {WL}, v2
v_xor_b32 v9, 32, v8
v_add_u32 v56, {2*WSLOT}, v8
v_add_u32 v57, {2*WSLOT}, v9
v_add_u32 v58, {2*WSLOT}, v10
v_and_b32 v2, 0x33, v0
v_bfe_u32 v14, v0, 2, 1
v_lshl_or_b32 v2, v14, 3, v2
v_bfe_u32 v14, v0, 3, 1
v_lshl_or_b32 v2, v14, 2, v2
v_lshlrev_b32 v2, 4, v2
v_and_b32 v11, 0x2f, v0
v_lshlrev_b32 v11, 4, v11
v_bfe_u32 v14, v0, 4, 1
v_lshl_add_u32 v11, v14, 17, v11
s_mov_b32 s{SL}, {f2u(LOG2E):#x}
s_mov_b32 s{SL+1}, {f2u(0.25*LOG2E):#x}
s_mov_b32 s{SL+2}, 0x0000ffff
s_mov_b32 s{SL+3}, 0x0000ffff
s_mov_b32 s{MODE}, 0
s_lshl_b32 s{SX}, s{S_HQ}, 1
s_add_u32 s{SX}, s{SX}, s{PP}
s_lshl_b32 s{SX}, s{SX}, 7
s_lshl_b32 s{T0+1}, s{S_TB}, 1
s_add_u32 s{SX}, s{SX}, s{T0+1}
s_add_u32 s{SX}, s{SX}, s{TT}
s_mul_i32 s{T0+1}, s{S_WAVE}, 6144
s_add_u32 s{T0+1}, s{T0+1}, {L_CMB}
v_lshlrev_b32 v60, 1, v13
v_bfe_u32 v14, v12, 1, 2
v_xor_b32 v60, v60, v14
v_lshlrev_b32 v60, 4, v60
v_lshl_add_u32 v60, v12, 6, v60
v_add_u32 v60, s{T0+1}, v60
v_xor_b32 v61, 16, v60
v_add_u32 v240, s{T0+1}, v1
s_mul_i32 s{T0+1}, s{PP}, 6144
s_add_u32 s{T0+1}, s{T0+1}, {L_CMB}
v_add_u32 v241, s{T0+1}, v1
s_lshl_b32 s{T0+2}, s{TT}, 11
s_add_u32 s{T0+1}, s{T0+1}, s{T0+2}
""")
    tr64_addr(a, 242, 14, T0+1)
    a(f"""
v_lshlrev_b32 v14, 5, v13
v_xor_b32 v242, v242, v14
v_bfe_u32 v14, v0, 3, 1
v_lshlrev_b32 v14, 4, v14
v_xor_b32 v242, v242, v14
""")
    a(f"""
v_bfe_u32 v14, v0, 4, 1
v_xor_b32 v14, s{TT}, v14
v_bfe_i32 v244, v14, 0, 1
v_mov_b32 v245, 0x3f803f80
v_mov_b64 v[42:43], 0
v_xor_b32 v246, s{S_HQ}, v0
v_lshl_add_u32 v246, v0, 3, v246
v_lshlrev_b32 v246, 8, v246
v_bfe_u32 v14, v0, 2, 1
s_mov_b32 s{T0+1}, 0x80008000
v_mul_lo_u32 v41, v14, s{T0+1}
s_lshl_b32 s{T0}, s{S_WAVE}, 9
s_add_u32 s{T0}, s{T0}, {L_QH}
v_lshrrev_b32 v243, 1, v1
v_add_u32 v243, s{T0}, v243
""")
    if P["WBT"]:
        a(f"""
s_and_b32 s{T0}, s{S_ROT}, 7
s_lshl_b32 s{T0}, s{T0}, 2
s_add_u32 s{T0}, s{T0}, s{S_WAVE}
s_mul_i32 s{T0}, s{T0}, {16*3072}
s_lshl_b32 s{T0+1}, s{S_HQ}, 7
s_add_u32 s{T0}, s{T0}, s{T0+1}
v_lshrrev_b32 v14, 2, v0
v_mul_u32_u24 v14, 3072, v14
v_and_b32 v15, 1, v0
v_lshl_add_u32 v14, v15, 6, v14
v_add_u32 v246, s{T0}, v14
v_bfe_u32 v15, v0, 1, 1
v_lshl_add_u32 v247, v15, 10, v246
""")
        WBT = ["global_load_dword v254, v247, s[12:13]", "s_mov_b32 exec_lo, 0x33333333", "s_mov_b32 exec_hi, 0x33333333",
               "global_load_dword v255, v246, s[12:13] offset:2048", "s_mov_b64 exec, -1"]
        if P["WBT"] == 1: a.emit(WBT)
    persist(a, 1, R2, XKB)
    def reads(c):
        b0 = BUF[c & 1]
        o = []
        for step in range(4):
            b = b0 + 16*step
            o.append(f"ds_read_b128 {v(b,4)}, v{XA[step]} offset:{c*8192}")
            for j in range(3):
                ad = WAD[(c >> 1) & 1][j]
                for rd in range(2):
                    o.append(f"ds_read_b64_tr_b16 {v(b+4+4*j+2*rd,2)}, v{ad} offset:{(c&1)*WSLOT+step*6144+rd*512}")
        return o
    def mfmas(c):
        o = []
        for step in range(4):
            b = BUF[c & 1] + 16*step
            for j in range(3):
                x = v(b,4); w = v(b+4+4*j,4); d = v(ACC[j],16)
                cc = "0" if (c == 0 and step == 0) else d
                if j < 2: o.append(f"v_mfma_f32_32x32x16_bf16 {d}, {w}, {x}, {cc}")
                else:     o.append(f"v_mfma_f32_32x32x16_bf16 {d}, {x}, {w}, {cc}")
        return o
    RPG = P["RPG"]
    def body(c):
        m = mfmas(c); r_ = reads(c + 1)
        for i in range(12):
            a(m[i]); a.emit(r_[RPG*i:RPG*i+RPG])
    stamp(a, 1)
    a(f"s_mov_b32 s{CNT}, 0")
    stamp(a, 1, 5)
    a("L_pass:")
    a("s_barrier")
    a.emit(reads(0))
    a("L_pass2:")
    a(f"s_cmp_eq_u32 s{CNT}, 0")
    for c in range(7):
        if c == 0:
            a("s_cbranch_scc0 L_nophi")
            stamp(a, 2, 5)
            a("s_waitcnt vmcnt(2)" if P["WBT"] == 1 else "s_waitcnt vmcnt(0)")
            stamp(a, 3, 5)
            for hd in range(2):
                for rd in range(2):
                    a(f"ds_read_b64_tr_b16 {v(WPHI[hd]+2*rd,2)}, v40 offset:{hd*512+rd*256}")
                    a(f"ds_read_b64_tr_b16 {v(WPHQ[hd]+2*rd,2)}, v40 offset:{8192+hd*512+rd*256}")
            a("ds_read_b64_tr_b16 v[36:37], v19")
            a("ds_read_b64_tr_b16 v[38:39], v19 offset:512")
            a("v_mov_b32 v16, 0")
            for i in range(8):
                a(f"v_dot2_f32_bf16 v16, v{20+i}, v{28+i}, v16")
            a(f"""
v_lshlrev_b32 v18, 2, v13
s_nop 2
v_add_f32_dpp v16, v16, v16 quad_perm:[1,0,3,2] row_mask:0xf bank_mask:0xf
s_nop 1
v_add_f32_dpp v16, v16, v16 quad_perm:[2,3,0,1] row_mask:0xf bank_mask:0xf
s_nop 1
v_add_f32_dpp v16, v16, v16 row_half_mirror row_mask:0xf bank_mask:0xf
s_nop 1
v_add_f32_dpp v16, v16, v16 row_mirror row_mask:0xf bank_mask:0xf
v_mov_b32 v17, v16
s_nop 1
v_permlane16_swap_b32 v16, v17
s_nop 1
v_add_f32 v16, v16, v17
v_mul_f32 v16, {f2u(-LOG2E):#x}, v16
v_exp_f32 v16, v16
s_nop 0
v_add_f32 v16, 1.0, v16
v_rcp_f32 v16, v16
s_waitcnt lgkmcnt(0)
""")
            for i in range(8):
                a(f"v_xor_b32 v{WPHI[0]+i}, v41, v{WPHI[0]+i}")
                a(f"v_xor_b32 v{WPHQ[0]+i}, v41, v{WPHQ[0]+i}")
            a(f"""
buffer_store_dwordx4 v[36:39], v1, {s(S_WS,4)}, s{WD} offen sc1
s_mov_b32 exec_lo, 1
s_mov_b32 exec_hi, 1
buffer_store_dword v16, v18, {s(S_WS,4)}, s{GO} offen sc1
s_mov_b64 exec, -1
""")
            if P["WBT"] == 2: a.emit(WBT)
            stamp(a, 4, 5)
            a("L_nophi:")
        if c == P["SIGC"]:
            a("s_cbranch_scc1 L_nodrain")
            a("s_waitcnt vmcnt(0)")
            a("L_nodrain:")
        a("s_waitcnt lgkmcnt(0)")
        a("s_barrier")
        if c == P["SIGC"]:
            assert 1 <= c <= 5
            a(f"s_cmp_eq_u32 s{CNT}, 1")
            a("s_cbranch_scc1 L_sig1")
            a("L_drained:")
        body(c)
    a("s_waitcnt lgkmcnt(0)")
    a("s_barrier")
    fill = L(VINIT) + ZERO_O + [f"v_add_u32 v{ADDR}, {R2}, v1"]
    m7 = mfmas(7)
    for i in range(12):
        a(m7[i]); a.emit(fill[3*i:3*i+3] if i < 11 else [])
    assert len(fill) <= 33
    a(f"s_cmp_lg_u32 s{CNT}, 0")
    a("s_cbranch_scc1 L_epiB")
    stamp(a, 3)
    PK = 16
    a(f"""
s_add_u32 s{CNT}, s{S_WAVE}, 1
s_xor_b32 s{T0+1}, s{SX}, {XQA*256}
s_lshl_b32 s{T0+1}, s{T0+1}, 10
s_add_u32 s{T0+2}, s{T0+1}, 65536
s_xor_b32 s{T0+3}, s{SX}, {XKA*256}
s_lshl_b32 s{T0+3}, s{T0+3}, 11
s_add_u32 s{T0+3}, s{T0+3}, {WS_KV}
s_add_u32 s{T0+4}, s{T0+3}, 131072
s_xor_b32 s{T0+5}, s{SX}, {XVA*256}
s_lshl_b32 s{T0+5}, s{T0+5}, 11
s_add_u32 s{T0+5}, s{T0+5}, {WS_KV}
""")
    for j in range(2):
        for i in range(4):
            a(f"v_cvt_pk_bf16_f32 v{PK+4*j+i}, v{ACC[j]+8+2*i}, v{ACC[j]+9+2*i}")
    for j in range(2):
        a(f"buffer_store_dwordx4 {v(PK+4*j,4)}, v2, {s(S_WS,4)}, s{T0+3+j} offen sc1")
    for i in range(8):
        a(f"v_cvt_pk_bf16_f32 v{PK+8+i}, v{ACC[2]+2*i}, v{ACC[2]+1+2*i}")
    a(f"buffer_store_dwordx4 {v(PK+8,4)}, v11, {s(S_WS,4)}, s{T0+5} offen offset:1024 sc1")
    a(f"buffer_store_dwordx4 {v(PK+12,4)}, v11, {s(S_WS,4)}, s{T0+5} offen offset:1280 sc1")
    if P["EARLYB"]:
        a("s_barrier")
        a.emit(reads(0))
    for j in range(2):
        for i in range(0, 8, 2):
            a(f"v_pk_mul_f32 {v(ACC[j]+i,2)}, {v(ACC[j]+i,2)}, {s(SL,2)} op_sel:[0,1] op_sel_hi:[1,1]")
        for i in range(4):
            a(f"v_cvt_pk_bf16_f32 v{PK+16+4*j+i}, v{ACC[j]+2*i}, v{ACC[j]+1+2*i}")
    for j in range(2):
        a(f"buffer_store_dwordx4 {v(PK+16+4*j,4)}, v1, {s(S_WS,4)}, s{T0+1+j} offen sc1")
    a(f"global_load_dword v59, v{VZ}, s[22:23] sc1")
    stamp(a, 4)
    a("s_branch L_pass2" if P["EARLYB"] else "s_branch L_pass")
    a("L_epiB:")
    stamp(a, 5); stamp(a, 1, 3)
    PB = 224
    PV = 144
    PKB = [160, 176]; PQB = [192, 208]
    a(f"""
s_xor_b32 s{T0+3}, s{SX}, {XQB*256}
s_lshl_b32 s{T0+3}, s{T0+3}, 11
s_add_u32 s{T0+3}, s{T0+3}, {WS_PHQ}
s_add_u32 s{T0+4}, s{T0+3}, 131072
s_xor_b32 s{T0+1}, s{S_HQ}, {XKB}
s_lshl_b32 s{T0+1}, s{T0+1}, 1
s_add_u32 s{T0+1}, s{T0+1}, s{PP}
s_lshl_b32 s{T0+1}, s{T0+1}, 1
s_add_u32 s{T0+1}, s{T0+1}, s{TT}
s_lshl_b32 s{T0+1}, s{T0+1}, 5
s_add_u32 s{T0+1}, s{T0+1}, s{S_TB}
s_lshl_b32 s{T0+1}, s{T0+1}, 12
s_add_u32 s{T0+1}, s{T0+1}, {WS_KVP}
""")
    for j in range(2):
        for i in range(4, 8):
            a(f"v_cvt_pk_bf16_f32 v{PB+8*j+i}, v{ACC[j]+2*i}, v{ACC[j]+1+2*i}")
    for j in range(2):
        for i in range(4):
            a(f"v_cvt_pk_bf16_f32 v{PB+8*j+i}, v{ACC[j]+2*i}, v{ACC[j]+1+2*i}")
        a(f"v_mfma_f32_32x32x16_bf16 {v(PKB[j],16)}, {v(WPHI[j],4)}, {v(PB+8*j+4,4)}, 0")
    for j in range(2):
        for i in range(4*j, 4*j+4):
            a(f"v_cvt_pk_bf16_f32 v{PV+i}, v{ACC[2]+2*i}, v{ACC[2]+1+2*i}")
        a(f"v_mfma_f32_32x32x16_bf16 {v(PQB[j],16)}, {v(WPHQ[j],4)}, {v(PB+8*j,4)}, 0")
    a.emit(ZSB)
    stamp(a, 2, 3)
    if P["QLATE"]:
        a.emit(rr(softmax16(PKB[0], 64), softmax16(PKB[1], 68)))
        sq = rr(softmax16(PQB[0], 152), softmax16(PQB[1], 156))
    else:
        a("s_nop 9")
        sq = rr(softmax16(PKB[0], 64), softmax16(PKB[1], 68), softmax16(PQB[0], 72), softmax16(PQB[1], 76))
        a.emit([x for x in sq if x != "s_nop 0"])
        sq = []
    stamp(a, 3, 3)
    a(f"ds_write_b128 v240, {v(PV,4)} offset:4096")
    a(f"ds_write_b128 v240, {v(PV+4,4)} offset:5120")
    for j in range(2):
        a(f"ds_write_b128 v60, {v(PKB[j],4)} offset:{j*2048}")
        a(f"ds_write_b128 v61, {v(PKB[j]+4,4)} offset:{j*2048}")
    a(f"""
s_sub_u32 s{T0+2}, s{P_PHQ}, {WS_PHQ + 2048}
s_lshr_b32 s{T0+2}, s{T0+2}, 1
s_add_u32 s{T0}, s{P_OF}, {OBR}
s_lshl_b32 s{P_KVB}, s{S_H}, 17
s_add_u32 s{P_KVB}, s{P_KVB}, {WS_KV}
s_lshl_b32 s{P_KVG}, s{S_WAVE}, 12
s_add_u32 s{P_KVG}, s{P_KVG}, {R2 - LEAD*4096}
s_waitcnt lgkmcnt(0)
""")
    stamp(a, 6); stamp(a, 4, 3)
    AF, VF, KVA = 160, 176, 224
    a(f"""
s_barrier
s_setprio 3
buffer_load_dwordx4 {v(QA,4)}, v1, {s(S_WS,4)}, s{T0+2} offen sc1
buffer_load_dwordx4 {v(QB,4)}, v1, {s(S_WS,4)}, s{T0+2} offen offset:1024 sc1
""")
    for t in range(2):
        for sx in range(2):
            a(f"ds_read_b128 {v(VF+8*t+4*sx,4)}, v241 offset:{t*12288+4096+sx*1024}")
    for t in range(2):
        for sx in range(2):
            for rd in range(2):
                a(f"ds_read_b64_tr_b16 {v(AF+8*t+4*sx+2*rd,2)}, v242 offset:{t*12288+(16*sx+8*rd)*64}")
    a.emit(sq[:36])
    a("s_waitcnt lgkmcnt(0)")
    a(f"""
ds_read_b64 v[38:39], v243
ds_read_b128 {v(KS[0],4)}, v{ADDR}
s_mov_b64 exec, {s(SL+2,2)}
ds_read_b128 {v(VS[0],4)}, v{ADDR} offset:1024
ds_read_b128 {v(VS[0]+4,4)}, v{ADDR} offset:1280
s_mov_b64 exec, -1
""")
    for i in range(16):
        a(f"v_bfi_b32 v{VF+i}, v244, v245, v{VF+i}")
        if i in (7, 11, 15):
            k_ = (i - 7) // 4
            a(f"v_mfma_f32_32x32x16_bf16 {v(KVA,16)}, {v(AF+4*k_,4)}, {v(VF+4*k_,4)}, {'0' if k_ == 0 else v(KVA,16)}")
    a(f"""
s_waitcnt lgkmcnt(0)
v_mfma_f32_32x32x16_bf16 {v(KVA,16)}, {v(AF+12,4)}, {v(VF+12,4)}, {v(KVA,16)}
""")
    a.emit(fm)
    a(f"v_subrev_u32 v{ADDR}, {2*LEAD*2048}, v{ADDR}")
    a("s_waitcnt vmcnt(0)")
    a(f"v_mfma_f32_32x32x16_bf16 {v(SA,16)}, {v(KS[0],4)}, {v(QA,4)}, {v(NMA,16)}")
    stamp(a, 7)
    for q in range(4):
        a(f"buffer_store_dwordx4 {v(KVA+4*q,4)}, v1, {s(S_WS,4)}, s{T0+1} offen offset:{q*1024} sc1")
        a.emit(sq[36+20*q:56+20*q])
    a.emit(sq[116:])
    for j in range(2):
        a(f"buffer_store_dwordx4 {v(PQB[j],4)}, v1, {s(S_WS,4)}, s{T0+3+j} offen sc1")
        a(f"buffer_store_dwordx4 {v(PQB[j]+4,4)}, v1, {s(S_WS,4)}, s{T0+3+j} offen offset:1024 sc1")
    a("s_nop 1")
    stamp(a, 8)
    a(f"s_branch L_slot{LEAD}")

    def e(b, i): return f"v_exp_f32 v{b+i}, v{b+i}"
    def sm(o, vv, p): return f"v_smfmac_f32_32x32x32_bf16 {v(o,16)}, {v(vv,4)}, {v(p,8)}, v{IDX}"
    def slot(base, last=False, bg=None):
        bg = bg or {}
        o = []
        k = [0]
        def ex(b, i):
            o.append(e(b, i))
            o.extend(bg.get(k[0], []))
            k[0] += 1
        for c in range(2):
            n = c ^ 1
            off = base + (c + 1) * 2048
            pf = not (last and c == 1)
            if pf: o.append(f"ds_read_b128 {v(KS[n],4)}, v{ADDR} offset:{off}")
            ex(SA,0); ex(SA,1)
            o.append(sm(OB, VS[n]+4, SB+8))
            if pf:
                o.append(f"s_mov_b64 exec, {s(SL+2,2)}")
                o.append(f"ds_read_b128 {v(VS[n],4)}, v{ADDR} offset:{off+1024}")
                o.append(f"ds_read_b128 {v(VS[n]+4,4)}, v{ADDR} offset:{off+1280}")
                o.append("s_mov_b64 exec, -1")
            ex(SA,2); ex(SA,3)
            o.append(f"v_mfma_f32_32x32x16_bf16 {v(SB,16)}, {v(KS[c],4)}, {v(QB,4)}, {v(NMB,16)}")
            for i in range(4, 10): ex(SA,i)
            o.append(sm(OA, VS[c], SA))
            for i in range(10, 16): ex(SA,i)
            ex(SB,0); ex(SB,1)
            o.append(sm(OA, VS[c]+4, SA+8))
            ex(SB,2); ex(SB,3)
            if pf:
                o.append("s_waitcnt lgkmcnt(0)")
                o.append(f"v_mfma_f32_32x32x16_bf16 {v(SA,16)}, {v(KS[n],4)}, {v(QA,4)}, {v(NMA,16)}")
            for i in range(4, 10): ex(SB,i)
            o.append(sm(OB, VS[c], SB))
            for i in range(10, 16): ex(SB,i)
        return o
    def spread(bg, items, lo, hi):
        n = len(items)
        for i, it in enumerate(items):
            pos = lo + (i * (hi - lo + 1)) // n
            bg.setdefault(pos, []).extend(it if isinstance(it, list) else [it])
    BG = {sl: {} for sl in range(NS)}
    M16 = "0x00ff00ff"
    assert LEAD == 2 and (BD, BA, BW) == (4, 8, 12)
    if not P["NOBD"]: spread(BG[0], kvgrp(P_KVG, 5*4096) + kvgrp(P_KVG, R2 + 3*4096), 0, 19)
    spread(BG[P["CLS"]], [f"buffer_store_dwordx4 v[44:47], v1, {s(S_WS,4)}, s{P_OF} offen sc1",
        [f"s_add_u32 s{T0}, s{P_OF}, {OBR}", f"buffer_store_dwordx4 v[44:47], v1, {s(S_WS,4)}, s{T0} offen sc1"],
        [f"s_cmp_lg_u32 s{KH}, 0", f"s_cselect_b32 exec_lo, 0, {M16}", "s_mov_b32 exec_hi, 0", f"buffer_store_dword v44, v43, {s(S_WS,4)}, s{P_KVT} offen sc1", "s_mov_b64 exec, -1"]], 10, 56)
    spread(BG[BD], kvgrp(P_KVG, 9*4096), 8, 56)
    spread(BG[BA], kvgrp(P_KVG, 13*4096), 14, 38)
    spread(BG[C0+1], [[f"s_cmp_lg_u32 s{KH}, 0", "s_cbranch_scc1 L_skipA", f"buffer_load_dword v41, v{VZ}, {s(S_WS,4)}, s{P_F2} offen sc1", "L_skipA:"]], 56, 56)
    l1a = [f"s_cmp_lg_u32 s{KH}, 0", "s_cbranch_scc1 L_skipB", "s_waitcnt vmcnt(0)", f"v_readfirstlane_b32 s{T0+6}, v41",
           f"s_add_u32 s{T0}, s{P_KVS}, 32768", f"s_add_u32 s{T0+1}, s{P_KVS}, 65536", f"s_add_u32 s{T0+2}, s{P_KVS}, 98304",
           f"s_cmp_lt_u32 s{T0+6}, 32", "s_cbranch_scc1 L_flagspin", "L_flagok:"]
    for p in range(4):
        l1a.append(f"buffer_load_dwordx4 {v(POOL+4*p,4)}, v42, {s(S_WS,4)}, s{P_KVS if p == 0 else T0+p-1} offen sc1")
    l1a.append("L_skipB:")
    spread(BG[C0+2], [l1a], 10, 10)
    l1b = ["s_waitcnt vmcnt(0)", f"s_cmp_lg_u32 s{KH}, 0", "s_cbranch_scc1 L_skipC"]
    for i in range(4): l1b.append(f"v_add_f32 v{POOL+i}, v{POOL+i}, v{POOL+4+i}")
    for i in range(4): l1b.append(f"v_add_f32 v{POOL+8+i}, v{POOL+8+i}, v{POOL+12+i}")
    for i in range(4): l1b.append(f"v_add_f32 v{POOL+i}, v{POOL+i}, v{POOL+8+i}")
    l1b += L(f"""
v_permlane32_swap_b32 v{POOL}, v{POOL+1}
s_nop 0
v_permlane32_swap_b32 v{POOL+2}, v{POOL+3}
v_add_f32 v{POOL}, v{POOL}, v{POOL+1}
s_nop 0
v_add_f32 v{POOL+2}, v{POOL+2}, v{POOL+3}
s_nop 1
v_permlane16_swap_b32 v{POOL}, v{POOL+2}
s_nop 1
v_add_f32 v{POOL}, v{POOL}, v{POOL+2}
s_nop 1
v_add_f32_dpp v{POOL}, v{POOL}, v{POOL} row_ror:8 row_mask:0xf bank_mask:0xf
v_mov_b32 v{POOL+1}, v{POOL}
s_nop 1
v_permlane32_swap_b32 v{POOL}, v{POOL+1}
s_nop 1
v_cvt_pk_bf16_f32 v40, v{POOL}, v{POOL+1}
v_min_u32 v40, -2, v40
s_mov_b32 exec_lo, {M16}
s_mov_b32 exec_hi, 0
buffer_store_dword v40, v43, {s(S_WS,4)}, s{P_KVT} offen sc1
s_mov_b64 exec, -1
L_skipC:
""")
    spread(BG[C0+3], [l1b], 30, 30)
    if BS == BD: assert C0 + 3 < BA
    CB = C0 + 4
    spread(BG[CB], L(f"""
v_and_b32 v42, 7, v0
v_lshlrev_b32 v42, 8, v42
s_mov_b32 s{T0+5}, {WS_FL}
buffer_load_dword v41, v42, {s(S_WS,4)}, s{T0+5} offen sc1
"""), 40, 56)
    KT = OBF
    R = OBF + 16
    ktl = [f"buffer_load_dwordx4 {v(KT,4)}, v1, {s(S_WS,4)}, s{P_KVT} offen sc1",
           f"buffer_load_dwordx4 {v(KT+4,4)}, v1, {s(S_WS,4)}, s{P_KVT} offen offset:1024 sc1"]
    spread(BG[CB+1], [["s_waitcnt vmcnt(0)", "v_cmp_gt_u32 vcc, 32, v41"]], 24, 24)
    spread(BG[CB+1], [["s_cbranch_vccnz L_flag2spin", "L_flag2ok:"],
                      f"buffer_load_dwordx4 {v(PQ,4)}, v1, {s(S_WS,4)}, s{P_PHQ} offen sc1",
                      f"buffer_load_dwordx4 {v(PQ+4,4)}, v1, {s(S_WS,4)}, s{P_PHQ} offen offset:1024 sc1"] + ktl, 28, 60)
    ktc = L(f"""
v_max3_u32 v40, v{KT}, v{KT+1}, v{KT+2}
v_max3_u32 v41, v{KT+3}, v{KT+4}, v{KT+5}
v_max3_u32 v40, v40, v{KT+6}, v{KT+7}
v_max_u32 v40, v40, v41
v_cmp_eq_u32 vcc, -1, v40
""")
    spread(BG[CB+2], [["s_waitcnt vmcnt(0)", ktc[0]]] + ktc[1:], 22, 27)
    spread(BG[CB+2], [["s_cbranch_vccnz L_ktspin", "L_ktok:", f"v_mfma_f32_32x32x16_bf16 {v(R,16)}, {v(KT,4)}, {v(PQ,4)}, 0"]], 30, 30)
    spread(BG[CB+2], [f"v_mfma_f32_32x32x16_bf16 {v(R,16)}, {v(KT+4,4)}, {v(PQ+4,4)}, {v(R,16)}"], 45, 45)
    ob = [f"v_add_f32 v40, {f2u(1e-6):#x}, v{R+8}", "v_rcp_f32 v40, v40"]
    ob += [f"v_mul_f32 v{R+i}, v{R+i}, v40" for i in range(8)]
    ob += [f"v_cvt_pk_bf16_f32 v{KACC+i}, v{R+2*i}, v{R+2*i+1}" for i in range(4)]
    ob += [f"v_min_u32 v{KACC+i}, -2, v{KACC+i}" for i in range(4)]
    ob += [[f"s_add_u32 s{T0}, s{P_OF}, {OBR}", f"buffer_store_dwordx4 {v(KACC,4)}, v1, {s(S_WS,4)}, s{T0} offen sc1"]]
    spread(BG[CB+3], ob, 0, 24)
    wob = []
    for i in range(16):
        g = [f"buffer_load_dwordx4 {v(POOL+4*i,4)}, v1, {s(S_WS,4)}, s{P_WOB} offen offset:{(i&3)*1024} sc1"]
        if i & 3 == 3: g.append(f"s_add_u32 s{P_WOB}, s{P_WOB}, 4096")
        wob.append(g)
    def woa_dma():
        o = []
        for g in range(2):
            o.append([f"s_add_u32 m0, s{P_WOL}, {g*4096}", f"s_add_u32 s{T0+1}, s{P_WOF}, {g*4096}"])
            for i in range(4):
                o.append(f"buffer_load_dwordx4 v1, {s(S_WS,4)}, s{T0+1} offen offset:{i*1024} sc1 lds")
        return o
    if BS == BD:
        spread(BG[CB+3], wob[:4], 30, 60)
        spread(BG[BW], woa_dma(), 2, 60)
        spread(BG[BW+1], wob[4:10], 2, 60)
        spread(BG[BW+2], wob[10:], 2, 60)
        OBS, OBLO, OBHI, PLO, PHI = NS - 2, 4, 60, 4, 40
    else:
        spread(BG[CB+2], wob[:2], 50, 60)
        spread(BG[CB+3], wob[2:7], 28, 60)
        spread(BG[CB+4], wob[7:16], 2, 60)
        spread(BG[CB+5], woa_dma(), 2, 60)
        OBS, OBLO, OBHI, PLO, PHI = NS - 1, 0, 30, 32, 60
    def ob_loads():
        o = [[f"s_add_u32 s{T0}, s{P_OA}, {OBR}", f"s_add_u32 s{T0+1}, s{P_OA}, {OBR+4096}"]]
        for j in range(8):
            o.append(f"buffer_load_dwordx4 {v(OBF+4*j,4)}, v1, {s(S_WS,4)}, s{T0+j//4} offen offset:{(j&3)*1024} sc1")
        return o
    spread(BG[OBS], L(f"""
v_and_b32 v40, 31, v0
v_lshlrev_b32 v40, 2, v40
buffer_load_dword v{GV}, v40, {s(S_WS,4)}, s{P_G} offen sc1
""") + ob_loads(), OBLO, OBHI)
    spread(BG[NS-2], L(f"""
s_and_b32 s{T0+2}, s{S_WAVE}, 3
s_mul_i32 s{T0+3}, s{T0+2}, {EXS}
s_add_u32 s{T0+3}, s{T0+3}, {L_EX}
v_add_u32 v41, s{T0+3}, v1
v_lshlrev_b32 v2, 2, v0
v_add_u32 v42, s{T0+3}, v2
v_and_b32 v2, 12, v2
v_add_u32 v2, {L_FLAG}, v2
s_lshl_b32 s{T0+2}, s{T0+2}, 2
s_add_u32 s{T0+2}, s{T0+2}, {L_FLAG}
v_mov_b32 v43, s{T0+2}
"""), 5, 59)
    XRD = [f"ds_read_b128 {v(NMA,4)}, v41", f"ds_read_b128 {v(NMA+4,4)}, v41 offset:1024", f"ds_read_b32 v{NMA+8}, v42 offset:4096",
           f"ds_read_b128 {v(NMB,4)}, v41 offset:2048", f"ds_read_b128 {v(NMB+4,4)}, v41 offset:3072", f"ds_read_b32 v{NMB+8}, v42 offset:4352"]
    import copy
    BGL = copy.deepcopy(BG[NS-1])
    spread(BGL, [["s_waitcnt vmcnt(9)", "s_barrier"]], P["XB"], P["XB"])
    spread(BGL, XRD, max(P["XB"] + 1, 46), max(P["XB"] + 7, 52))
    bars = sorted(set([BS, BW, NS] + ([] if P["NOBD"] else [BD]) + ([] if P["NOBA"] else [BA])))
    REB = 9
    a(".p2align 6")
    for sl in range(NS):
        a(f"L_slot{sl}:")
        if 1 <= sl - 4 <= 12: stamp(a, sl - 4, 1)
        if sl < 12: stamp(a, sl + 1, 4)
        if sl == BD and BD != BS and not P["NOBD"]:
            a(f"s_cmp_lg_u32 s{KH}, 0")
            a("s_cbranch_scc1 L_nowaitD")
            a("s_waitcnt vmcnt(3)" if P["CLS"] < BD else "s_waitcnt vmcnt(0)")
            a("L_nowaitD:")
            a("s_barrier")
        if sl == BS:
            a("s_waitcnt vmcnt(0)")
            a("s_barrier")
            a(f"s_cmp_eq_u32 s{S_WAVE}, 0")
            a("s_cbranch_scc1 L_sig2")
            a("L_sig2done:")
        if (sl == BW and not P["DIAG"] & 1) or (sl == BA and not P["NOBA"]):
            a("s_barrier")
        if True:
            nb = min(b for b in bars if b > sl)
            r_ = nb - sl - 1
            pb = max([0] + [b for b in bars if b <= sl])
            pr = min(3, r_) if nb - pb <= 5 else {0: 0, 1: 1, 2: 2, 3: 2, 4: 3, 5: 3}[r_]
            if P["DIAG"] & 1 and sl >= BS: pr = 3 if sl < 10 else 2 if sl < 14 else 1 if sl < 16 else 0
            if P["DIAG"] & 2 and sl >= BW: pr = {12: 3, 13: 2, 14: 2, 15: 1, 16: 0}[sl]
            a(f"s_setprio {pr}")
        if sl == REB:
            a(f"v_add_u32 v{ADDR}, {REB*4096}, v{ADDR}")
        if sl == NS - 1:
            a(f"s_cmp_eq_u32 s{KH}, 0")
            a("s_cbranch_scc1 L_last0")
        a.emit(slot((sl - (REB if sl >= REB else 0)) * 4096, sl == NS - 1, BG[sl]))
    a(f"""
L_tail1:
s_setprio 3
s_nop 0
{sm(OB, VS[1]+4, SB+8)}
""")
    stamp(a, 9)
    a(f"""
ds_write_b128 v41, {v(OA,4)}
ds_write_b128 v41, {v(OA+4,4)} offset:1024
ds_write_b32 v42, v{OA+8} offset:4096
s_nop 8
ds_write_b128 v41, {v(OB,4)} offset:2048
ds_write_b128 v41, {v(OB+4,4)} offset:3072
ds_write_b32 v42, v{OB+8} offset:4352
s_waitcnt lgkmcnt(0) vmcnt(9)
s_barrier
s_waitcnt vmcnt(0)
s_branch L_join
.p2align 3
L_last0:
""")
    a.emit(slot((NS - 1 - REB) * 4096, True, BGL))
    a(f"""
L_tail0:
s_mov_b32 s{T0}, 0x7e800000
s_waitcnt lgkmcnt(0)
{sm(OB, VS[1]+4, SB+8)}
""")
    stamp(a, 9)
    a(f"""
s_add_u32 s{T0+1}, s{P_OF}, 32768
s_mov_b32 s{T0+2}, 0
""")
    def fin(o, x, dst, so, lab, bit):
        a(f"s_bitcmp1_b32 s{MODE}, {bit}")
        a(f"v_add_f32 v{o+8}, v{o+8}, v{x+8}")
        for i in range(0, 8, 2):
            a(f"v_pk_add_f32 {v(o+i,2)}, {v(o+i,2)}, {v(x+i,2)}")
        a(f"v_rcp_f32 v{o+10}, v{o+8}")
        a(f"v_add_f32 v38, abs(v{o}), abs(v{o+8})")
        a(f"v_add_f32 v39, abs(v{o+1}), abs(v{o+2})")
        for i in range(3, 8):
            a(f"v_add_f32 v{38+(i+1)%2}, v{38+(i+1)%2}, abs(v{o+i})")
        a("v_add_f32 v38, v38, v39")
        a(f"v_cmp_ngt_f32 vcc, s{T0}, v38")
        for i in range(0, 8, 2):
            a(f"v_pk_mul_f32 {v(o+i,2)}, {v(o+i,2)}, {v(o+10,2)} op_sel_hi:[1,0]")
        for i in range(4):
            a(f"v_cvt_pk_bf16_f32 v{dst+i}, v{o+2*i}, v{o+2*i+1}")
        for i in range(4):
            a(f"v_min_u32 v{dst+i}, -2, v{dst+i}")
        a(f"""
s_cbranch_scc1 {lab}_no
s_cbranch_vccnz {lab}
{lab}_st:
buffer_store_dwordx4 {v(dst,4)}, v1, {s(S_WS,4)}, s{so} offen sc1
{lab}_no:
""")
    fin(OA, NMA, KACC, P_OF, "L_ova", 0)
    stamp(a, 10)
    fin(OB, NMB, PQ, T0+1, "L_ovb", 1)
    stamp(a, 11)
    a(f"""
v_mov_b32 v45, s{T0+2}
ds_write_b32 v43, v45
s_waitcnt lgkmcnt(0) vmcnt(2)
L_join:
s_barrier
ds_read_b32 v45, v2
s_setprio 0
s_waitcnt lgkmcnt(0)
v_cmp_ne_u32 vcc, 0, v45
s_nop 4
s_cbranch_vccnz L_slow
""")
    OFA = 80
    ACCA = [112, 128]
    ACCB = 48
    a(f"""
s_mov_b32 s{T0+7}, 0
s_add_u32 s{T0+2}, s{P_OA}, 4096
L_obchk:
v_max3_u32 v40, v{OBF}, v{OBF+1}, v{OBF+2}
v_max3_u32 v41, v{OBF+3}, v{OBF+4}, v{OBF+5}
""")
    for i in range(6, 30, 4):
        a(f"v_max3_u32 v40, v40, v{OBF+i}, v{OBF+i+1}")
        a(f"v_max3_u32 v41, v41, v{OBF+i+2}, v{OBF+i+3}")
    a(f"""
v_max3_u32 v40, v40, v{OBF+30}, v{OBF+31}
v_max_u32 v40, v40, v41
v_cmp_eq_u32 vcc, -1, v40
s_bfe_u32 s{T0}, s{S_WAVE}, 0x10001
s_lshl_b32 s{T0}, s{T0}, 14
s_lshr_b32 s{T0+1}, s{S_WAVE}, 2
s_mul_i32 s{T0+1}, s{T0+1}, {R2}
s_add_u32 s{T0}, s{T0}, s{T0+1}
v_add_u32 v39, s{T0}, v1
s_cbranch_vccnz L_obretry
L_obok:
""")
    prep = L(f"""
v_and_b32 v12, 31, v0
v_lshrrev_b32 v13, 5, v0
s_lshl_b32 s{T0}, s{S_WAVE}, 13
v_lshlrev_b32 v4, 8, v12
v_add_u32 v4, s{T0}, v4
v_and_b32 v14, 7, v0
v_lshlrev_b32 v15, 2, v13
v_xor_b32 v14, v14, v15
v_lshl_add_u32 v4, v14, 4, v4
v_xor_b32 v5, 16, v4
v_xor_b32 v6, 32, v4
v_xor_b32 v7, 48, v4
v_lshrrev_b32 v14, 3, v0
v_and_b32 v15, 7, v0
v_lshlrev_b32 v8, 1, v15
v_xor_b32 v8, v8, v14
v_lshlrev_b32 v8, 4, v8
v_lshl_add_u32 v8, v14, 8, v8
s_lshl_b32 s{T0}, s{S_WAVE}, 11
v_add_u32 v8, s{T0}, v8
v_xor_b32 v9, 16, v8
v_lshlrev_b32 v10, 10, v14
v_lshl_add_u32 v10, v15, 4, v10
s_and_b32 s{T0}, s2, 31
s_lshl_b32 s{T0}, s{T0}, 16
s_lshl_b32 s{T0+1}, s{S_WAVE}, 13
s_add_u32 s{T0}, s{T0}, s{T0+1}
s_lshr_b32 s{T0+1}, s2, 5
s_lshl_b32 s{T0+1}, s{T0+1}, 7
s_add_u32 s{T0}, s{T0}, s{T0+1}
v_sub_f32 v38, 1.0, v{GV}
s_mov_b32 s{S_X}, s20
s_mov_b32 s{S_X+1}, s21
s_mov_b32 s{S_X+2}, {2048*512*2}
s_mov_b32 s{S_X+3}, 0x20000
""")
    k = 0
    def oa_load(j):
        return f"buffer_load_dwordx4 {v(OFA+4*j,4)}, v1, {s(S_WS,4)}, s{P_OA if j < 4 else T0+2} offen offset:{(j&3)*1024} sc1"
    nl = 0
    for j in range(8):
        for ct in range(2):
            c = v(ACCB+16*ct,16)
            a(f"v_mfma_f32_32x32x16_bf16 {c}, {v(POOL+8*j+4*ct,4)}, {v(OBF+4*j,4)}, {'0' if j==0 else c}")
            a(f"ds_read_b128 {v(POOL+8*j+4*ct,4)}, v39 offset:{(2*j+ct)*1024}")
            if 2*j + ct >= P["OAP"] and nl < 8:
                a(oa_load(nl)); nl += 1
            a.emit(prep[k:k+3]); k += 3
    while nl < 8:
        a(oa_load(nl)); nl += 1
    a("s_nop 11")
    for i in range(0, 32, 2):
        a(f"v_pk_mul_f32 {v(ACCB+i,2)}, {v(ACCB+i,2)}, v[38:39] op_sel_hi:[1,0]")
    a("s_waitcnt lgkmcnt(0)")
    a("s_barrier")
    for j in range(8):
        f = OFA + 4*j
        a(f"""
L_cons{j}:
s_waitcnt vmcnt({7-j})
v_max3_u32 v38, v{f}, v{f+1}, v{f+2}
v_max_u32 v38, v38, v{f+3}
v_cmp_eq_u32 vcc, -1, v38
s_nop 4
s_cbranch_vccnz L_retry{j}
L_go{j}:
""")
        for ct in range(2):
            c = v(ACCA[ct],16)
            a(f"v_mfma_f32_32x32x16_bf16 {c}, {v(POOL+8*j+4*ct,4)}, {v(f,4)}, {'0' if j==0 else c}")
    stamp(a, 12)
    a("s_nop 10")
    for ct in range(2):
        for i in range(0, 16, 2):
            a(f"v_pk_fma_f32 {v(ACCA[ct]+i,2)}, {v(ACCA[ct]+i,2)}, {v(GV,2)}, {v(ACCB+16*ct+i,2)} op_sel_hi:[1,0,1]")
        for q in range(4):
            a(f"ds_write_b128 v{4+q}, {v(ACCA[ct]+4*q,4)} offset:{ct*128}")
    a(f"""
s_waitcnt lgkmcnt(0)
s_barrier
""")
    for kq in range(4):
        a(f"ds_read_b128 {v(16+8*kq,4)}, v8 offset:{kq*16384}")
        a(f"ds_read_b128 {v(20+8*kq,4)}, v9 offset:{kq*16384}")
    for kq in range(1, 4):
        a(f"s_waitcnt lgkmcnt({6-2*kq})")
        for i in range(0, 8, 2):
            a(f"v_pk_add_f32 {v(16+i,2)}, {v(16+i,2)}, {v(16+8*kq+i,2)}")
    for i in range(4):
        a(f"v_cvt_pk_bf16_f32 v{16+i}, v{16+2*i}, v{17+2*i}")
    a(f"buffer_store_dwordx4 v[16:19], v10, {s(S_X,4)}, s{T0} offen sc1")
    stamp_out(a)
    a("L_end:")
    a("s_endpgm")
    for j in range(8):
        a(f"""
L_retry{j}:
s_add_u32 s{T0+7}, s{T0+7}, 1
s_cmp_ge_u32 s{T0+7}, {SPIN}
s_cbranch_scc1 L_go{j}
""")
        if P["RT"] == 1: a(f"s_sleep {P['RSL']}")
        if P["RT"] < 2:
            for jj in range(j, 8): a(oa_load(jj))
            a(f"s_branch L_cons{j}")
        else:
            f = OFA + 4*j
            if P["RSL"]: a(f"s_sleep {P['RSL']}")
            a(oa_load(j))
            a(f"""
s_waitcnt vmcnt(0)
v_max3_u32 v38, v{f}, v{f+1}, v{f+2}
v_max_u32 v38, v38, v{f+3}
v_cmp_eq_u32 vcc, -1, v38
s_nop 4
s_cbranch_vccnz L_retry{j}
""")
            for jj in range(j + 1, 8): a(oa_load(jj))
            a(f"s_branch L_go{j}")
    for bit, lab in enumerate(("L_ova", "L_ovb")):
        a(f"""
{lab}:
s_cmp_lg_u32 s{MODE}, 0
s_cbranch_scc1 {lab}_st
s_bitset1_b32 s{T0+2}, {bit}
s_branch {lab}_no
""")
    a(f"""
L_obretry:
s_add_u32 s{T0+7}, s{T0+7}, 1
s_cmp_ge_u32 s{T0+7}, {SPIN}
s_cbranch_scc1 L_obok
""")
    for g in ob_loads(): a.emit(g if isinstance(g, list) else [g])
    a(f"""
s_waitcnt vmcnt(0)
s_branch L_obchk
L_pollF1:
s_sleep {P["PSL"]}
buffer_load_dword v40, v41, {s(S_WS,4)}, s{T0} offen sc1
s_add_u32 s{T0+7}, s{T0+7}, 1
s_waitcnt vmcnt(0)
v_cmp_gt_u32 vcc, 32, v40
s_cmp_ge_u32 s{T0+7}, {SPIN}
s_cbranch_scc1 L_pollF1_ok
s_nop 2
s_cbranch_vccnz L_pollF1
s_branch L_pollF1_ok
L_sig1:
s_mov_b32 s{T0+7}, 0
L_initpoll:
v_readfirstlane_b32 s{T0+6}, v59
s_cmp_lg_u32 s{T0+6}, 0
s_cbranch_scc1 L_initok
s_sleep 4
global_load_dword v59, v{VZ}, s[22:23] sc1
s_add_u32 s{T0+7}, s{T0+7}, 1
s_waitcnt vmcnt(0)
s_cmp_lt_u32 s{T0+7}, {SPIN}
s_cbranch_scc1 L_initpoll
L_initok:
s_mov_b32 s{T0}, {WS_FL + 2048}
v_mov_b32 v59, 1
s_mov_b64 exec, {7 if P["MIX"] else 1}
buffer_atomic_add v59, v246, {s(S_WS,4)}, s{T0} offen sc1
s_mov_b64 exec, -1
""")
    stamp(a, 2)
    a(f"""
s_branch L_drained
L_sig2:
s_lshl_b32 s{T0}, s{S_HQ}, 8
s_add_u32 s{T0}, s{T0}, {WS_FL}
v_mov_b32 v38, 1
s_mov_b64 exec, 1
buffer_atomic_add v38, v{VZ}, {s(S_WS,4)}, s{T0} offen sc1
s_mov_b64 exec, -1
s_branch L_sig2done
L_flagspin:
s_mov_b32 s{T0+7}, 0
L_flagspin2:
s_sleep 16
buffer_load_dword v41, v{VZ}, {s(S_WS,4)}, s{P_F2} offen sc1
s_add_u32 s{T0+7}, s{T0+7}, 1
s_waitcnt vmcnt(0)
v_readfirstlane_b32 s{T0+6}, v41
s_cmp_ge_u32 s{T0+6}, 32
s_cbranch_scc1 L_flagok
s_cmp_lt_u32 s{T0+7}, {SPIN}
s_cbranch_scc1 L_flagspin2
s_branch L_flagok
L_flag2spin:
s_mov_b32 s{T0+7}, 0
L_flag2spin2:
s_sleep 32
buffer_load_dword v41, v42, {s(S_WS,4)}, s{T0+5} offen sc1
s_add_u32 s{T0+7}, s{T0+7}, 1
s_waitcnt vmcnt(0)
v_cmp_gt_u32 vcc, 32, v41
s_cmp_ge_u32 s{T0+7}, {SPIN}
s_cbranch_scc1 L_flag2ok
s_nop 2
s_cbranch_vccnz L_flag2spin2
s_branch L_flag2ok
L_ktspin:
s_mov_b32 s{T0+7}, 0
L_ktspin2:
s_sleep 8
""")
    a.emit(ktl)
    a(f"""
s_add_u32 s{T0+7}, s{T0+7}, 1
s_waitcnt vmcnt(0)
""")
    a.emit(ktc)
    a(f"""
s_cmp_ge_u32 s{T0+7}, {SPIN}
s_cbranch_scc1 L_ktok
s_nop 2
s_cbranch_vccnz L_ktspin2
s_branch L_ktok
""")
    a(f"""
L_slow:
s_barrier
s_and_b32 s{MODE}, s{T0+2}, 3
s_xor_b32 s{MODE}, s{MODE}, 7
s_lshl_b32 s{T0+1}, s{S_H}, 17
s_add_u32 s{T0+1}, s{T0+1}, {WS_KV}
s_add_u32 s{T0+1}, s{T0+1}, s{P_WOL}
""")
    for g in range(2):
        a(f"s_add_u32 m0, s{P_WOL}, {g*4096}")
        a(f"s_add_u32 s{T0+1}, s{T0+1}, {g*4096}")
        for i in range(4):
            a(f"buffer_load_dwordx4 v1, {s(S_WS,4)}, s{T0+1} offen offset:{i*1024} sc1 lds")
    a(f"""
s_mov_b32 s{CNT}, 0
v_mov_b32 v{ADDR}, v1
v_mov_b32 v38, 0xff800000
v_mov_b32 v39, 0xff800000
v_mov_b32 v47, v41
s_waitcnt vmcnt(0)
s_barrier
L_mloop:
ds_read_b128 {v(KS[0],4)}, v{ADDR}
s_waitcnt lgkmcnt(0)
v_mfma_f32_32x32x16_bf16 {v(SA,16)}, {v(KS[0],4)}, {v(QA,4)}, 0
v_mfma_f32_32x32x16_bf16 {v(SB,16)}, {v(KS[0],4)}, {v(QB,4)}, 0
s_nop 15
""")
    a.emit(rr(maxtree(38, SA, 1), maxtree(39, SB, 1)))
    a(f"""
v_add_u32 v{ADDR}, 2048, v{ADDR}
s_add_u32 s{CNT}, s{CNT}, 1
s_cmp_lt_u32 s{CNT}, 64
s_cbranch_scc1 L_mloop
""")
    a(NEGM)
    a(f"""
s_lshl_b32 s{T0}, s{KH}, 16
v_add_u32 v{ADDR}, s{T0}, v1
s_mov_b32 s{CNT}, 0
ds_read_b128 {v(KS[0],4)}, v{ADDR}
s_mov_b64 exec, {s(SL+2,2)}
ds_read_b128 {v(VS[0],4)}, v{ADDR} offset:1024
ds_read_b128 {v(VS[0]+4,4)}, v{ADDR} offset:1280
s_mov_b64 exec, -1
""")
    a.emit(fm); a.emit(ZERO_O); a.emit(ZSB)
    a(f"""
s_waitcnt lgkmcnt(0)
v_mfma_f32_32x32x16_bf16 {v(SA,16)}, {v(KS[0],4)}, {v(QA,4)}, {v(NMA,16)}
s_nop 15
L_sloop:
""")
    a.emit(slot(0))
    a(f"""
v_add_u32 v{ADDR}, 4096, v{ADDR}
s_add_u32 s{CNT}, s{CNT}, 1
s_cmp_lt_u32 s{CNT}, 16
s_cbranch_scc1 L_sloop
v_mov_b32 v41, v47
s_barrier
""")
    for g in woa_dma(): a.emit(g if isinstance(g, list) else [g])
    a("s_waitcnt vmcnt(0)")
    a(f"s_cmp_lg_u32 s{KH}, 0")
    a("s_cbranch_scc1 L_tail1")
    a("s_barrier")
    a.emit(XRD)
    a("s_branch L_tail0")
    a("L_codeend:")
    a("s_endpgm")
    return kd(NAME, 256, 102)

HEAD = """; gated mix of softmax attention and hedgehog linear attention -- hand-written gfx950 kernel
; @launch grid=(256,1,1) block=(512,1,1) lds=163840
.amdgcn_target "amdgcn-amd-amdhsa--gfx950"
"""
if __name__ == "__main__":
    rt = False
    for o in sys.argv[2:]:
        if o == "st": P["STAMPS"] = 1
        elif o == "rt": rt = True
        else:
            k_, v_ = o.split("="); assert k_.upper() in P, k_; P[k_.upper()] = int(v_)
    a = Asm()
    k = gen(a)
    txt = a.text()
    if rt: txt = txt.replace("s_memtime", "s_memrealtime")
    open(sys.argv[1], "w").write(HEAD + txt + k)
```

```python
import sys, struct
from asmlib import *

NAME = "gated_mix__mha_block__linear_kernel_hedgehog__prompt_kernel"
LOG2E = 1.4426950408889634
def f2u(x): return struct.unpack("<I", struct.pack("<f", x))[0]

WS_QF  = 0
WS_KV  = 2 << 20
WS_PHQ = 6 << 20
WS_KVP = 10 << 20
WS_OF  = 14 << 20
WS_G   = 18 << 20
WS_KVT = (18 << 20) + 65536
WS_WOF = (18 << 20) + 131072
WS_FL  = WS_WOF + (1 << 20)
WS_SIZE = WS_FL + 32 * 256
WS_ST = 20 << 20
OBR = 64 * 32 * 1024

P = dict(STAMPS=0, STMODE=0, SPIN=400000, SIGC=1, LOOK=3, RPG=3, LEAD=2, CPF=1, XAH=1, PSL=2,
         KVS=4, PACE=0, PACK=0, TLB=0, WF=0, WBT=0, MIX=1, RT=0, RSL=4, OAP=8, HOLD=0, MPF=0, Q1=56, Q2=10, Q3=30, Q4=40, Q5=24, Q6=22, SL1=16, SL2=32, KF=0, QCUT=0, NOPK=0, PV=1, PS=5, PLO=12, PRI=0, LAY=0, SWO=0, EF1=0, SIDEK=13, XB=40, NOBD=1, NOBA=1, RLIM=11, EARLYB=0, QLATE=0, PRE=2, L1=9, RFIRST=1, CLS=3, BS=6, BD=4, BA=8, BW=12, DBG=0, ROTC=1, DIAG=0)

S_X, S_WA, S_WB, S_WS, S_MISC = 28, 32, 36, 40, 44
S_WAVE, S_HQ, S_TB, S_ROT = 48, 49, 50, 51
S_H, S_RB = 26, 27
T0 = 52
SL = 60
CNT, MODE, EVM, TT, PP, SX = 64, 65, 66, 67, 68, 69
P_KVG, P_KVB = 66, 67
P_OF, P_F2, P_KVS, P_KVT, P_PHQ, P_WOF, P_WOB, P_OA, P_G, P_WOL, KH = 4, 5, 6, 7, 8, 9, 10, 11, 0, 1, 3

XL, WL, WSLOT = 0, 65536, 24576
L_QH, L_WOS, L_CMB = 52*1024, 156*1024, 112*1024
L_FLAG, L_EX, EXS = 136*1024, 137*1024, 4608

QA, QB, KS, VS, IDX, ADDR = 4, 8, [12, 16], [20, 28], 36, 37
NMA, NMB, SA, SB, OA, OB = 48, 64, 80, 96, 112, 128
POOL, OBF, KACC, PQ, GV = 144, 208, 240, 244, 252
VZ = 3
L = lambda t: [x.strip() for x in t.strip().split("\n") if x.strip()]

def stamp(a, i, mode=0):
    if P["STAMPS"] and mode == P["STMODE"]:
        a(f"s_memtime s[{70+2*i}:{71+2*i}]")
def stamp_out(a):
    if not P["STAMPS"]:
        return
    a("s_mov_b64 exec, -1")
    a("s_memrealtime s[100:101]")
    a("s_waitcnt lgkmcnt(0) vmcnt(0)")
    a("s_memtime s[96:97]")
    a("s_waitcnt lgkmcnt(0)")
    srd(a, 40, 24, 25, WS_ST + (1 << 20))
    a(f"s_lshl_b32 s3, s2, 3")
    a(f"s_add_u32 s3, s3, s{S_WAVE}")
    a(f"s_lshl_b32 s3, s3, 6")
    a(f"s_add_u32 s3, s3, {WS_ST}")
    a("v_mov_b32 v1, 0")
    for i in range(16):
        a(f"v_mov_b32 v2, s{70+2*i}")
        a(f"buffer_store_dword v2, v1, s[40:43], s3 offen offset:{4*i}")
    a("s_waitcnt vmcnt(0)")

def softmax16(b, t):
    o = [f"v_max3_f32 v{t}, v{b}, v{b+1}, v{b+2}"]
    for i in range(3, 15, 2):
        o.append(f"v_max3_f32 v{t}, v{t}, v{b+i}, v{b+i+1}")
    o.append(f"v_max_f32 v{t}, v{t}, v{b+15}")
    o.append(f"v_mul_f32 v{t}, {f2u(-LOG2E):#x}, v{t}")
    for i in range(0, 16, 2):
        o.append(f"v_pk_fma_f32 {v(b+i,2)}, {v(b+i,2)}, {s(SL,2)}, {v(t,2)} op_sel_hi:[1,0,0]")
    for i in range(16):
        o.append(f"v_exp_f32 v{b+i}, v{b+i}")
    o.append(f"v_pk_add_f32 {v(t+2,2)}, {v(b,2)}, {v(b+2,2)}")
    for i in range(4, 16, 2):
        o.append(f"v_pk_add_f32 {v(t+2,2)}, {v(t+2,2)}, {v(b+i,2)}")
    o.append(f"v_add_f32 v{t}, v{t+2}, v{t+3}")
    o.append(f"v_rcp_f32 v{t}, v{t}")
    o.append("s_nop 0")
    for i in range(0, 16, 2):
        o.append(f"v_pk_mul_f32 {v(b+i,2)}, {v(b+i,2)}, {v(t,2)} op_sel_hi:[1,0]")
    for i in range(8):
        o.append(f"v_cvt_pk_bf16_f32 v{b+i}, v{b+2*i}, v{b+2*i+1}")
    return o

def unpk(x):
    import re
    m = re.match(r"v_pk_fma_f32 v\[(\d+):\d+\], v\[(\d+):\d+\], s\[(\d+):\d+\], v\[(\d+):\d+\]", x)
    if m:
        d, a_, s_, t = map(int, m.groups())
        return f"v_fma_f32 v{d}, v{a_}, s{s_}, v{t}\nv_fma_f32 v{d+1}, v{a_+1}, s{s_}, v{t}"
    m = re.match(r"v_pk_add_f32 v\[(\d+):\d+\], v\[(\d+):\d+\], v\[(\d+):\d+\]", x)
    if m:
        d, a_, b = map(int, m.groups())
        return f"v_add_f32 v{d}, v{a_}, v{b}\nv_add_f32 v{d+1}, v{a_+1}, v{b+1}"
    m = re.match(r"v_pk_mul_f32 v\[(\d+):\d+\], v\[(\d+):\d+\], v\[(\d+):\d+\] op_sel_hi:\[1,0\]", x)
    if m:
        d, a_, b = map(int, m.groups())
        return f"v_mul_f32 v{d}, v{a_}, v{b}\nv_mul_f32 v{d+1}, v{a_+1}, v{b}"
    m = re.match(r"v_mov_b64 v\[(\d+):\d+\], v\[(\d+):\d+\]", x)
    if m:
        d, a_ = map(int, m.groups())
        return f"v_mov_b32 v{d}, v{a_}\nv_mov_b32 v{d+1}, v{a_+1}"
    return x

def tr64_addr(a, dst, tmp, base_sgpr):
    a(f"""
v_bfe_u32 v{tmp}, v0, 2, 2
v_lshlrev_b32 v{dst}, 6, v{tmp}
v_lshrrev_b32 v{tmp}, 5, v0
v_lshl_add_u32 v{dst}, v{tmp}, 8, v{dst}
v_and_b32 v{tmp}, 1, v0
v_lshl_add_u32 v{dst}, v{tmp}, 5, v{dst}
v_bfe_u32 v{tmp}, v0, 4, 1
v_lshl_add_u32 v{dst}, v{tmp}, 4, v{dst}
v_bfe_u32 v{tmp}, v0, 1, 1
v_lshl_add_u32 v{dst}, v{tmp}, 3, v{dst}
v_add_u32 v{dst}, s{base_sgpr}, v{dst}
""")

def persist(a, kh, R2, xkb):
    a(f"""
s_mov_b32 s{KH}, {kh}
s_and_b32 s{T0}, s{S_WAVE}, 3
s_lshl_b32 s{T0+1}, s{S_RB}, 3
s_lshl_b32 s{T0+2}, s{T0}, 1
s_add_u32 s{T0+1}, s{T0+1}, s{T0+2}
s_add_u32 s{T0+1}, s{T0+1}, {kh}
s_lshl_b32 s{P_OF}, s{T0+1}, 5
s_add_u32 s{P_OF}, s{P_OF}, s{S_H}
s_lshl_b32 s{P_OF}, s{P_OF}, 10
s_add_u32 s{P_OF}, s{P_OF}, {WS_OF}
s_lshl_b32 s{P_PHQ}, s{S_H}, 6
s_add_u32 s{P_PHQ}, s{P_PHQ}, s{T0+1}
s_lshl_b32 s{P_PHQ}, s{P_PHQ}, 11
s_add_u32 s{P_PHQ}, s{P_PHQ}, {WS_PHQ}
s_lshr_b32 s{P_F2}, s{S_H}, 2
s_xor_b32 s{P_F2}, s{P_F2}, {xkb}
s_lshl_b32 s{P_F2}, s{P_F2}, 8
s_add_u32 s{P_F2}, s{P_F2}, {WS_FL}
s_lshl_b32 s{P_KVS}, s{S_H}, 17
s_lshl_b32 s{T0+2}, s{T0}, 10
s_add_u32 s{P_KVS}, s{P_KVS}, s{T0+2}
s_lshl_b32 s{T0+2}, s{S_RB}, 7
s_add_u32 s{P_KVS}, s{P_KVS}, s{T0+2}
s_add_u32 s{P_KVS}, s{P_KVS}, {WS_KVP}
s_lshl_b32 s{P_KVT}, s{S_H}, 11
s_add_u32 s{P_KVT}, s{P_KVT}, {WS_KVT}
s_lshr_b32 s{P_WOF}, s2, 5
s_lshl_b32 s{P_WOF}, s{P_WOF}, 17
s_add_u32 s{P_WOF}, s{P_WOF}, {WS_WOF}
s_lshr_b32 s{T0+1}, s{S_WAVE}, 1
s_lshl_b32 s{P_WOB}, s{T0+1}, 14
s_add_u32 s{P_WOB}, s{P_WOB}, s{P_WOF}
s_add_u32 s{P_WOB}, s{P_WOB}, 65536
s_lshl_b32 s{T0+2}, s{S_WAVE}, 13
s_add_u32 s{P_WOF}, s{P_WOF}, s{T0+2}
s_and_b32 s{P_OA}, s2, 31
s_lshl_b32 s{P_OA}, s{P_OA}, 1
s_and_b32 s{T0+2}, s{S_WAVE}, 1
s_add_u32 s{P_OA}, s{P_OA}, s{T0+2}
s_lshl_b32 s{P_G}, s{P_OA}, 7
s_add_u32 s{P_G}, s{P_G}, {WS_G}
s_lshl_b32 s{P_OA}, s{P_OA}, 5
s_lshl_b32 s{T0+1}, s{T0+1}, 3
s_add_u32 s{P_OA}, s{P_OA}, s{T0+1}
s_lshl_b32 s{P_OA}, s{P_OA}, 10
s_add_u32 s{P_OA}, s{P_OA}, {WS_OF}
s_lshl_b32 s{P_WOL}, s{T0}, 13
s_add_u32 s{P_WOL}, s{P_WOL}, {R2 if kh == 0 else 0}
""")

def gen(a):
    SPIN, LEAD = P["SPIN"], P["LEAD"]
    XQA, XKA, XVA, XQB, XKB = (1, 0, 2, 0, 3) if P["MIX"] else (0, 0, 0, 0, 0)
    NS = 16 + LEAD // 2
    R2 = 2 * NS * 2048
    BD, BA, BW, BS = P["BD"], P["BA"], P["BW"], P["BS"]
    C0 = BS
    assert BW >= LEAD + 8 and BW >= 8
    a(f""".text
.globl {NAME}
.p2align 8
.type {NAME},@function
{NAME}:
s_cmp_ge_u32 s2, 256
s_cbranch_scc1 L_end
""")
    if P["STAMPS"]:
        for i in range(70, 102): a(f"s_mov_b32 s{i}, 0")
        a("s_memtime s[70:71]")
        a("s_memrealtime s[98:99]")
    a(f"""
s_load_dwordx16 s[4:19], s[0:1], 0
s_load_dwordx4 s[20:23], s[0:1], 64
s_load_dwordx2 s[24:25], s[0:1], 80
v_lshrrev_b32 v1, 6, v0
v_and_b32 v0, 63, v0
v_readfirstlane_b32 s{S_WAVE}, v1
s_lshr_b32 s3, s2, 3
s_and_b32 s{S_TB}, s2, 6
s_lshl_b32 s{S_TB}, s{S_TB}, 2
s_and_b32 s{S_ROT}, s3, 7
s_add_u32 s{S_TB}, s{S_TB}, s{S_ROT}
s_lshr_b32 s3, s3, 3
s_and_b32 s{S_HQ}, s2, 1
s_lshl_b32 s{S_HQ}, s{S_HQ}, 2
s_add_u32 s{S_HQ}, s{S_HQ}, s3
s_and_b32 s{S_H}, s2, 7
s_lshl_b32 s{S_H}, s{S_H}, 2
s_add_u32 s{S_H}, s{S_H}, s3
s_lshl_b32 s3, s3, 1
s_add_u32 s{S_ROT}, s{S_ROT}, s3
s_bfe_u32 s{S_RB}, s2, 0x30003
v_mov_b32 v{VZ}, 0
s_cmp_ge_u32 s{S_WAVE}, 4
s_cbranch_scc0 L_compute
""")
    LW, XO, WO, XM, WM = 64, 65, 66, 67, 68
    a(f"""
s_sub_u32 s{LW}, s{S_WAVE}, 4
v_lshrrev_b32 v1, 3, v0
v_and_b32 v2, 7, v0
v_lshrrev_b32 v8, 4, v0
v_xor_b32 v9, v2, v8
v_lshlrev_b32 v10, 10, v1
v_lshl_add_u32 v4, v9, 4, v10
v_xor_b32 v5, 64, v4
v_add_u32 v5, {8192-1024}, v5
v_mul_u32_u24 v10, 3072, v1
v_and_b32 v8, 1, v8
v_lshlrev_b32 v8, 2, v8
v_xor_b32 v9, v2, v8
v_lshl_add_u32 v6, v9, 4, v10
s_lshl_b32 s{T0}, s{S_HQ}, 7
v_add_u32 v6, s{T0}, v6
v_xor_b32 v11, {XQA*128}, v6
v_xor_b32 v7, {XKA*128+32}, v6
v_xor_b32 v6, {XVA*128}, v6
s_lshl_b32 s{XO}, s{S_TB}, 16
s_lshl_b32 s{T0}, s{LW}, 14
s_add_u32 s{XO}, s{XO}, s{T0}
s_mul_i32 s{WO}, s{LW}, {16*3072}
s_lshl_b32 s{XM}, s{LW}, 11
s_mul_i32 s{WM}, s{LW}, 6144
s_add_u32 s{WM}, s{WM}, {WL}
s_mov_b32 s{S_X+2}, {2048*512*2}
s_mov_b32 s{S_X+3}, 0x20000
s_mov_b32 s{S_WA+2}, {512*1536*2}
s_mov_b32 s{S_WA+3}, 0x20000
s_waitcnt lgkmcnt(0)
s_mov_b32 s{S_X}, s4
s_mov_b32 s{S_X+1}, s5
s_mov_b32 s{S_WA}, s6
s_mov_b32 s{S_WA+1}, s7
""")
    stamp(a, 1)
    issued = []
    paced = [False]
    def pace():
        if P["PACE"] and paced[0]: a(f"s_waitcnt vmcnt({P['PACE']})")
    def issx(c):
        a(f"s_add_u32 s{T0}, s{S_ROT}, {c}")
        a(f"s_and_b32 s{T0}, s{T0}, 7")
        a(f"s_lshl_b32 s{T0}, s{T0}, 7")
        a(f"s_add_u32 m0, s{XM}, {XL + c*8192}")
        a(f"s_add_u32 s{T0}, s{T0}, s{XO}")
        pace()
        a(f"buffer_load_dwordx4 v4, {s(S_X,4)}, s{T0} offen lds")
        pace()
        a(f"buffer_load_dwordx4 v5, {s(S_X,4)}, s{T0} offen offset:1024 lds")
        issued.append((("x", c), 2))
        if c == 0 and P["TLB"]:
            a(f"""
s_lshr_b32 s{T0+2}, s2, 3
s_lshl_b32 s{T0+2}, s{T0+2}, 16
s_min_u32 s{T0+3}, s{T0+2}, {23*65536}
s_load_dword s{T0+4}, s[6:7], s{T0+3}
s_load_dword s{T0+5}, s[12:13], s{T0+3}
s_load_dword s{T0+6}, s[4:5], s{T0+2}
""")
    def issw(c):
        W = S_WA if c < 8 else S_WB
        if c == 8:
            a(f"v_xor_b32 v11, {(XQA^XQB)*128}, v11")
            a(f"v_xor_b32 v7, {(XKA^XKB)*128}, v7")
            a(f"v_xor_b32 v6, {(XVA^XKB)*128}, v6")
        a(f"s_add_u32 s{T0}, s{S_ROT}, {c & 7}")
        a(f"s_and_b32 s{T0}, s{T0}, 7")
        a(f"s_mul_i32 s{T0+1}, s{T0}, {64*3072}")
        for g in range(2):
            a(f"s_add_u32 m0, s{WM}, {(c & 3)*WSLOT + g*3072}")
            a(f"s_add_u32 s{T0+1}, s{T0+1}, " + (f"s{WO}" if g == 0 else f"{8*3072}"))
            pace()
            a(f"buffer_load_dwordx4 v11, {s(W,4)}, s{T0+1} offen lds")
            pace()
            a(f"buffer_load_dwordx4 v7, {s(W,4)}, s{T0+1} offen offset:1024 lds")
            pace()
            a(f"buffer_load_dwordx4 v6, {s(W,4)}, s{T0+1} offen offset:2048 lds")
        issued.append((("w", c), 6))
    nx = [0]
    def iss(c):
        if c == 0 and P["WF"]:
            issw(0); issx(0); nx[0] = 1
        else:
            if c < 8 and nx[0] <= c: issx(nx[0]); nx[0] += 1
            issw(c)
        while nx[0] < 8 and nx[0] <= c + P["XAH"]:
            issx(nx[0]); nx[0] += 1
    def wait_for(c):
        idx = max(i for i, (t, _) in enumerate(issued) if t in (("x", c), ("w", c)))
        a(f"s_waitcnt vmcnt({sum(k for _, k in issued[idx+1:])})")
    iss(0)
    stamp(a, 1, 5)
    srd(a, S_WB, 12, 13, 512*1536*2)
    srd(a, S_WS, 24, 25, WS_SIZE)
    GO, GX, WSRC, WD, WST = 60, 44, 45, 61, 46
    a(f"""
s_cmp_ge_u32 s2, 128
s_cselect_b32 s12, s16, s8
s_cselect_b32 s13, s17, s9
s_mov_b32 s14, {512*512*2}
s_mov_b32 s15, 0x20000
s_mov_b32 s16, s18
s_mov_b32 s17, s19
s_mov_b32 s18, 1024
s_mov_b32 s19, 0x20000
s_lshl_b32 s{GO}, s{S_TB}, 6
s_lshl_b32 s{T0+1}, s{S_HQ}, 3
s_add_u32 s{GO}, s{GO}, s{T0+1}
s_lshl_b32 s{T0+1}, s{LW}, 1
s_add_u32 s{GO}, s{GO}, s{T0+1}
s_and_b32 s{GX}, s{GO}, 63
s_lshl_b32 s{GO}, s{GO}, 2
s_add_u32 s{GO}, s{GO}, {WS_G}
s_bfe_u32 s{T0+1}, s{GX}, 0x30001
v_xor_b32 v8, s{T0+1}, v2
v_lshlrev_b32 v8, 4, v8
v_lshl_add_u32 v8, v1, 13, v8
s_lshl_b32 s{GX}, s{GX}, 7
v_add_u32 v{POOL+16}, s{GX}, v8
v_add_u32 v8, s{S_ROT}, v1
v_and_b32 v8, 7, v8
v_lshlrev_b32 v8, 7, v8
v_lshl_add_u32 v{POOL+17}, v2, 4, v8
v_mov_b32 v{POOL+13}, 0
v_lshrrev_b32 v8, 2, v0
v_lshlrev_b32 v8, 10, v8
v_and_b32 v9, 3, v0
v_lshl_add_u32 v{POOL+18}, v9, 4, v8
v_lshrrev_b32 v{POOL+19}, 5, v0
v_lshlrev_b32 v{POOL+19}, 2, v{POOL+19}
v_mov_b32 v{POOL+12}, 0
s_lshl_b32 s{T0}, s2, 2
s_add_u32 s{T0}, s{T0}, s{LW}
s_bfe_u32 s{T0+1}, s{T0}, 0x50004
s_and_b32 s{T0+2}, s{T0}, 15
s_lshl_b32 s{WSRC}, s{T0+1}, 14
s_lshl_b32 s{T0+3}, s{T0+2}, 6
s_add_u32 s{WSRC}, s{WSRC}, s{T0+3}
s_lshl_b32 s{WST}, s{LW}, 10
s_add_u32 s{WST}, s{WST}, {L_WOS}
s_lshr_b32 s{T0+3}, s{T0+2}, 1
s_lshl_b32 s{WD}, s{T0+3}, 17
s_lshr_b32 s{T0+3}, s{T0}, 9
s_lshl_b32 s{T0+3}, s{T0+3}, 16
s_add_u32 s{WD}, s{WD}, s{T0+3}
s_lshl_b32 s{T0+3}, s{T0+1}, 11
s_add_u32 s{WD}, s{WD}, s{T0+3}
s_and_b32 s{T0+3}, s{T0+2}, 1
s_lshl_b32 s{T0+3}, s{T0+3}, 10
s_add_u32 s{WD}, s{WD}, s{T0+3}
s_add_u32 s{WD}, s{WD}, {WS_WOF}
""")
    tr64_addr(a, POOL+9, 8, WST)
    if P["TLB"]: a("s_waitcnt lgkmcnt(0)")
    persist(a, 0, R2, XKB)
    VINIT = f"""
v_mov_b32 v{IDX}, 0xdddddddd
v_and_b32 v39, 27, v0
v_cmp_eq_u32 vcc, 16, v39
v_mov_b32 v38, 0x3f803f80
v_mov_b64 v[44:45], -1
v_cndmask_b32 v38, 0, v38, vcc
v_mov_b64 v[46:47], -1
v_mov_b32 v39, v38
""" + "\n".join(f"v_mov_b64 {v(VS[0]+i,2)}, v[38:39]" for i in range(0, 16, 2))
    ZERO_O = [f"v_mov_b64 {v(OA+i,2)}, 0" for i in range(0, 32, 2)]
    a(VINIT)
    a.emit(ZERO_O)
    a(f"""
v_lshlrev_b32 v42, 12, v1
v_lshl_add_u32 v42, v2, 4, v42
s_and_b32 s{T0}, s{S_H}, 1
s_lshl_b32 s{T0}, s{T0}, 1
s_xor_b32 s{T0}, s{T0}, s{S_RB}
s_lshl_b32 s{T0}, s{T0}, 7
s_lshr_b32 s{T0+1}, s{LW}, 1
s_lshl_b32 s{T0+1}, s{T0+1}, 10
s_add_u32 s{T0}, s{T0}, s{T0+1}
s_and_b32 s{T0+1}, s{LW}, 1
s_lshl_b32 s{T0+1}, s{T0+1}, 3
s_add_u32 s{T0}, s{T0}, s{T0+1}
v_lshlrev_b32 v43, 4, v2
v_bfe_u32 v8, v0, 4, 1
v_lshl_add_u32 v43, v8, 2, v43
v_add_u32 v43, s{T0}, v43
v_lshlrev_b32 v1, 4, v0
v_mov_b32 v{ADDR}, v1
s_lshl_b32 s{T0}, s{LW}, 9
s_add_u32 s{T0}, s{T0}, {L_QH}
v_lshrrev_b32 v{POOL+11}, 1, v1
v_add_u32 v{POOL+11}, s{T0}, v{POOL+11}
""")
    stamp(a, 2, 5)
    if P["PRE"] >= 2: iss(1)
    stamp(a, 3, 5)
    paced[0] = True
    stamp(a, 2)
    nxt = P["PRE"]
    for k in range(16):
        wait_for(k)
        if k < 3: stamp(a, 4 + 3*k, 5)
        if k == 0: stamp(a, 3)
        if k < 12: stamp(a, k + 1, 2)
        a("s_barrier")
        if k < 3: stamp(a, 5 + 3*k, 5)
        lim = k + P["LOOK"] if k > 0 else 2
        if k == 1: lim = min(lim, P["L1"])
        if k == 7 and P["RFIRST"]:
            a("s_barrier")
            lim = P["RLIM"]
        if k >= 7 and not (k == 7 and P["RFIRST"]): lim = k + 3
        if k in (5, 6) and P['HOLD']: lim = min(lim, 8)
        while nxt < 16 and nxt <= lim:
            iss(nxt); nxt += 1
        if k < 3: stamp(a, 6 + 3*k, 5)
        if P["SWO"] and 2 <= k <= 5:
            if k == 2:
                a("s_add_u32 s62, s12, s45")
                a("s_addc_u32 s63, s13, 0")
            for i in range(4):
                a(f"s_load_dword s47, s[62:63], {(4*(k-2)+i)*1024}")
        if k == 8:
            a(f"ds_read_b128 {v(POOL+20,4)}, v{POOL+16}")
            a(f"ds_read_b128 {v(POOL+24,4)}, v{POOL+16} offset:128")
        if k == 9: a("s_waitcnt lgkmcnt(0)")
        if k == 11:
            a(f"buffer_load_dwordx4 {v(POOL+28,4)}, v{POOL+17}, s[16:19], 0 offen")
            issued.append(("gw", 1))
        if k == P["SIDEK"]:
            a(f"buffer_load_dwordx4 {v(POOL+36,4)}, v{POOL+18}, s[12:15], s45 offen")
            issued.append(("g", 1))
        if k == 14:
            G0 = POOL + 12
            a(f"s_waitcnt vmcnt({sum(n_ for _, n_ in issued[[t for t, _ in issued].index('gw')+1:])})")
            for i in range(4):
                a(f"v_dot2_f32_bf16 v{G0}, v{POOL+20+i}, v{POOL+28+i}, v{G0}")
                a(f"v_dot2_f32_bf16 v{G0+1}, v{POOL+24+i}, v{POOL+28+i}, v{G0+1}")
            a(f"""
s_nop 2
v_permlane32_swap_b32 v{G0}, v{G0+1}
s_nop 1
v_add_f32 v{G0}, v{G0}, v{G0+1}
s_nop 1
v_add_f32_dpp v{G0}, v{G0}, v{G0} quad_perm:[1,0,3,2] row_mask:0xf bank_mask:0xf
s_nop 1
v_add_f32_dpp v{G0}, v{G0}, v{G0} quad_perm:[2,3,0,1] row_mask:0xf bank_mask:0xf
s_nop 1
v_add_f32_dpp v{G0}, v{G0}, v{G0} row_half_mirror row_mask:0xf bank_mask:0xf
s_nop 1
v_add_f32_dpp v{G0}, v{G0}, v{G0} row_mirror row_mask:0xf bank_mask:0xf
v_mov_b32 v{G0+1}, v{G0}
s_nop 1
v_permlane16_swap_b32 v{G0}, v{G0+1}
s_nop 1
v_add_f32 v{G0}, v{G0}, v{G0+1}
v_mul_f32 v{G0}, {f2u(-LOG2E):#x}, v{G0}
v_exp_f32 v{G0}, v{G0}
s_nop 0
v_add_f32 v{G0}, 1.0, v{G0}
v_rcp_f32 v{G0}, v{G0}
""")

        if k == 14:
            a(f"""
v_add_u32 v{POOL+18}, s{WST}, v1
s_lshr_b32 s{T0}, s{S_H}, 2
s_lshl_b32 s{T0}, s{T0}, 8
s_add_u32 s{T0}, s{T0}, {WS_FL + 2048}
v_min_u32 v41, {2 if P["MIX"] else 0}, v0
v_lshlrev_b32 v41, 11, v41
s_sub_u32 s{T0+1}, s{P_PHQ}, {WS_PHQ}
s_lshr_b32 s{T0+1}, s{T0+1}, 1
s_lshl_b32 s{P_KVB}, s{S_H}, 17
s_add_u32 s{P_KVB}, s{P_KVB}, {WS_KV}
s_lshl_b32 s{P_KVG}, s{LW}, 12
s_add_u32 s{T0+3}, s{P_KVG}, {R2 - 4096}
s_cmp_eq_u32 s{LW}, 0
s_cmov_b32 s{T0+3}, 16384
s_mov_b32 s{T0+7}, 0
""")
            if P["EF1"]:
                a(f"buffer_load_dword v40, v41, {s(S_WS,4)}, s{T0} offen sc1")
                issued.append(("f", 1))
        if k == 7 and not P["RFIRST"]:
            a("s_barrier")
            iss(nxt); nxt += 1
    stamp(a, 4)
    def kvgrp(reg, off):
        o = [[f"s_add_u32 m0, s{reg}, {off}", f"s_add_u32 s{T0+4}, m0, s{P_KVB}"]]
        o += [f"buffer_load_dwordx4 v1, {s(S_WS,4)}, s{T0+4} offen offset:{i*1024} sc1 lds" for i in range(4)]
        return o
    def flat(x):
        o = []
        for g in x: o += g if isinstance(g, list) else [g]
        return o
    FIRST = [f"buffer_load_dwordx4 {v(QA,4)}, v1, {s(S_WS,4)}, s{T0+1} offen sc1",
             f"buffer_load_dwordx4 {v(QB,4)}, v1, {s(S_WS,4)}, s{T0+1} offen offset:1024 sc1",
             f"buffer_load_dwordx4 {v(KS[0],4)}, v1, {s(S_WS,4)}, s{P_KVB} offen sc1"] + flat(kvgrp(P_KVG, 0)) + flat(kvgrp(T0+3, 0))
    if not P["EF1"]: a(f"buffer_load_dword v40, v41, {s(S_WS,4)}, s{T0} offen sc1")
    a(f"""
s_waitcnt vmcnt(0)
v_cmp_gt_u32 vcc, 32, v40
s_nop 4
s_cbranch_vccnz L_pollF1
L_pollF1_ok:
""")
    a.emit(FIRST)
    a("L_first_done:")
    stamp(a, 5); stamp(a, 1, 3)
    G0 = POOL + 12
    a(f"""
s_setprio 3
s_waitcnt vmcnt(8)
v_mfma_f32_32x32x16_bf16 {v(SA,16)}, {v(KS[0],4)}, {v(QA,4)}, 0
v_mfma_f32_32x32x16_bf16 {v(SB,16)}, {v(KS[0],4)}, {v(QB,4)}, 0
""")
    if P["NOBD"]: a.emit(flat(kvgrp(P_KVG, 5*4096) + kvgrp(P_KVG, R2 + 3*4096)))
    else: a("s_nop 9")
    a(f"""
s_mov_b32 s{MODE}, 0
s_mov_b32 s{SL+2}, 0x0000ffff
s_mov_b32 s{SL+3}, 0x0000ffff
""")
    def maxtree(dst, b, init=None):
        o = []
        if init is None:
            o.append(f"v_max3_f32 v{dst}, v{b}, v{b+1}, v{b+2}")
            for i in range(3, 15, 2):
                o.append(f"v_max3_f32 v{dst}, v{dst}, v{b+i}, v{b+i+1}")
            o.append(f"v_max_f32 v{dst}, v{dst}, v{b+15}")
        else:
            for i in range(0, 16, 2):
                o.append(f"v_max3_f32 v{dst}, v{dst}, v{b+i}, v{b+i+1}")
        return o
    a.emit(rr(maxtree(38, SA), maxtree(39, SB)))
    NEGM = f"""
v_permlane32_swap_b32 v38, v39
s_nop 1
v_max_f32 v38, v38, v39
v_sub_f32 v38, 0, v38
v_mov_b32 v39, v38
s_nop 1
v_permlane32_swap_b32 v38, v39
"""
    def fill_nm():
        o = [f"v_mov_b32 v40, v38", f"v_mov_b32 v41, v38"]
        o += [f"v_mov_b64 {v(NMA+i,2)}, v[40:41]" for i in range(0, 16, 2)]
        o += [f"v_mov_b32 v38, v39"]
        o += [f"v_mov_b64 {v(NMB+i,2)}, v[38:39]" for i in range(0, 16, 2)]
        return o
    ZSB = [f"v_mov_b64 {v(SB+i,2)}, 0" for i in range(8, 16, 2)]
    a("s_nop 1")
    a(NEGM)
    a(f"""
s_nop 1
v_mov_b64 {v(POOL+14,2)}, v[38:39]
""")
    fm = fill_nm()
    a.emit(fm[:11])
    a.emit(ZSB)
    a(f"v_mfma_f32_32x32x16_bf16 {v(SA,16)}, {v(KS[0],4)}, {v(QA,4)}, {v(NMA,16)}")
    a.emit(fm[11:])
    stamp(a, 2, 3)
    a("s_setprio 0")
    stamp(a, 3, 3)
    a(f"""
ds_write_b64 v{POOL+11}, {v(POOL+14,2)}
s_waitcnt vmcnt(0) lgkmcnt(0)
""")
    stamp(a, 6); stamp(a, 4, 3)
    a(f"""
s_barrier
s_mov_b64 exec, {s(SL+2,2)}
ds_read_b128 {v(VS[0],4)}, v{ADDR} offset:1024
ds_read_b128 {v(VS[0]+4,4)}, v{ADDR} offset:1280
s_mov_b64 exec, -1
""")
    a("s_waitcnt lgkmcnt(0)")
    stamp(a, 8)
    a("s_branch L_slot0")
    a("L_mark_c0:")
    XA = [4, 5, 6, 7]; WAD = [[8, 9, 10], [56, 57, 58]]
    BUF = [112, 176]
    ACC = [64, 80, 96]
    WPHI = [48, 52]
    WPHQ = [248, 252]
    WPK, WPQ, WPM = 36, 37, 32
    a("L_compute:")
    if P["CPF"]:
        a(f"""
s_getpc_b64 s[{T0}:{T0+1}]
L_pc:
s_sub_u32 s{T0}, s{T0}, L_pc-{NAME}
s_subb_u32 s{T0+1}, s{T0+1}, 0
s_lshr_b32 s{T0+2}, s2, 3
s_lshl_b32 s{T0+2}, s{T0+2}, 2
s_add_u32 s{T0+2}, s{T0+2}, s{S_WAVE}
s_lshl_b32 s{T0+2}, s{T0+2}, 8
s_min_u32 s{T0+2}, s{T0+2}, L_codeend-{NAME}-256
s_add_u32 s{T0}, s{T0}, s{T0+2}
s_addc_u32 s{T0+1}, s{T0+1}, 0
s_load_dword s{T0+3}, s[{T0}:{T0+1}], 0
s_load_dword s{T0+4}, s[{T0}:{T0+1}], 64
s_load_dword s{T0+5}, s[{T0}:{T0+1}], 128
s_load_dword s{T0+6}, s[{T0}:{T0+1}], 192
""")
    a(f"""
s_lshr_b32 s{TT}, s{S_WAVE}, 1
s_and_b32 s{PP}, s{S_WAVE}, 1
v_and_b32 v12, 31, v0
v_lshrrev_b32 v13, 5, v0
v_lshlrev_b32 v1, 4, v0
s_waitcnt lgkmcnt(0)
""")
    srd(a, S_MISC, 14, 15, 32*512)
    srd(a, S_WS, 24, 25, WS_SIZE)
    a(f"""
s_or_b32 s{T0+1}, s2, s{S_WAVE}
s_cmp_lg_u32 s{T0+1}, 0
s_cbranch_scc1 L_noinit
v_lshlrev_b32 v8, 8, v0
s_mov_b32 s{T0+1}, {WS_FL}
buffer_store_dword v{VZ}, v8, {s(S_WS,4)}, s{T0+1} offen sc1
s_waitcnt vmcnt(0)
v_mov_b32 v8, 1
s_mov_b64 exec, 1
global_store_dword v{VZ}, v8, s[22:23] sc1
s_mov_b64 exec, -1
L_noinit:
s_lshr_b32 s{T0+2}, s2, 3
s_lshl_b32 s{T0+2}, s{T0+2}, 2
s_add_u32 s{T0+2}, s{T0+2}, s{S_WAVE}
s_lshl_b32 s{T0+2}, s{T0+2}, 7
s_add_u32 s{T0+3}, s{T0+2}, 64
s_load_dword s38, s[14:15], s{T0+2}
s_load_dword s39, s[14:15], s{T0+3}
s_lshr_b32 s{T0+3}, s{T0+2}, 1
s_and_b32 s{T0+3}, s{T0+3}, 0x3c0
s_load_dword s33, s[18:19], s{T0+3}
s_lshl_b32 s{T0+3}, s{T0+2}, 5
s_load_dword s34, s[8:9], s{T0+3}
s_load_dword s35, s[16:17], s{T0+3}
s_lshl_b32 s{T0}, s{S_HQ}, 1
s_add_u32 s{T0}, s{T0}, s{PP}
s_lshl_b32 s{T0}, s{T0}, 10
s_xor_b32 s{WPK}, s{T0}, {XKB*2048}
s_xor_b32 s{WPQ}, s{T0}, {XQB*2048}
s_lshl_b32 s{T0+1}, s{S_WAVE}, 11
s_mov_b32 s{WPM}, s{T0+1}
v_bfe_u32 v14, v0, 2, 2
v_lshlrev_b32 v40, 5, v14
v_lshl_add_u32 v40, v13, 7, v40
v_bfe_u32 v14, v0, 4, 1
v_lshl_add_u32 v40, v14, 4, v40
v_bfe_u32 v14, v0, 1, 1
v_lshl_add_u32 v40, v14, 3, v40
v_add_u32 v40, s{T0+1}, v40
s_lshl_b32 s{T0}, s{TT}, 12
v_lshlrev_b32 v15, 7, v12
v_add_u32 v15, s{T0}, v15
v_bfe_u32 v14, v12, 1, 3
v_xor_b32 v14, v14, v13
v_lshl_add_u32 v{XA[0]}, v14, 4, v15
v_xor_b32 v{XA[1]}, 32, v{XA[0]}
v_xor_b32 v{XA[2]}, 64, v{XA[0]}
v_xor_b32 v{XA[3]}, 96, v{XA[0]}
v_mul_u32_u24 v2, 3072, v13
v_bfe_u32 v14, v0, 2, 2
v_lshl_add_u32 v2, v14, 7, v2
v_bfe_u32 v14, v0, 3, 1
v_xor_b32 v14, s{PP}, v14
v_lshl_add_u32 v2, v14, 6, v2
v_bfe_u32 v14, v0, 4, 1
v_lshl_add_u32 v2, v14, 5, v2
v_and_b32 v15, 3, v0
v_lshl_add_u32 v2, v15, 3, v2
v_add_u32 v10, {WL+2048}, v2
v_lshl_add_u32 v2, v14, 10, v2
v_add_u32 v8, {WL}, v2
v_xor_b32 v9, 32, v8
v_add_u32 v56, {2*WSLOT}, v8
v_add_u32 v57, {2*WSLOT}, v9
v_add_u32 v58, {2*WSLOT}, v10
v_and_b32 v2, 0x33, v0
v_bfe_u32 v14, v0, 2, 1
v_lshl_or_b32 v2, v14, 3, v2
v_bfe_u32 v14, v0, 3, 1
v_lshl_or_b32 v2, v14, 2, v2
v_lshlrev_b32 v2, 4, v2
v_and_b32 v11, 0x2f, v0
v_lshlrev_b32 v11, 4, v11
v_bfe_u32 v14, v0, 4, 1
v_lshl_add_u32 v11, v14, 17, v11
s_mov_b32 s{SL}, {f2u(LOG2E):#x}
s_mov_b32 s{SL+1}, {f2u(0.25*LOG2E):#x}
s_mov_b32 s{SL+2}, 0x0000ffff
s_mov_b32 s{SL+3}, 0x0000ffff
s_mov_b32 s{MODE}, 0
s_lshl_b32 s{SX}, s{S_HQ}, 1
s_add_u32 s{SX}, s{SX}, s{PP}
s_lshl_b32 s{SX}, s{SX}, 7
s_lshl_b32 s{T0+1}, s{S_TB}, 1
s_add_u32 s{SX}, s{SX}, s{T0+1}
s_add_u32 s{SX}, s{SX}, s{TT}
s_mul_i32 s{T0+1}, s{S_WAVE}, 6144
s_add_u32 s{T0+1}, s{T0+1}, {L_CMB}
v_lshlrev_b32 v60, 1, v13
v_bfe_u32 v14, v12, 1, 2
v_xor_b32 v60, v60, v14
v_lshlrev_b32 v60, 4, v60
v_lshl_add_u32 v60, v12, 6, v60
v_add_u32 v60, s{T0+1}, v60
v_xor_b32 v61, 16, v60
v_add_u32 v240, s{T0+1}, v1
s_mul_i32 s{T0+1}, s{PP}, 6144
s_add_u32 s{T0+1}, s{T0+1}, {L_CMB}
v_add_u32 v241, s{T0+1}, v1
s_lshl_b32 s{T0+2}, s{TT}, 11
s_add_u32 s{T0+1}, s{T0+1}, s{T0+2}
""")
    tr64_addr(a, 242, 14, T0+1)
    a(f"""
v_lshlrev_b32 v14, 5, v13
v_xor_b32 v242, v242, v14
v_bfe_u32 v14, v0, 3, 1
v_lshlrev_b32 v14, 4, v14
v_xor_b32 v242, v242, v14
""")
    a(f"""
v_bfe_u32 v14, v0, 4, 1
v_xor_b32 v14, s{TT}, v14
v_bfe_i32 v244, v14, 0, 1
v_mov_b32 v245, 0x3f803f80
v_mov_b64 v[42:43], 0
v_xor_b32 v246, s{S_HQ}, v0
v_lshl_add_u32 v246, v0, 3, v246
v_lshlrev_b32 v246, 8, v246
v_mov_b32 v247, 1
v_bfe_u32 v14, v0, 2, 1
s_mov_b32 s{T0+1}, 0x80008000
v_mul_lo_u32 v41, v14, s{T0+1}
s_lshl_b32 s{T0}, s{S_WAVE}, 9
s_add_u32 s{T0}, s{T0}, {L_QH}
v_lshrrev_b32 v243, 1, v1
v_add_u32 v243, s{T0}, v243
""")
    if P["WBT"]:
        a(f"""
s_and_b32 s{T0}, s{S_ROT}, 7
s_lshl_b32 s{T0}, s{T0}, 2
s_add_u32 s{T0}, s{T0}, s{S_WAVE}
s_mul_i32 s{T0}, s{T0}, {16*3072}
s_lshl_b32 s{T0+1}, s{S_HQ}, 7
s_add_u32 s{T0}, s{T0}, s{T0+1}
v_lshrrev_b32 v14, 2, v0
v_mul_u32_u24 v14, 3072, v14
v_and_b32 v15, 1, v0
v_lshl_add_u32 v14, v15, 6, v14
v_add_u32 v246, s{T0}, v14
v_bfe_u32 v15, v0, 1, 1
v_lshl_add_u32 v247, v15, 10, v246
""")
        WBT = ["global_load_dword v254, v247, s[12:13]", "s_mov_b32 exec_lo, 0x33333333", "s_mov_b32 exec_hi, 0x33333333",
               "global_load_dword v255, v246, s[12:13] offset:2048", "s_mov_b64 exec, -1"]
        if P["WBT"] == 1: a.emit(WBT)
    if P["MPF"]:
        a(f"""
s_lshl_b32 s{T0}, s2, 2
s_add_u32 s{T0}, s{T0}, s{S_WAVE}
s_mul_i32 s{T0}, s{T0}, 1536
s_add_u32 s12, s12, s{T0}
s_addc_u32 s13, s13, 0
""")
        for i in range(0, 24, P["MPF"]):
            a(f"s_load_dword s{38 + (i & 1)}, s[12:13], {64*i}")
    persist(a, 1, R2, XKB)
    def reads(c):
        b0 = BUF[c & 1]
        o = []
        for step in range(4):
            b = b0 + 16*step
            o.append(f"ds_read_b128 {v(b,4)}, v{XA[step]} offset:{c*8192}")
            for j in range(3):
                ad = WAD[(c >> 1) & 1][j]
                for rd in range(2):
                    o.append(f"ds_read_b64_tr_b16 {v(b+4+4*j+2*rd,2)}, v{ad} offset:{(c&1)*WSLOT+step*6144+rd*512}")
        return o
    def mfmas(c):
        o = []
        for step in range(4):
            b = BUF[c & 1] + 16*step
            for j in range(3):
                x = v(b,4); w = v(b+4+4*j,4); d = v(ACC[j],16)
                cc = "0" if (c == 0 and step == 0) else d
                if j < 2: o.append(f"v_mfma_f32_32x32x16_bf16 {d}, {w}, {x}, {cc}")
                else:     o.append(f"v_mfma_f32_32x32x16_bf16 {d}, {x}, {w}, {cc}")
        return o
    RPG = P["RPG"]
    rdp = ["s_waitcnt vmcnt(0)", "s_nop 0"]
    for hd in range(2):
        for rd in range(2):
            rdp.append(f"ds_read_b64_tr_b16 {v(WPHI[hd]+2*rd,2)}, v40 offset:{hd*512+rd*256}")
            rdp.append(f"ds_read_b64_tr_b16 {v(WPHQ[hd]+2*rd,2)}, v40 offset:{1024+hd*512+rd*256}")
    xr = [f"v_xor_b32 v{WPHI[0]+i}, v41, v{WPHI[0]+i}" for i in range(8)] + [f"v_xor_b32 v{WPHQ[0]+i}, v41, v{WPHQ[0]+i}" for i in range(8)]
    def body(c):
        m = mfmas(c); r_ = reads(c + 1)
        if c == 5: r_ = r_ + rdp
        for i in range(12):
            a(m[i]); a.emit(r_[RPG*i:RPG*i+RPG] if not (c == 5 and i == 11) else r_[RPG*i:])
            if c == 6 and i >= 4: a.emit(xr[2*(i-4):2*(i-4)+2])
    stamp(a, 1)
    a(f"s_mov_b32 s{CNT}, 0")
    stamp(a, 1, 5)
    a("L_pass:")
    a("s_barrier")
    a.emit(reads(0))
    a("L_pass2:")
    a(f"s_cmp_eq_u32 s{CNT}, 0")
    for c in range(7):
        if c == P["SIGC"]:
            a("s_cbranch_scc1 L_nodrain")
            a("s_waitcnt vmcnt(0)")
            a("L_nodrain:")
        a("s_waitcnt lgkmcnt(0)")
        a("s_barrier")
        if c == P["SIGC"]:
            assert 0 <= c <= 3
            a(f"""
s_cmp_lg_u32 s{CNT}, 1
s_cbranch_scc1 L_drained
v_readfirstlane_b32 s{T0+6}, v59
s_mov_b32 s{T0}, {WS_FL + 2048}
s_cmp_eq_u32 s{T0+6}, 0
s_cbranch_scc1 L_sig1
L_initok:
s_mov_b64 exec, {7 if P["MIX"] else 1}
buffer_atomic_add v247, v246, {s(S_WS,4)}, s{T0} offen sc1
s_mov_b64 exec, -1
s_nop 0
""")
            stamp(a, 2)
            a("L_drained:")
        if c == 2:
            a(f"""
s_cmp_eq_u32 s{CNT}, 0
s_cbranch_scc1 L_nophi
s_mov_b32 m0, s{WPM}
s_nop 0
buffer_load_dwordx4 v1, {s(S_MISC,4)}, s{WPK} offen lds
s_add_u32 m0, s{WPM}, 1024
s_nop 0
s_nop 0
buffer_load_dwordx4 v1, {s(S_MISC,4)}, s{WPQ} offen lds
L_nophi:
""")
        body(c)
    a("s_waitcnt lgkmcnt(0)")
    a(f"s_cmp_lg_u32 s{CNT}, 0")
    a("s_cbranch_scc1 L_nob16")
    a("s_barrier")
    a("L_nob16:")
    fill = L(VINIT) + ZERO_O + [f"v_add_u32 v{ADDR}, {R2}, v1"]
    m7 = mfmas(7)
    for i in range(12):
        a(m7[i]); a.emit(fill[3*i:3*i+3] if i < 11 else [])
    assert len(fill) <= 33
    a(f"s_cmp_lg_u32 s{CNT}, 0")
    a("s_cbranch_scc1 L_epiB")
    stamp(a, 3)
    PK = 16
    a(f"""
s_add_u32 s{CNT}, s{S_WAVE}, 1
s_xor_b32 s{T0+1}, s{SX}, {XQA*256}
s_lshl_b32 s{T0+1}, s{T0+1}, 10
s_add_u32 s{T0+2}, s{T0+1}, 65536
s_xor_b32 s{T0+3}, s{SX}, {XKA*256}
s_lshl_b32 s{T0+3}, s{T0+3}, 11
s_add_u32 s{T0+3}, s{T0+3}, {WS_KV}
s_add_u32 s{T0+4}, s{T0+3}, 131072
s_xor_b32 s{T0+5}, s{SX}, {XVA*256}
s_lshl_b32 s{T0+5}, s{T0+5}, 11
s_add_u32 s{T0+5}, s{T0+5}, {WS_KV}
""")
    for j in range(2):
        for i in range(4):
            a(f"v_cvt_pk_bf16_f32 v{PK+4*j+i}, v{ACC[j]+8+2*i}, v{ACC[j]+9+2*i}")
    for j in range(2):
        a(f"buffer_store_dwordx4 {v(PK+4*j,4)}, v2, {s(S_WS,4)}, s{T0+3+j} offen sc1")
    for i in range(8):
        a(f"v_cvt_pk_bf16_f32 v{PK+8+i}, v{ACC[2]+2*i}, v{ACC[2]+1+2*i}")
    a(f"buffer_store_dwordx4 {v(PK+8,4)}, v11, {s(S_WS,4)}, s{T0+5} offen offset:1024 sc1")
    a(f"buffer_store_dwordx4 {v(PK+12,4)}, v11, {s(S_WS,4)}, s{T0+5} offen offset:1280 sc1")
    if P["EARLYB"]:
        a("s_barrier")
        a.emit(reads(0))
    for j in range(2):
        for i in range(0, 8, 2):
            a(f"v_pk_mul_f32 {v(ACC[j]+i,2)}, {v(ACC[j]+i,2)}, {s(SL,2)} op_sel:[0,1] op_sel_hi:[1,1]")
        for i in range(4):
            a(f"v_cvt_pk_bf16_f32 v{PK+16+4*j+i}, v{ACC[j]+2*i}, v{ACC[j]+1+2*i}")
    for j in range(2):
        a(f"buffer_store_dwordx4 {v(PK+16+4*j,4)}, v1, {s(S_WS,4)}, s{T0+1+j} offen sc1")
    a(f"global_load_dword v59, v{VZ}, s[22:23] sc1")
    stamp(a, 4)
    a("s_branch L_pass2" if P["EARLYB"] else "s_branch L_pass")
    a("L_epiB:")
    stamp(a, 5); stamp(a, 1, 3)
    PB = 224
    PV = 144
    PKB = [160, 176]; PQB = [192, 208]
    a(f"""
s_xor_b32 s{T0+3}, s{SX}, {XQB*256}
s_lshl_b32 s{T0+3}, s{T0+3}, 11
s_add_u32 s{T0+3}, s{T0+3}, {WS_PHQ}
s_add_u32 s{T0+4}, s{T0+3}, 131072
s_xor_b32 s{T0+1}, s{S_HQ}, {XKB}
s_lshl_b32 s{T0+1}, s{T0+1}, 1
s_add_u32 s{T0+1}, s{T0+1}, s{PP}
s_lshl_b32 s{T0+1}, s{T0+1}, 1
s_add_u32 s{T0+1}, s{T0+1}, s{TT}
s_lshl_b32 s{T0+1}, s{T0+1}, 5
s_add_u32 s{T0+1}, s{T0+1}, s{S_TB}
s_lshl_b32 s{T0+1}, s{T0+1}, 12
s_add_u32 s{T0+1}, s{T0+1}, {WS_KVP}
""")
    for j in range(2):
        for i in range(4, 8):
            a(f"v_cvt_pk_bf16_f32 v{PB+8*j+i}, v{ACC[j]+2*i}, v{ACC[j]+1+2*i}")
    for j in range(2):
        for i in range(4):
            a(f"v_cvt_pk_bf16_f32 v{PB+8*j+i}, v{ACC[j]+2*i}, v{ACC[j]+1+2*i}")
        a(f"v_mfma_f32_32x32x16_bf16 {v(PKB[j],16)}, {v(WPHI[j],4)}, {v(PB+8*j+4,4)}, 0")
    for j in range(2):
        for i in range(4*j, 4*j+4):
            a(f"v_cvt_pk_bf16_f32 v{PV+i}, v{ACC[2]+2*i}, v{ACC[2]+1+2*i}")
        a(f"v_mfma_f32_32x32x16_bf16 {v(PQB[j],16)}, {v(WPHQ[j],4)}, {v(PB+8*j,4)}, 0")
    a.emit(ZSB)
    stamp(a, 2, 3)
    if P["QLATE"]:
        a.emit(rr(softmax16(PKB[0], 64), softmax16(PKB[1], 68)))
        sq = rr(softmax16(PQB[0], 152), softmax16(PQB[1], 156))
        a.emit(sq[:P["QCUT"]]); sq = sq[P["QCUT"]:]
    else:
        a("s_nop 9")
        st = [[x for x in softmax16(b_, t_) if x != "s_nop 0"] for b_, t_ in ((PKB[0], 64), (PKB[1], 68), (PQB[0], 72), (PQB[1], 76))]
        kf = len(st[0]) - P["KF"]
        a.emit(rr(*[x[:kf] for x in st]))
        a.emit(rr(st[0][kf:], st[1][kf:]) if P["KF"] else [])
        late = rr(st[2][kf:], st[3][kf:]) if P["KF"] else []
        sq = []
    stamp(a, 3, 3)
    wr = [f"ds_write_b128 v240, {v(PV,4)} offset:4096", f"ds_write_b128 v240, {v(PV+4,4)} offset:5120"]
    for j in range(2):
        wr.append(f"ds_write_b128 v60, {v(PKB[j],4)} offset:{j*2048}")
        wr.append(f"ds_write_b128 v61, {v(PKB[j]+4,4)} offset:{j*2048}")
    if P["QLATE"]: late = []
    stp = len(late) // 6
    for i in range(6):
        a(wr[i]); a.emit(late[stp*i:stp*(i+1)] if i < 5 else late[stp*5:])
    a(f"""
s_sub_u32 s{T0+2}, s{P_PHQ}, {WS_PHQ + 2048}
s_lshr_b32 s{T0+2}, s{T0+2}, 1
s_add_u32 s{T0}, s{P_OF}, {OBR}
s_lshl_b32 s{P_KVB}, s{S_H}, 17
s_add_u32 s{P_KVB}, s{P_KVB}, {WS_KV}
s_lshl_b32 s{P_KVG}, s{S_WAVE}, 12
s_add_u32 s{P_KVG}, s{P_KVG}, {R2 - LEAD*4096}
s_waitcnt lgkmcnt(0)
""")
    stamp(a, 6); stamp(a, 4, 3)
    AF, VF, KVA = 160, 176, 224
    a(f"""
s_barrier
s_setprio 3
buffer_load_dwordx4 {v(QA,4)}, v1, {s(S_WS,4)}, s{T0+2} offen sc1
buffer_load_dwordx4 {v(QB,4)}, v1, {s(S_WS,4)}, s{T0+2} offen offset:1024 sc1
""")
    for t in range(2):
        for sx in range(2):
            a(f"ds_read_b128 {v(VF+8*t+4*sx,4)}, v241 offset:{t*12288+4096+sx*1024}")
    for t in range(2):
        for sx in range(2):
            for rd in range(2):
                a(f"ds_read_b64_tr_b16 {v(AF+8*t+4*sx+2*rd,2)}, v242 offset:{t*12288+(16*sx+8*rd)*64}")
    a.emit(sq[:36])
    a("s_waitcnt lgkmcnt(0)")
    a(f"""
ds_read_b64 v[38:39], v243
ds_read_b128 {v(KS[0],4)}, v{ADDR}
s_mov_b64 exec, {s(SL+2,2)}
ds_read_b128 {v(VS[0],4)}, v{ADDR} offset:1024
ds_read_b128 {v(VS[0]+4,4)}, v{ADDR} offset:1280
s_mov_b64 exec, -1
""")
    for i in range(16):
        a(f"v_bfi_b32 v{VF+i}, v244, v245, v{VF+i}")
        if i in (7, 11, 15):
            k_ = (i - 7) // 4
            a(f"v_mfma_f32_32x32x16_bf16 {v(KVA,16)}, {v(AF+4*k_,4)}, {v(VF+4*k_,4)}, {'0' if k_ == 0 else v(KVA,16)}")
    a(f"""
s_waitcnt lgkmcnt(0)
v_mfma_f32_32x32x16_bf16 {v(KVA,16)}, {v(AF+12,4)}, {v(VF+12,4)}, {v(KVA,16)}
""")
    a.emit([unpk(x) for x in fm] if P["NOPK"] & 2 else fm)
    a(f"v_subrev_u32 v{ADDR}, {2*LEAD*2048}, v{ADDR}")
    a("s_waitcnt vmcnt(0)")
    a(f"v_mfma_f32_32x32x16_bf16 {v(SA,16)}, {v(KS[0],4)}, {v(QA,4)}, {v(NMA,16)}")
    stamp(a, 7)
    for q in range(4):
        a(f"buffer_store_dwordx4 {v(KVA+4*q,4)}, v1, {s(S_WS,4)}, s{T0+1} offen offset:{q*1024} sc1")
        a.emit(sq[36+20*q:56+20*q])
    a.emit(sq[116:])
    for j in range(2):
        a(f"buffer_store_dwordx4 {v(PQB[j],4)}, v1, {s(S_WS,4)}, s{T0+3+j} offen sc1")
        a(f"buffer_store_dwordx4 {v(PQB[j]+4,4)}, v1, {s(S_WS,4)}, s{T0+3+j} offen offset:1024 sc1")
    a("s_nop 1")
    stamp(a, 8)
    a(f"s_branch L_slot{LEAD}")
    a("L_mark_c1:")

    def e(b, i): return f"v_exp_f32 v{b+i}, v{b+i}"
    def sm(o, vv, p): return f"v_smfmac_f32_32x32x32_bf16 {v(o,16)}, {v(vv,4)}, {v(p,8)}, v{IDX}"
    def slot(base, last=False, bg=None):
        bg = bg or {}
        o = []
        k = [0]
        def ex(b, i):
            o.append(e(b, i))
            o.extend(bg.get(k[0], []))
            k[0] += 1
        for c in range(2):
            n = c ^ 1
            off = base + (c + 1) * 2048
            pf = not (last and c == 1)
            if pf: o.append(f"ds_read_b128 {v(KS[n],4)}, v{ADDR} offset:{off}")
            ex(SA,0); ex(SA,1)
            o.append(sm(OB, VS[n]+4, SB+8))
            vr = [f"s_mov_b64 exec, {s(SL+2,2)}", f"ds_read_b128 {v(VS[n],4)}, v{ADDR} offset:{off+1024}",
                  f"ds_read_b128 {v(VS[n]+4,4)}, v{ADDR} offset:{off+1280}", "s_mov_b64 exec, -1"] if pf else []
            if P["PV"] == 0: o.extend(vr)
            PS, PL = P["PS"], P["PLO"]
            for i in range(2, PS): ex(SA,i)
            o.append(f"v_mfma_f32_32x32x16_bf16 {v(SB,16)}, {v(KS[c],4)}, {v(QB,4)}, {v(NMB,16)}")
            if P["PV"] == 1: o.extend(vr)
            for i in range(PS, PL): ex(SA,i)
            o.append(sm(OA, VS[c], SA))
            for i in range(PL, 16): ex(SA,i)
            ex(SB,0); ex(SB,1)
            o.append(sm(OA, VS[c]+4, SA+8))
            for i in range(2, PS): ex(SB,i)
            if pf:
                o.append("s_waitcnt lgkmcnt(0)")
                o.append(f"v_mfma_f32_32x32x16_bf16 {v(SA,16)}, {v(KS[n],4)}, {v(QA,4)}, {v(NMA,16)}")
            for i in range(PS, PL): ex(SB,i)
            o.append(sm(OB, VS[c], SB))
            for i in range(PL, 16): ex(SB,i)
        return o
    def spread(bg, items, lo, hi):
        n = len(items)
        for i, it in enumerate(items):
            pos = lo + (i * (hi - lo + 1)) // n
            bg.setdefault(pos, []).extend(it if isinstance(it, list) else [it])
    BG = {sl: {} for sl in range(NS)}
    M16 = "0x00ff00ff"
    assert LEAD == 2 and (BD, BA, BW) == (4, 8, 12) and P["NOBD"]
    G0 = POOL + 12
    spread(BG[1], [f"ds_write_b128 v{POOL+18}, {v(POOL+36,4)}"], 30, 30)
    spread(BG[1], [[f"ds_read_b64_tr_b16 {v(POOL,2)}, v{POOL+9}", f"ds_read_b64_tr_b16 {v(POOL+2,2)}, v{POOL+9} offset:512"]], 40, 40)
    spread(BG[1], [f"buffer_store_dwordx4 {v(POOL,4)}, v1, {s(S_WS,4)}, s{WD} offen sc1",
        ["s_mov_b32 exec_lo, 1", "s_mov_b32 exec_hi, 1", f"buffer_store_dword v{G0}, v{POOL+19}, {s(S_WS,4)}, s{GO} offen sc1", "s_mov_b64 exec, -1"]], 58, 62)
    if not P["NOBD"]: spread(BG[0], kvgrp(P_KVG, 5*4096) + kvgrp(P_KVG, R2 + 3*4096), 0, 19)
    spread(BG[P["CLS"]], [f"buffer_store_dwordx4 v[44:47], v1, {s(S_WS,4)}, s{P_OF} offen sc1",
        [f"s_add_u32 s{T0}, s{P_OF}, {OBR}", f"buffer_store_dwordx4 v[44:47], v1, {s(S_WS,4)}, s{T0} offen sc1"],
        [f"s_cmp_lg_u32 s{KH}, 0", f"s_cselect_b32 exec_lo, 0, {M16}", "s_mov_b32 exec_hi, 0", f"buffer_store_dword v44, v43, {s(S_WS,4)}, s{P_KVT} offen sc1", "s_mov_b64 exec, -1"]], 10, 56)
    spread(BG[BD], kvgrp(P_KVG, 9*4096), 8, 56)
    spread(BG[BA], kvgrp(P_KVG, 13*4096), 14, 38)
    spread(BG[C0+1], [[f"s_cmp_lg_u32 s{KH}, 0", "s_cbranch_scc1 L_skipA", f"buffer_load_dword v41, v{VZ}, {s(S_WS,4)}, s{P_F2} offen sc1", "L_skipA:"]], P["Q1"], P["Q1"])
    l1a = [f"s_cmp_lg_u32 s{KH}, 0", "s_cbranch_scc1 L_skipB", "s_waitcnt vmcnt(0)", f"v_readfirstlane_b32 s{T0+6}, v41",
           f"s_add_u32 s{T0}, s{P_KVS}, 32768", f"s_add_u32 s{T0+1}, s{P_KVS}, 65536", f"s_add_u32 s{T0+2}, s{P_KVS}, 98304",
           f"s_cmp_lt_u32 s{T0+6}, 32", "s_cbranch_scc1 L_flagspin", "L_flagok:"]
    for p in range(4):
        l1a.append(f"buffer_load_dwordx4 {v(POOL+4*p,4)}, v42, {s(S_WS,4)}, s{P_KVS if p == 0 else T0+p-1} offen sc1")
    l1a.append("L_skipB:")
    spread(BG[C0+2], [l1a], P["Q2"], P["Q2"])
    l1b = ["s_waitcnt vmcnt(0)", f"s_cmp_lg_u32 s{KH}, 0", "s_cbranch_scc1 L_skipC"]
    for i in range(4): l1b.append(f"v_add_f32 v{POOL+i}, v{POOL+i}, v{POOL+4+i}")
    for i in range(4): l1b.append(f"v_add_f32 v{POOL+8+i}, v{POOL+8+i}, v{POOL+12+i}")
    for i in range(4): l1b.append(f"v_add_f32 v{POOL+i}, v{POOL+i}, v{POOL+8+i}")
    l1b += L(f"""
v_permlane32_swap_b32 v{POOL}, v{POOL+1}
s_nop 0
v_permlane32_swap_b32 v{POOL+2}, v{POOL+3}
v_add_f32 v{POOL}, v{POOL}, v{POOL+1}
s_nop 0
v_add_f32 v{POOL+2}, v{POOL+2}, v{POOL+3}
s_nop 1
v_permlane16_swap_b32 v{POOL}, v{POOL+2}
s_nop 1
v_add_f32 v{POOL}, v{POOL}, v{POOL+2}
s_nop 1
v_add_f32_dpp v{POOL}, v{POOL}, v{POOL} row_ror:8 row_mask:0xf bank_mask:0xf
v_mov_b32 v{POOL+1}, v{POOL}
s_nop 1
v_permlane32_swap_b32 v{POOL}, v{POOL+1}
s_nop 1
v_cvt_pk_bf16_f32 v40, v{POOL}, v{POOL+1}
v_min_u32 v40, -2, v40
s_mov_b32 exec_lo, {M16}
s_mov_b32 exec_hi, 0
buffer_store_dword v40, v43, {s(S_WS,4)}, s{P_KVT} offen sc1
s_mov_b64 exec, -1
L_skipC:
""")
    spread(BG[C0+3], [l1b], P["Q3"], P["Q3"])
    if BS == BD: assert C0 + 3 < BA
    CB = C0 + 4
    spread(BG[CB], L(f"""
v_and_b32 v42, 7, v0
v_lshlrev_b32 v42, 8, v42
s_mov_b32 s{T0+5}, {WS_FL}
buffer_load_dword v41, v42, {s(S_WS,4)}, s{T0+5} offen sc1
"""), P["Q4"], P["Q4"] + 16)
    KT = OBF
    R = OBF + 16
    ktl = [f"buffer_load_dwordx4 {v(KT,4)}, v1, {s(S_WS,4)}, s{P_KVT} offen sc1",
           f"buffer_load_dwordx4 {v(KT+4,4)}, v1, {s(S_WS,4)}, s{P_KVT} offen offset:1024 sc1"]
    spread(BG[CB+1], [["s_waitcnt vmcnt(0)", "v_cmp_gt_u32 vcc, 32, v41"]], P["Q5"], P["Q5"])
    spread(BG[CB+1], [["s_cbranch_vccnz L_flag2spin", "L_flag2ok:"],
                      f"buffer_load_dwordx4 {v(PQ,4)}, v1, {s(S_WS,4)}, s{P_PHQ} offen sc1",
                      f"buffer_load_dwordx4 {v(PQ+4,4)}, v1, {s(S_WS,4)}, s{P_PHQ} offen offset:1024 sc1"] + ktl, P["Q5"] + 4, 60)
    ktc = L(f"""
v_max3_u32 v40, v{KT}, v{KT+1}, v{KT+2}
v_max3_u32 v41, v{KT+3}, v{KT+4}, v{KT+5}
v_max3_u32 v40, v40, v{KT+6}, v{KT+7}
v_max_u32 v40, v40, v41
v_cmp_eq_u32 vcc, -1, v40
""")
    q6 = P["Q6"]
    spread(BG[CB+2], [["s_waitcnt vmcnt(0)", ktc[0]]] + ktc[1:], q6, q6 + 5)
    spread(BG[CB+2], [["s_cbranch_vccnz L_ktspin", "L_ktok:", f"v_mfma_f32_32x32x16_bf16 {v(R,16)}, {v(KT,4)}, {v(PQ,4)}, 0"]], q6 + 8, q6 + 8)
    m2 = q6 + 23
    spread(BG[CB+2 + m2 // 64], [f"v_mfma_f32_32x32x16_bf16 {v(R,16)}, {v(KT+4,4)}, {v(PQ+4,4)}, {v(R,16)}"], m2 % 64, m2 % 64)
    o0 = max(0, m2 + 13 - 64)
    ob = [f"v_add_f32 v40, {f2u(1e-6):#x}, v{R+8}", "v_rcp_f32 v40, v40"]
    ob += [f"v_mul_f32 v{R+i}, v{R+i}, v40" for i in range(8)]
    ob += [f"v_cvt_pk_bf16_f32 v{KACC+i}, v{R+2*i}, v{R+2*i+1}" for i in range(4)]
    ob += [f"v_min_u32 v{KACC+i}, -2, v{KACC+i}" for i in range(4)]
    ob += [[f"s_add_u32 s{T0}, s{P_OF}, {OBR}", f"buffer_store_dwordx4 {v(KACC,4)}, v1, {s(S_WS,4)}, s{T0} offen sc1"]]
    spread(BG[CB+3], ob, o0, o0 + 24)
    wob = []
    for i in range(16):
        g = [f"buffer_load_dwordx4 {v(POOL+4*i,4)}, v1, {s(S_WS,4)}, s{P_WOB} offen offset:{(i&3)*1024} sc1"]
        if i & 3 == 3: g.append(f"s_add_u32 s{P_WOB}, s{P_WOB}, 4096")
        wob.append(g)
    def woa_dma():
        o = []
        for g in range(2):
            o.append([f"s_add_u32 m0, s{P_WOL}, {g*4096}", f"s_add_u32 s{T0+1}, s{P_WOF}, {g*4096}"])
            for i in range(4):
                o.append(f"buffer_load_dwordx4 v1, {s(S_WS,4)}, s{T0+1} offen offset:{i*1024} sc1 lds")
        return o
    if BS == BD:
        spread(BG[CB+3], wob[:4], 30, 60)
        spread(BG[BW], woa_dma(), 2, 60)
        spread(BG[BW+1], wob[4:10], 2, 60)
        spread(BG[BW+2], wob[10:], 2, 60)
        OBS, OBLO, OBHI, PLO, PHI = NS - 2, 4, 60, 4, 40
    else:
        spread(BG[CB+2], wob[:2], 62, 63)
        spread(BG[CB+3], wob[2:7], 28, 60)
        spread(BG[CB+4], wob[7:16], 2, 60)
        spread(BG[CB+5], woa_dma(), 2, 60)
        OBS, OBLO, OBHI, PLO, PHI = NS - 1, 0, 30, 32, 60
    def ob_loads():
        o = [[f"s_add_u32 s{T0}, s{P_OA}, {OBR}", f"s_add_u32 s{T0+1}, s{P_OA}, {OBR+4096}"]]
        for j in range(8):
            o.append(f"buffer_load_dwordx4 {v(OBF+4*j,4)}, v1, {s(S_WS,4)}, s{T0+j//4} offen offset:{(j&3)*1024} sc1")
        return o
    spread(BG[OBS], L(f"""
v_and_b32 v40, 31, v0
v_lshlrev_b32 v40, 2, v40
buffer_load_dword v{GV}, v40, {s(S_WS,4)}, s{P_G} offen sc1
""") + ob_loads(), OBLO, OBHI)
    spread(BG[NS-2], L(f"""
s_and_b32 s{T0+2}, s{S_WAVE}, 3
s_mul_i32 s{T0+3}, s{T0+2}, {EXS}
s_add_u32 s{T0+3}, s{T0+3}, {L_EX}
v_add_u32 v41, s{T0+3}, v1
v_lshlrev_b32 v2, 2, v0
v_add_u32 v42, s{T0+3}, v2
v_and_b32 v2, 12, v2
v_add_u32 v2, {L_FLAG}, v2
s_lshl_b32 s{T0+2}, s{T0+2}, 2
s_add_u32 s{T0+2}, s{T0+2}, {L_FLAG}
v_mov_b32 v43, s{T0+2}
"""), 5, 59)
    XRD = [f"ds_read_b128 {v(NMA,4)}, v41", f"ds_read_b128 {v(NMA+4,4)}, v41 offset:1024", f"ds_read_b32 v{NMA+8}, v42 offset:4096",
           f"ds_read_b128 {v(NMB,4)}, v41 offset:2048", f"ds_read_b128 {v(NMB+4,4)}, v41 offset:3072", f"ds_read_b32 v{NMB+8}, v42 offset:4352"]
    import copy
    BGL = copy.deepcopy(BG[NS-1])
    spread(BGL, [["s_waitcnt vmcnt(9)", "s_barrier"]], P["XB"], P["XB"])
    spread(BGL, XRD, max(P["XB"] + 1, 46), max(P["XB"] + 7, 52))
    bars = sorted(set([BS, BW, NS] + ([] if P["NOBD"] else [BD]) + ([] if P["NOBA"] else [BA])))
    REB = 9
    a(".p2align 6")
    for sl in range(NS):
        a(f"L_slot{sl}:")
        if 1 <= sl - 4 <= 12: stamp(a, sl - 4, 1)
        if sl < 12: stamp(a, sl + 1, 4)
        if sl == BD and BD != BS and not P["NOBD"]:
            a(f"s_cmp_lg_u32 s{KH}, 0")
            a("s_cbranch_scc1 L_nowaitD")
            a("s_waitcnt vmcnt(3)" if P["CLS"] < BD else "s_waitcnt vmcnt(0)")
            a("L_nowaitD:")
            a("s_barrier")
        if sl == BS:
            a("s_waitcnt vmcnt(0)")
            a("s_barrier")
            a(f"""
s_cmp_lg_u32 s{S_WAVE}, 0
s_cbranch_scc1 L_sig2done
s_lshl_b32 s{T0}, s{S_HQ}, 8
s_add_u32 s{T0}, s{T0}, {WS_FL}
v_mov_b32 v38, 1
s_mov_b64 exec, 1
buffer_atomic_add v38, v{VZ}, {s(S_WS,4)}, s{T0} offen sc1
s_mov_b64 exec, -1
L_sig2done:
""")
        if (sl == BW and not P["DIAG"] & 1) or (sl == BA and not P["NOBA"]):
            a("s_barrier")
        if True:
            nb = min(b for b in bars if b > sl)
            r_ = nb - sl - 1
            pb = max([0] + [b for b in bars if b <= sl])
            pr = min(3, r_) if nb - pb <= 5 else {0: 0, 1: 1, 2: 2, 3: 2, 4: 3, 5: 3}[r_]
            if P["PRI"] == 1 and nb - pb > 5: pr = {0: 0, 1: 0, 2: 1, 3: 2, 4: 2, 5: 3}[r_]
            if P["PRI"] == 2 and nb - pb > 5: pr = {0: 0, 1: 1, 2: 1, 3: 2, 4: 2, 5: 3}[r_]
            if P["PRI"] == 3: pr = (r_ & 1) * 2 if True else pr
            if P["PRI"] == 4 and nb - pb > 5: pr = {0: 0, 1: 1, 2: 2, 3: 3, 4: 3, 5: 3}[r_]
            if P["DIAG"] & 1 and sl >= BS: pr = 3 if sl < 10 else 2 if sl < 14 else 1 if sl < 16 else 0
            if P["DIAG"] & 2 and sl >= BW: pr = {12: 3, 13: 2, 14: 2, 15: 1, 16: 0}[sl]
            a(f"s_setprio {pr}")
        if sl == REB:
            a(f"v_add_u32 v{ADDR}, {REB*4096}, v{ADDR}")
        if sl == NS - 1:
            a(f"s_cmp_eq_u32 s{KH}, 0")
            a("s_cbranch_scc1 L_last0")
        a.emit(slot((sl - (REB if sl >= REB else 0)) * 4096, sl == NS - 1, BG[sl]))
    a(f"""
L_tail1:
s_setprio 3
s_nop 0
{sm(OB, VS[1]+4, SB+8)}
""")
    stamp(a, 9)
    a(f"""
ds_write_b128 v41, {v(OA,4)}
ds_write_b128 v41, {v(OA+4,4)} offset:1024
ds_write_b32 v42, v{OA+8} offset:4096
s_nop 8
ds_write_b128 v41, {v(OB,4)} offset:2048
ds_write_b128 v41, {v(OB+4,4)} offset:3072
ds_write_b32 v42, v{OB+8} offset:4352
s_waitcnt lgkmcnt(0) vmcnt(9)
s_barrier
s_waitcnt vmcnt(0)
s_branch L_join
.p2align 3
L_last0:
""")
    a.emit(slot((NS - 1 - REB) * 4096, True, BGL))
    a(f"""
L_tail0:
s_mov_b32 s{T0}, 0x7e800000
s_waitcnt lgkmcnt(0)
{sm(OB, VS[1]+4, SB+8)}
""")
    stamp(a, 9)
    a(f"""
s_add_u32 s{T0+1}, s{P_OF}, 32768
s_mov_b32 s{T0+2}, 0
""")
    def fin(o, x, dst, so, lab, bit):
        a(f"s_bitcmp1_b32 s{MODE}, {bit}")
        a(f"v_add_f32 v{o+8}, v{o+8}, v{x+8}")
        for i in range(0, 8, 2):
            a(f"v_pk_add_f32 {v(o+i,2)}, {v(o+i,2)}, {v(x+i,2)}")
        a(f"v_rcp_f32 v{o+10}, v{o+8}")
        a(f"v_add_f32 v38, abs(v{o}), abs(v{o+8})")
        a(f"v_add_f32 v39, abs(v{o+1}), abs(v{o+2})")
        for i in range(3, 8):
            a(f"v_add_f32 v{38+(i+1)%2}, v{38+(i+1)%2}, abs(v{o+i})")
        a("v_add_f32 v38, v38, v39")
        a(f"v_cmp_ngt_f32 vcc, s{T0}, v38")
        for i in range(0, 8, 2):
            a(f"v_pk_mul_f32 {v(o+i,2)}, {v(o+i,2)}, {v(o+10,2)} op_sel_hi:[1,0]")
        for i in range(4):
            a(f"v_cvt_pk_bf16_f32 v{dst+i}, v{o+2*i}, v{o+2*i+1}")
        for i in range(4):
            a(f"v_min_u32 v{dst+i}, -2, v{dst+i}")
        a(f"""
s_cbranch_scc1 {lab}_no
s_cbranch_vccnz {lab}
{lab}_st:
buffer_store_dwordx4 {v(dst,4)}, v1, {s(S_WS,4)}, s{so} offen sc1
{lab}_no:
""")
    fin(OA, NMA, KACC, P_OF, "L_ova", 0)
    stamp(a, 10)
    fin(OB, NMB, PQ, T0+1, "L_ovb", 1)
    stamp(a, 11)
    a(f"""
v_mov_b32 v45, s{T0+2}
ds_write_b32 v43, v45
s_waitcnt lgkmcnt(0) vmcnt(2)
L_join:
s_barrier
ds_read_b32 v45, v2
s_setprio 0
s_waitcnt lgkmcnt(0)
v_cmp_ne_u32 vcc, 0, v45
s_nop 4
s_cbranch_vccnz L_slow
""")
    OFA = 80
    ACCA = [112, 128]
    ACCB = 48
    a(f"""
s_mov_b32 s{T0+7}, 0
s_add_u32 s{T0+2}, s{P_OA}, 4096
L_obchk:
v_max3_u32 v40, v{OBF}, v{OBF+1}, v{OBF+2}
v_max3_u32 v41, v{OBF+3}, v{OBF+4}, v{OBF+5}
""")
    for i in range(6, 30, 4):
        a(f"v_max3_u32 v40, v40, v{OBF+i}, v{OBF+i+1}")
        a(f"v_max3_u32 v41, v41, v{OBF+i+2}, v{OBF+i+3}")
    a(f"""
v_max3_u32 v40, v40, v{OBF+30}, v{OBF+31}
v_max_u32 v40, v40, v41
v_cmp_eq_u32 vcc, -1, v40
s_bfe_u32 s{T0}, s{S_WAVE}, 0x10001
s_lshl_b32 s{T0}, s{T0}, 14
s_lshr_b32 s{T0+1}, s{S_WAVE}, 2
s_mul_i32 s{T0+1}, s{T0+1}, {R2}
s_add_u32 s{T0}, s{T0}, s{T0+1}
v_add_u32 v39, s{T0}, v1
s_cbranch_vccnz L_obretry
L_obok:
""")
    prep = L(f"""
v_and_b32 v12, 31, v0
v_lshrrev_b32 v13, 5, v0
s_lshl_b32 s{T0}, s{S_WAVE}, 13
v_lshlrev_b32 v4, 8, v12
v_add_u32 v4, s{T0}, v4
v_and_b32 v14, 7, v0
v_lshlrev_b32 v15, 2, v13
v_xor_b32 v14, v14, v15
v_lshl_add_u32 v4, v14, 4, v4
v_xor_b32 v5, 16, v4
v_xor_b32 v6, 32, v4
v_xor_b32 v7, 48, v4
v_lshrrev_b32 v14, 3, v0
v_and_b32 v15, 7, v0
v_lshlrev_b32 v8, 1, v15
v_xor_b32 v8, v8, v14
v_lshlrev_b32 v8, 4, v8
v_lshl_add_u32 v8, v14, 8, v8
s_lshl_b32 s{T0}, s{S_WAVE}, 11
v_add_u32 v8, s{T0}, v8
v_xor_b32 v9, 16, v8
v_lshlrev_b32 v10, 10, v14
v_lshl_add_u32 v10, v15, 4, v10
s_and_b32 s{T0}, s2, 31
s_lshl_b32 s{T0}, s{T0}, 16
s_lshl_b32 s{T0+1}, s{S_WAVE}, 13
s_add_u32 s{T0}, s{T0}, s{T0+1}
s_lshr_b32 s{T0+1}, s2, 5
s_lshl_b32 s{T0+1}, s{T0+1}, 7
s_add_u32 s{T0}, s{T0}, s{T0+1}
v_sub_f32 v38, 1.0, v{GV}
s_mov_b32 s{S_X}, s20
s_mov_b32 s{S_X+1}, s21
s_mov_b32 s{S_X+2}, {2048*512*2}
s_mov_b32 s{S_X+3}, 0x20000
""")
    k = 0
    def oa_load(j):
        return f"buffer_load_dwordx4 {v(OFA+4*j,4)}, v1, {s(S_WS,4)}, s{P_OA if j < 4 else T0+2} offen offset:{(j&3)*1024} sc1"
    nl = 0
    for j in range(8):
        for ct in range(2):
            c = v(ACCB+16*ct,16)
            a(f"v_mfma_f32_32x32x16_bf16 {c}, {v(POOL+8*j+4*ct,4)}, {v(OBF+4*j,4)}, {'0' if j==0 else c}")
            a(f"ds_read_b128 {v(POOL+8*j+4*ct,4)}, v39 offset:{(2*j+ct)*1024}")
            if 2*j + ct >= P["OAP"] and nl < 8:
                a(oa_load(nl)); nl += 1
            a.emit(prep[k:k+3]); k += 3
    while nl < 8:
        a(oa_load(nl)); nl += 1
    a("s_nop 11")
    for i in range(0, 32, 2):
        a(f"v_pk_mul_f32 {v(ACCB+i,2)}, {v(ACCB+i,2)}, v[38:39] op_sel_hi:[1,0]")
    a("s_waitcnt lgkmcnt(0)")
    a("s_barrier")
    for j in range(8):
        f = OFA + 4*j
        a(f"""
L_cons{j}:
s_waitcnt vmcnt({7-j})
v_max3_u32 v38, v{f}, v{f+1}, v{f+2}
v_max_u32 v38, v38, v{f+3}
v_cmp_eq_u32 vcc, -1, v38
s_nop 4
s_cbranch_vccnz L_retry{j}
L_go{j}:
""")
        for ct in range(2):
            c = v(ACCA[ct],16)
            a(f"v_mfma_f32_32x32x16_bf16 {c}, {v(POOL+8*j+4*ct,4)}, {v(f,4)}, {'0' if j==0 else c}")
    stamp(a, 12)
    a("s_nop 10")
    for ct in range(2):
        for i in range(0, 16, 2):
            a(f"v_pk_fma_f32 {v(ACCA[ct]+i,2)}, {v(ACCA[ct]+i,2)}, {v(GV,2)}, {v(ACCB+16*ct+i,2)} op_sel_hi:[1,0,1]")
        for q in range(4):
            a(f"ds_write_b128 v{4+q}, {v(ACCA[ct]+4*q,4)} offset:{ct*128}")
    a(f"""
s_waitcnt lgkmcnt(0)
s_barrier
""")
    for kq in range(4):
        a(f"ds_read_b128 {v(16+8*kq,4)}, v8 offset:{kq*16384}")
        a(f"ds_read_b128 {v(20+8*kq,4)}, v9 offset:{kq*16384}")
    for kq in range(1, 4):
        a(f"s_waitcnt lgkmcnt({6-2*kq})")
        for i in range(0, 8, 2):
            a(f"v_pk_add_f32 {v(16+i,2)}, {v(16+i,2)}, {v(16+8*kq+i,2)}")
    for i in range(4):
        a(f"v_cvt_pk_bf16_f32 v{16+i}, v{16+2*i}, v{17+2*i}")
    a(f"buffer_store_dwordx4 v[16:19], v10, {s(S_X,4)}, s{T0} offen sc1")
    stamp_out(a)
    a("L_end:")
    a("s_endpgm")
    a("L_mark_o:")
    for j in range(8):
        a(f"""
L_retry{j}:
s_add_u32 s{T0+7}, s{T0+7}, 1
s_cmp_ge_u32 s{T0+7}, {SPIN}
s_cbranch_scc1 L_go{j}
""")
        if P["RT"] == 1: a(f"s_sleep {P['RSL']}")
        if P["RT"] < 2:
            for jj in range(j, 8): a(oa_load(jj))
            a(f"s_branch L_cons{j}")
        else:
            f = OFA + 4*j
            if P["RSL"]: a(f"s_sleep {P['RSL']}")
            a(oa_load(j))
            a(f"""
s_waitcnt vmcnt(0)
v_max3_u32 v38, v{f}, v{f+1}, v{f+2}
v_max_u32 v38, v38, v{f+3}
v_cmp_eq_u32 vcc, -1, v38
s_nop 4
s_cbranch_vccnz L_retry{j}
""")
            for jj in range(j + 1, 8): a(oa_load(jj))
            a(f"s_branch L_go{j}")
    for bit, lab in enumerate(("L_ova", "L_ovb")):
        a(f"""
{lab}:
s_cmp_lg_u32 s{MODE}, 0
s_cbranch_scc1 {lab}_st
s_bitset1_b32 s{T0+2}, {bit}
s_branch {lab}_no
""")
    a(f"""
L_obretry:
s_add_u32 s{T0+7}, s{T0+7}, 1
s_cmp_ge_u32 s{T0+7}, {SPIN}
s_cbranch_scc1 L_obok
""")
    for g in ob_loads(): a.emit(g if isinstance(g, list) else [g])
    a(f"""
s_waitcnt vmcnt(0)
s_branch L_obchk
L_pollF1:
s_sleep {P["PSL"]}
buffer_load_dword v40, v41, {s(S_WS,4)}, s{T0} offen sc1
s_add_u32 s{T0+7}, s{T0+7}, 1
s_waitcnt vmcnt(0)
v_cmp_gt_u32 vcc, 32, v40
s_cmp_ge_u32 s{T0+7}, {SPIN}
s_cbranch_scc1 L_pollF1_ok
s_nop 2
s_cbranch_vccnz L_pollF1
s_branch L_pollF1_ok
L_sig1:
s_mov_b32 s{T0+7}, 0
L_initpoll:
v_readfirstlane_b32 s{T0+6}, v59
s_cmp_lg_u32 s{T0+6}, 0
s_cbranch_scc1 L_initok
s_sleep 4
global_load_dword v59, v{VZ}, s[22:23] sc1
s_add_u32 s{T0+7}, s{T0+7}, 1
s_waitcnt vmcnt(0)
s_cmp_lt_u32 s{T0+7}, {SPIN}
s_cbranch_scc1 L_initpoll
s_branch L_initok
L_flagspin:
s_mov_b32 s{T0+7}, 0
L_flagspin2:
s_sleep {P['SL1']}
buffer_load_dword v41, v{VZ}, {s(S_WS,4)}, s{P_F2} offen sc1
s_add_u32 s{T0+7}, s{T0+7}, 1
s_waitcnt vmcnt(0)
v_readfirstlane_b32 s{T0+6}, v41
s_cmp_ge_u32 s{T0+6}, 32
s_cbranch_scc1 L_flagok
s_cmp_lt_u32 s{T0+7}, {SPIN}
s_cbranch_scc1 L_flagspin2
s_branch L_flagok
L_flag2spin:
s_mov_b32 s{T0+7}, 0
L_flag2spin2:
s_sleep {P['SL2']}
buffer_load_dword v41, v42, {s(S_WS,4)}, s{T0+5} offen sc1
s_add_u32 s{T0+7}, s{T0+7}, 1
s_waitcnt vmcnt(0)
v_cmp_gt_u32 vcc, 32, v41
s_cmp_ge_u32 s{T0+7}, {SPIN}
s_cbranch_scc1 L_flag2ok
s_nop 2
s_cbranch_vccnz L_flag2spin2
s_branch L_flag2ok
L_ktspin:
s_mov_b32 s{T0+7}, 0
L_ktspin2:
s_sleep 8
""")
    a.emit(ktl)
    a(f"""
s_add_u32 s{T0+7}, s{T0+7}, 1
s_waitcnt vmcnt(0)
""")
    a.emit(ktc)
    a(f"""
s_cmp_ge_u32 s{T0+7}, {SPIN}
s_cbranch_scc1 L_ktok
s_nop 2
s_cbranch_vccnz L_ktspin2
s_branch L_ktok
""")
    a(f"""
L_slow:
s_barrier
s_and_b32 s{MODE}, s{T0+2}, 3
s_xor_b32 s{MODE}, s{MODE}, 7
s_lshl_b32 s{T0+1}, s{S_H}, 17
s_add_u32 s{T0+1}, s{T0+1}, {WS_KV}
s_add_u32 s{T0+1}, s{T0+1}, s{P_WOL}
""")
    for g in range(2):
        a(f"s_add_u32 m0, s{P_WOL}, {g*4096}")
        a(f"s_add_u32 s{T0+1}, s{T0+1}, {g*4096}")
        for i in range(4):
            a(f"buffer_load_dwordx4 v1, {s(S_WS,4)}, s{T0+1} offen offset:{i*1024} sc1 lds")
    a(f"""
s_mov_b32 s{CNT}, 0
v_mov_b32 v{ADDR}, v1
v_mov_b32 v38, 0xff800000
v_mov_b32 v39, 0xff800000
v_mov_b32 v47, v41
s_waitcnt vmcnt(0)
s_barrier
L_mloop:
ds_read_b128 {v(KS[0],4)}, v{ADDR}
s_waitcnt lgkmcnt(0)
v_mfma_f32_32x32x16_bf16 {v(SA,16)}, {v(KS[0],4)}, {v(QA,4)}, 0
v_mfma_f32_32x32x16_bf16 {v(SB,16)}, {v(KS[0],4)}, {v(QB,4)}, 0
s_nop 15
""")
    a.emit(rr(maxtree(38, SA, 1), maxtree(39, SB, 1)))
    a(f"""
v_add_u32 v{ADDR}, 2048, v{ADDR}
s_add_u32 s{CNT}, s{CNT}, 1
s_cmp_lt_u32 s{CNT}, 64
s_cbranch_scc1 L_mloop
""")
    a(NEGM)
    a(f"""
s_lshl_b32 s{T0}, s{KH}, 16
v_add_u32 v{ADDR}, s{T0}, v1
s_mov_b32 s{CNT}, 0
ds_read_b128 {v(KS[0],4)}, v{ADDR}
s_mov_b64 exec, {s(SL+2,2)}
ds_read_b128 {v(VS[0],4)}, v{ADDR} offset:1024
ds_read_b128 {v(VS[0]+4,4)}, v{ADDR} offset:1280
s_mov_b64 exec, -1
""")
    a.emit(fm); a.emit(ZERO_O); a.emit(ZSB)
    a(f"""
s_waitcnt lgkmcnt(0)
v_mfma_f32_32x32x16_bf16 {v(SA,16)}, {v(KS[0],4)}, {v(QA,4)}, {v(NMA,16)}
s_nop 15
L_sloop:
""")
    a.emit(slot(0))
    a(f"""
v_add_u32 v{ADDR}, 4096, v{ADDR}
s_add_u32 s{CNT}, s{CNT}, 1
s_cmp_lt_u32 s{CNT}, 16
s_cbranch_scc1 L_sloop
v_mov_b32 v41, v47
s_barrier
""")
    for g in woa_dma(): a.emit(g if isinstance(g, list) else [g])
    a("s_waitcnt vmcnt(0)")
    a(f"s_cmp_lg_u32 s{KH}, 0")
    a("s_cbranch_scc1 L_tail1")
    a("s_barrier")
    a.emit(XRD)
    a("s_branch L_tail0")
    a("L_codeend:")
    a("s_endpgm")
    return kd(NAME, 256, 102)

HEAD = """; gated mix of softmax attention and hedgehog linear attention -- hand-written gfx950 kernel
; @launch grid=(256,1,1) block=(512,1,1) lds=163840
.amdgcn_target "amdgcn-amd-amdhsa--gfx950"
"""
if __name__ == "__main__":
    rt = False
    for o in sys.argv[2:]:
        if o == "st": P["STAMPS"] = 1
        elif o == "rt": rt = True
        else:
            k_, v_ = o.split("="); assert k_.upper() in P, k_; P[k_.upper()] = int(v_)
    a = Asm()
    k = gen(a)
    ls = a.lines
    c0, c1, o = ls.index("L_mark_c0:"), ls.index("L_mark_c1:"), ls.index("L_mark_o:")
    if P["LAY"]:
        head = ls[:c0-1]
        mid = [x for x in ls[c1+1:o]]
        if mid[0] == ".p2align 6": mid[0] = ".p2align 3"
        ls = head + mid + [".p2align 3"] + ls[c0+1:c1] + ls[o+1:]
    else:
        ls = [x for x in ls if not x.startswith("L_mark")]
    a.lines = ls
    txt = a.text()
    if rt: txt = txt.replace("s_memtime", "s_memrealtime")
    open(sys.argv[1], "w").write(HEAD + txt + k)
```

```python
import sys, struct
from asmlib import *

NAME = "gated_mix__mha_block__linear_kernel_hedgehog__prompt_kernel"
LOG2E = 1.4426950408889634
def f2u(x): return struct.unpack("<I", struct.pack("<f", x))[0]

WS_QF  = 0
WS_KV  = 2 << 20
WS_PHQ = 6 << 20
WS_KVP = 10 << 20
WS_OF  = 14 << 20
WS_G   = 18 << 20
WS_KVT = (18 << 20) + 65536
WS_WOF = (18 << 20) + 131072
WS_FL  = WS_WOF + (1 << 20)
WS_SIZE = WS_FL + 32 * 256
WS_ST = 20 << 20
OBR = 64 * 32 * 1024

P = dict(STAMPS=0, STMODE=0, SPIN=400000, SIGC=1, LOOK=3, RPG=3, LEAD=2, CPF=1, XAH=0, PSL=2,
         KVS=4, PACE=0, PACK=0, TLB=0, WF=0, WBT=0, MIX=1, RT=0, RSL=4, OAP=8, HOLD=0, MPF=0, Q1=56, Q2=10, Q3=30, Q4=40, Q5=24, Q6=22, DQ=0, EB=9, HP=6, KVP=3, HELP=0, GM0=80, GM1=120, WO0=120, WO1=140, HB=0, MAPT=0, SIG0=1, SIG1=1, SL1=16, SL2=32, KF=0, QCUT=0, NOPK=0, PV=1, PS=5, PLO=12, PRI=0, LAY=0, SWO=0, EF1=0, SIDEK=13, XB=40, NOBD=1, NOBA=1, RLIM=11, EARLYB=0, QLATE=0, PRE=2, L1=9, RFIRST=1, CLS=3, BS=6, BD=4, BA=8, BW=12, DBG=0, ROTC=1, DIAG=0)

S_X, S_WA, S_WB, S_WS, S_MISC = 28, 32, 36, 40, 44
S_WAVE, S_HQ, S_TB, S_ROT = 48, 49, 50, 51
S_H, S_RB = 26, 27
T0 = 52
SL = 60
CNT, MODE, EVM, TT, PP, SX = 64, 65, 66, 67, 68, 69
P_KVG, P_KVB = 66, 67
P_OF, P_F2, P_KVS, P_KVT, P_PHQ, P_WOF, P_WOB, P_OA, P_G, P_WOL, KH = 4, 5, 6, 7, 8, 9, 10, 11, 0, 1, 3

XL, WL, WSLOT = 0, 65536, 24576
L_QH, L_WOS, L_CMB = 52*1024, 156*1024, 128*1024
L_FLAG, L_EX, EXS = 136*1024, 137*1024, 4608

QA, QB, KS, VS, IDX, ADDR = 4, 8, [12, 16], [20, 28], 36, 37
NMA, NMB, SA, SB, OA, OB = 48, 64, 80, 96, 112, 128
POOL, OBF, KACC, PQ, GV = 144, 208, 240, 244, 252
VZ = 3
L = lambda t: [x.strip() for x in t.strip().split("\n") if x.strip()]

def stamp(a, i, mode=0):
    if P["STAMPS"] and mode == P["STMODE"]:
        a(f"s_memtime s[{70+2*i}:{71+2*i}]")
def stamp_out(a):
    if not P["STAMPS"]:
        return
    a("s_mov_b64 exec, -1")
    a("s_memrealtime s[100:101]")
    a("s_waitcnt lgkmcnt(0) vmcnt(0)")
    a("s_memtime s[96:97]")
    a("s_waitcnt lgkmcnt(0)")
    srd(a, 40, 24, 25, WS_ST + (1 << 20))
    a(f"s_lshl_b32 s3, s2, 3")
    a(f"s_add_u32 s3, s3, s{S_WAVE}")
    a(f"s_lshl_b32 s3, s3, 6")
    a(f"s_add_u32 s3, s3, {WS_ST}")
    a("v_mov_b32 v1, 0")
    for i in range(16):
        a(f"v_mov_b32 v2, s{70+2*i}")
        a(f"buffer_store_dword v2, v1, s[40:43], s3 offen offset:{4*i}")
    a("s_waitcnt vmcnt(0)")

def softmax16(b, t):
    o = [f"v_max3_f32 v{t}, v{b}, v{b+1}, v{b+2}"]
    for i in range(3, 15, 2):
        o.append(f"v_max3_f32 v{t}, v{t}, v{b+i}, v{b+i+1}")
    o.append(f"v_max_f32 v{t}, v{t}, v{b+15}")
    o.append(f"v_mul_f32 v{t}, {f2u(-LOG2E):#x}, v{t}")
    for i in range(0, 16, 2):
        o.append(f"v_pk_fma_f32 {v(b+i,2)}, {v(b+i,2)}, {s(SL,2)}, {v(t,2)} op_sel_hi:[1,0,0]")
    for i in range(16):
        o.append(f"v_exp_f32 v{b+i}, v{b+i}")
    o.append(f"v_pk_add_f32 {v(t+2,2)}, {v(b,2)}, {v(b+2,2)}")
    for i in range(4, 16, 2):
        o.append(f"v_pk_add_f32 {v(t+2,2)}, {v(t+2,2)}, {v(b+i,2)}")
    o.append(f"v_add_f32 v{t}, v{t+2}, v{t+3}")
    o.append(f"v_rcp_f32 v{t}, v{t}")
    o.append("s_nop 0")
    for i in range(0, 16, 2):
        o.append(f"v_pk_mul_f32 {v(b+i,2)}, {v(b+i,2)}, {v(t,2)} op_sel_hi:[1,0]")
    for i in range(8):
        o.append(f"v_cvt_pk_bf16_f32 v{b+i}, v{b+2*i}, v{b+2*i+1}")
    return o

def unpk(x):
    import re
    m = re.match(r"v_pk_fma_f32 v\[(\d+):\d+\], v\[(\d+):\d+\], s\[(\d+):\d+\], v\[(\d+):\d+\]", x)
    if m:
        d, a_, s_, t = map(int, m.groups())
        return f"v_fma_f32 v{d}, v{a_}, s{s_}, v{t}\nv_fma_f32 v{d+1}, v{a_+1}, s{s_}, v{t}"
    m = re.match(r"v_pk_add_f32 v\[(\d+):\d+\], v\[(\d+):\d+\], v\[(\d+):\d+\]", x)
    if m:
        d, a_, b = map(int, m.groups())
        return f"v_add_f32 v{d}, v{a_}, v{b}\nv_add_f32 v{d+1}, v{a_+1}, v{b+1}"
    m = re.match(r"v_pk_mul_f32 v\[(\d+):\d+\], v\[(\d+):\d+\], v\[(\d+):\d+\] op_sel_hi:\[1,0\]", x)
    if m:
        d, a_, b = map(int, m.groups())
        return f"v_mul_f32 v{d}, v{a_}, v{b}\nv_mul_f32 v{d+1}, v{a_+1}, v{b}"
    m = re.match(r"v_mov_b64 v\[(\d+):\d+\], v\[(\d+):\d+\]", x)
    if m:
        d, a_ = map(int, m.groups())
        return f"v_mov_b32 v{d}, v{a_}\nv_mov_b32 v{d+1}, v{a_+1}"
    return x

def tr64_addr(a, dst, tmp, base_sgpr):
    a(f"""
v_bfe_u32 v{tmp}, v0, 2, 2
v_lshlrev_b32 v{dst}, 6, v{tmp}
v_lshrrev_b32 v{tmp}, 5, v0
v_lshl_add_u32 v{dst}, v{tmp}, 8, v{dst}
v_and_b32 v{tmp}, 1, v0
v_lshl_add_u32 v{dst}, v{tmp}, 5, v{dst}
v_bfe_u32 v{tmp}, v0, 4, 1
v_lshl_add_u32 v{dst}, v{tmp}, 4, v{dst}
v_bfe_u32 v{tmp}, v0, 1, 1
v_lshl_add_u32 v{dst}, v{tmp}, 3, v{dst}
v_add_u32 v{dst}, s{base_sgpr}, v{dst}
""")

def persist(a, kh, R2, xkb):
    a(f"""
s_mov_b32 s{KH}, {kh}
s_and_b32 s{T0}, s{S_WAVE}, 3
s_lshl_b32 s{T0+1}, s{S_RB}, 3
s_lshl_b32 s{T0+2}, s{T0}, 1
s_add_u32 s{T0+1}, s{T0+1}, s{T0+2}
s_add_u32 s{T0+1}, s{T0+1}, {kh}
s_lshl_b32 s{P_OF}, s{T0+1}, 5
s_add_u32 s{P_OF}, s{P_OF}, s{S_H}
s_lshl_b32 s{P_OF}, s{P_OF}, 10
s_add_u32 s{P_OF}, s{P_OF}, {WS_OF}
s_lshl_b32 s{P_PHQ}, s{S_H}, 6
s_add_u32 s{P_PHQ}, s{P_PHQ}, s{T0+1}
s_lshl_b32 s{P_PHQ}, s{P_PHQ}, 11
s_add_u32 s{P_PHQ}, s{P_PHQ}, {WS_PHQ}
s_lshr_b32 s{P_F2}, s{S_H}, 2
s_xor_b32 s{P_F2}, s{P_F2}, {xkb}
s_lshl_b32 s{P_F2}, s{P_F2}, 8
s_add_u32 s{P_F2}, s{P_F2}, {WS_FL}
s_lshl_b32 s{P_KVS}, s{S_H}, 17
s_lshl_b32 s{T0+2}, s{T0}, 10
s_add_u32 s{P_KVS}, s{P_KVS}, s{T0+2}
s_lshl_b32 s{T0+2}, s{S_RB}, 7
s_add_u32 s{P_KVS}, s{P_KVS}, s{T0+2}
s_add_u32 s{P_KVS}, s{P_KVS}, {WS_KVP}
s_lshl_b32 s{P_KVT}, s{S_H}, 11
s_add_u32 s{P_KVT}, s{P_KVT}, {WS_KVT}
s_lshr_b32 s{P_WOF}, s2, 5
s_lshl_b32 s{P_WOF}, s{P_WOF}, 17
s_add_u32 s{P_WOF}, s{P_WOF}, {WS_WOF}
s_lshr_b32 s{T0+1}, s{S_WAVE}, 1
s_lshl_b32 s{P_WOB}, s{T0+1}, 14
s_add_u32 s{P_WOB}, s{P_WOB}, s{P_WOF}
s_add_u32 s{P_WOB}, s{P_WOB}, 65536
s_lshl_b32 s{T0+2}, s{S_WAVE}, 13
s_add_u32 s{P_WOF}, s{P_WOF}, s{T0+2}
s_and_b32 s{P_OA}, s2, 31
s_lshl_b32 s{P_OA}, s{P_OA}, 1
s_and_b32 s{T0+2}, s{S_WAVE}, 1
s_add_u32 s{P_OA}, s{P_OA}, s{T0+2}
s_lshl_b32 s{P_G}, s{P_OA}, 7
s_add_u32 s{P_G}, s{P_G}, {WS_G}
s_lshl_b32 s{P_OA}, s{P_OA}, 5
s_lshl_b32 s{T0+1}, s{T0+1}, 3
s_add_u32 s{P_OA}, s{P_OA}, s{T0+1}
s_lshl_b32 s{P_OA}, s{P_OA}, 10
s_add_u32 s{P_OA}, s{P_OA}, {WS_OF}
s_lshl_b32 s{P_WOL}, s{T0}, 13
s_add_u32 s{P_WOL}, s{P_WOL}, {R2 if kh == 0 else 0}
""")

def gen(a):
    SPIN, LEAD = P["SPIN"], P["LEAD"]
    XQA, XKA, XVA, XQB, XKB = (1, 0, 2, 5, 4) if P["MIX"] else (0, 0, 0, 0, 0)
    TYB = 6 if P["MAPT"] == 0 else 5
    TYC = f"s_bitcmp1_b32 s2, {TYB}"
    NS = 16 + LEAD // 2
    R2 = 2 * NS * 2048
    BD, BA, BW, BS = P["BD"], P["BA"], P["BW"], P["BS"]
    C0 = BS
    assert BW >= LEAD + 8 and BW >= 8
    a(f""".text
.globl {NAME}
.p2align 8
.type {NAME},@function
{NAME}:
s_cmp_ge_u32 s2, 256
s_cbranch_scc1 L_end
""")
    if P["STAMPS"]:
        for i in range(70, 102): a(f"s_mov_b32 s{i}, 0")
        a("s_memtime s[70:71]")
        a("s_memrealtime s[98:99]")
    a(f"""
s_load_dwordx16 s[4:19], s[0:1], 0
s_load_dwordx4 s[20:23], s[0:1], 64
s_load_dwordx2 s[24:25], s[0:1], 80
v_lshrrev_b32 v1, 6, v0
v_and_b32 v0, 63, v0
v_readfirstlane_b32 s{S_WAVE}, v1
""")
    if P["MAPT"] == 0:
        a(f"""
s_bfe_u32 s{S_ROT}, s2, 0x30003
s_and_b32 s{S_TB}, s2, 4
s_lshl_b32 s{S_TB}, s{S_TB}, 1
s_add_u32 s{S_TB}, s{S_TB}, s{S_ROT}
s_lshr_b32 s3, s2, 6
s_and_b32 s{S_HQ}, s2, 3
s_lshl_b32 s{S_HQ}, s{S_HQ}, 1
s_lshr_b32 s{S_H}, s3, 1
s_add_u32 s{S_HQ}, s{S_HQ}, s{S_H}
s_lshl_b32 s{S_H}, s3, 1
s_add_u32 s{S_ROT}, s{S_ROT}, s{S_H}
""")
    else:
        a(f"""
s_bfe_u32 s{S_ROT}, s2, 0x20003
s_and_b32 s{S_TB}, s2, 6
s_lshl_b32 s{S_TB}, s{S_TB}, 1
s_add_u32 s{S_TB}, s{S_TB}, s{S_ROT}
s_lshl_b32 s{S_ROT}, s{S_ROT}, 1
s_lshr_b32 s3, s2, 5
s_add_u32 s{S_ROT}, s{S_ROT}, s3
s_lshr_b32 s3, s3, 1
s_and_b32 s{S_HQ}, s2, 1
s_lshl_b32 s{S_HQ}, s{S_HQ}, 2
s_add_u32 s{S_HQ}, s{S_HQ}, s3
""")
    a(f"""
s_lshr_b32 s3, s2, 6
s_and_b32 s{S_H}, s2, 7
s_lshl_b32 s{S_H}, s{S_H}, 2
s_add_u32 s{S_H}, s{S_H}, s3
s_bfe_u32 s{S_RB}, s2, 0x30003
v_mov_b32 v{VZ}, 0
s_cmp_ge_u32 s{S_WAVE}, 4
s_cbranch_scc0 L_compute
""")
    LW, XO, WO, XM, WM = 64, 65, 66, 67, 68
    S0 = 128 * 1024
    X = lambda s_: s_ * 16384
    U = lambda i_: S0 + i_ * 8192
    def plan(ty):
        st = {}; when = {}
        if ty == 0:
            loc = [(U(0), U(1)), (U(2), U(3)), (X(7), X(7) + 8192), (U(0), U(1)), (U(2), U(3)), (X(7), X(7) + 8192), (U(0), U(1)), (U(2), U(3))]
            for t in range(8):
                st[t] = [(S_WA, 1024, XKA, loc[t][0]), (S_WA, 2048, XVA, loc[t][1])]
                for u in range(2): when[("w", t, u)] = -1 if t < 2 else t - 2
            for t in range(8, 16):
                st[t] = [(S_WB, 0, XQB, U(t & 3))]
                when[("w", t, 0)] = {8: 7, 9: 7, 10: 7.5, 11: 7.5}.get(t, t - 3)
            for c in range(8): when[("x", c)] = 6 if c == 7 else max(-1, c - 2 - P["XAH"])
        else:
            l1 = [U(t & 3) for t in range(8)] if P["EB"] == 9 else [U(2), X(6), X(6) + 8192, X(7), X(7) + 8192, U(2), U(3), U(2)]
            for t in range(8):
                st[t] = [(S_WA, 0, XQA, l1[t])]
                when[("w", t, 0)] = -1 if t < 2 else t - 2
            if P["EB"] != 9: when[("w", 7, 0)] = 6
            loc = {8: (U(0), U(1)), 9: (U(2), U(3)), 10: (U(0), U(1)), 11: (X(0), X(0) + 8192), 12: (U(2), U(3)), 13: (X(1), X(1) + 8192), 14: (U(0), U(1)), 15: (U(2), U(3))}
            e8 = 6 if P["EB"] == 9 else P["EB"] - 1
            wh = {8: (e8, e8), 9: (7.5, 7.5), 10: (9, 9), 11: (9, 9), 12: (10, 10), 13: (11, 11), 14: (12, 12), 15: (13, 13)}
            for t in range(8, 16):
                st[t] = [(S_WB, 1024, XKB, loc[t][0]), (S_WB, 2048, XKB, loc[t][1])]
                for u in range(2): when[("w", t, u)] = wh[t][u]
            for c in range(8): when[("x", c)] = max(-1, c - 2 - P["XAH"])
        return st, when
    PLAN = [plan(0), plan(1)]
    a(f"""
s_sub_u32 s{LW}, s{S_WAVE}, 4
v_lshrrev_b32 v1, 3, v0
v_and_b32 v2, 7, v0
v_lshrrev_b32 v8, 4, v0
v_xor_b32 v9, v2, v8
v_lshlrev_b32 v10, 10, v1
v_lshl_add_u32 v4, v9, 4, v10
v_xor_b32 v5, 64, v4
v_add_u32 v5, {8192-1024}, v5
v_mul_u32_u24 v10, 3072, v1
v_and_b32 v8, 1, v8
v_lshlrev_b32 v8, 2, v8
v_xor_b32 v9, v2, v8
v_lshl_add_u32 v6, v9, 4, v10
v_add_u32 v7, {8*3072-1024}, v6
s_lshl_b32 s{XO}, s{S_TB}, 17
s_lshl_b32 s{T0}, s{LW}, 15
s_add_u32 s{XO}, s{XO}, s{T0}
s_mul_i32 s{WO}, s{LW}, {16*3072}
s_lshl_b32 s{T0}, s{S_HQ}, 7
s_add_u32 s{WO}, s{WO}, s{T0}
s_lshl_b32 s{XM}, s{LW}, 12
s_lshl_b32 s{WM}, s{LW}, 11
s_mov_b32 s{S_X+2}, {2048*512*2}
s_mov_b32 s{S_X+3}, 0x20000
s_mov_b32 s{S_WA+2}, {512*1536*2}
s_mov_b32 s{S_WA+3}, 0x20000
s_waitcnt lgkmcnt(0)
s_mov_b32 s{S_X}, s4
s_mov_b32 s{S_X+1}, s5
s_mov_b32 s{S_WA}, s6
s_mov_b32 s{S_WA+1}, s7
""")
    stamp(a, 1)
    ISS = [[], []]
    def issx(c, tys):
        a(f"s_add_u32 s{T0}, s{S_ROT}, {c}")
        a(f"s_and_b32 s{T0}, s{T0}, 7")
        a(f"s_lshl_b32 s{T0}, s{T0}, 7")
        for g in range(2):
            a(f"s_add_u32 m0, s{XM}, {X(c) + g*2048}")
            a(f"s_add_u32 s{T0}, s{T0}, " + (f"s{XO}" if g == 0 else "16384"))
            a(f"buffer_load_dwordx4 v4, {s(S_X,4)}, s{T0} offen lds")
            a(f"buffer_load_dwordx4 v5, {s(S_X,4)}, s{T0} offen offset:1024 lds")
        for ty in tys: ISS[ty].append((("x", c), 4))
    def issw(ty, t, us):
        a(f"s_add_u32 s{T0}, s{S_ROT}, {t & 7}")
        a(f"s_and_b32 s{T0}, s{T0}, 7")
        a(f"s_mul_i32 s{T0}, s{T0}, {64*3072}")
        a(f"s_add_u32 s{T0}, s{T0}, s{WO}")
        for u in us:
            W, col, xr_, ad = PLAN[ty][0][t][u]
            a(f"s_xor_b32 s{T0+1}, s{T0}, {xr_*128}")
            a(f"s_add_u32 m0, s{WM}, {ad}")
            a(f"s_add_u32 s{T0+1}, s{T0+1}, {col}")
            a(f"buffer_load_dwordx4 v6, {s(W,4)}, s{T0+1} offen lds")
            a(f"buffer_load_dwordx4 v7, {s(W,4)}, s{T0+1} offen offset:1024 lds")
            ISS[ty].append((("w", t, u), 2))
    issx(0, (0, 1))
    a(TYC)
    a("s_cbranch_scc1 L_i1")
    issw(0, 0, (0, 1))
    a("s_branch L_i2")
    a("L_i1:")
    issw(1, 0, (0,)); issw(1, 1, (0,))
    a("L_i2:")
    issx(1, (0, 1))
    srd(a, S_WB, 12, 13, 512*1536*2)
    srd(a, S_WS, 24, 25, WS_SIZE)
    GO, GX, WSRC, WD, WST = 60, 44, 45, 61, 46
    a(f"""
s_cmp_ge_u32 s2, 128
s_cselect_b32 s12, s16, s8
s_cselect_b32 s13, s17, s9
s_mov_b32 s14, {512*512*2}
s_mov_b32 s15, 0x20000
s_mov_b32 s16, s18
s_mov_b32 s17, s19
s_mov_b32 s18, 1024
s_mov_b32 s19, 0x20000
s_lshl_b32 s{GO}, s{S_TB}, 7
s_lshl_b32 s{T0+1}, s{S_HQ}, 4
s_add_u32 s{GO}, s{GO}, s{T0+1}
s_bfe_u32 s{T0+1}, s2, {0x10000 + TYB}
s_lshl_b32 s{T0+1}, s{T0+1}, 3
s_add_u32 s{GO}, s{GO}, s{T0+1}
s_lshl_b32 s{T0+1}, s{LW}, 1
s_add_u32 s{GO}, s{GO}, s{T0+1}
s_and_b32 s{GX}, s{GO}, 127
s_lshl_b32 s{GO}, s{GO}, 2
s_add_u32 s{GO}, s{GO}, {WS_G}
s_bfe_u32 s{T0+1}, s{GX}, 0x30001
v_xor_b32 v8, s{T0+1}, v2
v_lshlrev_b32 v8, 4, v8
v_lshl_add_u32 v8, v1, 14, v8
s_lshl_b32 s{GX}, s{GX}, 7
v_add_u32 v{POOL+16}, s{GX}, v8
v_add_u32 v8, s{S_ROT}, v1
v_and_b32 v8, 7, v8
v_lshlrev_b32 v8, 7, v8
v_lshl_add_u32 v{POOL+17}, v2, 4, v8
v_mov_b32 v{POOL+13}, 0
v_lshrrev_b32 v8, 2, v0
v_lshlrev_b32 v8, 10, v8
v_and_b32 v9, 3, v0
v_lshl_add_u32 v{POOL+18}, v9, 4, v8
v_lshrrev_b32 v{POOL+19}, 5, v0
v_lshlrev_b32 v{POOL+19}, 2, v{POOL+19}
v_mov_b32 v{POOL+12}, 0
s_lshl_b32 s{T0}, s2, 2
s_add_u32 s{T0}, s{T0}, s{LW}
s_bfe_u32 s{T0+1}, s{T0}, 0x50004
s_and_b32 s{T0+2}, s{T0}, 15
s_lshl_b32 s{WSRC}, s{T0+1}, 14
s_lshl_b32 s{T0+3}, s{T0+2}, 6
s_add_u32 s{WSRC}, s{WSRC}, s{T0+3}
s_lshl_b32 s{WST}, s{LW}, 10
s_add_u32 s{WST}, s{WST}, {L_WOS}
s_lshr_b32 s{T0+3}, s{T0+2}, 1
s_lshl_b32 s{WD}, s{T0+3}, 17
s_lshr_b32 s{T0+3}, s{T0}, 9
s_lshl_b32 s{T0+3}, s{T0+3}, 16
s_add_u32 s{WD}, s{WD}, s{T0+3}
s_lshl_b32 s{T0+3}, s{T0+1}, 11
s_add_u32 s{WD}, s{WD}, s{T0+3}
s_and_b32 s{T0+3}, s{T0+2}, 1
s_lshl_b32 s{T0+3}, s{T0+3}, 10
s_add_u32 s{WD}, s{WD}, s{T0+3}
s_add_u32 s{WD}, s{WD}, {WS_WOF}
""")
    tr64_addr(a, POOL+9, 8, WST)
    if P["TLB"]: a("s_waitcnt lgkmcnt(0)")
    persist(a, 0, R2, XKB)
    VINIT = f"""
v_mov_b32 v{IDX}, 0xdddddddd
v_and_b32 v39, 27, v0
v_cmp_eq_u32 vcc, 16, v39
v_mov_b32 v38, 0x3f803f80
v_mov_b64 v[44:45], -1
v_cndmask_b32 v38, 0, v38, vcc
v_mov_b64 v[46:47], -1
v_mov_b32 v39, v38
""" + "\n".join(f"v_mov_b64 {v(VS[0]+i,2)}, v[38:39]" for i in range(0, 16, 2))
    ZERO_O = [f"v_mov_b64 {v(OA+i,2)}, 0" for i in range(0, 32, 2)]
    a(VINIT)
    a.emit(ZERO_O)
    a(f"""
v_lshlrev_b32 v42, 12, v1
v_lshl_add_u32 v42, v2, 4, v42
s_lshl_b32 s{T0}, s{S_RB}, 7
s_lshr_b32 s{T0+1}, s{LW}, 1
s_lshl_b32 s{T0+1}, s{T0+1}, 10
s_add_u32 s{T0}, s{T0}, s{T0+1}
s_and_b32 s{T0+1}, s{LW}, 1
s_lshl_b32 s{T0+1}, s{T0+1}, 3
s_add_u32 s{T0}, s{T0}, s{T0+1}
v_lshlrev_b32 v43, 4, v2
v_bfe_u32 v8, v0, 4, 1
v_lshl_add_u32 v43, v8, 2, v43
v_add_u32 v43, s{T0}, v43
v_lshlrev_b32 v1, 4, v0
v_mov_b32 v{ADDR}, v1
s_lshl_b32 s{T0}, s{LW}, 9
s_add_u32 s{T0}, s{T0}, {L_QH}
v_lshrrev_b32 v{POOL+11}, 1, v1
v_add_u32 v{POOL+11}, s{T0}, v{POOL+11}
""")
    def gate_math():
        G0 = POOL + 12
        for i in range(4):
            a(f"v_dot2_f32_bf16 v{G0}, v{POOL+20+i}, v{POOL+28+i}, v{G0}")
            a(f"v_dot2_f32_bf16 v{G0+1}, v{POOL+24+i}, v{POOL+28+i}, v{G0+1}")
        a(f"""
s_nop 2
v_permlane32_swap_b32 v{G0}, v{G0+1}
s_nop 1
v_add_f32 v{G0}, v{G0}, v{G0+1}
s_nop 1
v_add_f32_dpp v{G0}, v{G0}, v{G0} quad_perm:[1,0,3,2] row_mask:0xf bank_mask:0xf
s_nop 1
v_add_f32_dpp v{G0}, v{G0}, v{G0} quad_perm:[2,3,0,1] row_mask:0xf bank_mask:0xf
s_nop 1
v_add_f32_dpp v{G0}, v{G0}, v{G0} row_half_mirror row_mask:0xf bank_mask:0xf
s_nop 1
v_add_f32_dpp v{G0}, v{G0}, v{G0} row_mirror row_mask:0xf bank_mask:0xf
v_mov_b32 v{G0+1}, v{G0}
s_nop 1
v_permlane16_swap_b32 v{G0}, v{G0+1}
s_nop 1
v_add_f32 v{G0}, v{G0}, v{G0+1}
v_mul_f32 v{G0}, {f2u(-LOG2E):#x}, v{G0}
v_exp_f32 v{G0}, v{G0}
s_nop 0
v_add_f32 v{G0}, 1.0, v{G0}
v_rcp_f32 v{G0}, v{G0}
""")
    stamp(a, 2)
    a(TYC)
    a("s_cbranch_scc1 L_ld1")
    for ty in range(2):
        a(f"L_ld{ty}:")
        st_, when = PLAN[ty]
        issued = ISS[ty]
        def release(pt):
            done = {t for t, _ in issued}
            todo = [k_ for k_, w_ in when.items() if w_ <= pt and k_ not in done]
            todo.sort(key=lambda k_: (k_[1], 0 if k_[0] == "w" else 1))
            i_ = 0
            while i_ < len(todo):
                k_ = todo[i_]
                if k_[0] == "x": issx(k_[1], (ty,)); i_ += 1
                else:
                    us = [q_[2] for q_ in todo if q_[0] == "w" and q_[1] == k_[1]]
                    issw(ty, k_[1], us); i_ += len(us)
        def cnt_after(tags):
            idx = max(i for i, (t, _) in enumerate(issued) if t in tags)
            return sum(k_ for _, k_ in issued[idx+1:])
        def side(pt):
            if pt == P["HP"] - (0 if P["HP"] == 6 else 1) and ty == 1 and P["HELP"]:
                a(f"""
s_and_b32 s{T0}, s{S_ROT}, 7
s_mul_i32 s{T0}, s{T0}, {64*3072}
s_add_u32 s{T0}, s{T0}, s{WO}
s_xor_b32 s{T0}, s{T0}, {XQB*128}
buffer_load_dwordx4 {v(POOL+40,4)}, v6, {s(S_WB,4)}, s{T0} offen
buffer_load_dwordx4 {v(POOL+40,4)}, v7, {s(S_WB,4)}, s{T0} offen offset:1024
""")
                issued.append(("gw", 2))
            if P[f"WO{ty}"] == pt * 10:
                a(f"buffer_load_dwordx4 {v(POOL+36,4)}, v{POOL+18}, s[12:15], s45 offen")
                issued.append(("gw", 1))
            if pt == 6:
                a(f"buffer_load_dwordx4 {v(POOL+28,4)}, v{POOL+17}, s[16:19], 0 offen")
                issued.append(("gw", 1))
            if pt == 7.5:
                a(f"ds_read_b128 {v(POOL+20,4)}, v{POOL+16}")
                a(f"ds_read_b128 {v(POOL+24,4)}, v{POOL+16} offset:128")
            if P[f"GM{ty}"] == pt * 10:
                gate_math()
        release(-1)
        side(-1)
        for k in range(15):
            a(f"s_waitcnt vmcnt({cnt_after([('x', k), ('w', k, 0), ('w', k, 1)])})" + (" lgkmcnt(0)" if k == 8 else ""))
            if k == 0: stamp(a, 3)
            if k < 12: stamp(a, k + 1, 2)
            a("s_barrier")
            release(k)
            side(k)
            if k == 7:
                a("s_barrier")
                release(7.5)
                side(7.5)
        assert len([1 for t, _ in issued if t != "gw"]) == len(when)
        a(f"s_waitcnt vmcnt({cnt_after([('w', 15, 0), ('w', 15, 1)])})")
        if ty == 0: a("s_branch L_ldj")
    a("L_ldj:")
    a("s_barrier")
    a(f"""
v_add_u32 v{POOL+18}, s{WST}, v1
s_lshr_b32 s{T0}, s{S_H}, 2
s_lshl_b32 s{T0}, s{T0}, 8
s_add_u32 s{T0}, s{T0}, {WS_FL + 2048}
v_min_u32 v41, 2, v0
v_lshlrev_b32 v41, 11, v41
s_sub_u32 s{T0+1}, s{P_PHQ}, {WS_PHQ}
s_lshr_b32 s{T0+1}, s{T0+1}, 1
s_lshl_b32 s{P_KVB}, s{S_H}, 17
s_add_u32 s{P_KVB}, s{P_KVB}, {WS_KV}
s_lshl_b32 s{P_KVG}, s{LW}, 12
s_add_u32 s{T0+3}, s{P_KVG}, {R2 - 4096}
s_cmp_eq_u32 s{LW}, 0
s_cmov_b32 s{T0+3}, 16384
s_mov_b32 s{T0+7}, 0
""")
    a(f"buffer_load_dword v40, v41, {s(S_WS,4)}, s{T0} offen sc1")
    stamp(a, 4)
    def kvgrp(reg, off):
        o = [[f"s_add_u32 m0, s{reg}, {off}", f"s_add_u32 s{T0+4}, m0, s{P_KVB}"]]
        o += [f"buffer_load_dwordx4 v1, {s(S_WS,4)}, s{T0+4} offen offset:{i*1024} sc1 lds" for i in range(4)]
        return o
    def flat(x):
        o = []
        for g in x: o += g if isinstance(g, list) else [g]
        return o
    FIRST = [f"buffer_load_dwordx4 {v(QA,4)}, v1, {s(S_WS,4)}, s{T0+1} offen sc1",
             f"buffer_load_dwordx4 {v(QB,4)}, v1, {s(S_WS,4)}, s{T0+1} offen offset:1024 sc1",
             f"buffer_load_dwordx4 {v(KS[0],4)}, v1, {s(S_WS,4)}, s{P_KVB} offen sc1"] + flat(kvgrp(P_KVG, 0)) + flat(kvgrp(T0+3, 0))
    a(f"""
s_waitcnt vmcnt(0)
v_cmp_gt_u32 vcc, 16, v40
s_nop 4
s_cbranch_vccnz L_pollF1
L_pollF1_ok:
""")
    a.emit(FIRST)
    a("L_first_done:")
    stamp(a, 5); stamp(a, 1, 3)
    G0 = POOL + 12
    a(f"""
s_setprio 3
s_waitcnt vmcnt(8)
v_mfma_f32_32x32x16_bf16 {v(SA,16)}, {v(KS[0],4)}, {v(QA,4)}, 0
v_mfma_f32_32x32x16_bf16 {v(SB,16)}, {v(KS[0],4)}, {v(QB,4)}, 0
""")
    if P["NOBD"]: a.emit(flat(kvgrp(P_KVG, 5*4096) + kvgrp(P_KVG, R2 + 3*4096)))
    else: a("s_nop 9")
    a(f"""
s_mov_b32 s{MODE}, 0
s_mov_b32 s{SL+2}, 0x0000ffff
s_mov_b32 s{SL+3}, 0x0000ffff
""")
    def maxtree(dst, b, init=None):
        o = []
        if init is None:
            o.append(f"v_max3_f32 v{dst}, v{b}, v{b+1}, v{b+2}")
            for i in range(3, 15, 2):
                o.append(f"v_max3_f32 v{dst}, v{dst}, v{b+i}, v{b+i+1}")
            o.append(f"v_max_f32 v{dst}, v{dst}, v{b+15}")
        else:
            for i in range(0, 16, 2):
                o.append(f"v_max3_f32 v{dst}, v{dst}, v{b+i}, v{b+i+1}")
        return o
    a.emit(rr(maxtree(38, SA), maxtree(39, SB)))
    NEGM = f"""
v_permlane32_swap_b32 v38, v39
s_nop 1
v_max_f32 v38, v38, v39
v_sub_f32 v38, 0, v38
v_mov_b32 v39, v38
s_nop 1
v_permlane32_swap_b32 v38, v39
"""
    def fill_nm():
        o = [f"v_mov_b32 v40, v38", f"v_mov_b32 v41, v38"]
        o += [f"v_mov_b64 {v(NMA+i,2)}, v[40:41]" for i in range(0, 16, 2)]
        o += [f"v_mov_b32 v38, v39"]
        o += [f"v_mov_b64 {v(NMB+i,2)}, v[38:39]" for i in range(0, 16, 2)]
        return o
    ZSB = [f"v_mov_b64 {v(SB+i,2)}, 0" for i in range(8, 16, 2)]
    a("s_nop 1")
    a(NEGM)
    a(f"""
s_nop 1
v_mov_b64 {v(POOL+14,2)}, v[38:39]
""")
    fm = fill_nm()
    a.emit(fm[:11])
    a.emit(ZSB)
    a(f"v_mfma_f32_32x32x16_bf16 {v(SA,16)}, {v(KS[0],4)}, {v(QA,4)}, {v(NMA,16)}")
    a.emit(fm[11:])
    stamp(a, 2, 3)
    a("s_setprio 0")
    stamp(a, 3, 3)
    a(f"""
ds_write_b64 v{POOL+11}, {v(POOL+14,2)}
s_waitcnt vmcnt(0) lgkmcnt(0)
""")
    stamp(a, 6); stamp(a, 4, 3)
    a(f"""
s_barrier
s_mov_b64 exec, {s(SL+2,2)}
ds_read_b128 {v(VS[0],4)}, v{ADDR} offset:1024
ds_read_b128 {v(VS[0]+4,4)}, v{ADDR} offset:1280
s_mov_b64 exec, -1
""")
    a("s_waitcnt lgkmcnt(0)")
    stamp(a, 8)
    a("s_branch L_slot0")
    a("L_mark_c0:")
    XA = [4, 5, 6, 7]; WHI, WLO = 8, 9
    BUF = [112, 176]
    AQK, AV = [48, 64], [80, 96]
    WPHI = [248, 252]
    WPK, WPM = 36, 32
    VFLG, VPHI, VSGN, VF1, VONE = 10, 12, 13, 14, 15
    a("L_compute:")
    if P["CPF"]:
        a(f"""
s_getpc_b64 s[{T0}:{T0+1}]
L_pc:
s_sub_u32 s{T0}, s{T0}, L_pc-{NAME}
s_subb_u32 s{T0+1}, s{T0+1}, 0
s_lshr_b32 s{T0+2}, s2, 3
s_lshl_b32 s{T0+2}, s{T0+2}, 2
s_add_u32 s{T0+2}, s{T0+2}, s{S_WAVE}
s_mul_i32 s{T0+2}, s{T0+2}, 320
s_min_u32 s{T0+2}, s{T0+2}, L_codeend-{NAME}-320
s_add_u32 s{T0}, s{T0}, s{T0+2}
s_addc_u32 s{T0+1}, s{T0+1}, 0
s_load_dword s{T0+3}, s[{T0}:{T0+1}], 0
s_load_dword s{T0+4}, s[{T0}:{T0+1}], 64
s_load_dword s{T0+5}, s[{T0}:{T0+1}], 128
s_load_dword s{T0+6}, s[{T0}:{T0+1}], 192
s_load_dword s{T0+7}, s[{T0}:{T0+1}], 256
""")
    a(f"""
s_lshr_b32 s{TT}, s{S_WAVE}, 1
s_and_b32 s{PP}, s{S_WAVE}, 1
v_and_b32 v16, 31, v0
v_lshrrev_b32 v17, 5, v0
v_lshlrev_b32 v1, 4, v0
s_waitcnt lgkmcnt(0)
""")
    srd(a, S_MISC, 14, 15, 32*512)
    srd(a, S_WS, 24, 25, WS_SIZE)
    a(f"""
s_or_b32 s{T0+1}, s2, s{S_WAVE}
s_cmp_lg_u32 s{T0+1}, 0
s_cbranch_scc1 L_noinit
v_lshlrev_b32 v8, 8, v0
s_mov_b32 s{T0+1}, {WS_FL}
buffer_store_dword v{VZ}, v8, {s(S_WS,4)}, s{T0+1} offen sc1
s_waitcnt vmcnt(0)
v_mov_b32 v8, 1
s_mov_b64 exec, 1
global_store_dword v{VZ}, v8, s[22:23] sc1
s_mov_b64 exec, -1
L_noinit:
s_lshr_b32 s{T0+2}, s2, 3
s_lshl_b32 s{T0+2}, s{T0+2}, 2
s_add_u32 s{T0+2}, s{T0+2}, s{S_WAVE}
s_lshl_b32 s{T0+2}, s{T0+2}, 7
s_add_u32 s{T0+3}, s{T0+2}, 64
s_load_dword s38, s[14:15], s{T0+2}
s_load_dword s39, s[14:15], s{T0+3}
s_lshr_b32 s{T0+3}, s{T0+2}, 1
s_and_b32 s{T0+3}, s{T0+3}, 0x3c0
s_load_dword s33, s[18:19], s{T0+3}
s_lshl_b32 s{T0+3}, s{T0+2}, 5
s_load_dword s34, s[8:9], s{T0+3}
s_load_dword s35, s[16:17], s{T0+3}
s_lshl_b32 s{T0}, s{S_HQ}, 1
s_add_u32 s{T0}, s{T0}, s{PP}
s_lshl_b32 s{T0}, s{T0}, 10
{TYC}
s_mov_b32 s{T0+1}, {XQB*2048}
s_cmov_b32 s{T0+1}, {XKB*2048}
s_xor_b32 s{WPK}, s{T0}, s{T0+1}
s_lshl_b32 s{WPM}, s{S_WAVE}, 10
s_add_u32 s{WPM}, s{WPM}, {X(2)}
v_bfe_u32 v18, v0, 2, 2
v_lshlrev_b32 v{VPHI}, 5, v18
v_lshl_add_u32 v{VPHI}, v17, 7, v{VPHI}
v_bfe_u32 v18, v0, 4, 1
v_lshl_add_u32 v{VPHI}, v18, 4, v{VPHI}
v_bfe_u32 v18, v0, 1, 1
v_lshl_add_u32 v{VPHI}, v18, 3, v{VPHI}
v_add_u32 v{VPHI}, s{WPM}, v{VPHI}
s_lshl_b32 s{T0}, s{TT}, 13
v_lshlrev_b32 v19, 7, v16
v_add_u32 v19, s{T0}, v19
v_bfe_u32 v18, v16, 1, 3
v_xor_b32 v18, v18, v17
v_lshl_add_u32 v{XA[0]}, v18, 4, v19
v_xor_b32 v{XA[1]}, 32, v{XA[0]}
v_xor_b32 v{XA[2]}, 64, v{XA[0]}
v_xor_b32 v{XA[3]}, 96, v{XA[0]}
v_lshlrev_b32 v{WLO}, 10, v17
v_bfe_u32 v18, v0, 2, 2
v_lshl_add_u32 v{WLO}, v18, 7, v{WLO}
v_bfe_u32 v18, v0, 3, 1
v_xor_b32 v18, s{PP}, v18
v_lshl_add_u32 v{WLO}, v18, 6, v{WLO}
v_bfe_u32 v18, v0, 4, 1
v_lshl_add_u32 v{WLO}, v18, 5, v{WLO}
v_and_b32 v19, 3, v0
v_lshl_add_u32 v{WLO}, v19, 3, v{WLO}
v_add_u32 v{WHI}, {X(6)}, v{WLO}
v_and_b32 v2, 0x33, v0
v_bfe_u32 v18, v0, 2, 1
v_lshl_or_b32 v2, v18, 3, v2
v_bfe_u32 v18, v0, 3, 1
v_lshl_or_b32 v2, v18, 2, v2
v_lshlrev_b32 v2, 4, v2
v_and_b32 v11, 0x2f, v0
v_lshlrev_b32 v11, 4, v11
v_bfe_u32 v18, v0, 4, 1
v_lshl_add_u32 v11, v18, 17, v11
s_mov_b32 s{SL}, {f2u(LOG2E):#x}
s_mov_b32 s{SL+1}, {f2u(0.25*LOG2E):#x}
s_mov_b32 s{SL+2}, 0x0000ffff
s_mov_b32 s{SL+3}, 0x0000ffff
s_mov_b32 s{MODE}, 0
s_lshl_b32 s{SX}, s{S_HQ}, 1
s_add_u32 s{SX}, s{SX}, s{PP}
s_lshl_b32 s{SX}, s{SX}, 7
s_lshl_b32 s{T0+1}, s{S_TB}, 2
s_add_u32 s{SX}, s{SX}, s{T0+1}
s_lshl_b32 s{T0+1}, s{TT}, 1
s_add_u32 s{SX}, s{SX}, s{T0+1}
s_lshl_b32 s{T0+1}, s{S_WAVE}, 12
s_add_u32 s{T0+1}, s{T0+1}, {L_CMB}
v_lshlrev_b32 v240, 1, v17
v_bfe_u32 v18, v16, 1, 2
v_xor_b32 v240, v240, v18
v_lshlrev_b32 v240, 4, v240
v_lshl_add_u32 v240, v16, 6, v240
v_add_u32 v240, s{T0+1}, v240
v_xor_b32 v241, 16, v240
""")
    tr64_addr(a, 242, 18, T0+1)
    a(f"""
v_lshlrev_b32 v18, 5, v17
v_xor_b32 v242, v242, v18
v_bfe_u32 v18, v0, 3, 1
v_lshlrev_b32 v18, 4, v18
v_xor_b32 v242, v242, v18
v_mov_b32 v244, 0x3f803f80
v_mov_b32 v245, 0x3f803f80
v_and_b32 v18, {3 if P["MIX"] else 0}, v0
v_xor_b32 v{VF1}, s{S_HQ}, v18
v_lshl_add_u32 v{VF1}, v0, 3, v{VF1}
v_lshlrev_b32 v{VF1}, 8, v{VF1}
v_mov_b32 v{VONE}, 1
v_bfe_u32 v18, v0, 2, 1
s_mov_b32 s{T0+1}, 0x80008000
v_mul_lo_u32 v{VSGN}, v18, s{T0+1}
s_lshl_b32 s{T0}, s{S_WAVE}, 9
s_add_u32 s{T0}, s{T0}, {L_QH}
v_lshrrev_b32 v243, 1, v1
v_add_u32 v243, s{T0}, v243
""")
    assert (XKA, XQA, XVA) in ((0, 1, 2), (0, 0, 0))
    persist(a, 1, R2, XKB)
    rdp = ["s_waitcnt vmcnt(0)", "s_nop 0"]
    for hd in range(2):
        for rd in range(2):
            rdp.append(f"ds_read_b64_tr_b16 {v(WPHI[hd]+2*rd,2)}, v{VPHI} offset:{hd*512+rd*256}")
    xr = [f"v_xor_b32 v{WPHI[0]+i}, v{VSGN}, v{WPHI[0]+i}" for i in range(8)]
    PK = 16
    stamp(a, 1)
    a(TYC)
    a("s_cbranch_scc1 L_cmp1")
    for ty in range(2):
        a(".p2align 3")
        a(f"L_cmp{ty}:")
        st_ = PLAN[ty][0]
        def reads(t):
            b0 = BUF[t & 1]; o = []
            for step in range(4):
                b = b0 + 16*step
                xo = (t & 3) * 16384
                o.append(f"ds_read_b128 {v(b,4)}, v{XA[step]} offset:{xo}")
                for u, (_, _, _, ad) in enumerate(st_[t]):
                    reg, off = (WHI, ad - X(6)) if ad >= X(6) else (WLO, ad)
                    for rd in range(2):
                        o.append(f"ds_read_b64_tr_b16 {v(b+8+4*u+2*rd,2)}, v{reg} offset:{off+step*2048+rd*512}")
                    if u == 0: o.append(f"ds_read_b128 {v(b+4,4)}, v{XA[step]} offset:{xo+4096}")
            return o
        def mfmas(t):
            o = []
            for step in range(4):
                b = BUF[t & 1] + 16*step
                for u in range(len(st_[t])):
                    for tt in range(2):
                        x = v(b+4*tt,4); w = v(b+8+4*u,4); d = v((AQK, AV)[u][tt],16)
                        cc = "0" if ((t & 7) == 0 and step == 0) else d
                        o.append(f"v_mfma_f32_32x32x16_bf16 {d}, {w}, {x}, {cc}" if u == 0 else f"v_mfma_f32_32x32x16_bf16 {d}, {x}, {w}, {cc}")
            return o
        def xswitch(t):
            if t & 3: return []
            return [f"v_xor_b32 v{r_}, 0x10000, v{r_}" for r_ in XA]
        def weave(m, r_, per, first=()):
            a(m[0]); a.emit(list(first))
            k_ = 0
            if not first:
                a.emit(r_[:per]); k_ = per
            for i in range(1, len(m)):
                a(m[i]); a.emit(r_[k_:k_+per] if i < len(m) - 1 else r_[k_:]); k_ += per
        SIG = 8 + P[f"SIG{ty}"]
        deferred = []
        for ps in range(2):
            a("s_barrier")
            a("s_nop 0")
            a.emit(reads(8*ps))
            for t in range(8*ps, 8*ps + 7):
                a("s_waitcnt lgkmcnt(0)" + (" vmcnt(0)" if t == SIG else ""))
                a("s_barrier")
                if t == SIG:
                    assert t <= 13
                    a(f"""
s_cmp_lg_u32 s{S_WAVE}, 0
s_cbranch_scc1 L_drained{ty}
v_readfirstlane_b32 s{T0+6}, v{VFLG}
s_mov_b32 s{T0}, {WS_FL + 2048}
s_cmp_eq_u32 s{T0+6}, 0
s_cbranch_scc1 L_sig1
L_initok{ty}:
s_mov_b64 exec, {5 if ty == 0 else 2}
buffer_atomic_add v{VONE}, v{VF1}, {s(S_WS,4)}, s{T0} offen sc1
s_mov_b64 exec, -1
s_nop 0
""")
                    stamp(a, 2)
                    a(f"L_drained{ty}:")
                if t == 10:
                    a(f"s_mov_b32 m0, s{WPM}")
                    a("s_nop 0")
                    a(f"buffer_load_dwordx4 v1, {s(S_MISC,4)}, s{WPK} offen lds")
                m = mfmas(t); r_ = reads(t + 1)
                if deferred and t >= 7 + P["DQ"]:
                    assert t < SIG
                    n_ = 2 if len(deferred) > 3 else 3
                    r_ = r_ + ["s_nop 0", "s_nop 0"] + [y for x_ in deferred[:n_] for y in (x_, "s_nop 0", "s_nop 0")][:-2]
                    deferred = deferred[n_:]
                    r_ = [y for y in r_ if y != "s_nop 0"] if False else r_
                if t == 13: r_ = r_ + rdp
                if t == 14: r_ = r_ + xr
                weave(m, r_, 2 if len(m) == 16 else 3, xswitch(t + 1))
            a("s_waitcnt lgkmcnt(0)")
            m = mfmas(8*ps + 7)
            if ps == 0:
                a("s_barrier")
                offs = L(f"""
s_xor_b32 s{T0+1}, s{SX}, {(XKA if ty == 0 else XQA)*256}
s_lshl_b32 s{T0+1}, s{T0+1}, {11 if ty == 0 else 10}
s_add_u32 s{T0+1}, s{T0+1}, {WS_KV if ty == 0 else WS_QF}
s_add_u32 s{T0+2}, s{T0+1}, {131072 if ty == 0 else 65536}
s_xor_b32 s{T0+5}, s{SX}, {XVA*256}
s_lshl_b32 s{T0+5}, s{T0+5}, 11
s_add_u32 s{T0+5}, s{T0+5}, {WS_KV}
""")
                weave(m, xswitch(8) + offs, 2)
                stamp(a, 3)
                a("s_nop 11" if ty == 1 else "s_nop 9")
                for tt in range(2):
                    if ty == 1:
                        for i in range(0, 16, 2):
                            a(f"v_pk_mul_f32 {v(AQK[tt]+i,2)}, {v(AQK[tt]+i,2)}, {s(SL,2)} op_sel:[0,1] op_sel_hi:[1,1]")
                    for i in range(8):
                        a(f"v_cvt_pk_bf16_f32 v{PK+8*tt+i}, v{AQK[tt]+2*i}, v{AQK[tt]+1+2*i}")
                    for hd in range(2):
                        x_ = f"buffer_store_dwordx4 {v(PK+8*tt+4*hd,4)}, v{2 if ty == 0 else 1}, {s(S_WS,4)}, s{T0+1+hd} offen offset:{tt*(2048 if ty == 0 else 1024)} sc1"
                        if ty == 1 and P["DQ"]: deferred.append(x_)
                        else: a(x_)
                if ty == 0:
                    for tt in range(2):
                        for i in range(8):
                            a(f"v_cvt_pk_bf16_f32 v{PK+16+8*tt+i}, v{AV[tt]+2*i}, v{AV[tt]+1+2*i}")
                        a(f"buffer_store_dwordx4 {v(PK+16+8*tt,4)}, v11, {s(S_WS,4)}, s{T0+5} offen offset:{tt*2048+1024} sc1")
                        a(f"buffer_store_dwordx4 {v(PK+20+8*tt,4)}, v11, {s(S_WS,4)}, s{T0+5} offen offset:{tt*2048+1280} sc1")
                x_ = f"global_load_dword v{VFLG}, v{VZ}, s[22:23] sc1"
                if deferred: deferred.append(x_)
                else: a(x_)
                stamp(a, 4)
                a(".p2align 3")
            else:
                a("s_nop 0")
                fill = L(VINIT) + ZERO_O + [f"v_add_u32 v{ADDR}, {R2}, v1", "v_mov_b64 v[42:43], 0"]
                weave(m, fill, 3 if len(m) == 16 else 4)
        if ty == 0: a("s_branch L_epiB")
    a("L_epiB:")
    stamp(a, 5); stamp(a, 1, 3)
    PB, PV = 224, 144
    FB = {(0,0): 160, (0,1): 176, (1,0): 192, (1,1): 208}
    a(f"""
s_xor_b32 s{T0+3}, s{SX}, {XQB*256}
s_lshl_b32 s{T0+3}, s{T0+3}, 11
s_add_u32 s{T0+3}, s{T0+3}, {WS_PHQ}
s_add_u32 s{T0+4}, s{T0+3}, 131072
s_xor_b32 s{T0+1}, s{S_HQ}, {XKB}
s_lshl_b32 s{T0+1}, s{T0+1}, 1
s_add_u32 s{T0+1}, s{T0+1}, s{PP}
s_lshl_b32 s{T0+1}, s{T0+1}, 5
s_add_u32 s{T0+1}, s{T0+1}, s{S_TB}
s_lshl_b32 s{T0+1}, s{T0+1}, 1
s_add_u32 s{T0+1}, s{T0+1}, s{TT}
s_lshl_b32 s{T0+1}, s{T0+1}, 12
s_add_u32 s{T0+1}, s{T0+1}, {WS_KVP}
s_add_u32 s{T0+5}, s{T0+1}, 131072
""")
    for tt in range(2):
        for i in range(8):
            a(f"v_cvt_pk_bf16_f32 v{PB+8*tt+i}, v{AQK[tt]+2*i}, v{AQK[tt]+1+2*i}")
            if tt == 1 and i in (1, 5):
                hd = i // 4
                a(f"v_mfma_f32_32x32x16_bf16 {v(FB[(0,hd)],16)}, {v(WPHI[hd],4)}, {v(PB+4*hd,4)}, 0")
    for tt in range(2):
        for i in range(8):
            a(f"v_cvt_pk_bf16_f32 v{PV+8*tt+i}, v{AV[tt]+2*i}, v{AV[tt]+1+2*i}")
            if tt == 0 and i in (1, 5):
                hd = i // 4
                a(f"v_mfma_f32_32x32x16_bf16 {v(FB[(1,hd)],16)}, {v(WPHI[hd],4)}, {v(PB+8+4*hd,4)}, 0")
    a.emit(ZSB)
    a.emit([f"v_mov_b64 {v(PB+i,2)}, v[244:245]" for i in range(0, 16, 2)])
    stamp(a, 2, 3)
    a.emit(rr(*[[x for x in softmax16(FB[k_], 48 + 4*i) if x != "s_nop 0"] for i, k_ in enumerate(((0,0), (0,1), (1,0), (1,1)))]))
    stamp(a, 3, 3)
    a(f"""
s_sub_u32 s{T0+2}, s{P_PHQ}, {WS_PHQ + 2048}
s_lshr_b32 s{T0+2}, s{T0+2}, 1
s_lshl_b32 s{P_KVB}, s{S_H}, 17
s_add_u32 s{P_KVB}, s{P_KVB}, {WS_KV}
s_lshl_b32 s{P_KVG}, s{S_WAVE}, 12
s_add_u32 s{P_KVG}, s{P_KVG}, {R2 - LEAD*4096}
""")
    stamp(a, 6); stamp(a, 4, 3)
    a(f"""
s_barrier
s_setprio 3
buffer_load_dwordx4 {v(QA,4)}, v1, {s(S_WS,4)}, s{T0+2} offen sc1
buffer_load_dwordx4 {v(QB,4)}, v1, {s(S_WS,4)}, s{T0+2} offen offset:1024 sc1
ds_read_b64 v[38:39], v243
ds_read_b128 {v(KS[0],4)}, v{ADDR}
s_mov_b64 exec, {s(SL+2,2)}
ds_read_b128 {v(VS[0],4)}, v{ADDR} offset:1024
ds_read_b128 {v(VS[0]+4,4)}, v{ADDR} offset:1280
s_mov_b64 exec, -1
v_subrev_u32 v{ADDR}, {2*LEAD*2048}, v{ADDR}
{TYC}
s_cbranch_scc1 L_kv
s_waitcnt lgkmcnt(0)
""")
    a.emit(fm)
    a("s_waitcnt vmcnt(0)")
    a(f"v_mfma_f32_32x32x16_bf16 {v(SA,16)}, {v(KS[0],4)}, {v(QA,4)}, {v(NMA,16)}")
    stamp(a, 7)
    for hd in range(2):
        for tt in range(2):
            a(f"buffer_store_dwordx4 {v(FB[(tt,hd)],4)}, v1, {s(S_WS,4)}, s{T0+3+hd} offen offset:{tt*2048} sc1")
            a(f"buffer_store_dwordx4 {v(FB[(tt,hd)]+4,4)}, v1, {s(S_WS,4)}, s{T0+3+hd} offen offset:{tt*2048+1024} sc1")
    a("s_nop 1")
    stamp(a, 8)
    a(f"s_branch L_slot{LEAD}")
    a("L_kv:")
    V0 = PB
    KVA = [SA, FB[(0,0)]]
    for hd in range(2):
        for tt in range(2):
            a(f"ds_write_b128 v240, {v(FB[(tt,hd)],4)} offset:{tt*2048}")
            a(f"ds_write_b128 v241, {v(FB[(tt,hd)]+4,4)} offset:{tt*2048}")
        for tt in range(2):
            for sx in range(2):
                for rd in range(2):
                    a(f"ds_read_b64_tr_b16 {v(FB[(tt,hd)]+8+4*sx+2*rd,2)}, v242 offset:{tt*2048+(16*sx+8*rd)*64}")
        for i in range(8*hd, 8*hd + 8):
            a(f"v_permlane16_swap_b32 v{PV+i}, v{V0+i}")
    a("s_waitcnt lgkmcnt(0)")
    if P["KVP"] < 3: a(f"s_setprio {P['KVP']}")
    k_ = 0
    for hd in range(2):
        for tt in range(2):
            for sx in range(2):
                c = "0" if (tt == 0 and sx == 0) else v(KVA[hd],16)
                a(f"v_mfma_f32_32x32x16_bf16 {v(KVA[hd],16)}, {v(FB[(tt,hd)]+8+4*sx,4)}, {v((PV, V0)[hd]+8*tt+4*sx,4)}, {c}")
                a.emit(fm[k_:k_+3]); k_ += 3
    for q in range(4):
        a(f"buffer_store_dwordx4 {v(KVA[0]+4*q,4)}, v1, {s(S_WS,4)}, s{T0+1} offen offset:{q*1024} sc1")
    a("s_waitcnt vmcnt(4)")
    a("s_nop 0")
    a(f"v_mfma_f32_32x32x16_bf16 {v(SA,16)}, {v(KS[0],4)}, {v(QA,4)}, {v(NMA,16)}")
    stamp(a, 7)
    a("s_nop 4")
    for q in range(4):
        a(f"buffer_store_dwordx4 {v(KVA[1]+4*q,4)}, v1, {s(S_WS,4)}, s{T0+5} offen offset:{q*1024} sc1")
    a("s_nop 1")
    stamp(a, 8)
    a(f"s_branch L_slot{LEAD}")
    a("L_mark_c1:")

    def e(b, i): return f"v_exp_f32 v{b+i}, v{b+i}"
    def sm(o, vv, p): return f"v_smfmac_f32_32x32x32_bf16 {v(o,16)}, {v(vv,4)}, {v(p,8)}, v{IDX}"
    def slot(base, last=False, bg=None):
        bg = bg or {}
        o = []
        k = [0]
        def ex(b, i):
            o.append(e(b, i))
            o.extend(bg.get(k[0], []))
            k[0] += 1
        for c in range(2):
            n = c ^ 1
            off = base + (c + 1) * 2048
            pf = not (last and c == 1)
            if pf: o.append(f"ds_read_b128 {v(KS[n],4)}, v{ADDR} offset:{off}")
            ex(SA,0); ex(SA,1)
            o.append(sm(OB, VS[n]+4, SB+8))
            vr = [f"s_mov_b64 exec, {s(SL+2,2)}", f"ds_read_b128 {v(VS[n],4)}, v{ADDR} offset:{off+1024}",
                  f"ds_read_b128 {v(VS[n]+4,4)}, v{ADDR} offset:{off+1280}", "s_mov_b64 exec, -1"] if pf else []
            if P["PV"] == 0: o.extend(vr)
            PS, PL = P["PS"], P["PLO"]
            for i in range(2, PS): ex(SA,i)
            o.append(f"v_mfma_f32_32x32x16_bf16 {v(SB,16)}, {v(KS[c],4)}, {v(QB,4)}, {v(NMB,16)}")
            if P["PV"] == 1: o.extend(vr)
            for i in range(PS, PL): ex(SA,i)
            o.append(sm(OA, VS[c], SA))
            for i in range(PL, 16): ex(SA,i)
            ex(SB,0); ex(SB,1)
            o.append(sm(OA, VS[c]+4, SA+8))
            for i in range(2, PS): ex(SB,i)
            if pf:
                o.append("s_waitcnt lgkmcnt(0)")
                o.append(f"v_mfma_f32_32x32x16_bf16 {v(SA,16)}, {v(KS[n],4)}, {v(QA,4)}, {v(NMA,16)}")
            for i in range(PS, PL): ex(SB,i)
            o.append(sm(OB, VS[c], SB))
            for i in range(PL, 16): ex(SB,i)
        return o
    def spread(bg, items, lo, hi):
        n = len(items)
        for i, it in enumerate(items):
            pos = lo + (i * (hi - lo + 1)) // n
            bg.setdefault(pos, []).extend(it if isinstance(it, list) else [it])
    BG = {sl: {} for sl in range(NS)}
    M16 = "0x00ff00ff"
    assert LEAD == 2 and (BD, BA, BW) == (4, 8, 12) and P["NOBD"]
    G0 = POOL + 12
    spread(BG[1], [f"ds_write_b128 v{POOL+18}, {v(POOL+36,4)}"], 30, 30)
    spread(BG[1], [[f"ds_read_b64_tr_b16 {v(POOL,2)}, v{POOL+9}", f"ds_read_b64_tr_b16 {v(POOL+2,2)}, v{POOL+9} offset:512"]], 40, 40)
    spread(BG[1], [f"buffer_store_dwordx4 {v(POOL,4)}, v1, {s(S_WS,4)}, s{WD} offen sc1",
        ["s_mov_b32 exec_lo, 1", "s_mov_b32 exec_hi, 1", f"buffer_store_dword v{G0}, v{POOL+19}, {s(S_WS,4)}, s{GO} offen sc1", "s_mov_b64 exec, -1"]], 58, 62)
    if not P["NOBD"]: spread(BG[0], kvgrp(P_KVG, 5*4096) + kvgrp(P_KVG, R2 + 3*4096), 0, 19)
    spread(BG[P["CLS"]], [f"buffer_store_dwordx4 v[44:47], v1, {s(S_WS,4)}, s{P_OF} offen sc1",
        [f"s_add_u32 s{T0}, s{P_OF}, {OBR}", f"buffer_store_dwordx4 v[44:47], v1, {s(S_WS,4)}, s{T0} offen sc1"],
        [f"s_cmp_lg_u32 s{KH}, 0", f"s_cselect_b32 exec_lo, 0, {M16}", "s_mov_b32 exec_hi, 0", f"buffer_store_dword v44, v43, {s(S_WS,4)}, s{P_KVT} offen sc1", "s_mov_b64 exec, -1"]], 10, 56)
    spread(BG[BD], kvgrp(P_KVG, 9*4096), 8, 56)
    spread(BG[BA], kvgrp(P_KVG, 13*4096), 14, 38)
    spread(BG[C0+1], [[f"s_cmp_lg_u32 s{KH}, 0", "s_cbranch_scc1 L_skipA", f"buffer_load_dword v41, v{VZ}, {s(S_WS,4)}, s{P_F2} offen sc1", "L_skipA:"]], P["Q1"], P["Q1"])
    l1a = [f"s_cmp_lg_u32 s{KH}, 0", "s_cbranch_scc1 L_skipB", "s_waitcnt vmcnt(0)", f"v_readfirstlane_b32 s{T0+6}, v41",
           f"s_add_u32 s{T0}, s{P_KVS}, 32768", f"s_add_u32 s{T0+1}, s{P_KVS}, 65536", f"s_add_u32 s{T0+2}, s{P_KVS}, 98304",
           f"s_cmp_lt_u32 s{T0+6}, 32", "s_cbranch_scc1 L_flagspin", "L_flagok:"]
    for p in range(4):
        l1a.append(f"buffer_load_dwordx4 {v(POOL+4*p,4)}, v42, {s(S_WS,4)}, s{P_KVS if p == 0 else T0+p-1} offen sc1")
    l1a.append("L_skipB:")
    spread(BG[C0+2], [l1a], P["Q2"], P["Q2"])
    l1b = ["s_waitcnt vmcnt(0)", f"s_cmp_lg_u32 s{KH}, 0", "s_cbranch_scc1 L_skipC"]
    for i in range(4): l1b.append(f"v_add_f32 v{POOL+i}, v{POOL+i}, v{POOL+4+i}")
    for i in range(4): l1b.append(f"v_add_f32 v{POOL+8+i}, v{POOL+8+i}, v{POOL+12+i}")
    for i in range(4): l1b.append(f"v_add_f32 v{POOL+i}, v{POOL+i}, v{POOL+8+i}")
    l1b += L(f"""
v_permlane32_swap_b32 v{POOL}, v{POOL+1}
s_nop 0
v_permlane32_swap_b32 v{POOL+2}, v{POOL+3}
v_add_f32 v{POOL}, v{POOL}, v{POOL+1}
s_nop 0
v_add_f32 v{POOL+2}, v{POOL+2}, v{POOL+3}
s_nop 1
v_permlane16_swap_b32 v{POOL}, v{POOL+2}
s_nop 1
v_add_f32 v{POOL}, v{POOL}, v{POOL+2}
s_nop 1
v_add_f32_dpp v{POOL}, v{POOL}, v{POOL} row_ror:8 row_mask:0xf bank_mask:0xf
v_mov_b32 v{POOL+1}, v{POOL}
s_nop 1
v_permlane32_swap_b32 v{POOL}, v{POOL+1}
s_nop 1
v_cvt_pk_bf16_f32 v40, v{POOL}, v{POOL+1}
v_min_u32 v40, -2, v40
s_mov_b32 exec_lo, {M16}
s_mov_b32 exec_hi, 0
buffer_store_dword v40, v43, {s(S_WS,4)}, s{P_KVT} offen sc1
s_mov_b64 exec, -1
L_skipC:
""")
    spread(BG[C0+3], [l1b], P["Q3"], P["Q3"])
    if BS == BD: assert C0 + 3 < BA
    CB = C0 + 4
    spread(BG[CB], L(f"""
v_and_b32 v42, 7, v0
v_lshlrev_b32 v42, 8, v42
s_mov_b32 s{T0+5}, {WS_FL}
buffer_load_dword v41, v42, {s(S_WS,4)}, s{T0+5} offen sc1
"""), P["Q4"], P["Q4"] + 16)
    KT = OBF
    R = OBF + 16
    ktl = [f"buffer_load_dwordx4 {v(KT,4)}, v1, {s(S_WS,4)}, s{P_KVT} offen sc1",
           f"buffer_load_dwordx4 {v(KT+4,4)}, v1, {s(S_WS,4)}, s{P_KVT} offen offset:1024 sc1"]
    spread(BG[CB+1], [["s_waitcnt vmcnt(0)", "v_cmp_gt_u32 vcc, 32, v41"]], P["Q5"], P["Q5"])
    spread(BG[CB+1], [["s_cbranch_vccnz L_flag2spin", "L_flag2ok:"],
                      f"buffer_load_dwordx4 {v(PQ,4)}, v1, {s(S_WS,4)}, s{P_PHQ} offen sc1",
                      f"buffer_load_dwordx4 {v(PQ+4,4)}, v1, {s(S_WS,4)}, s{P_PHQ} offen offset:1024 sc1"] + ktl, P["Q5"] + 4, 60)
    ktc = L(f"""
v_max3_u32 v40, v{KT}, v{KT+1}, v{KT+2}
v_max3_u32 v41, v{KT+3}, v{KT+4}, v{KT+5}
v_max3_u32 v40, v40, v{KT+6}, v{KT+7}
v_max_u32 v40, v40, v41
v_cmp_eq_u32 vcc, -1, v40
""")
    q6 = P["Q6"]
    spread(BG[CB+2], [["s_waitcnt vmcnt(0)", ktc[0]]] + ktc[1:], q6, q6 + 5)
    spread(BG[CB+2], [["s_cbranch_vccnz L_ktspin", "L_ktok:", f"v_mfma_f32_32x32x16_bf16 {v(R,16)}, {v(KT,4)}, {v(PQ,4)}, 0"]], q6 + 8, q6 + 8)
    m2 = q6 + 23
    spread(BG[CB+2 + m2 // 64], [f"v_mfma_f32_32x32x16_bf16 {v(R,16)}, {v(KT+4,4)}, {v(PQ+4,4)}, {v(R,16)}"], m2 % 64, m2 % 64)
    o0 = max(0, m2 + 13 - 64)
    ob = [f"v_add_f32 v40, {f2u(1e-6):#x}, v{R+8}", "v_rcp_f32 v40, v40"]
    ob += [f"v_mul_f32 v{R+i}, v{R+i}, v40" for i in range(8)]
    ob += [f"v_cvt_pk_bf16_f32 v{KACC+i}, v{R+2*i}, v{R+2*i+1}" for i in range(4)]
    ob += [f"v_min_u32 v{KACC+i}, -2, v{KACC+i}" for i in range(4)]
    ob += [[f"s_add_u32 s{T0}, s{P_OF}, {OBR}", f"buffer_store_dwordx4 {v(KACC,4)}, v1, {s(S_WS,4)}, s{T0} offen sc1"]]
    spread(BG[CB+3], ob, o0, o0 + 24)
    wob = []
    for i in range(16):
        g = [f"buffer_load_dwordx4 {v(POOL+4*i,4)}, v1, {s(S_WS,4)}, s{P_WOB} offen offset:{(i&3)*1024} sc1"]
        if i & 3 == 3: g.append(f"s_add_u32 s{P_WOB}, s{P_WOB}, 4096")
        wob.append(g)
    def woa_dma():
        o = []
        for g in range(2):
            o.append([f"s_add_u32 m0, s{P_WOL}, {g*4096}", f"s_add_u32 s{T0+1}, s{P_WOF}, {g*4096}"])
            for i in range(4):
                o.append(f"buffer_load_dwordx4 v1, {s(S_WS,4)}, s{T0+1} offen offset:{i*1024} sc1 lds")
        return o
    if BS == BD:
        spread(BG[CB+3], wob[:4], 30, 60)
        spread(BG[BW], woa_dma(), 2, 60)
        spread(BG[BW+1], wob[4:10], 2, 60)
        spread(BG[BW+2], wob[10:], 2, 60)
        OBS, OBLO, OBHI, PLO, PHI = NS - 2, 4, 60, 4, 40
    else:
        spread(BG[CB+2], wob[:2], 62, 63)
        spread(BG[CB+3], wob[2:7], 28, 60)
        spread(BG[CB+4], wob[7:16], 2, 60)
        spread(BG[CB+5], woa_dma(), 2, 60)
        OBS, OBLO, OBHI, PLO, PHI = NS - 1, 0, 30, 32, 60
    def ob_loads():
        o = [[f"s_add_u32 s{T0}, s{P_OA}, {OBR}", f"s_add_u32 s{T0+1}, s{P_OA}, {OBR+4096}"]]
        for j in range(8):
            o.append(f"buffer_load_dwordx4 {v(OBF+4*j,4)}, v1, {s(S_WS,4)}, s{T0+j//4} offen offset:{(j&3)*1024} sc1")
        return o
    spread(BG[OBS], L(f"""
v_and_b32 v40, 31, v0
v_lshlrev_b32 v40, 2, v40
buffer_load_dword v{GV}, v40, {s(S_WS,4)}, s{P_G} offen sc1
""") + ob_loads(), OBLO, OBHI)
    spread(BG[NS-2], L(f"""
s_and_b32 s{T0+2}, s{S_WAVE}, 3
s_mul_i32 s{T0+3}, s{T0+2}, {EXS}
s_add_u32 s{T0+3}, s{T0+3}, {L_EX}
v_add_u32 v41, s{T0+3}, v1
v_lshlrev_b32 v2, 2, v0
v_add_u32 v42, s{T0+3}, v2
v_and_b32 v2, 12, v2
v_add_u32 v2, {L_FLAG}, v2
s_lshl_b32 s{T0+2}, s{T0+2}, 2
s_add_u32 s{T0+2}, s{T0+2}, {L_FLAG}
v_mov_b32 v43, s{T0+2}
"""), 5, 59)
    XRD = [f"ds_read_b128 {v(NMA,4)}, v41", f"ds_read_b128 {v(NMA+4,4)}, v41 offset:1024", f"ds_read_b32 v{NMA+8}, v42 offset:4096",
           f"ds_read_b128 {v(NMB,4)}, v41 offset:2048", f"ds_read_b128 {v(NMB+4,4)}, v41 offset:3072", f"ds_read_b32 v{NMB+8}, v42 offset:4352"]
    import copy
    BGL = copy.deepcopy(BG[NS-1])
    spread(BGL, [["s_waitcnt vmcnt(9)", "s_barrier"]], P["XB"], P["XB"])
    spread(BGL, XRD, max(P["XB"] + 1, 46), max(P["XB"] + 7, 52))
    bars = sorted(set([BS, BW, NS] + ([] if P["NOBD"] else [BD]) + ([] if P["NOBA"] else [BA])))
    REB = 9
    a(".p2align 6")
    for sl in range(NS):
        a(f"L_slot{sl}:")
        if 1 <= sl - 4 <= 12: stamp(a, sl - 4, 1)
        if sl < 12: stamp(a, sl + 1, 4)
        if sl == BD and BD != BS and not P["NOBD"]:
            a(f"s_cmp_lg_u32 s{KH}, 0")
            a("s_cbranch_scc1 L_nowaitD")
            a("s_waitcnt vmcnt(3)" if P["CLS"] < BD else "s_waitcnt vmcnt(0)")
            a("L_nowaitD:")
            a("s_barrier")
        if sl == BS:
            a("s_waitcnt vmcnt(0)")
            a("s_barrier")
            a(f"""
s_cmp_lg_u32 s{S_WAVE}, 0
s_cbranch_scc1 L_sig2done
s_lshl_b32 s{T0}, s{S_HQ}, 8
s_add_u32 s{T0}, s{T0}, {WS_FL}
v_mov_b32 v38, 1
s_mov_b64 exec, 1
buffer_atomic_add v38, v{VZ}, {s(S_WS,4)}, s{T0} offen sc1
s_mov_b64 exec, -1
L_sig2done:
""")
        if (sl == BW and not P["DIAG"] & 1) or (sl == BA and not P["NOBA"]):
            a("s_barrier")
        if True:
            nb = min(b for b in bars if b > sl)
            r_ = nb - sl - 1
            pb = max([0] + [b for b in bars if b <= sl])
            pr = min(3, r_) if nb - pb <= 5 else {0: 0, 1: 1, 2: 2, 3: 2, 4: 3, 5: 3}[r_]
            if P["PRI"] == 1 and nb - pb > 5: pr = {0: 0, 1: 0, 2: 1, 3: 2, 4: 2, 5: 3}[r_]
            if P["PRI"] == 2 and nb - pb > 5: pr = {0: 0, 1: 1, 2: 1, 3: 2, 4: 2, 5: 3}[r_]
            if P["PRI"] == 3: pr = (r_ & 1) * 2 if True else pr
            if P["PRI"] == 4 and nb - pb > 5: pr = {0: 0, 1: 1, 2: 2, 3: 3, 4: 3, 5: 3}[r_]
            if P["DIAG"] & 1 and sl >= BS: pr = 3 if sl < 10 else 2 if sl < 14 else 1 if sl < 16 else 0
            if P["DIAG"] & 2 and sl >= BW: pr = {12: 3, 13: 2, 14: 2, 15: 1, 16: 0}[sl]
            a(f"s_setprio {pr}")
        if sl == REB:
            a(f"v_add_u32 v{ADDR}, {REB*4096}, v{ADDR}")
        if sl == NS - 1:
            a(f"s_cmp_eq_u32 s{KH}, 0")
            a("s_cbranch_scc1 L_last0")
        a.emit(slot((sl - (REB if sl >= REB else 0)) * 4096, sl == NS - 1, BG[sl]))
    a(f"""
L_tail1:
s_setprio 3
s_nop 0
{sm(OB, VS[1]+4, SB+8)}
""")
    stamp(a, 9)
    a(f"""
ds_write_b128 v41, {v(OA,4)}
ds_write_b128 v41, {v(OA+4,4)} offset:1024
ds_write_b32 v42, v{OA+8} offset:4096
s_nop 8
ds_write_b128 v41, {v(OB,4)} offset:2048
ds_write_b128 v41, {v(OB+4,4)} offset:3072
ds_write_b32 v42, v{OB+8} offset:4352
s_waitcnt lgkmcnt(0) vmcnt(9)
s_barrier
s_waitcnt vmcnt(0)
s_branch L_join
.p2align 3
L_last0:
""")
    a.emit(slot((NS - 1 - REB) * 4096, True, BGL))
    a(f"""
L_tail0:
s_mov_b32 s{T0}, 0x7e800000
s_waitcnt lgkmcnt(0)
{sm(OB, VS[1]+4, SB+8)}
""")
    stamp(a, 9)
    a(f"""
s_add_u32 s{T0+1}, s{P_OF}, 32768
s_mov_b32 s{T0+2}, 0
""")
    def fin(o, x, dst, so, lab, bit):
        a(f"s_bitcmp1_b32 s{MODE}, {bit}")
        a(f"v_add_f32 v{o+8}, v{o+8}, v{x+8}")
        for i in range(0, 8, 2):
            a(f"v_pk_add_f32 {v(o+i,2)}, {v(o+i,2)}, {v(x+i,2)}")
        a(f"v_rcp_f32 v{o+10}, v{o+8}")
        a(f"v_add_f32 v38, abs(v{o}), abs(v{o+8})")
        a(f"v_add_f32 v39, abs(v{o+1}), abs(v{o+2})")
        for i in range(3, 8):
            a(f"v_add_f32 v{38+(i+1)%2}, v{38+(i+1)%2}, abs(v{o+i})")
        a("v_add_f32 v38, v38, v39")
        a(f"v_cmp_ngt_f32 vcc, s{T0}, v38")
        for i in range(0, 8, 2):
            a(f"v_pk_mul_f32 {v(o+i,2)}, {v(o+i,2)}, {v(o+10,2)} op_sel_hi:[1,0]")
        for i in range(4):
            a(f"v_cvt_pk_bf16_f32 v{dst+i}, v{o+2*i}, v{o+2*i+1}")
        for i in range(4):
            a(f"v_min_u32 v{dst+i}, -2, v{dst+i}")
        a(f"""
s_cbranch_scc1 {lab}_no
s_cbranch_vccnz {lab}
{lab}_st:
buffer_store_dwordx4 {v(dst,4)}, v1, {s(S_WS,4)}, s{so} offen sc1
{lab}_no:
""")
    fin(OA, NMA, KACC, P_OF, "L_ova", 0)
    stamp(a, 10)
    fin(OB, NMB, PQ, T0+1, "L_ovb", 1)
    stamp(a, 11)
    a(f"""
v_mov_b32 v45, s{T0+2}
ds_write_b32 v43, v45
s_waitcnt lgkmcnt(0) vmcnt(2)
L_join:
s_barrier
ds_read_b32 v45, v2
s_setprio 0
s_waitcnt lgkmcnt(0)
v_cmp_ne_u32 vcc, 0, v45
s_nop 4
s_cbranch_vccnz L_slow
""")
    OFA = 80
    ACCA = [112, 128]
    ACCB = 48
    a(f"""
s_mov_b32 s{T0+7}, 0
s_add_u32 s{T0+2}, s{P_OA}, 4096
L_obchk:
v_max3_u32 v40, v{OBF}, v{OBF+1}, v{OBF+2}
v_max3_u32 v41, v{OBF+3}, v{OBF+4}, v{OBF+5}
""")
    for i in range(6, 30, 4):
        a(f"v_max3_u32 v40, v40, v{OBF+i}, v{OBF+i+1}")
        a(f"v_max3_u32 v41, v41, v{OBF+i+2}, v{OBF+i+3}")
    a(f"""
v_max3_u32 v40, v40, v{OBF+30}, v{OBF+31}
v_max_u32 v40, v40, v41
v_cmp_eq_u32 vcc, -1, v40
s_bfe_u32 s{T0}, s{S_WAVE}, 0x10001
s_lshl_b32 s{T0}, s{T0}, 14
s_lshr_b32 s{T0+1}, s{S_WAVE}, 2
s_mul_i32 s{T0+1}, s{T0+1}, {R2}
s_add_u32 s{T0}, s{T0}, s{T0+1}
v_add_u32 v39, s{T0}, v1
s_cbranch_vccnz L_obretry
L_obok:
""")
    prep = L(f"""
v_and_b32 v12, 31, v0
v_lshrrev_b32 v13, 5, v0
s_lshl_b32 s{T0}, s{S_WAVE}, 13
v_lshlrev_b32 v4, 8, v12
v_add_u32 v4, s{T0}, v4
v_and_b32 v14, 7, v0
v_lshlrev_b32 v15, 2, v13
v_xor_b32 v14, v14, v15
v_lshl_add_u32 v4, v14, 4, v4
v_xor_b32 v5, 16, v4
v_xor_b32 v6, 32, v4
v_xor_b32 v7, 48, v4
v_lshrrev_b32 v14, 3, v0
v_and_b32 v15, 7, v0
v_lshlrev_b32 v8, 1, v15
v_xor_b32 v8, v8, v14
v_lshlrev_b32 v8, 4, v8
v_lshl_add_u32 v8, v14, 8, v8
s_lshl_b32 s{T0}, s{S_WAVE}, 11
v_add_u32 v8, s{T0}, v8
v_xor_b32 v9, 16, v8
v_lshlrev_b32 v10, 10, v14
v_lshl_add_u32 v10, v15, 4, v10
s_and_b32 s{T0}, s2, 31
s_lshl_b32 s{T0}, s{T0}, 16
s_lshl_b32 s{T0+1}, s{S_WAVE}, 13
s_add_u32 s{T0}, s{T0}, s{T0+1}
s_lshr_b32 s{T0+1}, s2, 5
s_lshl_b32 s{T0+1}, s{T0+1}, 7
s_add_u32 s{T0}, s{T0}, s{T0+1}
v_sub_f32 v38, 1.0, v{GV}
s_mov_b32 s{S_X}, s20
s_mov_b32 s{S_X+1}, s21
s_mov_b32 s{S_X+2}, {2048*512*2}
s_mov_b32 s{S_X+3}, 0x20000
""")
    k = 0
    def oa_load(j):
        return f"buffer_load_dwordx4 {v(OFA+4*j,4)}, v1, {s(S_WS,4)}, s{P_OA if j < 4 else T0+2} offen offset:{(j&3)*1024} sc1"
    nl = 0
    for j in range(8):
        for ct in range(2):
            c = v(ACCB+16*ct,16)
            a(f"v_mfma_f32_32x32x16_bf16 {c}, {v(POOL+8*j+4*ct,4)}, {v(OBF+4*j,4)}, {'0' if j==0 else c}")
            a(f"ds_read_b128 {v(POOL+8*j+4*ct,4)}, v39 offset:{(2*j+ct)*1024}")
            if 2*j + ct >= P["OAP"] and nl < 8:
                a(oa_load(nl)); nl += 1
            a.emit(prep[k:k+3]); k += 3
    while nl < 8:
        a(oa_load(nl)); nl += 1
    a("s_nop 11")
    for i in range(0, 32, 2):
        a(f"v_pk_mul_f32 {v(ACCB+i,2)}, {v(ACCB+i,2)}, v[38:39] op_sel_hi:[1,0]")
    a("s_waitcnt lgkmcnt(0)")
    a("s_barrier")
    for j in range(8):
        f = OFA + 4*j
        a(f"""
L_cons{j}:
s_waitcnt vmcnt({7-j})
v_max3_u32 v38, v{f}, v{f+1}, v{f+2}
v_max_u32 v38, v38, v{f+3}
v_cmp_eq_u32 vcc, -1, v38
s_nop 4
s_cbranch_vccnz L_retry{j}
L_go{j}:
""")
        for ct in range(2):
            c = v(ACCA[ct],16)
            a(f"v_mfma_f32_32x32x16_bf16 {c}, {v(POOL+8*j+4*ct,4)}, {v(f,4)}, {'0' if j==0 else c}")
    stamp(a, 12)
    a("s_nop 10")
    for ct in range(2):
        for i in range(0, 16, 2):
            a(f"v_pk_fma_f32 {v(ACCA[ct]+i,2)}, {v(ACCA[ct]+i,2)}, {v(GV,2)}, {v(ACCB+16*ct+i,2)} op_sel_hi:[1,0,1]")
        for q in range(4):
            a(f"ds_write_b128 v{4+q}, {v(ACCA[ct]+4*q,4)} offset:{ct*128}")
    a(f"""
s_waitcnt lgkmcnt(0)
s_barrier
""")
    for kq in range(4):
        a(f"ds_read_b128 {v(16+8*kq,4)}, v8 offset:{kq*16384}")
        a(f"ds_read_b128 {v(20+8*kq,4)}, v9 offset:{kq*16384}")
    for kq in range(1, 4):
        a(f"s_waitcnt lgkmcnt({6-2*kq})")
        for i in range(0, 8, 2):
            a(f"v_pk_add_f32 {v(16+i,2)}, {v(16+i,2)}, {v(16+8*kq+i,2)}")
    for i in range(4):
        a(f"v_cvt_pk_bf16_f32 v{16+i}, v{16+2*i}, v{17+2*i}")
    a(f"buffer_store_dwordx4 v[16:19], v10, {s(S_X,4)}, s{T0} offen sc1")
    stamp_out(a)
    a("L_end:")
    a("s_endpgm")
    a("L_mark_o:")
    for j in range(8):
        a(f"""
L_retry{j}:
s_add_u32 s{T0+7}, s{T0+7}, 1
s_cmp_ge_u32 s{T0+7}, {SPIN}
s_cbranch_scc1 L_go{j}
""")
        if P["RT"] == 1: a(f"s_sleep {P['RSL']}")
        if P["RT"] < 2:
            for jj in range(j, 8): a(oa_load(jj))
            a(f"s_branch L_cons{j}")
        else:
            f = OFA + 4*j
            if P["RSL"]: a(f"s_sleep {P['RSL']}")
            a(oa_load(j))
            a(f"""
s_waitcnt vmcnt(0)
v_max3_u32 v38, v{f}, v{f+1}, v{f+2}
v_max_u32 v38, v38, v{f+3}
v_cmp_eq_u32 vcc, -1, v38
s_nop 4
s_cbranch_vccnz L_retry{j}
""")
            for jj in range(j + 1, 8): a(oa_load(jj))
            a(f"s_branch L_go{j}")
    for bit, lab in enumerate(("L_ova", "L_ovb")):
        a(f"""
{lab}:
s_cmp_lg_u32 s{MODE}, 0
s_cbranch_scc1 {lab}_st
s_bitset1_b32 s{T0+2}, {bit}
s_branch {lab}_no
""")
    a(f"""
L_obretry:
s_add_u32 s{T0+7}, s{T0+7}, 1
s_cmp_ge_u32 s{T0+7}, {SPIN}
s_cbranch_scc1 L_obok
""")
    for g in ob_loads(): a.emit(g if isinstance(g, list) else [g])
    a(f"""
s_waitcnt vmcnt(0)
s_branch L_obchk
L_pollF1:
s_sleep {P["PSL"]}
buffer_load_dword v40, v41, {s(S_WS,4)}, s{T0} offen sc1
s_add_u32 s{T0+7}, s{T0+7}, 1
s_waitcnt vmcnt(0)
v_cmp_gt_u32 vcc, 16, v40
s_cmp_ge_u32 s{T0+7}, {SPIN}
s_cbranch_scc1 L_pollF1_ok
s_nop 2
s_cbranch_vccnz L_pollF1
s_branch L_pollF1_ok
L_sig1:
s_mov_b32 s{T0+7}, 0
L_initpoll:
s_sleep 4
global_load_dword v10, v{VZ}, s[22:23] sc1
s_add_u32 s{T0+7}, s{T0+7}, 1
s_waitcnt vmcnt(0)
v_readfirstlane_b32 s{T0+6}, v10
s_cmp_lg_u32 s{T0+6}, 0
s_cbranch_scc1 L_initdone
s_cmp_lt_u32 s{T0+7}, {SPIN}
s_cbranch_scc1 L_initpoll
L_initdone:
{TYC}
s_cbranch_scc1 L_initok1
s_branch L_initok0
L_flagspin:
s_mov_b32 s{T0+7}, 0
L_flagspin2:
s_sleep {P['SL1']}
buffer_load_dword v41, v{VZ}, {s(S_WS,4)}, s{P_F2} offen sc1
s_add_u32 s{T0+7}, s{T0+7}, 1
s_waitcnt vmcnt(0)
v_readfirstlane_b32 s{T0+6}, v41
s_cmp_ge_u32 s{T0+6}, 32
s_cbranch_scc1 L_flagok
s_cmp_lt_u32 s{T0+7}, {SPIN}
s_cbranch_scc1 L_flagspin2
s_branch L_flagok
L_flag2spin:
s_mov_b32 s{T0+7}, 0
L_flag2spin2:
s_sleep {P['SL2']}
buffer_load_dword v41, v42, {s(S_WS,4)}, s{T0+5} offen sc1
s_add_u32 s{T0+7}, s{T0+7}, 1
s_waitcnt vmcnt(0)
v_cmp_gt_u32 vcc, 32, v41
s_cmp_ge_u32 s{T0+7}, {SPIN}
s_cbranch_scc1 L_flag2ok
s_nop 2
s_cbranch_vccnz L_flag2spin2
s_branch L_flag2ok
L_ktspin:
s_mov_b32 s{T0+7}, 0
L_ktspin2:
s_sleep 8
""")
    a.emit(ktl)
    a(f"""
s_add_u32 s{T0+7}, s{T0+7}, 1
s_waitcnt vmcnt(0)
""")
    a.emit(ktc)
    a(f"""
s_cmp_ge_u32 s{T0+7}, {SPIN}
s_cbranch_scc1 L_ktok
s_nop 2
s_cbranch_vccnz L_ktspin2
s_branch L_ktok
""")
    a(f"""
L_slow:
s_barrier
s_and_b32 s{MODE}, s{T0+2}, 3
s_xor_b32 s{MODE}, s{MODE}, 7
s_lshl_b32 s{T0+1}, s{S_H}, 17
s_add_u32 s{T0+1}, s{T0+1}, {WS_KV}
s_add_u32 s{T0+1}, s{T0+1}, s{P_WOL}
""")
    for g in range(2):
        a(f"s_add_u32 m0, s{P_WOL}, {g*4096}")
        a(f"s_add_u32 s{T0+1}, s{T0+1}, {g*4096}")
        for i in range(4):
            a(f"buffer_load_dwordx4 v1, {s(S_WS,4)}, s{T0+1} offen offset:{i*1024} sc1 lds")
    a(f"""
s_mov_b32 s{CNT}, 0
v_mov_b32 v{ADDR}, v1
v_mov_b32 v38, 0xff800000
v_mov_b32 v39, 0xff800000
v_mov_b32 v47, v41
s_waitcnt vmcnt(0)
s_barrier
L_mloop:
ds_read_b128 {v(KS[0],4)}, v{ADDR}
s_waitcnt lgkmcnt(0)
v_mfma_f32_32x32x16_bf16 {v(SA,16)}, {v(KS[0],4)}, {v(QA,4)}, 0
v_mfma_f32_32x32x16_bf16 {v(SB,16)}, {v(KS[0],4)}, {v(QB,4)}, 0
s_nop 15
""")
    a.emit(rr(maxtree(38, SA, 1), maxtree(39, SB, 1)))
    a(f"""
v_add_u32 v{ADDR}, 2048, v{ADDR}
s_add_u32 s{CNT}, s{CNT}, 1
s_cmp_lt_u32 s{CNT}, 64
s_cbranch_scc1 L_mloop
""")
    a(NEGM)
    a(f"""
s_lshl_b32 s{T0}, s{KH}, 16
v_add_u32 v{ADDR}, s{T0}, v1
s_mov_b32 s{CNT}, 0
ds_read_b128 {v(KS[0],4)}, v{ADDR}
s_mov_b64 exec, {s(SL+2,2)}
ds_read_b128 {v(VS[0],4)}, v{ADDR} offset:1024
ds_read_b128 {v(VS[0]+4,4)}, v{ADDR} offset:1280
s_mov_b64 exec, -1
""")
    a.emit(fm); a.emit(ZERO_O); a.emit(ZSB)
    a(f"""
s_waitcnt lgkmcnt(0)
v_mfma_f32_32x32x16_bf16 {v(SA,16)}, {v(KS[0],4)}, {v(QA,4)}, {v(NMA,16)}
s_nop 15
L_sloop:
""")
    a.emit(slot(0))
    a(f"""
v_add_u32 v{ADDR}, 4096, v{ADDR}
s_add_u32 s{CNT}, s{CNT}, 1
s_cmp_lt_u32 s{CNT}, 16
s_cbranch_scc1 L_sloop
v_mov_b32 v41, v47
s_barrier
""")
    for g in woa_dma(): a.emit(g if isinstance(g, list) else [g])
    a("s_waitcnt vmcnt(0)")
    a(f"s_cmp_lg_u32 s{KH}, 0")
    a("s_cbranch_scc1 L_tail1")
    a("s_barrier")
    a.emit(XRD)
    a("s_branch L_tail0")
    a("L_codeend:")
    a("s_endpgm")
    return kd(NAME, 256, 102)

HEAD = """; gated mix of softmax attention and hedgehog linear attention -- hand-written gfx950 kernel
; @launch grid=(256,1,1) block=(512,1,1) lds=163840
.amdgcn_target "amdgcn-amd-amdhsa--gfx950"
"""
if __name__ == "__main__":
    rt = False
    for o in sys.argv[2:]:
        if o == "st": P["STAMPS"] = 1
        elif o == "rt": rt = True
        else:
            k_, v_ = o.split("="); assert k_.upper() in P, k_; P[k_.upper()] = int(v_)
    a = Asm()
    k = gen(a)
    ls = a.lines
    c0, c1, o = ls.index("L_mark_c0:"), ls.index("L_mark_c1:"), ls.index("L_mark_o:")
    if P["LAY"]:
        head = ls[:c0-1]
        mid = [x for x in ls[c1+1:o]]
        if mid[0] == ".p2align 6": mid[0] = ".p2align 3"
        ls = head + mid + [".p2align 3"] + ls[c0+1:c1] + ls[o+1:]
    else:
        ls = [x for x in ls if not x.startswith("L_mark")]
    a.lines = ls
    txt = a.text()
    if rt: txt = txt.replace("s_memtime", "s_memrealtime")
    open(sys.argv[1], "w").write(HEAD + txt + k)
```

```python
import sys, struct
from asmlib import *

NAME = "gated_mix__mha_block__linear_kernel_hedgehog__prompt_kernel"
LOG2E = 1.4426950408889634
def f2u(x): return struct.unpack("<I", struct.pack("<f", x))[0]

WS_QF  = 0
WS_KV  = 2 << 20
WS_PHQ = 6 << 20
WS_KVP = 10 << 20
WS_OF  = 14 << 20
WS_G   = 18 << 20
WS_KVT = (18 << 20) + 65536
WS_WOF = (18 << 20) + 131072
WS_FL  = WS_WOF + (1 << 20)
WS_SIZE = WS_FL + 32 * 256
WS_ST = 20 << 20
OBR = 64 * 32 * 1024

P = dict(STAMPS=0, STMODE=0, SPIN=400000, SIGC=1, LOOK=3, RPG=3, LEAD=2, CPF=1, XAH=0, PSL=2,
         KVS=4, PACE=0, PACK=0, TLB=0, WF=0, WBT=0, MIX=1, RT=0, RSL=4, OAP=8, HOLD=0, MPF=0, Q1=56, Q2=10, Q3=30, Q4=40, Q5=24, Q6=22, SH=0, PER2=2, PER1=3, DQ=0, EB=9, HP=6, KVP=3, HELP=0, GM0=80, GM1=120, WO0=90, WO1=140, HB=0, MAPT=1, SIG0=1, SIG1=1, SL1=16, SL2=32, KF=0, QCUT=0, NOPK=0, PV=1, PS=5, PLO=12, PRI=0, LAY=0, SWO=0, EF1=0, SIDEK=13, XB=40, NOBD=1, NOBA=1, RLIM=11, EARLYB=0, QLATE=0, PRE=2, L1=9, RFIRST=1, CLS=3, BS=6, BD=4, BA=8, BW=12, DBG=0, ROTC=1, DIAG=0)

S_X, S_WA, S_WB, S_WS, S_MISC = 28, 32, 36, 40, 44
S_WAVE, S_HQ, S_TB, S_ROT = 48, 49, 50, 51
S_H, S_RB = 26, 27
T0 = 52
SL = 60
CNT, MODE, EVM, TT, PP, SX = 64, 65, 66, 67, 68, 69
P_KVG, P_KVB = 66, 67
P_OF, P_F2, P_KVS, P_KVT, P_PHQ, P_WOF, P_WOB, P_OA, P_G, P_WOL, KH = 4, 5, 6, 7, 8, 9, 10, 11, 0, 1, 3

XL, WL, WSLOT = 0, 65536, 24576
L_QH, L_WOS, L_CMB = 52*1024, 156*1024, 128*1024
L_FLAG, L_EX, EXS = 136*1024, 137*1024, 4608

QA, QB, KS, VS, IDX, ADDR = 4, 8, [12, 16], [20, 28], 36, 37
NMA, NMB, SA, SB, OA, OB = 48, 64, 80, 96, 112, 128
POOL, OBF, KACC, PQ, GV = 144, 208, 240, 244, 252
VZ = 3
L = lambda t: [x.strip() for x in t.strip().split("\n") if x.strip()]

def stamp(a, i, mode=0):
    if P["STAMPS"] and mode == P["STMODE"]:
        a(f"s_memtime s[{70+2*i}:{71+2*i}]")
def stamp_out(a):
    if not P["STAMPS"]:
        return
    a("s_mov_b64 exec, -1")
    a("s_memrealtime s[100:101]")
    a("s_waitcnt lgkmcnt(0) vmcnt(0)")
    a("s_memtime s[96:97]")
    a("s_waitcnt lgkmcnt(0)")
    srd(a, 40, 24, 25, WS_ST + (1 << 20))
    a(f"s_lshl_b32 s3, s2, 3")
    a(f"s_add_u32 s3, s3, s{S_WAVE}")
    a(f"s_lshl_b32 s3, s3, 6")
    a(f"s_add_u32 s3, s3, {WS_ST}")
    a("v_mov_b32 v1, 0")
    for i in range(16):
        a(f"v_mov_b32 v2, s{70+2*i}")
        a(f"buffer_store_dword v2, v1, s[40:43], s3 offen offset:{4*i}")
    a("s_waitcnt vmcnt(0)")

def softmax16(b, t):
    o = [f"v_max3_f32 v{t}, v{b}, v{b+1}, v{b+2}"]
    for i in range(3, 15, 2):
        o.append(f"v_max3_f32 v{t}, v{t}, v{b+i}, v{b+i+1}")
    o.append(f"v_max_f32 v{t}, v{t}, v{b+15}")
    o.append(f"v_mul_f32 v{t}, {f2u(-LOG2E):#x}, v{t}")
    for i in range(0, 16, 2):
        o.append(f"v_pk_fma_f32 {v(b+i,2)}, {v(b+i,2)}, {s(SL,2)}, {v(t,2)} op_sel_hi:[1,0,0]")
    for i in range(16):
        o.append(f"v_exp_f32 v{b+i}, v{b+i}")
    o.append(f"v_pk_add_f32 {v(t+2,2)}, {v(b,2)}, {v(b+2,2)}")
    for i in range(4, 16, 2):
        o.append(f"v_pk_add_f32 {v(t+2,2)}, {v(t+2,2)}, {v(b+i,2)}")
    o.append(f"v_add_f32 v{t}, v{t+2}, v{t+3}")
    o.append(f"v_rcp_f32 v{t}, v{t}")
    o.append("s_nop 0")
    for i in range(0, 16, 2):
        o.append(f"v_pk_mul_f32 {v(b+i,2)}, {v(b+i,2)}, {v(t,2)} op_sel_hi:[1,0]")
    for i in range(8):
        o.append(f"v_cvt_pk_bf16_f32 v{b+i}, v{b+2*i}, v{b+2*i+1}")
    return o

def unpk(x):
    import re
    m = re.match(r"v_pk_fma_f32 v\[(\d+):\d+\], v\[(\d+):\d+\], s\[(\d+):\d+\], v\[(\d+):\d+\]", x)
    if m:
        d, a_, s_, t = map(int, m.groups())
        return f"v_fma_f32 v{d}, v{a_}, s{s_}, v{t}\nv_fma_f32 v{d+1}, v{a_+1}, s{s_}, v{t}"
    m = re.match(r"v_pk_add_f32 v\[(\d+):\d+\], v\[(\d+):\d+\], v\[(\d+):\d+\]", x)
    if m:
        d, a_, b = map(int, m.groups())
        return f"v_add_f32 v{d}, v{a_}, v{b}\nv_add_f32 v{d+1}, v{a_+1}, v{b+1}"
    m = re.match(r"v_pk_mul_f32 v\[(\d+):\d+\], v\[(\d+):\d+\], v\[(\d+):\d+\] op_sel_hi:\[1,0\]", x)
    if m:
        d, a_, b = map(int, m.groups())
        return f"v_mul_f32 v{d}, v{a_}, v{b}\nv_mul_f32 v{d+1}, v{a_+1}, v{b}"
    m = re.match(r"v_mov_b64 v\[(\d+):\d+\], v\[(\d+):\d+\]", x)
    if m:
        d, a_ = map(int, m.groups())
        return f"v_mov_b32 v{d}, v{a_}\nv_mov_b32 v{d+1}, v{a_+1}"
    return x

def tr64_addr(a, dst, tmp, base_sgpr):
    a(f"""
v_bfe_u32 v{tmp}, v0, 2, 2
v_lshlrev_b32 v{dst}, 6, v{tmp}
v_lshrrev_b32 v{tmp}, 5, v0
v_lshl_add_u32 v{dst}, v{tmp}, 8, v{dst}
v_and_b32 v{tmp}, 1, v0
v_lshl_add_u32 v{dst}, v{tmp}, 5, v{dst}
v_bfe_u32 v{tmp}, v0, 4, 1
v_lshl_add_u32 v{dst}, v{tmp}, 4, v{dst}
v_bfe_u32 v{tmp}, v0, 1, 1
v_lshl_add_u32 v{dst}, v{tmp}, 3, v{dst}
v_add_u32 v{dst}, s{base_sgpr}, v{dst}
""")

def persist(a, kh, R2, xkb):
    a(f"""
s_mov_b32 s{KH}, {kh}
s_and_b32 s{T0}, s{S_WAVE}, 3
s_lshl_b32 s{T0+1}, s{S_RB}, 3
s_lshl_b32 s{T0+2}, s{T0}, 1
s_add_u32 s{T0+1}, s{T0+1}, s{T0+2}
s_add_u32 s{T0+1}, s{T0+1}, {kh}
s_lshl_b32 s{P_OF}, s{T0+1}, 5
s_add_u32 s{P_OF}, s{P_OF}, s{S_H}
s_lshl_b32 s{P_OF}, s{P_OF}, 10
s_add_u32 s{P_OF}, s{P_OF}, {WS_OF}
s_lshl_b32 s{P_PHQ}, s{S_H}, 6
s_add_u32 s{P_PHQ}, s{P_PHQ}, s{T0+1}
s_lshl_b32 s{P_PHQ}, s{P_PHQ}, 11
s_add_u32 s{P_PHQ}, s{P_PHQ}, {WS_PHQ}
s_lshr_b32 s{P_F2}, s{S_H}, 2
s_xor_b32 s{P_F2}, s{P_F2}, {xkb}
s_lshl_b32 s{P_F2}, s{P_F2}, 8
s_add_u32 s{P_F2}, s{P_F2}, {WS_FL}
s_lshl_b32 s{P_KVS}, s{S_H}, 17
s_lshl_b32 s{T0+2}, s{T0}, 10
s_add_u32 s{P_KVS}, s{P_KVS}, s{T0+2}
s_lshl_b32 s{T0+2}, s{S_RB}, 7
s_add_u32 s{P_KVS}, s{P_KVS}, s{T0+2}
s_add_u32 s{P_KVS}, s{P_KVS}, {WS_KVP}
s_lshl_b32 s{P_KVT}, s{S_H}, 11
s_add_u32 s{P_KVT}, s{P_KVT}, {WS_KVT}
s_lshr_b32 s{P_WOF}, s2, 5
s_lshl_b32 s{P_WOF}, s{P_WOF}, 17
s_add_u32 s{P_WOF}, s{P_WOF}, {WS_WOF}
s_lshr_b32 s{T0+1}, s{S_WAVE}, 1
s_lshl_b32 s{P_WOB}, s{T0+1}, 14
s_add_u32 s{P_WOB}, s{P_WOB}, s{P_WOF}
s_add_u32 s{P_WOB}, s{P_WOB}, 65536
s_lshl_b32 s{T0+2}, s{S_WAVE}, 13
s_add_u32 s{P_WOF}, s{P_WOF}, s{T0+2}
s_and_b32 s{P_OA}, s2, 31
s_lshl_b32 s{P_OA}, s{P_OA}, 1
s_and_b32 s{T0+2}, s{S_WAVE}, 1
s_add_u32 s{P_OA}, s{P_OA}, s{T0+2}
s_lshl_b32 s{P_G}, s{P_OA}, 7
s_add_u32 s{P_G}, s{P_G}, {WS_G}
s_lshl_b32 s{P_OA}, s{P_OA}, 5
s_lshl_b32 s{T0+1}, s{T0+1}, 3
s_add_u32 s{P_OA}, s{P_OA}, s{T0+1}
s_lshl_b32 s{P_OA}, s{P_OA}, 10
s_add_u32 s{P_OA}, s{P_OA}, {WS_OF}
s_lshl_b32 s{P_WOL}, s{T0}, 13
s_add_u32 s{P_WOL}, s{P_WOL}, {R2 if kh == 0 else 0}
""")

def gen(a):
    SPIN, LEAD = P["SPIN"], P["LEAD"]
    XQA, XKA, XVA, XQB, XKB = (1, 0, 2, 5, 4) if P["MIX"] else (0, 0, 0, 0, 0)
    TYB = 6 if P["MAPT"] == 0 else 5
    TYC = f"s_bitcmp1_b32 s2, {TYB}"
    NS = 16 + LEAD // 2
    R2 = 2 * NS * 2048
    BD, BA, BW, BS = P["BD"], P["BA"], P["BW"], P["BS"]
    C0 = BS
    assert BW >= LEAD + 8 and BW >= 8
    a(f""".text
.globl {NAME}
.p2align 8
.type {NAME},@function
{NAME}:
s_cmp_ge_u32 s2, 256
s_cbranch_scc1 L_end
""")
    if P["STAMPS"]:
        for i in range(70, 102): a(f"s_mov_b32 s{i}, 0")
        a("s_memtime s[70:71]")
        a("s_memrealtime s[98:99]")
    a(f"""
s_load_dwordx16 s[4:19], s[0:1], 0
s_load_dwordx4 s[20:23], s[0:1], 64
s_load_dwordx2 s[24:25], s[0:1], 80
v_lshrrev_b32 v1, 6, v0
v_and_b32 v0, 63, v0
v_readfirstlane_b32 s{S_WAVE}, v1
""")
    if P["MAPT"] == 0:
        a(f"""
s_bfe_u32 s{S_ROT}, s2, 0x30003
s_and_b32 s{S_TB}, s2, 4
s_lshl_b32 s{S_TB}, s{S_TB}, 1
s_add_u32 s{S_TB}, s{S_TB}, s{S_ROT}
s_lshr_b32 s3, s2, 6
s_and_b32 s{S_HQ}, s2, 3
s_lshl_b32 s{S_HQ}, s{S_HQ}, 1
s_lshr_b32 s{S_H}, s3, 1
s_add_u32 s{S_HQ}, s{S_HQ}, s{S_H}
s_lshl_b32 s{S_H}, s3, 1
s_add_u32 s{S_ROT}, s{S_ROT}, s{S_H}
""")
    else:
        a(f"""
s_bfe_u32 s{S_ROT}, s2, 0x20003
s_and_b32 s{S_TB}, s2, 6
s_lshl_b32 s{S_TB}, s{S_TB}, 1
s_add_u32 s{S_TB}, s{S_TB}, s{S_ROT}
s_lshl_b32 s{S_ROT}, s{S_ROT}, 1
s_lshr_b32 s3, s2, 5
s_add_u32 s{S_ROT}, s{S_ROT}, s3
s_lshr_b32 s3, s3, 1
s_and_b32 s{S_HQ}, s2, 1
s_lshl_b32 s{S_HQ}, s{S_HQ}, 2
s_add_u32 s{S_HQ}, s{S_HQ}, s3
""")
    a(f"""
s_lshr_b32 s3, s2, 6
s_and_b32 s{S_H}, s2, 7
s_lshl_b32 s{S_H}, s{S_H}, 2
s_add_u32 s{S_H}, s{S_H}, s3
s_bfe_u32 s{S_RB}, s2, 0x30003
v_mov_b32 v{VZ}, 0
s_cmp_ge_u32 s{S_WAVE}, 4
s_cbranch_scc0 L_compute
""")
    LW, XO, WO, XM, WM = 64, 65, 66, 67, 68
    S0 = 128 * 1024
    X = lambda s_: s_ * 16384
    U = lambda i_: S0 + i_ * 8192
    def plan(ty):
        st = {}; when = {}
        if ty == 0:
            loc = [(U(0), U(1)), (U(2), U(3)), (X(7), X(7) + 8192), (U(0), U(1)), (U(2), U(3)), (X(7), X(7) + 8192), (U(0), U(1)), (U(2), U(3))]
            for t in range(8):
                st[t] = [(S_WA, 1024, XKA, loc[t][0]), (S_WA, 2048, XVA, loc[t][1])]
                for u in range(2): when[("w", t, u)] = -1 if t < 2 else t - 2
            for t in range(8, 16):
                st[t] = [(S_WB, 0, XQB, U(t & 3))]
                when[("w", t, 0)] = {8: 7, 9: 7, 10: 7.5, 11: 7.5}.get(t, t - 3)
            for c in range(8): when[("x", c)] = 6 if c == 7 else max(-1, c - 2 - P["XAH"])
        else:
            l1 = [U(t & 3) for t in range(8)] if P["EB"] == 9 else [U(2), X(6), X(6) + 8192, X(7), X(7) + 8192, U(2), U(3), U(2)]
            for t in range(8):
                st[t] = [(S_WA, 0, XQA, l1[t])]
                when[("w", t, 0)] = -1 if t < 2 else t - 2
            if P["EB"] != 9: when[("w", 7, 0)] = 6
            loc = {8: (U(0), U(1)), 9: (U(2), U(3)), 10: (U(0), U(1)), 11: (X(0), X(0) + 8192), 12: (U(2), U(3)), 13: (X(1), X(1) + 8192), 14: (U(0), U(1)), 15: (U(2), U(3))}
            e8 = 6 if P["EB"] == 9 else P["EB"] - 1
            wh = {8: (e8, e8), 9: (7.5, 7.5), 10: (9, 9), 11: (9, 9), 12: (10, 10), 13: (11, 11), 14: (12, 12), 15: (13, 13)}
            for t in range(8, 16):
                st[t] = [(S_WB, 1024, XKB, loc[t][0]), (S_WB, 2048, XKB, loc[t][1])]
                for u in range(2): when[("w", t, u)] = wh[t][u]
            for c in range(8): when[("x", c)] = max(-1, c - 2 - P["XAH"])
        return st, when
    PLAN = [plan(0), plan(1)]
    a(f"""
s_sub_u32 s{LW}, s{S_WAVE}, 4
v_lshrrev_b32 v1, 3, v0
v_and_b32 v2, 7, v0
v_lshrrev_b32 v8, 4, v0
v_xor_b32 v9, v2, v8
v_lshlrev_b32 v10, 10, v1
v_lshl_add_u32 v4, v9, 4, v10
v_xor_b32 v5, 64, v4
v_add_u32 v5, {8192-1024}, v5
v_mul_u32_u24 v10, 3072, v1
v_and_b32 v8, 1, v8
v_lshlrev_b32 v8, 2, v8
v_xor_b32 v9, v2, v8
v_lshl_add_u32 v6, v9, 4, v10
v_add_u32 v7, {8*3072-1024}, v6
s_lshl_b32 s{XO}, s{S_TB}, 17
s_lshl_b32 s{T0}, s{LW}, 15
s_add_u32 s{XO}, s{XO}, s{T0}
s_mul_i32 s{WO}, s{LW}, {16*3072}
s_lshl_b32 s{T0}, s{S_HQ}, 7
s_add_u32 s{WO}, s{WO}, s{T0}
s_lshl_b32 s{XM}, s{LW}, 12
s_lshl_b32 s{WM}, s{LW}, 11
s_mov_b32 s{S_X+2}, {2048*512*2}
s_mov_b32 s{S_X+3}, 0x20000
s_mov_b32 s{S_WA+2}, {512*1536*2}
s_mov_b32 s{S_WA+3}, 0x20000
s_waitcnt lgkmcnt(0)
s_mov_b32 s{S_X}, s4
s_mov_b32 s{S_X+1}, s5
s_mov_b32 s{S_WA}, s6
s_mov_b32 s{S_WA+1}, s7
""")
    stamp(a, 1)
    ISS = [[], []]
    def issx(c, tys):
        a(f"s_add_u32 s{T0}, s{S_ROT}, {c}")
        a(f"s_and_b32 s{T0}, s{T0}, 7")
        a(f"s_lshl_b32 s{T0}, s{T0}, 7")
        for g in range(2):
            a(f"s_add_u32 m0, s{XM}, {X(c) + g*2048}")
            a(f"s_add_u32 s{T0}, s{T0}, " + (f"s{XO}" if g == 0 else "16384"))
            a(f"buffer_load_dwordx4 v4, {s(S_X,4)}, s{T0} offen lds")
            a(f"buffer_load_dwordx4 v5, {s(S_X,4)}, s{T0} offen offset:1024 lds")
        for ty in tys: ISS[ty].append((("x", c), 4))
    def issw(ty, t, us):
        a(f"s_add_u32 s{T0}, s{S_ROT}, {t & 7}")
        a(f"s_and_b32 s{T0}, s{T0}, 7")
        a(f"s_mul_i32 s{T0}, s{T0}, {64*3072}")
        a(f"s_add_u32 s{T0}, s{T0}, s{WO}")
        for u in us:
            W, col, xr_, ad = PLAN[ty][0][t][u]
            a(f"s_xor_b32 s{T0+1}, s{T0}, {xr_*128}")
            a(f"s_add_u32 m0, s{WM}, {ad}")
            a(f"s_add_u32 s{T0+1}, s{T0+1}, {col}")
            a(f"buffer_load_dwordx4 v6, {s(W,4)}, s{T0+1} offen lds")
            a(f"buffer_load_dwordx4 v7, {s(W,4)}, s{T0+1} offen offset:1024 lds")
            ISS[ty].append((("w", t, u), 2))
    issx(0, (0, 1))
    a(TYC)
    a("s_cbranch_scc1 L_i1")
    issw(0, 0, (0, 1))
    a("s_branch L_i2")
    a("L_i1:")
    issw(1, 0, (0,)); issw(1, 1, (0,))
    a("L_i2:")
    issx(1, (0, 1))
    srd(a, S_WB, 12, 13, 512*1536*2)
    srd(a, S_WS, 24, 25, WS_SIZE)
    GO, GX, WSRC, WD, WST = 60, 44, 45, 61, 46
    a(f"""
s_cmp_ge_u32 s2, 128
s_cselect_b32 s12, s16, s8
s_cselect_b32 s13, s17, s9
s_mov_b32 s14, {512*512*2}
s_mov_b32 s15, 0x20000
s_mov_b32 s16, s18
s_mov_b32 s17, s19
s_mov_b32 s18, 1024
s_mov_b32 s19, 0x20000
s_lshl_b32 s{GO}, s{S_TB}, 7
s_lshl_b32 s{T0+1}, s{S_HQ}, 4
s_add_u32 s{GO}, s{GO}, s{T0+1}
s_bfe_u32 s{T0+1}, s2, {0x10000 + TYB}
s_lshl_b32 s{T0+1}, s{T0+1}, 3
s_add_u32 s{GO}, s{GO}, s{T0+1}
s_lshl_b32 s{T0+1}, s{LW}, 1
s_add_u32 s{GO}, s{GO}, s{T0+1}
s_and_b32 s{GX}, s{GO}, 127
s_lshl_b32 s{GO}, s{GO}, 2
s_add_u32 s{GO}, s{GO}, {WS_G}
s_bfe_u32 s{T0+1}, s{GX}, 0x30001
v_xor_b32 v8, s{T0+1}, v2
v_lshlrev_b32 v8, 4, v8
v_lshl_add_u32 v8, v1, 14, v8
s_lshl_b32 s{GX}, s{GX}, 7
v_add_u32 v{POOL+16}, s{GX}, v8
v_add_u32 v8, s{S_ROT}, v1
v_and_b32 v8, 7, v8
v_lshlrev_b32 v8, 7, v8
v_lshl_add_u32 v{POOL+17}, v2, 4, v8
v_mov_b32 v{POOL+13}, 0
v_lshrrev_b32 v8, 2, v0
v_lshlrev_b32 v8, 10, v8
v_and_b32 v9, 3, v0
v_lshl_add_u32 v{POOL+18}, v9, 4, v8
v_lshrrev_b32 v{POOL+19}, 5, v0
v_lshlrev_b32 v{POOL+19}, 2, v{POOL+19}
v_mov_b32 v{POOL+12}, 0
s_lshl_b32 s{T0}, s2, 2
s_add_u32 s{T0}, s{T0}, s{LW}
s_bfe_u32 s{T0+1}, s{T0}, 0x50004
s_and_b32 s{T0+2}, s{T0}, 15
s_lshl_b32 s{WSRC}, s{T0+1}, 14
s_lshl_b32 s{T0+3}, s{T0+2}, 6
s_add_u32 s{WSRC}, s{WSRC}, s{T0+3}
s_lshl_b32 s{WST}, s{LW}, 10
s_add_u32 s{WST}, s{WST}, {L_WOS}
s_lshr_b32 s{T0+3}, s{T0+2}, 1
s_lshl_b32 s{WD}, s{T0+3}, 17
s_lshr_b32 s{T0+3}, s{T0}, 9
s_lshl_b32 s{T0+3}, s{T0+3}, 16
s_add_u32 s{WD}, s{WD}, s{T0+3}
s_lshl_b32 s{T0+3}, s{T0+1}, 11
s_add_u32 s{WD}, s{WD}, s{T0+3}
s_and_b32 s{T0+3}, s{T0+2}, 1
s_lshl_b32 s{T0+3}, s{T0+3}, 10
s_add_u32 s{WD}, s{WD}, s{T0+3}
s_add_u32 s{WD}, s{WD}, {WS_WOF}
""")
    tr64_addr(a, POOL+9, 8, WST)
    if P["TLB"]: a("s_waitcnt lgkmcnt(0)")
    persist(a, 0, R2, XKB)
    VINIT = f"""
v_mov_b32 v{IDX}, 0xdddddddd
v_and_b32 v39, 27, v0
v_cmp_eq_u32 vcc, 16, v39
v_mov_b32 v38, 0x3f803f80
v_mov_b64 v[44:45], -1
v_cndmask_b32 v38, 0, v38, vcc
v_mov_b64 v[46:47], -1
v_mov_b32 v39, v38
""" + "\n".join(f"v_mov_b64 {v(VS[0]+i,2)}, v[38:39]" for i in range(0, 16, 2))
    ZERO_O = [f"v_mov_b64 {v(OA+i,2)}, 0" for i in range(0, 32, 2)]
    a(VINIT)
    a.emit(ZERO_O)
    a(f"""
v_lshlrev_b32 v42, 12, v1
v_lshl_add_u32 v42, v2, 4, v42
s_lshl_b32 s{T0}, s{S_RB}, 7
s_lshr_b32 s{T0+1}, s{LW}, 1
s_lshl_b32 s{T0+1}, s{T0+1}, 10
s_add_u32 s{T0}, s{T0}, s{T0+1}
s_and_b32 s{T0+1}, s{LW}, 1
s_lshl_b32 s{T0+1}, s{T0+1}, 3
s_add_u32 s{T0}, s{T0}, s{T0+1}
v_lshlrev_b32 v43, 4, v2
v_bfe_u32 v8, v0, 4, 1
v_lshl_add_u32 v43, v8, 2, v43
v_add_u32 v43, s{T0}, v43
v_lshlrev_b32 v1, 4, v0
v_mov_b32 v{ADDR}, v1
s_lshl_b32 s{T0}, s{LW}, 9
s_add_u32 s{T0}, s{T0}, {L_QH}
v_lshrrev_b32 v{POOL+11}, 1, v1
v_add_u32 v{POOL+11}, s{T0}, v{POOL+11}
""")
    def gate_math():
        G0 = POOL + 12
        for i in range(4):
            a(f"v_dot2_f32_bf16 v{G0}, v{POOL+20+i}, v{POOL+28+i}, v{G0}")
            a(f"v_dot2_f32_bf16 v{G0+1}, v{POOL+24+i}, v{POOL+28+i}, v{G0+1}")
        a(f"""
s_nop 2
v_permlane32_swap_b32 v{G0}, v{G0+1}
s_nop 1
v_add_f32 v{G0}, v{G0}, v{G0+1}
s_nop 1
v_add_f32_dpp v{G0}, v{G0}, v{G0} quad_perm:[1,0,3,2] row_mask:0xf bank_mask:0xf
s_nop 1
v_add_f32_dpp v{G0}, v{G0}, v{G0} quad_perm:[2,3,0,1] row_mask:0xf bank_mask:0xf
s_nop 1
v_add_f32_dpp v{G0}, v{G0}, v{G0} row_half_mirror row_mask:0xf bank_mask:0xf
s_nop 1
v_add_f32_dpp v{G0}, v{G0}, v{G0} row_mirror row_mask:0xf bank_mask:0xf
v_mov_b32 v{G0+1}, v{G0}
s_nop 1
v_permlane16_swap_b32 v{G0}, v{G0+1}
s_nop 1
v_add_f32 v{G0}, v{G0}, v{G0+1}
v_mul_f32 v{G0}, {f2u(-LOG2E):#x}, v{G0}
v_exp_f32 v{G0}, v{G0}
s_nop 0
v_add_f32 v{G0}, 1.0, v{G0}
v_rcp_f32 v{G0}, v{G0}
""")
    stamp(a, 2)
    a(TYC)
    a("s_cbranch_scc1 L_ld1")
    for ty in range(2):
        a(f"L_ld{ty}:")
        st_, when = PLAN[ty]
        issued = ISS[ty]
        def release(pt):
            done = {t for t, _ in issued}
            todo = [k_ for k_, w_ in when.items() if w_ <= pt and k_ not in done]
            todo.sort(key=lambda k_: (k_[1], 0 if k_[0] == "w" else 1))
            i_ = 0
            while i_ < len(todo):
                k_ = todo[i_]
                if k_[0] == "x": issx(k_[1], (ty,)); i_ += 1
                else:
                    us = [q_[2] for q_ in todo if q_[0] == "w" and q_[1] == k_[1]]
                    issw(ty, k_[1], us); i_ += len(us)
        def cnt_after(tags):
            idx = max(i for i, (t, _) in enumerate(issued) if t in tags)
            return sum(k_ for _, k_ in issued[idx+1:])
        def side(pt):
            if pt == P["HP"] - (0 if P["HP"] == 6 else 1) and ty == 1 and P["HELP"]:
                a(f"""
s_and_b32 s{T0}, s{S_ROT}, 7
s_mul_i32 s{T0}, s{T0}, {64*3072}
s_add_u32 s{T0}, s{T0}, s{WO}
s_xor_b32 s{T0}, s{T0}, {XQB*128}
buffer_load_dwordx4 {v(POOL+40,4)}, v6, {s(S_WB,4)}, s{T0} offen
buffer_load_dwordx4 {v(POOL+40,4)}, v7, {s(S_WB,4)}, s{T0} offen offset:1024
""")
                issued.append(("gw", 2))
            if P[f"WO{ty}"] == pt * 10:
                a(f"buffer_load_dwordx4 {v(POOL+36,4)}, v{POOL+18}, s[12:15], s45 offen")
                issued.append(("gw", 1))
            if pt == 6:
                a(f"buffer_load_dwordx4 {v(POOL+28,4)}, v{POOL+17}, s[16:19], 0 offen")
                issued.append(("gw", 1))
            if pt == 7.5:
                a(f"ds_read_b128 {v(POOL+20,4)}, v{POOL+16}")
                a(f"ds_read_b128 {v(POOL+24,4)}, v{POOL+16} offset:128")
            if P[f"GM{ty}"] == pt * 10:
                gate_math()
        release(-1)
        side(-1)
        for k in range(15):
            a(f"s_waitcnt vmcnt({cnt_after([('x', k), ('w', k, 0), ('w', k, 1)])})" + (" lgkmcnt(0)" if k == 8 else ""))
            if k == 0: stamp(a, 3)
            if k < 12: stamp(a, k + 1, 2)
            a("s_barrier")
            release(k)
            side(k)
            if k == 7:
                a("s_barrier")
                release(7.5)
                side(7.5)
        assert len([1 for t, _ in issued if t != "gw"]) == len(when)
        a(f"s_waitcnt vmcnt({cnt_after([('w', 15, 0), ('w', 15, 1)])})")
        if ty == 0: a("s_branch L_ldj")
    a("L_ldj:")
    a("s_barrier")
    a(f"""
v_add_u32 v{POOL+18}, s{WST}, v1
s_lshr_b32 s{T0}, s{S_H}, 2
s_lshl_b32 s{T0}, s{T0}, 8
s_add_u32 s{T0}, s{T0}, {WS_FL + 2048}
v_min_u32 v41, 2, v0
v_lshlrev_b32 v41, 11, v41
s_sub_u32 s{T0+1}, s{P_PHQ}, {WS_PHQ}
s_lshr_b32 s{T0+1}, s{T0+1}, 1
s_lshl_b32 s{P_KVB}, s{S_H}, 17
s_add_u32 s{P_KVB}, s{P_KVB}, {WS_KV}
s_lshl_b32 s{P_KVG}, s{LW}, 12
s_add_u32 s{T0+3}, s{P_KVG}, {R2 - 4096}
s_cmp_eq_u32 s{LW}, 0
s_cmov_b32 s{T0+3}, 16384
s_mov_b32 s{T0+7}, 0
""")
    a(f"buffer_load_dword v40, v41, {s(S_WS,4)}, s{T0} offen sc1")
    stamp(a, 4)
    def kvgrp(reg, off):
        o = [[f"s_add_u32 m0, s{reg}, {off}", f"s_add_u32 s{T0+4}, m0, s{P_KVB}"]]
        o += [f"buffer_load_dwordx4 v1, {s(S_WS,4)}, s{T0+4} offen offset:{i*1024} sc1 lds" for i in range(4)]
        return o
    def flat(x):
        o = []
        for g in x: o += g if isinstance(g, list) else [g]
        return o
    FIRST = [f"buffer_load_dwordx4 {v(QA,4)}, v1, {s(S_WS,4)}, s{T0+1} offen sc1",
             f"buffer_load_dwordx4 {v(QB,4)}, v1, {s(S_WS,4)}, s{T0+1} offen offset:1024 sc1",
             f"buffer_load_dwordx4 {v(KS[0],4)}, v1, {s(S_WS,4)}, s{P_KVB} offen sc1"] + flat(kvgrp(P_KVG, 0)) + flat(kvgrp(T0+3, 0))
    a(f"""
s_waitcnt vmcnt(0)
v_cmp_gt_u32 vcc, 16, v40
s_nop 4
s_cbranch_vccnz L_pollF1
L_pollF1_ok:
""")
    a.emit(FIRST)
    a("L_first_done:")
    stamp(a, 5); stamp(a, 1, 3)
    G0 = POOL + 12
    a(f"""
s_setprio 3
s_waitcnt vmcnt(8)
v_mfma_f32_32x32x16_bf16 {v(SA,16)}, {v(KS[0],4)}, {v(QA,4)}, 0
v_mfma_f32_32x32x16_bf16 {v(SB,16)}, {v(KS[0],4)}, {v(QB,4)}, 0
""")
    if P["NOBD"]: a.emit(flat(kvgrp(P_KVG, 5*4096) + kvgrp(P_KVG, R2 + 3*4096)))
    else: a("s_nop 9")
    a(f"""
s_mov_b32 s{MODE}, 0
s_mov_b32 s{SL+2}, 0x0000ffff
s_mov_b32 s{SL+3}, 0x0000ffff
""")
    def maxtree(dst, b, init=None):
        o = []
        if init is None:
            o.append(f"v_max3_f32 v{dst}, v{b}, v{b+1}, v{b+2}")
            for i in range(3, 15, 2):
                o.append(f"v_max3_f32 v{dst}, v{dst}, v{b+i}, v{b+i+1}")
            o.append(f"v_max_f32 v{dst}, v{dst}, v{b+15}")
        else:
            for i in range(0, 16, 2):
                o.append(f"v_max3_f32 v{dst}, v{dst}, v{b+i}, v{b+i+1}")
        return o
    a.emit(rr(maxtree(38, SA), maxtree(39, SB)))
    NEGM = f"""
v_permlane32_swap_b32 v38, v39
s_nop 1
v_max_f32 v38, v38, v39
v_sub_f32 v38, 0, v38
v_mov_b32 v39, v38
s_nop 1
v_permlane32_swap_b32 v38, v39
"""
    def fill_nm():
        o = [f"v_mov_b32 v40, v38", f"v_mov_b32 v41, v38"]
        o += [f"v_mov_b64 {v(NMA+i,2)}, v[40:41]" for i in range(0, 16, 2)]
        o += [f"v_mov_b32 v38, v39"]
        o += [f"v_mov_b64 {v(NMB+i,2)}, v[38:39]" for i in range(0, 16, 2)]
        return o
    ZSB = [f"v_mov_b64 {v(SB+i,2)}, 0" for i in range(8, 16, 2)]
    a("s_nop 1")
    a(NEGM)
    a(f"""
s_nop 1
v_mov_b64 {v(POOL+14,2)}, v[38:39]
""")
    fm = fill_nm()
    a.emit(fm[:11])
    a.emit(ZSB)
    a(f"v_mfma_f32_32x32x16_bf16 {v(SA,16)}, {v(KS[0],4)}, {v(QA,4)}, {v(NMA,16)}")
    a.emit(fm[11:])
    stamp(a, 2, 3)
    a("s_setprio 0")
    stamp(a, 3, 3)
    a(f"""
ds_write_b64 v{POOL+11}, {v(POOL+14,2)}
s_waitcnt vmcnt(0) lgkmcnt(0)
""")
    stamp(a, 6); stamp(a, 4, 3)
    a(f"""
s_barrier
s_mov_b64 exec, {s(SL+2,2)}
ds_read_b128 {v(VS[0],4)}, v{ADDR} offset:1024
ds_read_b128 {v(VS[0]+4,4)}, v{ADDR} offset:1280
s_mov_b64 exec, -1
""")
    a("s_waitcnt lgkmcnt(0)")
    stamp(a, 8)
    a("s_branch L_slot0")
    a("L_mark_c0:")
    XA = [4, 5, 6, 7]; WHI, WLO = 8, 9
    BUF = [112, 176]
    AQK, AV = [48, 64], [80, 96]
    WPHI = [248, 252]
    WPK, WPM = 36, 32
    VFLG, VPHI, VSGN, VF1, VONE = 10, 12, 13, 14, 15
    a("L_compute:")
    if P["CPF"]:
        a(f"""
s_getpc_b64 s[{T0}:{T0+1}]
L_pc:
s_sub_u32 s{T0}, s{T0}, L_pc-{NAME}
s_subb_u32 s{T0+1}, s{T0+1}, 0
s_lshr_b32 s{T0+2}, s2, 3
s_lshl_b32 s{T0+2}, s{T0+2}, 2
s_add_u32 s{T0+2}, s{T0+2}, s{S_WAVE}
s_mul_i32 s{T0+2}, s{T0+2}, 320
s_min_u32 s{T0+2}, s{T0+2}, L_codeend-{NAME}-320
s_add_u32 s{T0}, s{T0}, s{T0+2}
s_addc_u32 s{T0+1}, s{T0+1}, 0
s_load_dword s{T0+3}, s[{T0}:{T0+1}], 0
s_load_dword s{T0+4}, s[{T0}:{T0+1}], 64
s_load_dword s{T0+5}, s[{T0}:{T0+1}], 128
s_load_dword s{T0+6}, s[{T0}:{T0+1}], 192
s_load_dword s{T0+7}, s[{T0}:{T0+1}], 256
""")
    a(f"""
s_lshr_b32 s{TT}, s{S_WAVE}, 1
s_and_b32 s{PP}, s{S_WAVE}, 1
v_and_b32 v16, 31, v0
v_lshrrev_b32 v17, 5, v0
v_lshlrev_b32 v1, 4, v0
s_waitcnt lgkmcnt(0)
""")
    srd(a, S_MISC, 14, 15, 32*512)
    srd(a, S_WS, 24, 25, WS_SIZE)
    a(f"""
s_or_b32 s{T0+1}, s2, s{S_WAVE}
s_cmp_lg_u32 s{T0+1}, 0
s_cbranch_scc1 L_noinit
v_lshlrev_b32 v8, 8, v0
s_mov_b32 s{T0+1}, {WS_FL}
buffer_store_dword v{VZ}, v8, {s(S_WS,4)}, s{T0+1} offen sc1
s_waitcnt vmcnt(0)
v_mov_b32 v8, 1
s_mov_b64 exec, 1
global_store_dword v{VZ}, v8, s[22:23] sc1
s_mov_b64 exec, -1
L_noinit:
s_lshr_b32 s{T0+2}, s2, 3
s_lshl_b32 s{T0+2}, s{T0+2}, 2
s_add_u32 s{T0+2}, s{T0+2}, s{S_WAVE}
s_lshl_b32 s{T0+2}, s{T0+2}, 7
s_add_u32 s{T0+3}, s{T0+2}, 64
s_load_dword s38, s[14:15], s{T0+2}
s_load_dword s39, s[14:15], s{T0+3}
s_lshr_b32 s{T0+3}, s{T0+2}, 1
s_and_b32 s{T0+3}, s{T0+3}, 0x3c0
s_load_dword s33, s[18:19], s{T0+3}
s_lshl_b32 s{T0+3}, s{T0+2}, 5
s_load_dword s34, s[8:9], s{T0+3}
s_load_dword s35, s[16:17], s{T0+3}
s_lshl_b32 s{T0}, s{S_HQ}, 1
s_add_u32 s{T0}, s{T0}, s{PP}
s_lshl_b32 s{T0}, s{T0}, 10
{TYC}
s_mov_b32 s{T0+1}, {XQB*2048}
s_cmov_b32 s{T0+1}, {XKB*2048}
s_xor_b32 s{WPK}, s{T0}, s{T0+1}
s_lshl_b32 s{WPM}, s{S_WAVE}, 10
s_add_u32 s{WPM}, s{WPM}, {X(2)}
v_bfe_u32 v18, v0, 2, 2
v_lshlrev_b32 v{VPHI}, 5, v18
v_lshl_add_u32 v{VPHI}, v17, 7, v{VPHI}
v_bfe_u32 v18, v0, 4, 1
v_lshl_add_u32 v{VPHI}, v18, 4, v{VPHI}
v_bfe_u32 v18, v0, 1, 1
v_lshl_add_u32 v{VPHI}, v18, 3, v{VPHI}
v_add_u32 v{VPHI}, s{WPM}, v{VPHI}
s_lshl_b32 s{T0}, s{TT}, 13
v_lshlrev_b32 v19, 7, v16
v_add_u32 v19, s{T0}, v19
v_bfe_u32 v18, v16, 1, 3
v_xor_b32 v18, v18, v17
v_lshl_add_u32 v{XA[0]}, v18, 4, v19
v_xor_b32 v{XA[1]}, 32, v{XA[0]}
v_xor_b32 v{XA[2]}, 64, v{XA[0]}
v_xor_b32 v{XA[3]}, 96, v{XA[0]}
v_lshlrev_b32 v{WLO}, 10, v17
v_bfe_u32 v18, v0, 2, 2
v_lshl_add_u32 v{WLO}, v18, 7, v{WLO}
v_bfe_u32 v18, v0, 3, 1
v_xor_b32 v18, s{PP}, v18
v_lshl_add_u32 v{WLO}, v18, 6, v{WLO}
v_bfe_u32 v18, v0, 4, 1
v_lshl_add_u32 v{WLO}, v18, 5, v{WLO}
v_and_b32 v19, 3, v0
v_lshl_add_u32 v{WLO}, v19, 3, v{WLO}
v_add_u32 v{WHI}, {X(6)}, v{WLO}
v_and_b32 v2, 0x33, v0
v_bfe_u32 v18, v0, 2, 1
v_lshl_or_b32 v2, v18, 3, v2
v_bfe_u32 v18, v0, 3, 1
v_lshl_or_b32 v2, v18, 2, v2
v_lshlrev_b32 v2, 4, v2
v_and_b32 v11, 0x2f, v0
v_lshlrev_b32 v11, 4, v11
v_bfe_u32 v18, v0, 4, 1
v_lshl_add_u32 v11, v18, 17, v11
s_mov_b32 s{SL}, {f2u(LOG2E):#x}
s_mov_b32 s{SL+1}, {f2u(0.25*LOG2E):#x}
s_mov_b32 s{SL+2}, 0x0000ffff
s_mov_b32 s{SL+3}, 0x0000ffff
s_mov_b32 s{MODE}, 0
s_lshl_b32 s{SX}, s{S_HQ}, 1
s_add_u32 s{SX}, s{SX}, s{PP}
s_lshl_b32 s{SX}, s{SX}, 7
s_lshl_b32 s{T0+1}, s{S_TB}, 2
s_add_u32 s{SX}, s{SX}, s{T0+1}
s_lshl_b32 s{T0+1}, s{TT}, 1
s_add_u32 s{SX}, s{SX}, s{T0+1}
s_lshl_b32 s{T0+1}, s{S_WAVE}, 12
s_add_u32 s{T0+1}, s{T0+1}, {L_CMB}
v_lshlrev_b32 v240, 1, v17
v_bfe_u32 v18, v16, 1, 2
v_xor_b32 v240, v240, v18
v_lshlrev_b32 v240, 4, v240
v_lshl_add_u32 v240, v16, 6, v240
v_add_u32 v240, s{T0+1}, v240
v_xor_b32 v241, 16, v240
""")
    tr64_addr(a, 242, 18, T0+1)
    a(f"""
v_lshlrev_b32 v18, 5, v17
v_xor_b32 v242, v242, v18
v_bfe_u32 v18, v0, 3, 1
v_lshlrev_b32 v18, 4, v18
v_xor_b32 v242, v242, v18
v_mov_b32 v244, 0x3f803f80
v_mov_b32 v245, 0x3f803f80
v_and_b32 v18, {3 if P["MIX"] else 0}, v0
v_xor_b32 v{VF1}, s{S_HQ}, v18
v_lshl_add_u32 v{VF1}, v0, 3, v{VF1}
v_lshlrev_b32 v{VF1}, 8, v{VF1}
v_mov_b32 v{VONE}, 1
v_bfe_u32 v18, v0, 2, 1
s_mov_b32 s{T0+1}, 0x80008000
v_mul_lo_u32 v{VSGN}, v18, s{T0+1}
s_lshl_b32 s{T0}, s{S_WAVE}, 9
s_add_u32 s{T0}, s{T0}, {L_QH}
v_lshrrev_b32 v243, 1, v1
v_add_u32 v243, s{T0}, v243
""")
    assert (XKA, XQA, XVA) in ((0, 1, 2), (0, 0, 0))
    persist(a, 1, R2, XKB)
    rdp = ["s_waitcnt vmcnt(0)", "s_nop 0"]
    for hd in range(2):
        for rd in range(2):
            rdp.append(f"ds_read_b64_tr_b16 {v(WPHI[hd]+2*rd,2)}, v{VPHI} offset:{hd*512+rd*256}")
    xr = [f"v_xor_b32 v{WPHI[0]+i}, v{VSGN}, v{WPHI[0]+i}" for i in range(8)]
    PK = 16
    stamp(a, 1)
    a(TYC)
    a("s_cbranch_scc1 L_cmp1")
    for ty in range(2):
        a(".p2align 3")
        a(f"L_cmp{ty}:")
        st_ = PLAN[ty][0]
        def reads(t):
            b0 = BUF[t & 1]; o = []
            for step in range(4):
                b = b0 + 16*step
                xo = (t & 3) * 16384
                o.append(f"ds_read_b128 {v(b,4)}, v{XA[step]} offset:{xo}")
                for u, (_, _, _, ad) in enumerate(st_[t]):
                    reg, off = (WHI, ad - X(6)) if ad >= X(6) else (WLO, ad)
                    for rd in range(2):
                        o.append(f"ds_read_b64_tr_b16 {v(b+8+4*u+2*rd,2)}, v{reg} offset:{off+step*2048+rd*512}")
                    if u == 0: o.append(f"ds_read_b128 {v(b+4,4)}, v{XA[step]} offset:{xo+4096}")
            return o
        def mfmas(t):
            o = []
            for step in range(4):
                b = BUF[t & 1] + 16*step
                for u in range(len(st_[t])):
                    for tt in range(2):
                        x = v(b+4*tt,4); w = v(b+8+4*u,4); d = v((AQK, AV)[u][tt],16)
                        cc = "0" if ((t & 7) == 0 and step == 0) else d
                        o.append(f"v_mfma_f32_32x32x16_bf16 {d}, {w}, {x}, {cc}" if u == 0 else f"v_mfma_f32_32x32x16_bf16 {d}, {x}, {w}, {cc}")
            return o
        def xswitch(t):
            if t & 3: return []
            return [f"v_xor_b32 v{r_}, 0x10000, v{r_}" for r_ in XA]
        def weave(m, r_, per, first=()):
            a(m[0]); a.emit(list(first))
            k_ = 0
            if not first:
                a.emit(r_[:per]); k_ = per
            for i in range(1, len(m)):
                a(m[i]); a.emit(r_[k_:k_+per] if i < len(m) - 1 else r_[k_:]); k_ += per
        SIG = 8 + P[f"SIG{ty}"]
        deferred = []
        for ps in range(2):
            a("s_barrier")
            a("s_nop 0")
            a.emit(reads(8*ps))
            nout = len(reads(8*ps))
            def head(t, m):
                if not P["SH"] or P["STAMPS"] and t in (0, 8, SIG + 1): return m
                q_ = len(m) // 4 * P["SH"]
                a(f"s_waitcnt lgkmcnt({min(15, nout - len(reads(t)) // 4 * P['SH'])})")
                a("s_nop 0")
                a.emit(m[:q_])
                return m[q_:]
            for t in range(8*ps, 8*ps + 7):
                m = mfmas(t); big = len(m) == 16
                m = head(t, m)
                a("s_waitcnt lgkmcnt(0)" + (" vmcnt(0)" if t == SIG else ""))
                a("s_barrier")
                if t == SIG:
                    assert t <= 13
                    a(f"""
s_cmp_lg_u32 s{S_WAVE}, 0
s_cbranch_scc1 L_drained{ty}
v_readfirstlane_b32 s{T0+6}, v{VFLG}
s_mov_b32 s{T0}, {WS_FL + 2048}
s_cmp_eq_u32 s{T0+6}, 0
s_cbranch_scc1 L_sig1
L_initok{ty}:
s_mov_b64 exec, {5 if ty == 0 else 2}
buffer_atomic_add v{VONE}, v{VF1}, {s(S_WS,4)}, s{T0} offen sc1
s_mov_b64 exec, -1
s_nop 0
""")
                    stamp(a, 2)
                    a(f"L_drained{ty}:")
                if t == 10:
                    a(f"s_mov_b32 m0, s{WPM}")
                    a("s_nop 0")
                    a(f"buffer_load_dwordx4 v1, {s(S_MISC,4)}, s{WPK} offen lds")
                r_ = reads(t + 1)
                if deferred and t >= 7 + P["DQ"]:
                    assert t < SIG
                    n_ = 2 if len(deferred) > 3 else 3
                    r_ = r_ + ["s_nop 0", "s_nop 0"] + [y for x_ in deferred[:n_] for y in (x_, "s_nop 0", "s_nop 0")][:-2]
                    deferred = deferred[n_:]
                    r_ = [y for y in r_ if y != "s_nop 0"] if False else r_
                if t == 13: r_ = r_ + rdp
                if t == 14: r_ = r_ + xr
                weave(m, r_, P["PER2"] if big else P["PER1"], xswitch(t + 1))
                nout = len([y for y in r_ if y.startswith("ds_")])
            m = mfmas(8*ps + 7); big = len(m) == 16
            m = head(8*ps + 7, m)
            a("s_waitcnt lgkmcnt(0)")
            if ps == 0:
                a("s_barrier")
                offs = L(f"""
s_xor_b32 s{T0+1}, s{SX}, {(XKA if ty == 0 else XQA)*256}
s_lshl_b32 s{T0+1}, s{T0+1}, {11 if ty == 0 else 10}
s_add_u32 s{T0+1}, s{T0+1}, {WS_KV if ty == 0 else WS_QF}
s_add_u32 s{T0+2}, s{T0+1}, {131072 if ty == 0 else 65536}
s_xor_b32 s{T0+5}, s{SX}, {XVA*256}
s_lshl_b32 s{T0+5}, s{T0+5}, 11
s_add_u32 s{T0+5}, s{T0+5}, {WS_KV}
""")
                weave(m, xswitch(8) + offs, 2)
                stamp(a, 3)
                a("s_nop 11" if ty == 1 else "s_nop 9")
                for tt in range(2):
                    if ty == 1:
                        for i in range(0, 16, 2):
                            a(f"v_pk_mul_f32 {v(AQK[tt]+i,2)}, {v(AQK[tt]+i,2)}, {s(SL,2)} op_sel:[0,1] op_sel_hi:[1,1]")
                    for i in range(8):
                        a(f"v_cvt_pk_bf16_f32 v{PK+8*tt+i}, v{AQK[tt]+2*i}, v{AQK[tt]+1+2*i}")
                    for hd in range(2):
                        x_ = f"buffer_store_dwordx4 {v(PK+8*tt+4*hd,4)}, v{2 if ty == 0 else 1}, {s(S_WS,4)}, s{T0+1+hd} offen offset:{tt*(2048 if ty == 0 else 1024)} sc1"
                        if ty == 1 and P["DQ"]: deferred.append(x_)
                        else: a(x_)
                if ty == 0:
                    for tt in range(2):
                        for i in range(8):
                            a(f"v_cvt_pk_bf16_f32 v{PK+16+8*tt+i}, v{AV[tt]+2*i}, v{AV[tt]+1+2*i}")
                        a(f"buffer_store_dwordx4 {v(PK+16+8*tt,4)}, v11, {s(S_WS,4)}, s{T0+5} offen offset:{tt*2048+1024} sc1")
                        a(f"buffer_store_dwordx4 {v(PK+20+8*tt,4)}, v11, {s(S_WS,4)}, s{T0+5} offen offset:{tt*2048+1280} sc1")
                x_ = f"global_load_dword v{VFLG}, v{VZ}, s[22:23] sc1"
                if deferred: deferred.append(x_)
                else: a(x_)
                stamp(a, 4)
                a(".p2align 3")
            else:
                a("s_nop 0")
                fill = L(VINIT) + ZERO_O + [f"v_add_u32 v{ADDR}, {R2}, v1", "v_mov_b64 v[42:43], 0"]
                weave(m, fill, 3 if big else 5)
        if ty == 0: a("s_branch L_epiB")
    a("L_epiB:")
    stamp(a, 5); stamp(a, 1, 3)
    PB, PV = 224, 144
    FB = {(0,0): 160, (0,1): 176, (1,0): 192, (1,1): 208}
    a(f"""
s_xor_b32 s{T0+3}, s{SX}, {XQB*256}
s_lshl_b32 s{T0+3}, s{T0+3}, 11
s_add_u32 s{T0+3}, s{T0+3}, {WS_PHQ}
s_add_u32 s{T0+4}, s{T0+3}, 131072
s_xor_b32 s{T0+1}, s{S_HQ}, {XKB}
s_lshl_b32 s{T0+1}, s{T0+1}, 1
s_add_u32 s{T0+1}, s{T0+1}, s{PP}
s_lshl_b32 s{T0+1}, s{T0+1}, 5
s_add_u32 s{T0+1}, s{T0+1}, s{S_TB}
s_lshl_b32 s{T0+1}, s{T0+1}, 1
s_add_u32 s{T0+1}, s{T0+1}, s{TT}
s_lshl_b32 s{T0+1}, s{T0+1}, 12
s_add_u32 s{T0+1}, s{T0+1}, {WS_KVP}
s_add_u32 s{T0+5}, s{T0+1}, 131072
""")
    for tt in range(2):
        for i in range(8):
            a(f"v_cvt_pk_bf16_f32 v{PB+8*tt+i}, v{AQK[tt]+2*i}, v{AQK[tt]+1+2*i}")
            if tt == 1 and i in (1, 5):
                hd = i // 4
                a(f"v_mfma_f32_32x32x16_bf16 {v(FB[(0,hd)],16)}, {v(WPHI[hd],4)}, {v(PB+4*hd,4)}, 0")
    for tt in range(2):
        for i in range(8):
            a(f"v_cvt_pk_bf16_f32 v{PV+8*tt+i}, v{AV[tt]+2*i}, v{AV[tt]+1+2*i}")
            if tt == 0 and i in (1, 5):
                hd = i // 4
                a(f"v_mfma_f32_32x32x16_bf16 {v(FB[(1,hd)],16)}, {v(WPHI[hd],4)}, {v(PB+8+4*hd,4)}, 0")
    a.emit(ZSB)
    a.emit([f"v_mov_b64 {v(PB+i,2)}, v[244:245]" for i in range(0, 16, 2)])
    stamp(a, 2, 3)
    a.emit(rr(*[[x for x in softmax16(FB[k_], 48 + 4*i) if x != "s_nop 0"] for i, k_ in enumerate(((0,0), (0,1), (1,0), (1,1)))]))
    stamp(a, 3, 3)
    a(f"""
s_sub_u32 s{T0+2}, s{P_PHQ}, {WS_PHQ + 2048}
s_lshr_b32 s{T0+2}, s{T0+2}, 1
s_lshl_b32 s{P_KVB}, s{S_H}, 17
s_add_u32 s{P_KVB}, s{P_KVB}, {WS_KV}
s_lshl_b32 s{P_KVG}, s{S_WAVE}, 12
s_add_u32 s{P_KVG}, s{P_KVG}, {R2 - LEAD*4096}
""")
    stamp(a, 6); stamp(a, 4, 3)
    a(f"""
s_barrier
s_setprio 3
buffer_load_dwordx4 {v(QA,4)}, v1, {s(S_WS,4)}, s{T0+2} offen sc1
buffer_load_dwordx4 {v(QB,4)}, v1, {s(S_WS,4)}, s{T0+2} offen offset:1024 sc1
ds_read_b64 v[38:39], v243
ds_read_b128 {v(KS[0],4)}, v{ADDR}
s_mov_b64 exec, {s(SL+2,2)}
ds_read_b128 {v(VS[0],4)}, v{ADDR} offset:1024
ds_read_b128 {v(VS[0]+4,4)}, v{ADDR} offset:1280
s_mov_b64 exec, -1
v_subrev_u32 v{ADDR}, {2*LEAD*2048}, v{ADDR}
{TYC}
s_cbranch_scc1 L_kv
s_waitcnt lgkmcnt(0)
""")
    a.emit(fm)
    a("s_waitcnt vmcnt(0)")
    a(f"v_mfma_f32_32x32x16_bf16 {v(SA,16)}, {v(KS[0],4)}, {v(QA,4)}, {v(NMA,16)}")
    stamp(a, 7)
    for hd in range(2):
        for tt in range(2):
            a(f"buffer_store_dwordx4 {v(FB[(tt,hd)],4)}, v1, {s(S_WS,4)}, s{T0+3+hd} offen offset:{tt*2048} sc1")
            a(f"buffer_store_dwordx4 {v(FB[(tt,hd)]+4,4)}, v1, {s(S_WS,4)}, s{T0+3+hd} offen offset:{tt*2048+1024} sc1")
    a("s_nop 1")
    stamp(a, 8)
    a(f"s_branch L_slot{LEAD}")
    a("L_kv:")
    V0 = PB
    KVA = [SA, FB[(0,0)]]
    for hd in range(2):
        for tt in range(2):
            a(f"ds_write_b128 v240, {v(FB[(tt,hd)],4)} offset:{tt*2048}")
            a(f"ds_write_b128 v241, {v(FB[(tt,hd)]+4,4)} offset:{tt*2048}")
        for tt in range(2):
            for sx in range(2):
                for rd in range(2):
                    a(f"ds_read_b64_tr_b16 {v(FB[(tt,hd)]+8+4*sx+2*rd,2)}, v242 offset:{tt*2048+(16*sx+8*rd)*64}")
        for i in range(8*hd, 8*hd + 8):
            a(f"v_permlane16_swap_b32 v{PV+i}, v{V0+i}")
    a("s_waitcnt lgkmcnt(0)")
    if P["KVP"] < 3: a(f"s_setprio {P['KVP']}")
    k_ = 0
    for hd in range(2):
        for tt in range(2):
            for sx in range(2):
                c = "0" if (tt == 0 and sx == 0) else v(KVA[hd],16)
                a(f"v_mfma_f32_32x32x16_bf16 {v(KVA[hd],16)}, {v(FB[(tt,hd)]+8+4*sx,4)}, {v((PV, V0)[hd]+8*tt+4*sx,4)}, {c}")
                a.emit(fm[k_:k_+3]); k_ += 3
    for q in range(4):
        a(f"buffer_store_dwordx4 {v(KVA[0]+4*q,4)}, v1, {s(S_WS,4)}, s{T0+1} offen offset:{q*1024} sc1")
    a("s_waitcnt vmcnt(4)")
    a("s_nop 0")
    a(f"v_mfma_f32_32x32x16_bf16 {v(SA,16)}, {v(KS[0],4)}, {v(QA,4)}, {v(NMA,16)}")
    stamp(a, 7)
    a("s_nop 4")
    for q in range(4):
        a(f"buffer_store_dwordx4 {v(KVA[1]+4*q,4)}, v1, {s(S_WS,4)}, s{T0+5} offen offset:{q*1024} sc1")
    a("s_nop 1")
    stamp(a, 8)
    a(f"s_branch L_slot{LEAD}")
    a("L_mark_c1:")

    def e(b, i): return f"v_exp_f32 v{b+i}, v{b+i}"
    def sm(o, vv, p): return f"v_smfmac_f32_32x32x32_bf16 {v(o,16)}, {v(vv,4)}, {v(p,8)}, v{IDX}"
    def slot(base, last=False, bg=None):
        bg = bg or {}
        o = []
        k = [0]
        def ex(b, i):
            o.append(e(b, i))
            o.extend(bg.get(k[0], []))
            k[0] += 1
        for c in range(2):
            n = c ^ 1
            off = base + (c + 1) * 2048
            pf = not (last and c == 1)
            if pf: o.append(f"ds_read_b128 {v(KS[n],4)}, v{ADDR} offset:{off}")
            ex(SA,0); ex(SA,1)
            o.append(sm(OB, VS[n]+4, SB+8))
            vr = [f"s_mov_b64 exec, {s(SL+2,2)}", f"ds_read_b128 {v(VS[n],4)}, v{ADDR} offset:{off+1024}",
                  f"ds_read_b128 {v(VS[n]+4,4)}, v{ADDR} offset:{off+1280}", "s_mov_b64 exec, -1"] if pf else []
            if P["PV"] == 0: o.extend(vr)
            PS, PL = P["PS"], P["PLO"]
            for i in range(2, PS): ex(SA,i)
            o.append(f"v_mfma_f32_32x32x16_bf16 {v(SB,16)}, {v(KS[c],4)}, {v(QB,4)}, {v(NMB,16)}")
            if P["PV"] == 1: o.extend(vr)
            for i in range(PS, PL): ex(SA,i)
            o.append(sm(OA, VS[c], SA))
            for i in range(PL, 16): ex(SA,i)
            ex(SB,0); ex(SB,1)
            o.append(sm(OA, VS[c]+4, SA+8))
            for i in range(2, PS): ex(SB,i)
            if pf:
                o.append("s_waitcnt lgkmcnt(0)")
                o.append(f"v_mfma_f32_32x32x16_bf16 {v(SA,16)}, {v(KS[n],4)}, {v(QA,4)}, {v(NMA,16)}")
            for i in range(PS, PL): ex(SB,i)
            o.append(sm(OB, VS[c], SB))
            for i in range(PL, 16): ex(SB,i)
        return o
    def spread(bg, items, lo, hi):
        n = len(items)
        for i, it in enumerate(items):
            pos = lo + (i * (hi - lo + 1)) // n
            bg.setdefault(pos, []).extend(it if isinstance(it, list) else [it])
    BG = {sl: {} for sl in range(NS)}
    M16 = "0x00ff00ff"
    assert LEAD == 2 and (BD, BA, BW) == (4, 8, 12) and P["NOBD"]
    G0 = POOL + 12
    spread(BG[1], [f"ds_write_b128 v{POOL+18}, {v(POOL+36,4)}"], 30, 30)
    spread(BG[1], [[f"ds_read_b64_tr_b16 {v(POOL,2)}, v{POOL+9}", f"ds_read_b64_tr_b16 {v(POOL+2,2)}, v{POOL+9} offset:512"]], 40, 40)
    spread(BG[1], [f"buffer_store_dwordx4 {v(POOL,4)}, v1, {s(S_WS,4)}, s{WD} offen sc1",
        ["s_mov_b32 exec_lo, 1", "s_mov_b32 exec_hi, 1", f"buffer_store_dword v{G0}, v{POOL+19}, {s(S_WS,4)}, s{GO} offen sc1", "s_mov_b64 exec, -1"]], 58, 62)
    if not P["NOBD"]: spread(BG[0], kvgrp(P_KVG, 5*4096) + kvgrp(P_KVG, R2 + 3*4096), 0, 19)
    spread(BG[P["CLS"]], [f"buffer_store_dwordx4 v[44:47], v1, {s(S_WS,4)}, s{P_OF} offen sc1",
        [f"s_add_u32 s{T0}, s{P_OF}, {OBR}", f"buffer_store_dwordx4 v[44:47], v1, {s(S_WS,4)}, s{T0} offen sc1"],
        [f"s_cmp_lg_u32 s{KH}, 0", f"s_cselect_b32 exec_lo, 0, {M16}", "s_mov_b32 exec_hi, 0", f"buffer_store_dword v44, v43, {s(S_WS,4)}, s{P_KVT} offen sc1", "s_mov_b64 exec, -1"]], 10, 56)
    spread(BG[BD], kvgrp(P_KVG, 9*4096), 8, 56)
    spread(BG[BA], kvgrp(P_KVG, 13*4096), 14, 38)
    spread(BG[C0+1], [[f"s_cmp_lg_u32 s{KH}, 0", "s_cbranch_scc1 L_skipA", f"buffer_load_dword v41, v{VZ}, {s(S_WS,4)}, s{P_F2} offen sc1", "L_skipA:"]], P["Q1"], P["Q1"])
    l1a = [f"s_cmp_lg_u32 s{KH}, 0", "s_cbranch_scc1 L_skipB", "s_waitcnt vmcnt(0)", f"v_readfirstlane_b32 s{T0+6}, v41",
           f"s_add_u32 s{T0}, s{P_KVS}, 32768", f"s_add_u32 s{T0+1}, s{P_KVS}, 65536", f"s_add_u32 s{T0+2}, s{P_KVS}, 98304",
           f"s_cmp_lt_u32 s{T0+6}, 32", "s_cbranch_scc1 L_flagspin", "L_flagok:"]
    for p in range(4):
        l1a.append(f"buffer_load_dwordx4 {v(POOL+4*p,4)}, v42, {s(S_WS,4)}, s{P_KVS if p == 0 else T0+p-1} offen sc1")
    l1a.append("L_skipB:")
    spread(BG[C0+2], [l1a], P["Q2"], P["Q2"])
    l1b = ["s_waitcnt vmcnt(0)", f"s_cmp_lg_u32 s{KH}, 0", "s_cbranch_scc1 L_skipC"]
    for i in range(4): l1b.append(f"v_add_f32 v{POOL+i}, v{POOL+i}, v{POOL+4+i}")
    for i in range(4): l1b.append(f"v_add_f32 v{POOL+8+i}, v{POOL+8+i}, v{POOL+12+i}")
    for i in range(4): l1b.append(f"v_add_f32 v{POOL+i}, v{POOL+i}, v{POOL+8+i}")
    l1b += L(f"""
v_permlane32_swap_b32 v{POOL}, v{POOL+1}
s_nop 0
v_permlane32_swap_b32 v{POOL+2}, v{POOL+3}
v_add_f32 v{POOL}, v{POOL}, v{POOL+1}
s_nop 0
v_add_f32 v{POOL+2}, v{POOL+2}, v{POOL+3}
s_nop 1
v_permlane16_swap_b32 v{POOL}, v{POOL+2}
s_nop 1
v_add_f32 v{POOL}, v{POOL}, v{POOL+2}
s_nop 1
v_add_f32_dpp v{POOL}, v{POOL}, v{POOL} row_ror:8 row_mask:0xf bank_mask:0xf
v_mov_b32 v{POOL+1}, v{POOL}
s_nop 1
v_permlane32_swap_b32 v{POOL}, v{POOL+1}
s_nop 1
v_cvt_pk_bf16_f32 v40, v{POOL}, v{POOL+1}
v_min_u32 v40, -2, v40
s_mov_b32 exec_lo, {M16}
s_mov_b32 exec_hi, 0
buffer_store_dword v40, v43, {s(S_WS,4)}, s{P_KVT} offen sc1
s_mov_b64 exec, -1
L_skipC:
""")
    spread(BG[C0+3], [l1b], P["Q3"], P["Q3"])
    if BS == BD: assert C0 + 3 < BA
    CB = C0 + 4
    spread(BG[CB], L(f"""
v_and_b32 v42, 7, v0
v_lshlrev_b32 v42, 8, v42
s_mov_b32 s{T0+5}, {WS_FL}
buffer_load_dword v41, v42, {s(S_WS,4)}, s{T0+5} offen sc1
"""), P["Q4"], P["Q4"] + 16)
    KT = OBF
    R = OBF + 16
    ktl = [f"buffer_load_dwordx4 {v(KT,4)}, v1, {s(S_WS,4)}, s{P_KVT} offen sc1",
           f"buffer_load_dwordx4 {v(KT+4,4)}, v1, {s(S_WS,4)}, s{P_KVT} offen offset:1024 sc1"]
    spread(BG[CB+1], [["s_waitcnt vmcnt(0)", "v_cmp_gt_u32 vcc, 32, v41"]], P["Q5"], P["Q5"])
    spread(BG[CB+1], [["s_cbranch_vccnz L_flag2spin", "L_flag2ok:"],
                      f"buffer_load_dwordx4 {v(PQ,4)}, v1, {s(S_WS,4)}, s{P_PHQ} offen sc1",
                      f"buffer_load_dwordx4 {v(PQ+4,4)}, v1, {s(S_WS,4)}, s{P_PHQ} offen offset:1024 sc1"] + ktl, P["Q5"] + 4, 60)
    ktc = L(f"""
v_max3_u32 v40, v{KT}, v{KT+1}, v{KT+2}
v_max3_u32 v41, v{KT+3}, v{KT+4}, v{KT+5}
v_max3_u32 v40, v40, v{KT+6}, v{KT+7}
v_max_u32 v40, v40, v41
v_cmp_eq_u32 vcc, -1, v40
""")
    q6 = P["Q6"]
    spread(BG[CB+2], [["s_waitcnt vmcnt(0)", ktc[0]]] + ktc[1:], q6, q6 + 5)
    spread(BG[CB+2], [["s_cbranch_vccnz L_ktspin", "L_ktok:", f"v_mfma_f32_32x32x16_bf16 {v(R,16)}, {v(KT,4)}, {v(PQ,4)}, 0"]], q6 + 8, q6 + 8)
    m2 = q6 + 23
    spread(BG[CB+2 + m2 // 64], [f"v_mfma_f32_32x32x16_bf16 {v(R,16)}, {v(KT+4,4)}, {v(PQ+4,4)}, {v(R,16)}"], m2 % 64, m2 % 64)
    o0 = max(0, m2 + 13 - 64)
    ob = [f"v_add_f32 v40, {f2u(1e-6):#x}, v{R+8}", "v_rcp_f32 v40, v40"]
    ob += [f"v_mul_f32 v{R+i}, v{R+i}, v40" for i in range(8)]
    ob += [f"v_cvt_pk_bf16_f32 v{KACC+i}, v{R+2*i}, v{R+2*i+1}" for i in range(4)]
    ob += [f"v_min_u32 v{KACC+i}, -2, v{KACC+i}" for i in range(4)]
    ob += [[f"s_add_u32 s{T0}, s{P_OF}, {OBR}", f"buffer_store_dwordx4 {v(KACC,4)}, v1, {s(S_WS,4)}, s{T0} offen sc1"]]
    spread(BG[CB+3], ob, o0, o0 + 24)
    wob = []
    for i in range(16):
        g = [f"buffer_load_dwordx4 {v(POOL+4*i,4)}, v1, {s(S_WS,4)}, s{P_WOB} offen offset:{(i&3)*1024} sc1"]
        if i & 3 == 3: g.append(f"s_add_u32 s{P_WOB}, s{P_WOB}, 4096")
        wob.append(g)
    def woa_dma():
        o = []
        for g in range(2):
            o.append([f"s_add_u32 m0, s{P_WOL}, {g*4096}", f"s_add_u32 s{T0+1}, s{P_WOF}, {g*4096}"])
            for i in range(4):
                o.append(f"buffer_load_dwordx4 v1, {s(S_WS,4)}, s{T0+1} offen offset:{i*1024} sc1 lds")
        return o
    if BS == BD:
        spread(BG[CB+3], wob[:4], 30, 60)
        spread(BG[BW], woa_dma(), 2, 60)
        spread(BG[BW+1], wob[4:10], 2, 60)
        spread(BG[BW+2], wob[10:], 2, 60)
        OBS, OBLO, OBHI, PLO, PHI = NS - 2, 4, 60, 4, 40
    else:
        spread(BG[CB+2], wob[:2], 62, 63)
        spread(BG[CB+3], wob[2:7], 28, 60)
        spread(BG[CB+4], wob[7:16], 2, 60)
        spread(BG[CB+5], woa_dma(), 2, 60)
        OBS, OBLO, OBHI, PLO, PHI = NS - 1, 0, 30, 32, 60
    def ob_loads():
        o = [[f"s_add_u32 s{T0}, s{P_OA}, {OBR}", f"s_add_u32 s{T0+1}, s{P_OA}, {OBR+4096}"]]
        for j in range(8):
            o.append(f"buffer_load_dwordx4 {v(OBF+4*j,4)}, v1, {s(S_WS,4)}, s{T0+j//4} offen offset:{(j&3)*1024} sc1")
        return o
    spread(BG[OBS], L(f"""
v_and_b32 v40, 31, v0
v_lshlrev_b32 v40, 2, v40
buffer_load_dword v{GV}, v40, {s(S_WS,4)}, s{P_G} offen sc1
""") + ob_loads(), OBLO, OBHI)
    spread(BG[NS-2], L(f"""
s_and_b32 s{T0+2}, s{S_WAVE}, 3
s_mul_i32 s{T0+3}, s{T0+2}, {EXS}
s_add_u32 s{T0+3}, s{T0+3}, {L_EX}
v_add_u32 v41, s{T0+3}, v1
v_lshlrev_b32 v2, 2, v0
v_add_u32 v42, s{T0+3}, v2
v_and_b32 v2, 12, v2
v_add_u32 v2, {L_FLAG}, v2
s_lshl_b32 s{T0+2}, s{T0+2}, 2
s_add_u32 s{T0+2}, s{T0+2}, {L_FLAG}
v_mov_b32 v43, s{T0+2}
"""), 5, 59)
    XRD = [f"ds_read_b128 {v(NMA,4)}, v41", f"ds_read_b128 {v(NMA+4,4)}, v41 offset:1024", f"ds_read_b32 v{NMA+8}, v42 offset:4096",
           f"ds_read_b128 {v(NMB,4)}, v41 offset:2048", f"ds_read_b128 {v(NMB+4,4)}, v41 offset:3072", f"ds_read_b32 v{NMB+8}, v42 offset:4352"]
    import copy
    BGL = copy.deepcopy(BG[NS-1])
    spread(BGL, [["s_waitcnt vmcnt(9)", "s_barrier"]], P["XB"], P["XB"])
    spread(BGL, XRD, max(P["XB"] + 1, 46), max(P["XB"] + 7, 52))
    bars = sorted(set([BS, BW, NS] + ([] if P["NOBD"] else [BD]) + ([] if P["NOBA"] else [BA])))
    REB = 9
    a(".p2align 6")
    for sl in range(NS):
        a(f"L_slot{sl}:")
        if 1 <= sl - 4 <= 12: stamp(a, sl - 4, 1)
        if sl < 12: stamp(a, sl + 1, 4)
        if sl == BD and BD != BS and not P["NOBD"]:
            a(f"s_cmp_lg_u32 s{KH}, 0")
            a("s_cbranch_scc1 L_nowaitD")
            a("s_waitcnt vmcnt(3)" if P["CLS"] < BD else "s_waitcnt vmcnt(0)")
            a("L_nowaitD:")
            a("s_barrier")
        if sl == BS:
            a("s_waitcnt vmcnt(0)")
            a("s_barrier")
            a(f"""
s_cmp_lg_u32 s{S_WAVE}, 0
s_cbranch_scc1 L_sig2done
s_lshl_b32 s{T0}, s{S_HQ}, 8
s_add_u32 s{T0}, s{T0}, {WS_FL}
v_mov_b32 v38, 1
s_mov_b64 exec, 1
buffer_atomic_add v38, v{VZ}, {s(S_WS,4)}, s{T0} offen sc1
s_mov_b64 exec, -1
L_sig2done:
""")
        if (sl == BW and not P["DIAG"] & 1) or (sl == BA and not P["NOBA"]):
            a("s_barrier")
        if True:
            nb = min(b for b in bars if b > sl)
            r_ = nb - sl - 1
            pb = max([0] + [b for b in bars if b <= sl])
            pr = min(3, r_) if nb - pb <= 5 else {0: 0, 1: 1, 2: 2, 3: 2, 4: 3, 5: 3}[r_]
            if P["PRI"] == 1 and nb - pb > 5: pr = {0: 0, 1: 0, 2: 1, 3: 2, 4: 2, 5: 3}[r_]
            if P["PRI"] == 2 and nb - pb > 5: pr = {0: 0, 1: 1, 2: 1, 3: 2, 4: 2, 5: 3}[r_]
            if P["PRI"] == 3: pr = (r_ & 1) * 2 if True else pr
            if P["PRI"] == 4 and nb - pb > 5: pr = {0: 0, 1: 1, 2: 2, 3: 3, 4: 3, 5: 3}[r_]
            if P["DIAG"] & 1 and sl >= BS: pr = 3 if sl < 10 else 2 if sl < 14 else 1 if sl < 16 else 0
            if P["DIAG"] & 2 and sl >= BW: pr = {12: 3, 13: 2, 14: 2, 15: 1, 16: 0}[sl]
            a(f"s_setprio {pr}")
        if sl == REB:
            a(f"v_add_u32 v{ADDR}, {REB*4096}, v{ADDR}")
        if sl == NS - 1:
            a(f"s_cmp_eq_u32 s{KH}, 0")
            a("s_cbranch_scc1 L_last0")
        a.emit(slot((sl - (REB if sl >= REB else 0)) * 4096, sl == NS - 1, BG[sl]))
    a(f"""
L_tail1:
s_setprio 3
s_nop 0
{sm(OB, VS[1]+4, SB+8)}
""")
    stamp(a, 9)
    a(f"""
ds_write_b128 v41, {v(OA,4)}
ds_write_b128 v41, {v(OA+4,4)} offset:1024
ds_write_b32 v42, v{OA+8} offset:4096
s_nop 8
ds_write_b128 v41, {v(OB,4)} offset:2048
ds_write_b128 v41, {v(OB+4,4)} offset:3072
ds_write_b32 v42, v{OB+8} offset:4352
s_waitcnt lgkmcnt(0) vmcnt(9)
s_barrier
s_waitcnt vmcnt(0)
s_branch L_join
.p2align 3
L_last0:
""")
    a.emit(slot((NS - 1 - REB) * 4096, True, BGL))
    a(f"""
L_tail0:
s_mov_b32 s{T0}, 0x7e800000
s_waitcnt lgkmcnt(0)
{sm(OB, VS[1]+4, SB+8)}
""")
    stamp(a, 9)
    a(f"""
s_add_u32 s{T0+1}, s{P_OF}, 32768
s_mov_b32 s{T0+2}, 0
""")
    def fin(o, x, dst, so, lab, bit):
        a(f"s_bitcmp1_b32 s{MODE}, {bit}")
        a(f"v_add_f32 v{o+8}, v{o+8}, v{x+8}")
        for i in range(0, 8, 2):
            a(f"v_pk_add_f32 {v(o+i,2)}, {v(o+i,2)}, {v(x+i,2)}")
        a(f"v_rcp_f32 v{o+10}, v{o+8}")
        a(f"v_add_f32 v38, abs(v{o}), abs(v{o+8})")
        a(f"v_add_f32 v39, abs(v{o+1}), abs(v{o+2})")
        for i in range(3, 8):
            a(f"v_add_f32 v{38+(i+1)%2}, v{38+(i+1)%2}, abs(v{o+i})")
        a("v_add_f32 v38, v38, v39")
        a(f"v_cmp_ngt_f32 vcc, s{T0}, v38")
        for i in range(0, 8, 2):
            a(f"v_pk_mul_f32 {v(o+i,2)}, {v(o+i,2)}, {v(o+10,2)} op_sel_hi:[1,0]")
        for i in range(4):
            a(f"v_cvt_pk_bf16_f32 v{dst+i}, v{o+2*i}, v{o+2*i+1}")
        for i in range(4):
            a(f"v_min_u32 v{dst+i}, -2, v{dst+i}")
        a(f"""
s_cbranch_scc1 {lab}_no
s_cbranch_vccnz {lab}
{lab}_st:
buffer_store_dwordx4 {v(dst,4)}, v1, {s(S_WS,4)}, s{so} offen sc1
{lab}_no:
""")
    fin(OA, NMA, KACC, P_OF, "L_ova", 0)
    stamp(a, 10)
    fin(OB, NMB, PQ, T0+1, "L_ovb", 1)
    stamp(a, 11)
    a(f"""
v_mov_b32 v45, s{T0+2}
ds_write_b32 v43, v45
s_waitcnt lgkmcnt(0) vmcnt(2)
L_join:
s_barrier
ds_read_b32 v45, v2
s_setprio 0
s_waitcnt lgkmcnt(0)
v_cmp_ne_u32 vcc, 0, v45
s_nop 4
s_cbranch_vccnz L_slow
""")
    OFA = 80
    ACCA = [112, 128]
    ACCB = 48
    a(f"""
s_mov_b32 s{T0+7}, 0
s_add_u32 s{T0+2}, s{P_OA}, 4096
L_obchk:
v_max3_u32 v40, v{OBF}, v{OBF+1}, v{OBF+2}
v_max3_u32 v41, v{OBF+3}, v{OBF+4}, v{OBF+5}
""")
    for i in range(6, 30, 4):
        a(f"v_max3_u32 v40, v40, v{OBF+i}, v{OBF+i+1}")
        a(f"v_max3_u32 v41, v41, v{OBF+i+2}, v{OBF+i+3}")
    a(f"""
v_max3_u32 v40, v40, v{OBF+30}, v{OBF+31}
v_max_u32 v40, v40, v41
v_cmp_eq_u32 vcc, -1, v40
s_bfe_u32 s{T0}, s{S_WAVE}, 0x10001
s_lshl_b32 s{T0}, s{T0}, 14
s_lshr_b32 s{T0+1}, s{S_WAVE}, 2
s_mul_i32 s{T0+1}, s{T0+1}, {R2}
s_add_u32 s{T0}, s{T0}, s{T0+1}
v_add_u32 v39, s{T0}, v1
s_cbranch_vccnz L_obretry
L_obok:
""")
    prep = L(f"""
v_and_b32 v12, 31, v0
v_lshrrev_b32 v13, 5, v0
s_lshl_b32 s{T0}, s{S_WAVE}, 13
v_lshlrev_b32 v4, 8, v12
v_add_u32 v4, s{T0}, v4
v_and_b32 v14, 7, v0
v_lshlrev_b32 v15, 2, v13
v_xor_b32 v14, v14, v15
v_lshl_add_u32 v4, v14, 4, v4
v_xor_b32 v5, 16, v4
v_xor_b32 v6, 32, v4
v_xor_b32 v7, 48, v4
v_lshrrev_b32 v14, 3, v0
v_and_b32 v15, 7, v0
v_lshlrev_b32 v8, 1, v15
v_xor_b32 v8, v8, v14
v_lshlrev_b32 v8, 4, v8
v_lshl_add_u32 v8, v14, 8, v8
s_lshl_b32 s{T0}, s{S_WAVE}, 11
v_add_u32 v8, s{T0}, v8
v_xor_b32 v9, 16, v8
v_lshlrev_b32 v10, 10, v14
v_lshl_add_u32 v10, v15, 4, v10
s_and_b32 s{T0}, s2, 31
s_lshl_b32 s{T0}, s{T0}, 16
s_lshl_b32 s{T0+1}, s{S_WAVE}, 13
s_add_u32 s{T0}, s{T0}, s{T0+1}
s_lshr_b32 s{T0+1}, s2, 5
s_lshl_b32 s{T0+1}, s{T0+1}, 7
s_add_u32 s{T0}, s{T0}, s{T0+1}
v_sub_f32 v38, 1.0, v{GV}
s_mov_b32 s{S_X}, s20
s_mov_b32 s{S_X+1}, s21
s_mov_b32 s{S_X+2}, {2048*512*2}
s_mov_b32 s{S_X+3}, 0x20000
""")
    k = 0
    def oa_load(j):
        return f"buffer_load_dwordx4 {v(OFA+4*j,4)}, v1, {s(S_WS,4)}, s{P_OA if j < 4 else T0+2} offen offset:{(j&3)*1024} sc1"
    nl = 0
    for j in range(8):
        for ct in range(2):
            c = v(ACCB+16*ct,16)
            a(f"v_mfma_f32_32x32x16_bf16 {c}, {v(POOL+8*j+4*ct,4)}, {v(OBF+4*j,4)}, {'0' if j==0 else c}")
            a(f"ds_read_b128 {v(POOL+8*j+4*ct,4)}, v39 offset:{(2*j+ct)*1024}")
            if 2*j + ct >= P["OAP"] and nl < 8:
                a(oa_load(nl)); nl += 1
            a.emit(prep[k:k+3]); k += 3
    while nl < 8:
        a(oa_load(nl)); nl += 1
    a("s_nop 11")
    for i in range(0, 32, 2):
        a(f"v_pk_mul_f32 {v(ACCB+i,2)}, {v(ACCB+i,2)}, v[38:39] op_sel_hi:[1,0]")
    a("s_waitcnt lgkmcnt(0)")
    a("s_barrier")
    for j in range(8):
        f = OFA + 4*j
        a(f"""
L_cons{j}:
s_waitcnt vmcnt({7-j})
v_max3_u32 v38, v{f}, v{f+1}, v{f+2}
v_max_u32 v38, v38, v{f+3}
v_cmp_eq_u32 vcc, -1, v38
s_nop 4
s_cbranch_vccnz L_retry{j}
L_go{j}:
""")
        for ct in range(2):
            c = v(ACCA[ct],16)
            a(f"v_mfma_f32_32x32x16_bf16 {c}, {v(POOL+8*j+4*ct,4)}, {v(f,4)}, {'0' if j==0 else c}")
    stamp(a, 12)
    a("s_nop 10")
    for ct in range(2):
        for i in range(0, 16, 2):
            a(f"v_pk_fma_f32 {v(ACCA[ct]+i,2)}, {v(ACCA[ct]+i,2)}, {v(GV,2)}, {v(ACCB+16*ct+i,2)} op_sel_hi:[1,0,1]")
        for q in range(4):
            a(f"ds_write_b128 v{4+q}, {v(ACCA[ct]+4*q,4)} offset:{ct*128}")
    a(f"""
s_waitcnt lgkmcnt(0)
s_barrier
""")
    for kq in range(4):
        a(f"ds_read_b128 {v(16+8*kq,4)}, v8 offset:{kq*16384}")
        a(f"ds_read_b128 {v(20+8*kq,4)}, v9 offset:{kq*16384}")
    for kq in range(1, 4):
        a(f"s_waitcnt lgkmcnt({6-2*kq})")
        for i in range(0, 8, 2):
            a(f"v_pk_add_f32 {v(16+i,2)}, {v(16+i,2)}, {v(16+8*kq+i,2)}")
    for i in range(4):
        a(f"v_cvt_pk_bf16_f32 v{16+i}, v{16+2*i}, v{17+2*i}")
    a(f"buffer_store_dwordx4 v[16:19], v10, {s(S_X,4)}, s{T0} offen sc1")
    stamp_out(a)
    a("L_end:")
    a("s_endpgm")
    a("L_mark_o:")
    for j in range(8):
        a(f"""
L_retry{j}:
s_add_u32 s{T0+7}, s{T0+7}, 1
s_cmp_ge_u32 s{T0+7}, {SPIN}
s_cbranch_scc1 L_go{j}
""")
        if P["RT"] == 1: a(f"s_sleep {P['RSL']}")
        if P["RT"] < 2:
            for jj in range(j, 8): a(oa_load(jj))
            a(f"s_branch L_cons{j}")
        else:
            f = OFA + 4*j
            if P["RSL"]: a(f"s_sleep {P['RSL']}")
            a(oa_load(j))
            a(f"""
s_waitcnt vmcnt(0)
v_max3_u32 v38, v{f}, v{f+1}, v{f+2}
v_max_u32 v38, v38, v{f+3}
v_cmp_eq_u32 vcc, -1, v38
s_nop 4
s_cbranch_vccnz L_retry{j}
""")
            for jj in range(j + 1, 8): a(oa_load(jj))
            a(f"s_branch L_go{j}")
    for bit, lab in enumerate(("L_ova", "L_ovb")):
        a(f"""
{lab}:
s_cmp_lg_u32 s{MODE}, 0
s_cbranch_scc1 {lab}_st
s_bitset1_b32 s{T0+2}, {bit}
s_branch {lab}_no
""")
    a(f"""
L_obretry:
s_add_u32 s{T0+7}, s{T0+7}, 1
s_cmp_ge_u32 s{T0+7}, {SPIN}
s_cbranch_scc1 L_obok
""")
    for g in ob_loads(): a.emit(g if isinstance(g, list) else [g])
    a(f"""
s_waitcnt vmcnt(0)
s_branch L_obchk
L_pollF1:
s_sleep {P["PSL"]}
buffer_load_dword v40, v41, {s(S_WS,4)}, s{T0} offen sc1
s_add_u32 s{T0+7}, s{T0+7}, 1
s_waitcnt vmcnt(0)
v_cmp_gt_u32 vcc, 16, v40
s_cmp_ge_u32 s{T0+7}, {SPIN}
s_cbranch_scc1 L_pollF1_ok
s_nop 2
s_cbranch_vccnz L_pollF1
s_branch L_pollF1_ok
L_sig1:
s_mov_b32 s{T0+7}, 0
L_initpoll:
s_sleep 4
global_load_dword v10, v{VZ}, s[22:23] sc1
s_add_u32 s{T0+7}, s{T0+7}, 1
s_waitcnt vmcnt(0)
v_readfirstlane_b32 s{T0+6}, v10
s_cmp_lg_u32 s{T0+6}, 0
s_cbranch_scc1 L_initdone
s_cmp_lt_u32 s{T0+7}, {SPIN}
s_cbranch_scc1 L_initpoll
L_initdone:
{TYC}
s_cbranch_scc1 L_initok1
s_branch L_initok0
L_flagspin:
s_mov_b32 s{T0+7}, 0
L_flagspin2:
s_sleep {P['SL1']}
buffer_load_dword v41, v{VZ}, {s(S_WS,4)}, s{P_F2} offen sc1
s_add_u32 s{T0+7}, s{T0+7}, 1
s_waitcnt vmcnt(0)
v_readfirstlane_b32 s{T0+6}, v41
s_cmp_ge_u32 s{T0+6}, 32
s_cbranch_scc1 L_flagok
s_cmp_lt_u32 s{T0+7}, {SPIN}
s_cbranch_scc1 L_flagspin2
s_branch L_flagok
L_flag2spin:
s_mov_b32 s{T0+7}, 0
L_flag2spin2:
s_sleep {P['SL2']}
buffer_load_dword v41, v42, {s(S_WS,4)}, s{T0+5} offen sc1
s_add_u32 s{T0+7}, s{T0+7}, 1
s_waitcnt vmcnt(0)
v_cmp_gt_u32 vcc, 32, v41
s_cmp_ge_u32 s{T0+7}, {SPIN}
s_cbranch_scc1 L_flag2ok
s_nop 2
s_cbranch_vccnz L_flag2spin2
s_branch L_flag2ok
L_ktspin:
s_mov_b32 s{T0+7}, 0
L_ktspin2:
s_sleep 8
""")
    a.emit(ktl)
    a(f"""
s_add_u32 s{T0+7}, s{T0+7}, 1
s_waitcnt vmcnt(0)
""")
    a.emit(ktc)
    a(f"""
s_cmp_ge_u32 s{T0+7}, {SPIN}
s_cbranch_scc1 L_ktok
s_nop 2
s_cbranch_vccnz L_ktspin2
s_branch L_ktok
""")
    a(f"""
L_slow:
s_barrier
s_and_b32 s{MODE}, s{T0+2}, 3
s_xor_b32 s{MODE}, s{MODE}, 7
s_lshl_b32 s{T0+1}, s{S_H}, 17
s_add_u32 s{T0+1}, s{T0+1}, {WS_KV}
s_add_u32 s{T0+1}, s{T0+1}, s{P_WOL}
""")
    for g in range(2):
        a(f"s_add_u32 m0, s{P_WOL}, {g*4096}")
        a(f"s_add_u32 s{T0+1}, s{T0+1}, {g*4096}")
        for i in range(4):
            a(f"buffer_load_dwordx4 v1, {s(S_WS,4)}, s{T0+1} offen offset:{i*1024} sc1 lds")
    a(f"""
s_mov_b32 s{CNT}, 0
v_mov_b32 v{ADDR}, v1
v_mov_b32 v38, 0xff800000
v_mov_b32 v39, 0xff800000
v_mov_b32 v47, v41
s_waitcnt vmcnt(0)
s_barrier
L_mloop:
ds_read_b128 {v(KS[0],4)}, v{ADDR}
s_waitcnt lgkmcnt(0)
v_mfma_f32_32x32x16_bf16 {v(SA,16)}, {v(KS[0],4)}, {v(QA,4)}, 0
v_mfma_f32_32x32x16_bf16 {v(SB,16)}, {v(KS[0],4)}, {v(QB,4)}, 0
s_nop 15
""")
    a.emit(rr(maxtree(38, SA, 1), maxtree(39, SB, 1)))
    a(f"""
v_add_u32 v{ADDR}, 2048, v{ADDR}
s_add_u32 s{CNT}, s{CNT}, 1
s_cmp_lt_u32 s{CNT}, 64
s_cbranch_scc1 L_mloop
""")
    a(NEGM)
    a(f"""
s_lshl_b32 s{T0}, s{KH}, 16
v_add_u32 v{ADDR}, s{T0}, v1
s_mov_b32 s{CNT}, 0
ds_read_b128 {v(KS[0],4)}, v{ADDR}
s_mov_b64 exec, {s(SL+2,2)}
ds_read_b128 {v(VS[0],4)}, v{ADDR} offset:1024
ds_read_b128 {v(VS[0]+4,4)}, v{ADDR} offset:1280
s_mov_b64 exec, -1
""")
    a.emit(fm); a.emit(ZERO_O); a.emit(ZSB)
    a(f"""
s_waitcnt lgkmcnt(0)
v_mfma_f32_32x32x16_bf16 {v(SA,16)}, {v(KS[0],4)}, {v(QA,4)}, {v(NMA,16)}
s_nop 15
L_sloop:
""")
    a.emit(slot(0))
    a(f"""
v_add_u32 v{ADDR}, 4096, v{ADDR}
s_add_u32 s{CNT}, s{CNT}, 1
s_cmp_lt_u32 s{CNT}, 16
s_cbranch_scc1 L_sloop
v_mov_b32 v41, v47
s_barrier
""")
    for g in woa_dma(): a.emit(g if isinstance(g, list) else [g])
    a("s_waitcnt vmcnt(0)")
    a(f"s_cmp_lg_u32 s{KH}, 0")
    a("s_cbranch_scc1 L_tail1")
    a("s_barrier")
    a.emit(XRD)
    a("s_branch L_tail0")
    a("L_codeend:")
    a("s_endpgm")
    return kd(NAME, 256, 102)

HEAD = """; gated mix of softmax attention and hedgehog linear attention -- hand-written gfx950 kernel
; @launch grid=(256,1,1) block=(512,1,1) lds=163840
.amdgcn_target "amdgcn-amd-amdhsa--gfx950"
"""
if __name__ == "__main__":
    rt = False
    for o in sys.argv[2:]:
        if o == "st": P["STAMPS"] = 1
        elif o == "rt": rt = True
        else:
            k_, v_ = o.split("="); assert k_.upper() in P, k_; P[k_.upper()] = int(v_)
    a = Asm()
    k = gen(a)
    ls = a.lines
    c0, c1, o = ls.index("L_mark_c0:"), ls.index("L_mark_c1:"), ls.index("L_mark_o:")
    if P["LAY"]:
        head = ls[:c0-1]
        mid = [x for x in ls[c1+1:o]]
        if mid[0] == ".p2align 6": mid[0] = ".p2align 3"
        ls = head + mid + [".p2align 3"] + ls[c0+1:c1] + ls[o+1:]
    else:
        ls = [x for x in ls if not x.startswith("L_mark")]
    a.lines = ls
    txt = a.text()
    if rt: txt = txt.replace("s_memtime", "s_memrealtime")
    open(sys.argv[1], "w").write(HEAD + txt + k)
```

```python
import sys, struct
from asmlib import *

NAME = "gated_mix__mha_block__linear_kernel_hedgehog__prompt_kernel"
LOG2E = 1.4426950408889634
def f2u(x): return struct.unpack("<I", struct.pack("<f", x))[0]

WS_QF  = 0
WS_KV  = 2 << 20
WS_PHQ = 6 << 20
WS_KVP = 10 << 20
WS_OF  = 14 << 20
WS_G   = 18 << 20
WS_KVT = (18 << 20) + 65536
WS_WOF = (18 << 20) + 131072
WS_FL  = WS_WOF + (1 << 20)
WS_SIZE = WS_FL + 32 * 256
WS_ST = 20 << 20
OBR = 64 * 32 * 1024

P = dict(STAMPS=0, STMODE=0, SPIN=400000, SIGC=1, LOOK=3, RPG=3, LEAD=2, CPF=1, XAH=0, PSL=2,
         KVS=4, PACE=0, PACK=0, TLB=0, WF=0, WBT=0, MIX=1, RT=0, RSL=4, OAP=8, HOLD=0, MPF=0, Q1=56, Q2=10, Q3=30, Q4=40, Q5=24, Q6=22, SH=0, PER2=1, PER1=2, DQ=0, EB=9, HP=6, KVP=3, HELP=0, GM0=80, GM1=120, WO0=90, WO1=140, HB=0, MAPT=1, SIG0=1, SIG1=1, SL1=16, SL2=32, KF=0, QCUT=0, NOPK=0, PV=1, PS=5, PLO=12, PRI=0, LAY=0, SWO=0, EF1=0, SIDEK=13, XB=40, NOBD=1, NOBA=1, RLIM=11, EARLYB=0, QLATE=0, PRE=2, L1=9, RFIRST=1, CLS=3, BS=6, BD=4, BA=8, BW=12, DBG=0, ROTC=1, DIAG=0)

S_X, S_WA, S_WB, S_WS, S_MISC = 28, 32, 36, 40, 44
S_WAVE, S_HQ, S_TB, S_ROT = 48, 49, 50, 51
S_H, S_RB = 26, 27
T0 = 52
SL = 60
CNT, MODE, EVM, TT, PP, SX = 64, 65, 66, 67, 68, 69
P_KVG, P_KVB = 66, 67
P_OF, P_F2, P_KVS, P_KVT, P_PHQ, P_WOF, P_WOB, P_OA, P_G, P_WOL, KH = 4, 5, 6, 7, 8, 9, 10, 11, 0, 1, 3

XL, WL, WSLOT = 0, 65536, 24576
L_QH, L_WOS, L_CMB = 52*1024, 156*1024, 128*1024
L_FLAG, L_EX, EXS = 136*1024, 137*1024, 4608

QA, QB, KS, VS, IDX, ADDR = 4, 8, [12, 16], [20, 28], 36, 37
NMA, NMB, SA, SB, OA, OB = 48, 64, 80, 96, 112, 128
POOL, OBF, KACC, PQ, GV = 144, 208, 240, 244, 252
VZ = 3
L = lambda t: [x.strip() for x in t.strip().split("\n") if x.strip()]

def stamp(a, i, mode=0):
    if P["STAMPS"] and mode == P["STMODE"]:
        a(f"s_memtime s[{70+2*i}:{71+2*i}]")
def stamp_out(a):
    if not P["STAMPS"]:
        return
    a("s_mov_b64 exec, -1")
    a("s_memrealtime s[100:101]")
    a("s_waitcnt lgkmcnt(0) vmcnt(0)")
    a("s_memtime s[96:97]")
    a("s_waitcnt lgkmcnt(0)")
    srd(a, 40, 24, 25, WS_ST + (1 << 20))
    a(f"s_lshl_b32 s3, s2, 3")
    a(f"s_add_u32 s3, s3, s{S_WAVE}")
    a(f"s_lshl_b32 s3, s3, 6")
    a(f"s_add_u32 s3, s3, {WS_ST}")
    a("v_mov_b32 v1, 0")
    for i in range(16):
        a(f"v_mov_b32 v2, s{70+2*i}")
        a(f"buffer_store_dword v2, v1, s[40:43], s3 offen offset:{4*i}")
    a("s_waitcnt vmcnt(0)")

def softmax16(b, t):
    o = [f"v_max3_f32 v{t}, v{b}, v{b+1}, v{b+2}"]
    for i in range(3, 15, 2):
        o.append(f"v_max3_f32 v{t}, v{t}, v{b+i}, v{b+i+1}")
    o.append(f"v_max_f32 v{t}, v{t}, v{b+15}")
    o.append(f"v_mul_f32 v{t}, {f2u(-LOG2E):#x}, v{t}")
    for i in range(0, 16, 2):
        o.append(f"v_pk_fma_f32 {v(b+i,2)}, {v(b+i,2)}, {s(SL,2)}, {v(t,2)} op_sel_hi:[1,0,0]")
    for i in range(16):
        o.append(f"v_exp_f32 v{b+i}, v{b+i}")
    o.append(f"v_pk_add_f32 {v(t+2,2)}, {v(b,2)}, {v(b+2,2)}")
    for i in range(4, 16, 2):
        o.append(f"v_pk_add_f32 {v(t+2,2)}, {v(t+2,2)}, {v(b+i,2)}")
    o.append(f"v_add_f32 v{t}, v{t+2}, v{t+3}")
    o.append(f"v_rcp_f32 v{t}, v{t}")
    o.append("s_nop 0")
    for i in range(0, 16, 2):
        o.append(f"v_pk_mul_f32 {v(b+i,2)}, {v(b+i,2)}, {v(t,2)} op_sel_hi:[1,0]")
    for i in range(8):
        o.append(f"v_cvt_pk_bf16_f32 v{b+i}, v{b+2*i}, v{b+2*i+1}")
    return o

def unpk(x):
    import re
    m = re.match(r"v_pk_fma_f32 v\[(\d+):\d+\], v\[(\d+):\d+\], s\[(\d+):\d+\], v\[(\d+):\d+\]", x)
    if m:
        d, a_, s_, t = map(int, m.groups())
        return f"v_fma_f32 v{d}, v{a_}, s{s_}, v{t}\nv_fma_f32 v{d+1}, v{a_+1}, s{s_}, v{t}"
    m = re.match(r"v_pk_add_f32 v\[(\d+):\d+\], v\[(\d+):\d+\], v\[(\d+):\d+\]", x)
    if m:
        d, a_, b = map(int, m.groups())
        return f"v_add_f32 v{d}, v{a_}, v{b}\nv_add_f32 v{d+1}, v{a_+1}, v{b+1}"
    m = re.match(r"v_pk_mul_f32 v\[(\d+):\d+\], v\[(\d+):\d+\], v\[(\d+):\d+\] op_sel_hi:\[1,0\]", x)
    if m:
        d, a_, b = map(int, m.groups())
        return f"v_mul_f32 v{d}, v{a_}, v{b}\nv_mul_f32 v{d+1}, v{a_+1}, v{b}"
    m = re.match(r"v_mov_b64 v\[(\d+):\d+\], v\[(\d+):\d+\]", x)
    if m:
        d, a_ = map(int, m.groups())
        return f"v_mov_b32 v{d}, v{a_}\nv_mov_b32 v{d+1}, v{a_+1}"
    return x

def tr64_addr(a, dst, tmp, base_sgpr):
    a(f"""
v_bfe_u32 v{tmp}, v0, 2, 2
v_lshlrev_b32 v{dst}, 6, v{tmp}
v_lshrrev_b32 v{tmp}, 5, v0
v_lshl_add_u32 v{dst}, v{tmp}, 8, v{dst}
v_and_b32 v{tmp}, 1, v0
v_lshl_add_u32 v{dst}, v{tmp}, 5, v{dst}
v_bfe_u32 v{tmp}, v0, 4, 1
v_lshl_add_u32 v{dst}, v{tmp}, 4, v{dst}
v_bfe_u32 v{tmp}, v0, 1, 1
v_lshl_add_u32 v{dst}, v{tmp}, 3, v{dst}
v_add_u32 v{dst}, s{base_sgpr}, v{dst}
""")

def persist(a, kh, R2, xkb):
    a(f"""
s_mov_b32 s{KH}, {kh}
s_and_b32 s{T0}, s{S_WAVE}, 3
s_lshl_b32 s{T0+1}, s{S_RB}, 3
s_lshl_b32 s{T0+2}, s{T0}, 1
s_add_u32 s{T0+1}, s{T0+1}, s{T0+2}
s_add_u32 s{T0+1}, s{T0+1}, {kh}
s_lshl_b32 s{P_OF}, s{T0+1}, 5
s_add_u32 s{P_OF}, s{P_OF}, s{S_H}
s_lshl_b32 s{P_OF}, s{P_OF}, 10
s_add_u32 s{P_OF}, s{P_OF}, {WS_OF}
s_lshl_b32 s{P_PHQ}, s{S_H}, 6
s_add_u32 s{P_PHQ}, s{P_PHQ}, s{T0+1}
s_lshl_b32 s{P_PHQ}, s{P_PHQ}, 11
s_add_u32 s{P_PHQ}, s{P_PHQ}, {WS_PHQ}
s_lshr_b32 s{P_F2}, s{S_H}, 2
s_xor_b32 s{P_F2}, s{P_F2}, {xkb}
s_lshl_b32 s{P_F2}, s{P_F2}, 8
s_add_u32 s{P_F2}, s{P_F2}, {WS_FL}
s_lshl_b32 s{P_KVS}, s{S_H}, 17
s_lshl_b32 s{T0+2}, s{T0}, 10
s_add_u32 s{P_KVS}, s{P_KVS}, s{T0+2}
s_lshl_b32 s{T0+2}, s{S_RB}, 7
s_add_u32 s{P_KVS}, s{P_KVS}, s{T0+2}
s_add_u32 s{P_KVS}, s{P_KVS}, {WS_KVP}
s_lshl_b32 s{P_KVT}, s{S_H}, 11
s_add_u32 s{P_KVT}, s{P_KVT}, {WS_KVT}
s_lshr_b32 s{P_WOF}, s2, 5
s_lshl_b32 s{P_WOF}, s{P_WOF}, 17
s_add_u32 s{P_WOF}, s{P_WOF}, {WS_WOF}
s_lshr_b32 s{T0+1}, s{S_WAVE}, 1
s_lshl_b32 s{P_WOB}, s{T0+1}, 14
s_add_u32 s{P_WOB}, s{P_WOB}, s{P_WOF}
s_add_u32 s{P_WOB}, s{P_WOB}, 65536
s_lshl_b32 s{T0+2}, s{S_WAVE}, 13
s_add_u32 s{P_WOF}, s{P_WOF}, s{T0+2}
s_and_b32 s{P_OA}, s2, 31
s_lshl_b32 s{P_OA}, s{P_OA}, 1
s_and_b32 s{T0+2}, s{S_WAVE}, 1
s_add_u32 s{P_OA}, s{P_OA}, s{T0+2}
s_lshl_b32 s{P_G}, s{P_OA}, 7
s_add_u32 s{P_G}, s{P_G}, {WS_G}
s_lshl_b32 s{P_OA}, s{P_OA}, 5
s_lshl_b32 s{T0+1}, s{T0+1}, 3
s_add_u32 s{P_OA}, s{P_OA}, s{T0+1}
s_lshl_b32 s{P_OA}, s{P_OA}, 10
s_add_u32 s{P_OA}, s{P_OA}, {WS_OF}
s_lshl_b32 s{P_WOL}, s{T0}, 13
s_add_u32 s{P_WOL}, s{P_WOL}, {R2 if kh == 0 else 0}
""")

def gen(a):
    SPIN, LEAD = P["SPIN"], P["LEAD"]
    XQA, XKA, XVA, XQB, XKB = (1, 0, 2, 5, 4) if P["MIX"] else (0, 0, 0, 0, 0)
    TYB = 6 if P["MAPT"] == 0 else 5
    TYC = f"s_bitcmp1_b32 s2, {TYB}"
    NS = 16 + LEAD // 2
    R2 = 2 * NS * 2048
    BD, BA, BW, BS = P["BD"], P["BA"], P["BW"], P["BS"]
    C0 = BS
    assert BW >= LEAD + 8 and BW >= 8
    a(f""".text
.globl {NAME}
.p2align 8
.type {NAME},@function
{NAME}:
s_cmp_ge_u32 s2, 256
s_cbranch_scc1 L_end
""")
    if P["STAMPS"]:
        for i in range(70, 102): a(f"s_mov_b32 s{i}, 0")
        a("s_memtime s[70:71]")
        a("s_memrealtime s[98:99]")
    a(f"""
s_load_dwordx16 s[4:19], s[0:1], 0
s_load_dwordx4 s[20:23], s[0:1], 64
s_load_dwordx2 s[24:25], s[0:1], 80
v_lshrrev_b32 v1, 6, v0
v_and_b32 v0, 63, v0
v_readfirstlane_b32 s{S_WAVE}, v1
""")
    if P["MAPT"] == 0:
        a(f"""
s_bfe_u32 s{S_ROT}, s2, 0x30003
s_and_b32 s{S_TB}, s2, 4
s_lshl_b32 s{S_TB}, s{S_TB}, 1
s_add_u32 s{S_TB}, s{S_TB}, s{S_ROT}
s_lshr_b32 s3, s2, 6
s_and_b32 s{S_HQ}, s2, 3
s_lshl_b32 s{S_HQ}, s{S_HQ}, 1
s_lshr_b32 s{S_H}, s3, 1
s_add_u32 s{S_HQ}, s{S_HQ}, s{S_H}
s_lshl_b32 s{S_H}, s3, 1
s_add_u32 s{S_ROT}, s{S_ROT}, s{S_H}
""")
    else:
        a(f"""
s_bfe_u32 s{S_ROT}, s2, 0x20003
s_and_b32 s{S_TB}, s2, 6
s_lshl_b32 s{S_TB}, s{S_TB}, 1
s_add_u32 s{S_TB}, s{S_TB}, s{S_ROT}
s_lshl_b32 s{S_ROT}, s{S_ROT}, 1
s_lshr_b32 s3, s2, 5
s_add_u32 s{S_ROT}, s{S_ROT}, s3
s_lshr_b32 s3, s3, 1
s_and_b32 s{S_HQ}, s2, 1
s_lshl_b32 s{S_HQ}, s{S_HQ}, 2
s_add_u32 s{S_HQ}, s{S_HQ}, s3
""")
    a(f"""
s_lshr_b32 s3, s2, 6
s_and_b32 s{S_H}, s2, 7
s_lshl_b32 s{S_H}, s{S_H}, 2
s_add_u32 s{S_H}, s{S_H}, s3
s_bfe_u32 s{S_RB}, s2, 0x30003
v_mov_b32 v{VZ}, 0
s_cmp_ge_u32 s{S_WAVE}, 4
s_cbranch_scc0 L_compute
""")
    LW, XO, WO, XM, WM = 64, 65, 66, 67, 68
    S0 = 128 * 1024
    X = lambda s_: s_ * 16384
    U = lambda i_: S0 + i_ * 8192
    def plan(ty):
        st = {}; when = {}
        if ty == 0:
            loc = [(U(0), U(1)), (U(2), U(3)), (X(7), X(7) + 8192), (U(0), U(1)), (U(2), U(3)), (X(7), X(7) + 8192), (U(0), U(1)), (U(2), U(3))]
            for t in range(8):
                st[t] = [(S_WA, 1024, XKA, loc[t][0]), (S_WA, 2048, XVA, loc[t][1])]
                for u in range(2): when[("w", t, u)] = -1 if t < 2 else t - 2
            for t in range(8, 16):
                st[t] = [(S_WB, 0, XQB, U(t & 3))]
                when[("w", t, 0)] = {8: 7, 9: 7, 10: 7.5, 11: 7.5}.get(t, t - 3)
            for c in range(8): when[("x", c)] = 6 if c == 7 else max(-1, c - 2 - P["XAH"])
        else:
            l1 = [U(t & 3) for t in range(8)] if P["EB"] == 9 else [U(2), X(6), X(6) + 8192, X(7), X(7) + 8192, U(2), U(3), U(2)]
            for t in range(8):
                st[t] = [(S_WA, 0, XQA, l1[t])]
                when[("w", t, 0)] = -1 if t < 2 else t - 2
            if P["EB"] != 9: when[("w", 7, 0)] = 6
            loc = {8: (U(0), U(1)), 9: (U(2), U(3)), 10: (U(0), U(1)), 11: (X(0), X(0) + 8192), 12: (U(2), U(3)), 13: (X(1), X(1) + 8192), 14: (U(0), U(1)), 15: (U(2), U(3))}
            e8 = 6 if P["EB"] == 9 else P["EB"] - 1
            wh = {8: (e8, e8), 9: (7.5, 7.5), 10: (9, 9), 11: (9, 9), 12: (10, 10), 13: (11, 11), 14: (12, 12), 15: (13, 13)}
            for t in range(8, 16):
                st[t] = [(S_WB, 1024, XKB, loc[t][0]), (S_WB, 2048, XKB, loc[t][1])]
                for u in range(2): when[("w", t, u)] = wh[t][u]
            for c in range(8): when[("x", c)] = max(-1, c - 2 - P["XAH"])
        return st, when
    PLAN = [plan(0), plan(1)]
    a(f"""
s_sub_u32 s{LW}, s{S_WAVE}, 4
v_lshrrev_b32 v1, 3, v0
v_and_b32 v2, 7, v0
v_lshrrev_b32 v8, 4, v0
v_xor_b32 v9, v2, v8
v_lshlrev_b32 v10, 10, v1
v_lshl_add_u32 v4, v9, 4, v10
v_xor_b32 v5, 64, v4
v_add_u32 v5, {8192-1024}, v5
v_mul_u32_u24 v10, 3072, v1
v_and_b32 v8, 1, v8
v_lshlrev_b32 v8, 2, v8
v_xor_b32 v9, v2, v8
v_lshl_add_u32 v6, v9, 4, v10
v_xor_b32 v7, 32, v6
v_add_u32 v7, {8*3072-1024}, v7
s_lshl_b32 s{XO}, s{S_TB}, 17
s_lshl_b32 s{T0}, s{LW}, 15
s_add_u32 s{XO}, s{XO}, s{T0}
s_mul_i32 s{WO}, s{LW}, {16*3072}
s_lshl_b32 s{T0}, s{S_HQ}, 7
s_add_u32 s{WO}, s{WO}, s{T0}
s_lshl_b32 s{XM}, s{LW}, 12
s_lshl_b32 s{WM}, s{LW}, 11
s_mov_b32 s{S_X+2}, {2048*512*2}
s_mov_b32 s{S_X+3}, 0x20000
s_mov_b32 s{S_WA+2}, {512*1536*2}
s_mov_b32 s{S_WA+3}, 0x20000
s_waitcnt lgkmcnt(0)
s_mov_b32 s{S_X}, s4
s_mov_b32 s{S_X+1}, s5
s_mov_b32 s{S_WA}, s6
s_mov_b32 s{S_WA+1}, s7
""")
    stamp(a, 1)
    ISS = [[], []]
    def issx(c, tys):
        a(f"s_add_u32 s{T0}, s{S_ROT}, {c}")
        a(f"s_and_b32 s{T0}, s{T0}, 7")
        a(f"s_lshl_b32 s{T0}, s{T0}, 7")
        for g in range(2):
            a(f"s_add_u32 m0, s{XM}, {X(c) + g*2048}")
            a(f"s_add_u32 s{T0}, s{T0}, " + (f"s{XO}" if g == 0 else "16384"))
            a(f"buffer_load_dwordx4 v4, {s(S_X,4)}, s{T0} offen lds")
            a(f"buffer_load_dwordx4 v5, {s(S_X,4)}, s{T0} offen offset:1024 lds")
        for ty in tys: ISS[ty].append((("x", c), 4))
    def issw(ty, t, us):
        a(f"s_add_u32 s{T0}, s{S_ROT}, {t & 7}")
        a(f"s_and_b32 s{T0}, s{T0}, 7")
        a(f"s_mul_i32 s{T0}, s{T0}, {64*3072}")
        a(f"s_add_u32 s{T0}, s{T0}, s{WO}")
        for u in us:
            W, col, xr_, ad = PLAN[ty][0][t][u]
            a(f"s_xor_b32 s{T0+1}, s{T0}, {xr_*128}")
            a(f"s_add_u32 m0, s{WM}, {ad}")
            a(f"s_add_u32 s{T0+1}, s{T0+1}, {col}")
            a(f"buffer_load_dwordx4 v6, {s(W,4)}, s{T0+1} offen lds")
            a(f"buffer_load_dwordx4 v7, {s(W,4)}, s{T0+1} offen offset:1024 lds")
            ISS[ty].append((("w", t, u), 2))
    issx(0, (0, 1))
    a(TYC)
    a("s_cbranch_scc1 L_i1")
    issw(0, 0, (0, 1))
    a("s_branch L_i2")
    a("L_i1:")
    issw(1, 0, (0,)); issw(1, 1, (0,))
    a("L_i2:")
    issx(1, (0, 1))
    srd(a, S_WB, 12, 13, 512*1536*2)
    srd(a, S_WS, 24, 25, WS_SIZE)
    GO, GX, WSRC, WD, WST = 60, 44, 45, 61, 46
    a(f"""
s_cmp_ge_u32 s2, 128
s_cselect_b32 s12, s16, s8
s_cselect_b32 s13, s17, s9
s_mov_b32 s14, {512*512*2}
s_mov_b32 s15, 0x20000
s_mov_b32 s16, s18
s_mov_b32 s17, s19
s_mov_b32 s18, 1024
s_mov_b32 s19, 0x20000
s_lshl_b32 s{GO}, s{S_TB}, 7
s_lshl_b32 s{T0+1}, s{S_HQ}, 4
s_add_u32 s{GO}, s{GO}, s{T0+1}
s_bfe_u32 s{T0+1}, s2, {0x10000 + TYB}
s_lshl_b32 s{T0+1}, s{T0+1}, 3
s_add_u32 s{GO}, s{GO}, s{T0+1}
s_lshl_b32 s{T0+1}, s{LW}, 1
s_add_u32 s{GO}, s{GO}, s{T0+1}
s_and_b32 s{GX}, s{GO}, 127
s_lshl_b32 s{GO}, s{GO}, 2
s_add_u32 s{GO}, s{GO}, {WS_G}
s_bfe_u32 s{T0+1}, s{GX}, 0x30001
v_xor_b32 v8, s{T0+1}, v2
v_lshlrev_b32 v8, 4, v8
v_lshl_add_u32 v8, v1, 14, v8
s_lshl_b32 s{GX}, s{GX}, 7
v_add_u32 v{POOL+16}, s{GX}, v8
v_add_u32 v8, s{S_ROT}, v1
v_and_b32 v8, 7, v8
v_lshlrev_b32 v8, 7, v8
v_lshl_add_u32 v{POOL+17}, v2, 4, v8
v_mov_b32 v{POOL+13}, 0
v_lshrrev_b32 v8, 2, v0
v_lshlrev_b32 v8, 10, v8
v_and_b32 v9, 3, v0
v_lshl_add_u32 v{POOL+18}, v9, 4, v8
v_lshrrev_b32 v{POOL+19}, 5, v0
v_lshlrev_b32 v{POOL+19}, 2, v{POOL+19}
v_mov_b32 v{POOL+12}, 0
s_lshl_b32 s{T0}, s2, 2
s_add_u32 s{T0}, s{T0}, s{LW}
s_bfe_u32 s{T0+1}, s{T0}, 0x50004
s_and_b32 s{T0+2}, s{T0}, 15
s_lshl_b32 s{WSRC}, s{T0+1}, 14
s_lshl_b32 s{T0+3}, s{T0+2}, 6
s_add_u32 s{WSRC}, s{WSRC}, s{T0+3}
s_lshl_b32 s{WST}, s{LW}, 10
s_add_u32 s{WST}, s{WST}, {L_WOS}
s_lshr_b32 s{T0+3}, s{T0+2}, 1
s_lshl_b32 s{WD}, s{T0+3}, 17
s_lshr_b32 s{T0+3}, s{T0}, 9
s_lshl_b32 s{T0+3}, s{T0+3}, 16
s_add_u32 s{WD}, s{WD}, s{T0+3}
s_lshl_b32 s{T0+3}, s{T0+1}, 11
s_add_u32 s{WD}, s{WD}, s{T0+3}
s_and_b32 s{T0+3}, s{T0+2}, 1
s_lshl_b32 s{T0+3}, s{T0+3}, 10
s_add_u32 s{WD}, s{WD}, s{T0+3}
s_add_u32 s{WD}, s{WD}, {WS_WOF}
""")
    tr64_addr(a, POOL+9, 8, WST)
    if P["TLB"]: a("s_waitcnt lgkmcnt(0)")
    persist(a, 0, R2, XKB)
    VINIT = f"""
v_mov_b32 v{IDX}, 0xdddddddd
v_and_b32 v39, 27, v0
v_cmp_eq_u32 vcc, 16, v39
v_mov_b32 v38, 0x3f803f80
v_mov_b64 v[44:45], -1
v_cndmask_b32 v38, 0, v38, vcc
v_mov_b64 v[46:47], -1
v_mov_b32 v39, v38
""" + "\n".join(f"v_mov_b64 {v(VS[0]+i,2)}, v[38:39]" for i in range(0, 16, 2))
    ZERO_O = [f"v_mov_b64 {v(OA+i,2)}, 0" for i in range(0, 32, 2)]
    a(VINIT)
    a.emit(ZERO_O)
    a(f"""
v_lshlrev_b32 v42, 12, v1
v_lshl_add_u32 v42, v2, 4, v42
s_lshl_b32 s{T0}, s{S_RB}, 7
s_lshr_b32 s{T0+1}, s{LW}, 1
s_lshl_b32 s{T0+1}, s{T0+1}, 10
s_add_u32 s{T0}, s{T0}, s{T0+1}
s_and_b32 s{T0+1}, s{LW}, 1
s_lshl_b32 s{T0+1}, s{T0+1}, 3
s_add_u32 s{T0}, s{T0}, s{T0+1}
v_lshlrev_b32 v43, 4, v2
v_bfe_u32 v8, v0, 4, 1
v_lshl_add_u32 v43, v8, 2, v43
v_add_u32 v43, s{T0}, v43
v_lshlrev_b32 v1, 4, v0
v_mov_b32 v{ADDR}, v1
s_lshl_b32 s{T0}, s{LW}, 9
s_add_u32 s{T0}, s{T0}, {L_QH}
v_lshrrev_b32 v{POOL+11}, 1, v1
v_add_u32 v{POOL+11}, s{T0}, v{POOL+11}
""")
    def gate_math():
        G0 = POOL + 12
        for i in range(4):
            a(f"v_dot2_f32_bf16 v{G0}, v{POOL+20+i}, v{POOL+28+i}, v{G0}")
            a(f"v_dot2_f32_bf16 v{G0+1}, v{POOL+24+i}, v{POOL+28+i}, v{G0+1}")
        a(f"""
s_nop 2
v_permlane32_swap_b32 v{G0}, v{G0+1}
s_nop 1
v_add_f32 v{G0}, v{G0}, v{G0+1}
s_nop 1
v_add_f32_dpp v{G0}, v{G0}, v{G0} quad_perm:[1,0,3,2] row_mask:0xf bank_mask:0xf
s_nop 1
v_add_f32_dpp v{G0}, v{G0}, v{G0} quad_perm:[2,3,0,1] row_mask:0xf bank_mask:0xf
s_nop 1
v_add_f32_dpp v{G0}, v{G0}, v{G0} row_half_mirror row_mask:0xf bank_mask:0xf
s_nop 1
v_add_f32_dpp v{G0}, v{G0}, v{G0} row_mirror row_mask:0xf bank_mask:0xf
v_mov_b32 v{G0+1}, v{G0}
s_nop 1
v_permlane16_swap_b32 v{G0}, v{G0+1}
s_nop 1
v_add_f32 v{G0}, v{G0}, v{G0+1}
v_mul_f32 v{G0}, {f2u(-LOG2E):#x}, v{G0}
v_exp_f32 v{G0}, v{G0}
s_nop 0
v_add_f32 v{G0}, 1.0, v{G0}
v_rcp_f32 v{G0}, v{G0}
""")
    stamp(a, 2)
    a(TYC)
    a("s_cbranch_scc1 L_ld1")
    for ty in range(2):
        a(f"L_ld{ty}:")
        st_, when = PLAN[ty]
        issued = ISS[ty]
        def release(pt):
            done = {t for t, _ in issued}
            todo = [k_ for k_, w_ in when.items() if w_ <= pt and k_ not in done]
            todo.sort(key=lambda k_: (k_[1], 0 if k_[0] == "w" else 1))
            i_ = 0
            while i_ < len(todo):
                k_ = todo[i_]
                if k_[0] == "x": issx(k_[1], (ty,)); i_ += 1
                else:
                    us = [q_[2] for q_ in todo if q_[0] == "w" and q_[1] == k_[1]]
                    issw(ty, k_[1], us); i_ += len(us)
        def cnt_after(tags):
            idx = max(i for i, (t, _) in enumerate(issued) if t in tags)
            return sum(k_ for _, k_ in issued[idx+1:])
        def side(pt):
            if pt == P["HP"] - (0 if P["HP"] == 6 else 1) and ty == 1 and P["HELP"]:
                a(f"""
s_and_b32 s{T0}, s{S_ROT}, 7
s_mul_i32 s{T0}, s{T0}, {64*3072}
s_add_u32 s{T0}, s{T0}, s{WO}
s_xor_b32 s{T0}, s{T0}, {XQB*128}
buffer_load_dwordx4 {v(POOL+40,4)}, v6, {s(S_WB,4)}, s{T0} offen
buffer_load_dwordx4 {v(POOL+40,4)}, v7, {s(S_WB,4)}, s{T0} offen offset:1024
""")
                issued.append(("gw", 2))
            if P[f"WO{ty}"] == pt * 10:
                a(f"buffer_load_dwordx4 {v(POOL+36,4)}, v{POOL+18}, s[12:15], s45 offen")
                issued.append(("gw", 1))
            if pt == 6:
                a(f"buffer_load_dwordx4 {v(POOL+28,4)}, v{POOL+17}, s[16:19], 0 offen")
                issued.append(("gw", 1))
            if pt == 7.5:
                a(f"ds_read_b128 {v(POOL+20,4)}, v{POOL+16}")
                a(f"ds_read_b128 {v(POOL+24,4)}, v{POOL+16} offset:128")
            if P[f"GM{ty}"] == pt * 10:
                gate_math()
        release(-1)
        side(-1)
        for k in range(15):
            a(f"s_waitcnt vmcnt({cnt_after([('x', k), ('w', k, 0), ('w', k, 1)])})" + (" lgkmcnt(0)" if k == 8 else ""))
            if k == 0: stamp(a, 3)
            if k < 12: stamp(a, k + 1, 2)
            a("s_barrier")
            release(k)
            side(k)
            if k == 7:
                a("s_barrier")
                release(7.5)
                side(7.5)
        assert len([1 for t, _ in issued if t != "gw"]) == len(when)
        a(f"s_waitcnt vmcnt({cnt_after([('w', 15, 0), ('w', 15, 1)])})")
        if ty == 0: a("s_branch L_ldj")
    a("L_ldj:")
    a("s_barrier")
    a(f"""
v_add_u32 v{POOL+18}, s{WST}, v1
s_lshr_b32 s{T0}, s{S_H}, 2
s_lshl_b32 s{T0}, s{T0}, 8
s_add_u32 s{T0}, s{T0}, {WS_FL + 2048}
v_min_u32 v41, 2, v0
v_lshlrev_b32 v41, 11, v41
s_sub_u32 s{T0+1}, s{P_PHQ}, {WS_PHQ}
s_lshr_b32 s{T0+1}, s{T0+1}, 1
s_lshl_b32 s{P_KVB}, s{S_H}, 17
s_add_u32 s{P_KVB}, s{P_KVB}, {WS_KV}
s_lshl_b32 s{P_KVG}, s{LW}, 12
s_add_u32 s{T0+3}, s{P_KVG}, {R2 - 4096}
s_cmp_eq_u32 s{LW}, 0
s_cmov_b32 s{T0+3}, 16384
s_mov_b32 s{T0+7}, 0
""")
    a(f"buffer_load_dword v40, v41, {s(S_WS,4)}, s{T0} offen sc1")
    stamp(a, 4)
    def kvgrp(reg, off):
        o = [[f"s_add_u32 m0, s{reg}, {off}", f"s_add_u32 s{T0+4}, m0, s{P_KVB}"]]
        o += [f"buffer_load_dwordx4 v1, {s(S_WS,4)}, s{T0+4} offen offset:{i*1024} sc1 lds" for i in range(4)]
        return o
    def flat(x):
        o = []
        for g in x: o += g if isinstance(g, list) else [g]
        return o
    FIRST = [f"buffer_load_dwordx4 {v(QA,4)}, v1, {s(S_WS,4)}, s{T0+1} offen sc1",
             f"buffer_load_dwordx4 {v(QB,4)}, v1, {s(S_WS,4)}, s{T0+1} offen offset:1024 sc1",
             f"buffer_load_dwordx4 {v(KS[0],4)}, v1, {s(S_WS,4)}, s{P_KVB} offen sc1"] + flat(kvgrp(P_KVG, 0)) + flat(kvgrp(T0+3, 0))
    a(f"""
s_waitcnt vmcnt(0)
v_cmp_gt_u32 vcc, 16, v40
s_nop 4
s_cbranch_vccnz L_pollF1
L_pollF1_ok:
""")
    a.emit(FIRST)
    a("L_first_done:")
    stamp(a, 5); stamp(a, 1, 3)
    G0 = POOL + 12
    a(f"""
s_setprio 3
s_waitcnt vmcnt(8)
v_mfma_f32_32x32x16_bf16 {v(SA,16)}, {v(KS[0],4)}, {v(QA,4)}, 0
v_mfma_f32_32x32x16_bf16 {v(SB,16)}, {v(KS[0],4)}, {v(QB,4)}, 0
""")
    if P["NOBD"]: a.emit(flat(kvgrp(P_KVG, 5*4096) + kvgrp(P_KVG, R2 + 3*4096)))
    else: a("s_nop 9")
    a(f"""
s_mov_b32 s{MODE}, 0
s_mov_b32 s{SL+2}, 0x0000ffff
s_mov_b32 s{SL+3}, 0x0000ffff
""")
    def maxtree(dst, b, init=None):
        o = []
        if init is None:
            o.append(f"v_max3_f32 v{dst}, v{b}, v{b+1}, v{b+2}")
            for i in range(3, 15, 2):
                o.append(f"v_max3_f32 v{dst}, v{dst}, v{b+i}, v{b+i+1}")
            o.append(f"v_max_f32 v{dst}, v{dst}, v{b+15}")
        else:
            for i in range(0, 16, 2):
                o.append(f"v_max3_f32 v{dst}, v{dst}, v{b+i}, v{b+i+1}")
        return o
    a.emit(rr(maxtree(38, SA), maxtree(39, SB)))
    NEGM = f"""
v_permlane32_swap_b32 v38, v39
s_nop 1
v_max_f32 v38, v38, v39
v_sub_f32 v38, 0, v38
v_mov_b32 v39, v38
s_nop 1
v_permlane32_swap_b32 v38, v39
"""
    def fill_nm():
        o = [f"v_mov_b32 v40, v38", f"v_mov_b32 v41, v38"]
        o += [f"v_mov_b64 {v(NMA+i,2)}, v[40:41]" for i in range(0, 16, 2)]
        o += [f"v_mov_b32 v38, v39"]
        o += [f"v_mov_b64 {v(NMB+i,2)}, v[38:39]" for i in range(0, 16, 2)]
        return o
    ZSB = [f"v_mov_b64 {v(SB+i,2)}, 0" for i in range(8, 16, 2)]
    a("s_nop 1")
    a(NEGM)
    a(f"""
s_nop 1
v_mov_b64 {v(POOL+14,2)}, v[38:39]
""")
    fm = fill_nm()
    a.emit(fm[:11])
    a.emit(ZSB)
    a(f"v_mfma_f32_32x32x16_bf16 {v(SA,16)}, {v(KS[0],4)}, {v(QA,4)}, {v(NMA,16)}")
    a.emit(fm[11:])
    stamp(a, 2, 3)
    a("s_setprio 0")
    stamp(a, 3, 3)
    a(f"""
ds_write_b64 v{POOL+11}, {v(POOL+14,2)}
s_waitcnt vmcnt(0) lgkmcnt(0)
""")
    stamp(a, 6); stamp(a, 4, 3)
    a(f"""
s_barrier
s_mov_b64 exec, {s(SL+2,2)}
ds_read_b128 {v(VS[0],4)}, v{ADDR} offset:1024
ds_read_b128 {v(VS[0]+4,4)}, v{ADDR} offset:1280
s_mov_b64 exec, -1
""")
    a("s_waitcnt lgkmcnt(0)")
    stamp(a, 8)
    a("s_branch L_slot0")
    a("L_mark_c0:")
    XA = [4, 5]; WHI, WLO = [8, 6], [9, 7]
    BUF = [112, 176]
    AQK, AV = 48, 80
    def acc(base, t, hd): return base + 16*(t >> 1) + 8*hd + 4*(t & 1)
    WPHI = [248, 252]
    WPK, WPM = 36, 32
    VFLG, VPHI, VSGN, VF1, VONE = 10, 12, 13, 14, 15
    a("L_compute:")
    if P["CPF"]:
        a(f"""
s_getpc_b64 s[{T0}:{T0+1}]
L_pc:
s_sub_u32 s{T0}, s{T0}, L_pc-{NAME}
s_subb_u32 s{T0+1}, s{T0+1}, 0
s_lshr_b32 s{T0+2}, s2, 3
s_lshl_b32 s{T0+2}, s{T0+2}, 2
s_add_u32 s{T0+2}, s{T0+2}, s{S_WAVE}
s_mul_i32 s{T0+2}, s{T0+2}, 320
s_min_u32 s{T0+2}, s{T0+2}, L_codeend-{NAME}-320
s_add_u32 s{T0}, s{T0}, s{T0+2}
s_addc_u32 s{T0+1}, s{T0+1}, 0
s_load_dword s{T0+3}, s[{T0}:{T0+1}], 0
s_load_dword s{T0+4}, s[{T0}:{T0+1}], 64
s_load_dword s{T0+5}, s[{T0}:{T0+1}], 128
s_load_dword s{T0+6}, s[{T0}:{T0+1}], 192
s_load_dword s{T0+7}, s[{T0}:{T0+1}], 256
""")
    a(f"""
s_lshr_b32 s{TT}, s{S_WAVE}, 1
s_and_b32 s{PP}, s{S_WAVE}, 1
v_and_b32 v16, 31, v0
v_lshrrev_b32 v17, 5, v0
v_lshlrev_b32 v1, 4, v0
s_waitcnt lgkmcnt(0)
""")
    srd(a, S_MISC, 14, 15, 32*512)
    srd(a, S_WS, 24, 25, WS_SIZE)
    a(f"""
s_or_b32 s{T0+1}, s2, s{S_WAVE}
s_cmp_lg_u32 s{T0+1}, 0
s_cbranch_scc1 L_noinit
v_lshlrev_b32 v8, 8, v0
s_mov_b32 s{T0+1}, {WS_FL}
buffer_store_dword v{VZ}, v8, {s(S_WS,4)}, s{T0+1} offen sc1
s_waitcnt vmcnt(0)
v_mov_b32 v8, 1
s_mov_b64 exec, 1
global_store_dword v{VZ}, v8, s[22:23] sc1
s_mov_b64 exec, -1
L_noinit:
s_lshr_b32 s{T0+2}, s2, 3
s_lshl_b32 s{T0+2}, s{T0+2}, 2
s_add_u32 s{T0+2}, s{T0+2}, s{S_WAVE}
s_lshl_b32 s{T0+2}, s{T0+2}, 7
s_add_u32 s{T0+3}, s{T0+2}, 64
s_load_dword s38, s[14:15], s{T0+2}
s_load_dword s39, s[14:15], s{T0+3}
s_lshr_b32 s{T0+3}, s{T0+2}, 1
s_and_b32 s{T0+3}, s{T0+3}, 0x3c0
s_load_dword s33, s[18:19], s{T0+3}
s_lshl_b32 s{T0+3}, s{T0+2}, 5
s_load_dword s34, s[8:9], s{T0+3}
s_load_dword s35, s[16:17], s{T0+3}
s_lshl_b32 s{T0}, s{S_HQ}, 1
s_add_u32 s{T0}, s{T0}, s{PP}
s_lshl_b32 s{T0}, s{T0}, 10
{TYC}
s_mov_b32 s{T0+1}, {XQB*2048}
s_cmov_b32 s{T0+1}, {XKB*2048}
s_xor_b32 s{WPK}, s{T0}, s{T0+1}
s_lshl_b32 s{WPM}, s{S_WAVE}, 10
s_add_u32 s{WPM}, s{WPM}, {X(2)}
v_bfe_u32 v18, v0, 2, 2
v_lshlrev_b32 v{VPHI}, 5, v18
v_lshl_add_u32 v{VPHI}, v17, 8, v{VPHI}
v_bfe_u32 v18, v0, 4, 1
v_lshl_add_u32 v{VPHI}, v18, 4, v{VPHI}
v_bfe_u32 v18, v0, 1, 1
v_lshl_add_u32 v{VPHI}, v18, 3, v{VPHI}
v_add_u32 v{VPHI}, s{WPM}, v{VPHI}
s_lshl_b32 s{T0}, s{TT}, 13
v_and_b32 v20, 15, v0
v_lshrrev_b32 v21, 4, v0
v_lshlrev_b32 v19, 7, v20
v_add_u32 v19, s{T0}, v19
v_lshrrev_b32 v18, 1, v20
v_xor_b32 v18, v18, v21
v_lshl_add_u32 v{XA[0]}, v18, 4, v19
v_xor_b32 v{XA[1]}, 64, v{XA[0]}
v_lshlrev_b32 v9, 10, v21
v_bfe_u32 v18, v0, 2, 2
v_lshl_add_u32 v9, v18, 7, v9
v_bfe_u32 v18, v0, 3, 1
v_xor_b32 v18, s{PP}, v18
v_lshl_add_u32 v9, v18, 6, v9
v_bfe_u32 v18, v0, 4, 1
v_lshl_add_u32 v9, v18, 5, v9
v_and_b32 v19, 3, v0
v_lshl_add_u32 v9, v19, 3, v9
v_xor_b32 v7, 32, v9
v_add_u32 v8, {X(6)}, v9
v_add_u32 v6, {X(6)}, v7
s_mov_b32 s{SL}, {f2u(LOG2E):#x}
s_mov_b32 s{SL+1}, {f2u(0.25*LOG2E):#x}
s_mov_b32 s{SL+2}, 0x0000ffff
s_mov_b32 s{SL+3}, 0x0000ffff
s_mov_b32 s{MODE}, 0
s_lshl_b32 s{SX}, s{S_HQ}, 1
s_add_u32 s{SX}, s{SX}, s{PP}
s_lshl_b32 s{SX}, s{SX}, 7
s_lshl_b32 s{T0+1}, s{S_TB}, 2
s_add_u32 s{SX}, s{SX}, s{T0+1}
s_lshl_b32 s{T0+1}, s{TT}, 1
s_add_u32 s{SX}, s{SX}, s{T0+1}
s_lshl_b32 s{T0+1}, s{S_WAVE}, 12
s_add_u32 s{T0+1}, s{T0+1}, {L_CMB}
v_lshlrev_b32 v240, 1, v17
v_bfe_u32 v18, v16, 1, 2
v_xor_b32 v240, v240, v18
v_lshlrev_b32 v240, 4, v240
v_lshl_add_u32 v240, v16, 6, v240
v_add_u32 v240, s{T0+1}, v240
v_xor_b32 v241, 16, v240
""")
    tr64_addr(a, 242, 18, T0+1)
    a(f"""
v_lshl_add_u32 v242, v17, 8, v242
v_bfe_u32 v18, v0, 3, 1
v_lshlrev_b32 v18, 4, v18
v_xor_b32 v242, v242, v18
v_xor_b32 v246, 32, v242
v_mov_b32 v244, 0x3f803f80
v_mov_b32 v245, 0x3f803f80
v_and_b32 v18, {3 if P["MIX"] else 0}, v0
v_xor_b32 v{VF1}, s{S_HQ}, v18
v_lshl_add_u32 v{VF1}, v0, 3, v{VF1}
v_lshlrev_b32 v{VF1}, 8, v{VF1}
v_mov_b32 v{VONE}, 1
v_bfe_u32 v18, v0, 2, 1
s_mov_b32 s{T0+1}, 0x80008000
v_mul_lo_u32 v{VSGN}, v18, s{T0+1}
s_lshl_b32 s{T0}, s{S_WAVE}, 9
s_add_u32 s{T0}, s{T0}, {L_QH}
v_lshrrev_b32 v243, 1, v1
v_add_u32 v243, s{T0}, v243
""")
    assert (XKA, XQA, XVA) in ((0, 1, 2), (0, 0, 0))
    persist(a, 1, R2, XKB)
    rdp = ["s_waitcnt vmcnt(0)", "s_nop 0"]
    for hd in range(2):
        for rd in range(2):
            rdp.append(f"ds_read_b64_tr_b16 {v(WPHI[hd]+2*rd,2)}, v{VPHI} offset:{hd*512+rd*128}")
    xr = [f"v_xor_b32 v{WPHI[0]+i}, v{VSGN}, v{WPHI[0]+i}" for i in range(8)]
    PK = 16
    stamp(a, 1)
    a(TYC)
    a("s_cbranch_scc1 L_cmp1")
    for ty in range(2):
        a(".p2align 3")
        a(f"L_cmp{ty}:")
        st_ = PLAN[ty][0]
        def reads(t):
            o = []
            xo = (t & 3) * 16384
            for step in range(2):
                b = BUF[t & 1] + 32*step
                xs = [f"ds_read_b128 {v(b+4*q,4)}, v{XA[step]} offset:{xo+q*2048}" for q in range(4)]
                ws = []
                for u, (_, _, _, ad) in enumerate(st_[t]):
                    reg, off = (WHI, ad - X(6)) if ad >= X(6) else (WLO, ad)
                    for hd in range(2):
                        for rd in range(2):
                            ws.append(f"ds_read_b64_tr_b16 {v(b+16+8*u+4*hd+2*rd,2)}, v{reg[hd]} offset:{off+step*4096+rd*512}")
                n_ = len(ws) // 4
                for q in range(4):
                    o += [xs[q]] + ws[n_*q:n_*(q+1)]
            return o
        def mfmas(t):
            o = []
            for step in range(2):
                b = BUF[t & 1] + 32*step
                for u in range(len(st_[t])):
                    for hd in range(2):
                        for q in range(4):
                            x = v(b+4*q,4); w = v(b+16+8*u+4*hd,4); d = v(acc((AQK, AV)[u], q, hd),4)
                            cc = "0" if ((t & 7) == 0 and step == 0) else d
                            o.append(f"v_mfma_f32_16x16x32_bf16 {d}, {w}, {x}, {cc}" if u == 0 else f"v_mfma_f32_16x16x32_bf16 {d}, {x}, {w}, {cc}")
            return o
        def xswitch(t):
            if t & 3: return []
            return [f"v_xor_b32 v{r_}, 0x10000, v{r_}" for r_ in XA]
        def weave(m, r_, per, first=()):
            a(m[0]); a.emit(list(first))
            k_ = 0
            if not first:
                a.emit(r_[:per]); k_ = per
            for i in range(1, len(m)):
                a(m[i]); a.emit(r_[k_:k_+per] if i < len(m) - 1 else r_[k_:]); k_ += per
        SIG = 8 + P[f"SIG{ty}"]
        deferred = []
        for ps in range(2):
            a("s_barrier")
            a("s_nop 0")
            a.emit(reads(8*ps))
            nout = len(reads(8*ps))
            def head(t, m):
                if not P["SH"] or P["STAMPS"] and t in (0, 8, SIG + 1): return m
                q_ = len(m) // 4 * P["SH"]
                a(f"s_waitcnt lgkmcnt({min(15, nout - len(reads(t)) // 4 * P['SH'])})")
                a("s_nop 0")
                a.emit(m[:q_])
                return m[q_:]
            for t in range(8*ps, 8*ps + 7):
                m = mfmas(t); big = len(m) == 32
                m = head(t, m)
                a("s_waitcnt lgkmcnt(0)" + (" vmcnt(0)" if t == SIG else ""))
                a("s_barrier")
                if t == SIG:
                    assert t <= 13
                    a(f"""
s_cmp_lg_u32 s{S_WAVE}, 0
s_cbranch_scc1 L_drained{ty}
v_readfirstlane_b32 s{T0+6}, v{VFLG}
s_mov_b32 s{T0}, {WS_FL + 2048}
s_cmp_eq_u32 s{T0+6}, 0
s_cbranch_scc1 L_sig1
L_initok{ty}:
s_mov_b64 exec, {5 if ty == 0 else 2}
buffer_atomic_add v{VONE}, v{VF1}, {s(S_WS,4)}, s{T0} offen sc1
s_mov_b64 exec, -1
s_nop 0
""")
                    stamp(a, 2)
                    a(f"L_drained{ty}:")
                if t == 10:
                    a(f"s_mov_b32 m0, s{WPM}")
                    a("s_nop 0")
                    a(f"buffer_load_dwordx4 v1, {s(S_MISC,4)}, s{WPK} offen lds")
                r_ = reads(t + 1)
                if deferred and t >= 7 + P["DQ"]:
                    assert t < SIG
                    n_ = 2 if len(deferred) > 3 else 3
                    r_ = r_ + ["s_nop 0", "s_nop 0"] + [y for x_ in deferred[:n_] for y in (x_, "s_nop 0", "s_nop 0")][:-2]
                    deferred = deferred[n_:]
                    r_ = [y for y in r_ if y != "s_nop 0"] if False else r_
                if t == 13: r_ = r_ + rdp
                if t == 14: r_ = r_ + xr
                weave(m, r_, P["PER2"] if big else P["PER1"], xswitch(t + 1))
                nout = len([y for y in r_ if y.startswith("ds_")])
            m = mfmas(8*ps + 7); big = len(m) == 32
            m = head(8*ps + 7, m)
            a("s_waitcnt lgkmcnt(0)")
            if ps == 0:
                a("s_barrier")
                offs = L(f"""
s_xor_b32 s{T0+1}, s{SX}, {(XKA if ty == 0 else XQA)*256}
s_lshl_b32 s{T0+1}, s{T0+1}, {11 if ty == 0 else 10}
s_add_u32 s{T0+1}, s{T0+1}, {WS_KV if ty == 0 else WS_QF}
s_add_u32 s{T0+2}, s{T0+1}, {131072 if ty == 0 else 65536}
s_xor_b32 s{T0+5}, s{SX}, {XVA*256}
s_lshl_b32 s{T0+5}, s{T0+5}, 11
s_add_u32 s{T0+5}, s{T0+5}, {WS_KV}
""")
                weave(m, xswitch(8) + offs, 1)
                stamp(a, 3)
                a("s_nop 11" if ty == 1 else "s_nop 3")
                a(f"s_add_u32 s{T0+6}, s{T0+5}, 131072")
                def pack(dst, base):
                    for i in range(8):
                        a(f"v_cvt_pk_bf16_f32 v{dst+i}, v{base+2*i}, v{base+1+2*i}")
                    a(f"v_permlane16_swap_b32 v{dst}, v{dst+2}")
                    a(f"v_permlane16_swap_b32 v{dst+1}, v{dst+3}")
                    a(f"v_permlane16_swap_b32 v{dst+4}, v{dst+6}")
                    a(f"v_permlane16_swap_b32 v{dst+5}, v{dst+7}")
                for tt in range(2):
                    if ty == 1:
                        for i in range(0, 16, 2):
                            a(f"v_pk_mul_f32 {v(AQK+16*tt+i,2)}, {v(AQK+16*tt+i,2)}, {s(SL,2)} op_sel:[0,1] op_sel_hi:[1,1]")
                    pack(PK+8*tt, AQK+16*tt)
                    for hd in range(2):
                        a(f"buffer_store_dwordx4 {v(PK+8*tt+4*hd,4)}, v1, {s(S_WS,4)}, s{T0+1+hd} offen offset:{tt*(2048 if ty == 0 else 1024)} sc1")
                if ty == 0:
                    for tt in range(2):
                        pack(PK+16+8*tt, AV+16*tt)
                        for hd in range(2):
                            a(f"buffer_store_dwordx4 {v(PK+16+8*tt+4*hd,4)}, v1, {s(S_WS,4)}, s{T0+5+hd} offen offset:{tt*2048+1024} sc1")
                x_ = f"global_load_dword v{VFLG}, v{VZ}, s[22:23] sc1"
                if deferred: deferred.append(x_)
                else: a(x_)
                stamp(a, 4)
                a(".p2align 3")
            else:
                a("s_nop 0")
                fill = L(VINIT) + ZERO_O + [f"v_add_u32 v{ADDR}, {R2}, v1", "v_mov_b64 v[42:43], 0"]
                weave(m, fill, 2)
        if ty == 0: a("s_branch L_epiB")
    a("L_epiB:")
    stamp(a, 5); stamp(a, 1, 3)
    PB, PV = 224, 144
    FB = {(0,0): 160, (0,1): 176, (1,0): 192, (1,1): 208}
    a(f"""
s_xor_b32 s{T0+3}, s{SX}, {XQB*256}
s_lshl_b32 s{T0+3}, s{T0+3}, 11
s_add_u32 s{T0+3}, s{T0+3}, {WS_PHQ}
s_add_u32 s{T0+4}, s{T0+3}, 131072
s_xor_b32 s{T0+1}, s{S_HQ}, {XKB}
s_lshl_b32 s{T0+1}, s{T0+1}, 1
s_add_u32 s{T0+1}, s{T0+1}, s{PP}
s_lshl_b32 s{T0+1}, s{T0+1}, 5
s_add_u32 s{T0+1}, s{T0+1}, s{S_TB}
s_lshl_b32 s{T0+1}, s{T0+1}, 1
s_add_u32 s{T0+1}, s{T0+1}, s{TT}
s_lshl_b32 s{T0+1}, s{T0+1}, 12
s_add_u32 s{T0+1}, s{T0+1}, {WS_KVP}
s_add_u32 s{T0+5}, s{T0+1}, 131072
""")
    def packl(dst, base):
        o = [f"v_cvt_pk_bf16_f32 v{dst+i}, v{base+2*i}, v{base+1+2*i}" for i in range(8)]
        o += [f"v_permlane16_swap_b32 v{dst+i}, v{dst+i+2}" for i in (0, 1, 4, 5)]
        return o
    fmm = lambda tt, hd: f"v_mfma_f32_32x32x16_bf16 {v(FB[(tt,hd)],16)}, {v(WPHI[hd],4)}, {v(PB+8*tt+4*hd,4)}, 0"
    a.emit(packl(PB, AQK))
    p_ = packl(PB+8, AQK+16)
    a.emit(p_[:2]); a(fmm(0, 0)); a.emit(p_[2:8]); a(fmm(0, 1)); a.emit(p_[8:])
    p_ = packl(PV, AV)
    a.emit(p_[:2]); a(fmm(1, 0)); a.emit(p_[2:8]); a(fmm(1, 1)); a.emit(p_[8:])
    a.emit(packl(PV+8, AV+16))
    a.emit(ZSB)
    a.emit([f"v_mov_b64 {v(PB+i,2)}, v[244:245]" for i in range(0, 16, 2)])
    stamp(a, 2, 3)
    a.emit(rr(*[[x for x in softmax16(FB[k_], 48 + 4*i) if x != "s_nop 0"] for i, k_ in enumerate(((0,0), (0,1), (1,0), (1,1)))]))
    stamp(a, 3, 3)
    a(f"""
s_sub_u32 s{T0+2}, s{P_PHQ}, {WS_PHQ + 2048}
s_lshr_b32 s{T0+2}, s{T0+2}, 1
s_lshl_b32 s{P_KVB}, s{S_H}, 17
s_add_u32 s{P_KVB}, s{P_KVB}, {WS_KV}
s_lshl_b32 s{P_KVG}, s{S_WAVE}, 12
s_add_u32 s{P_KVG}, s{P_KVG}, {R2 - LEAD*4096}
""")
    stamp(a, 6); stamp(a, 4, 3)
    a(f"""
s_barrier
s_setprio 3
buffer_load_dwordx4 {v(QA,4)}, v1, {s(S_WS,4)}, s{T0+2} offen sc1
buffer_load_dwordx4 {v(QB,4)}, v1, {s(S_WS,4)}, s{T0+2} offen offset:1024 sc1
ds_read_b64 v[38:39], v243
ds_read_b128 {v(KS[0],4)}, v{ADDR}
s_mov_b64 exec, {s(SL+2,2)}
ds_read_b128 {v(VS[0],4)}, v{ADDR} offset:1024
ds_read_b128 {v(VS[0]+4,4)}, v{ADDR} offset:1280
s_mov_b64 exec, -1
v_subrev_u32 v{ADDR}, {2*LEAD*2048}, v{ADDR}
{TYC}
s_cbranch_scc1 L_kv
s_waitcnt lgkmcnt(0)
""")
    a.emit(fm)
    a("s_waitcnt vmcnt(0)")
    a(f"v_mfma_f32_32x32x16_bf16 {v(SA,16)}, {v(KS[0],4)}, {v(QA,4)}, {v(NMA,16)}")
    stamp(a, 7)
    for hd in range(2):
        for tt in range(2):
            a(f"buffer_store_dwordx4 {v(FB[(tt,hd)],4)}, v1, {s(S_WS,4)}, s{T0+3+hd} offen offset:{tt*2048} sc1")
            a(f"buffer_store_dwordx4 {v(FB[(tt,hd)]+4,4)}, v1, {s(S_WS,4)}, s{T0+3+hd} offen offset:{tt*2048+1024} sc1")
    a("s_nop 1")
    stamp(a, 8)
    a(f"s_branch L_slot{LEAD}")
    a("L_kv:")
    V0 = PB
    KVA = [SA, FB[(0,0)]]
    for hd in range(2):
        for tt in range(2):
            a(f"ds_write_b128 v240, {v(FB[(tt,hd)],4)} offset:{tt*2048}")
            a(f"ds_write_b128 v241, {v(FB[(tt,hd)]+4,4)} offset:{tt*2048}")
        for tt in range(2):
            for sx in range(2):
                for rd in range(2):
                    a(f"ds_read_b64_tr_b16 {v(FB[(tt,hd)]+8+4*sx+2*rd,2)}, v{(242, 246)[rd]} offset:{tt*2048+(16*sx+4*rd)*64}")
        for i in range(8*hd, 8*hd + 8):
            a(f"v_permlane16_swap_b32 v{PV+i}, v{V0+i}")
    a("s_waitcnt lgkmcnt(0)")
    if P["KVP"] < 3: a(f"s_setprio {P['KVP']}")
    k_ = 0
    for hd in range(2):
        for tt in range(2):
            for sx in range(2):
                c = "0" if (tt == 0 and sx == 0) else v(KVA[hd],16)
                a(f"v_mfma_f32_32x32x16_bf16 {v(KVA[hd],16)}, {v(FB[(tt,hd)]+8+4*sx,4)}, {v((PV, V0)[sx]+8*tt+4*hd,4)}, {c}")
                a.emit(fm[k_:k_+3]); k_ += 3
    for q in range(4):
        a(f"buffer_store_dwordx4 {v(KVA[0]+4*q,4)}, v1, {s(S_WS,4)}, s{T0+1} offen offset:{q*1024} sc1")
    a("s_waitcnt vmcnt(4)")
    a("s_nop 0")
    a(f"v_mfma_f32_32x32x16_bf16 {v(SA,16)}, {v(KS[0],4)}, {v(QA,4)}, {v(NMA,16)}")
    stamp(a, 7)
    a("s_nop 4")
    for q in range(4):
        a(f"buffer_store_dwordx4 {v(KVA[1]+4*q,4)}, v1, {s(S_WS,4)}, s{T0+5} offen offset:{q*1024} sc1")
    a("s_nop 1")
    stamp(a, 8)
    a(f"s_branch L_slot{LEAD}")
    a("L_mark_c1:")

    def e(b, i): return f"v_exp_f32 v{b+i}, v{b+i}"
    def sm(o, vv, p): return f"v_smfmac_f32_32x32x32_bf16 {v(o,16)}, {v(vv,4)}, {v(p,8)}, v{IDX}"
    def slot(base, last=False, bg=None):
        bg = bg or {}
        o = []
        k = [0]
        def ex(b, i):
            o.append(e(b, i))
            o.extend(bg.get(k[0], []))
            k[0] += 1
        for c in range(2):
            n = c ^ 1
            off = base + (c + 1) * 2048
            pf = not (last and c == 1)
            if pf: o.append(f"ds_read_b128 {v(KS[n],4)}, v{ADDR} offset:{off}")
            ex(SA,0); ex(SA,1)
            o.append(sm(OB, VS[n]+4, SB+8))
            vr = [f"s_mov_b64 exec, {s(SL+2,2)}", f"ds_read_b128 {v(VS[n],4)}, v{ADDR} offset:{off+1024}",
                  f"ds_read_b128 {v(VS[n]+4,4)}, v{ADDR} offset:{off+1280}", "s_mov_b64 exec, -1"] if pf else []
            if P["PV"] == 0: o.extend(vr)
            PS, PL = P["PS"], P["PLO"]
            for i in range(2, PS): ex(SA,i)
            o.append(f"v_mfma_f32_32x32x16_bf16 {v(SB,16)}, {v(KS[c],4)}, {v(QB,4)}, {v(NMB,16)}")
            if P["PV"] == 1: o.extend(vr)
            for i in range(PS, PL): ex(SA,i)
            o.append(sm(OA, VS[c], SA))
            for i in range(PL, 16): ex(SA,i)
            ex(SB,0); ex(SB,1)
            o.append(sm(OA, VS[c]+4, SA+8))
            for i in range(2, PS): ex(SB,i)
            if pf:
                o.append("s_waitcnt lgkmcnt(0)")
                o.append(f"v_mfma_f32_32x32x16_bf16 {v(SA,16)}, {v(KS[n],4)}, {v(QA,4)}, {v(NMA,16)}")
            for i in range(PS, PL): ex(SB,i)
            o.append(sm(OB, VS[c], SB))
            for i in range(PL, 16): ex(SB,i)
        return o
    def spread(bg, items, lo, hi):
        n = len(items)
        for i, it in enumerate(items):
            pos = lo + (i * (hi - lo + 1)) // n
            bg.setdefault(pos, []).extend(it if isinstance(it, list) else [it])
    BG = {sl: {} for sl in range(NS)}
    M16 = "0x00ff00ff"
    assert LEAD == 2 and (BD, BA, BW) == (4, 8, 12) and P["NOBD"]
    G0 = POOL + 12
    spread(BG[1], [f"ds_write_b128 v{POOL+18}, {v(POOL+36,4)}"], 30, 30)
    spread(BG[1], [[f"ds_read_b64_tr_b16 {v(POOL,2)}, v{POOL+9}", f"ds_read_b64_tr_b16 {v(POOL+2,2)}, v{POOL+9} offset:512"]], 40, 40)
    spread(BG[1], [f"buffer_store_dwordx4 {v(POOL,4)}, v1, {s(S_WS,4)}, s{WD} offen sc1",
        ["s_mov_b32 exec_lo, 1", "s_mov_b32 exec_hi, 1", f"buffer_store_dword v{G0}, v{POOL+19}, {s(S_WS,4)}, s{GO} offen sc1", "s_mov_b64 exec, -1"]], 58, 62)
    if not P["NOBD"]: spread(BG[0], kvgrp(P_KVG, 5*4096) + kvgrp(P_KVG, R2 + 3*4096), 0, 19)
    spread(BG[P["CLS"]], [f"buffer_store_dwordx4 v[44:47], v1, {s(S_WS,4)}, s{P_OF} offen sc1",
        [f"s_add_u32 s{T0}, s{P_OF}, {OBR}", f"buffer_store_dwordx4 v[44:47], v1, {s(S_WS,4)}, s{T0} offen sc1"],
        [f"s_cmp_lg_u32 s{KH}, 0", f"s_cselect_b32 exec_lo, 0, {M16}", "s_mov_b32 exec_hi, 0", f"buffer_store_dword v44, v43, {s(S_WS,4)}, s{P_KVT} offen sc1", "s_mov_b64 exec, -1"]], 10, 56)
    spread(BG[BD], kvgrp(P_KVG, 9*4096), 8, 56)
    spread(BG[BA], kvgrp(P_KVG, 13*4096), 14, 38)
    spread(BG[C0+1], [[f"s_cmp_lg_u32 s{KH}, 0", "s_cbranch_scc1 L_skipA", f"buffer_load_dword v41, v{VZ}, {s(S_WS,4)}, s{P_F2} offen sc1", "L_skipA:"]], P["Q1"], P["Q1"])
    l1a = [f"s_cmp_lg_u32 s{KH}, 0", "s_cbranch_scc1 L_skipB", "s_waitcnt vmcnt(0)", f"v_readfirstlane_b32 s{T0+6}, v41",
           f"s_add_u32 s{T0}, s{P_KVS}, 32768", f"s_add_u32 s{T0+1}, s{P_KVS}, 65536", f"s_add_u32 s{T0+2}, s{P_KVS}, 98304",
           f"s_cmp_lt_u32 s{T0+6}, 32", "s_cbranch_scc1 L_flagspin", "L_flagok:"]
    for p in range(4):
        l1a.append(f"buffer_load_dwordx4 {v(POOL+4*p,4)}, v42, {s(S_WS,4)}, s{P_KVS if p == 0 else T0+p-1} offen sc1")
    l1a.append("L_skipB:")
    spread(BG[C0+2], [l1a], P["Q2"], P["Q2"])
    l1b = ["s_waitcnt vmcnt(0)", f"s_cmp_lg_u32 s{KH}, 0", "s_cbranch_scc1 L_skipC"]
    for i in range(4): l1b.append(f"v_add_f32 v{POOL+i}, v{POOL+i}, v{POOL+4+i}")
    for i in range(4): l1b.append(f"v_add_f32 v{POOL+8+i}, v{POOL+8+i}, v{POOL+12+i}")
    for i in range(4): l1b.append(f"v_add_f32 v{POOL+i}, v{POOL+i}, v{POOL+8+i}")
    l1b += L(f"""
v_permlane32_swap_b32 v{POOL}, v{POOL+1}
s_nop 0
v_permlane32_swap_b32 v{POOL+2}, v{POOL+3}
v_add_f32 v{POOL}, v{POOL}, v{POOL+1}
s_nop 0
v_add_f32 v{POOL+2}, v{POOL+2}, v{POOL+3}
s_nop 1
v_permlane16_swap_b32 v{POOL}, v{POOL+2}
s_nop 1
v_add_f32 v{POOL}, v{POOL}, v{POOL+2}
s_nop 1
v_add_f32_dpp v{POOL}, v{POOL}, v{POOL} row_ror:8 row_mask:0xf bank_mask:0xf
v_mov_b32 v{POOL+1}, v{POOL}
s_nop 1
v_permlane32_swap_b32 v{POOL}, v{POOL+1}
s_nop 1
v_cvt_pk_bf16_f32 v40, v{POOL}, v{POOL+1}
v_min_u32 v40, -2, v40
s_mov_b32 exec_lo, {M16}
s_mov_b32 exec_hi, 0
buffer_store_dword v40, v43, {s(S_WS,4)}, s{P_KVT} offen sc1
s_mov_b64 exec, -1
L_skipC:
""")
    spread(BG[C0+3], [l1b], P["Q3"], P["Q3"])
    if BS == BD: assert C0 + 3 < BA
    CB = C0 + 4
    spread(BG[CB], L(f"""
v_and_b32 v42, 7, v0
v_lshlrev_b32 v42, 8, v42
s_mov_b32 s{T0+5}, {WS_FL}
buffer_load_dword v41, v42, {s(S_WS,4)}, s{T0+5} offen sc1
"""), P["Q4"], P["Q4"] + 16)
    KT = OBF
    R = OBF + 16
    ktl = [f"buffer_load_dwordx4 {v(KT,4)}, v1, {s(S_WS,4)}, s{P_KVT} offen sc1",
           f"buffer_load_dwordx4 {v(KT+4,4)}, v1, {s(S_WS,4)}, s{P_KVT} offen offset:1024 sc1"]
    spread(BG[CB+1], [["s_waitcnt vmcnt(0)", "v_cmp_gt_u32 vcc, 32, v41"]], P["Q5"], P["Q5"])
    spread(BG[CB+1], [["s_cbranch_vccnz L_flag2spin", "L_flag2ok:"],
                      f"buffer_load_dwordx4 {v(PQ,4)}, v1, {s(S_WS,4)}, s{P_PHQ} offen sc1",
                      f"buffer_load_dwordx4 {v(PQ+4,4)}, v1, {s(S_WS,4)}, s{P_PHQ} offen offset:1024 sc1"] + ktl, P["Q5"] + 4, 60)
    ktc = L(f"""
v_max3_u32 v40, v{KT}, v{KT+1}, v{KT+2}
v_max3_u32 v41, v{KT+3}, v{KT+4}, v{KT+5}
v_max3_u32 v40, v40, v{KT+6}, v{KT+7}
v_max_u32 v40, v40, v41
v_cmp_eq_u32 vcc, -1, v40
""")
    q6 = P["Q6"]
    spread(BG[CB+2], [["s_waitcnt vmcnt(0)", ktc[0]]] + ktc[1:], q6, q6 + 5)
    spread(BG[CB+2], [["s_cbranch_vccnz L_ktspin", "L_ktok:", f"v_mfma_f32_32x32x16_bf16 {v(R,16)}, {v(KT,4)}, {v(PQ,4)}, 0"]], q6 + 8, q6 + 8)
    m2 = q6 + 23
    spread(BG[CB+2 + m2 // 64], [f"v_mfma_f32_32x32x16_bf16 {v(R,16)}, {v(KT+4,4)}, {v(PQ+4,4)}, {v(R,16)}"], m2 % 64, m2 % 64)
    o0 = max(0, m2 + 13 - 64)
    ob = [f"v_add_f32 v40, {f2u(1e-6):#x}, v{R+8}", "v_rcp_f32 v40, v40"]
    ob += [f"v_mul_f32 v{R+i}, v{R+i}, v40" for i in range(8)]
    ob += [f"v_cvt_pk_bf16_f32 v{KACC+i}, v{R+2*i}, v{R+2*i+1}" for i in range(4)]
    ob += [f"v_min_u32 v{KACC+i}, -2, v{KACC+i}" for i in range(4)]
    ob += [[f"s_add_u32 s{T0}, s{P_OF}, {OBR}", f"buffer_store_dwordx4 {v(KACC,4)}, v1, {s(S_WS,4)}, s{T0} offen sc1"]]
    spread(BG[CB+3], ob, o0, o0 + 24)
    wob = []
    for i in range(16):
        g = [f"buffer_load_dwordx4 {v(POOL+4*i,4)}, v1, {s(S_WS,4)}, s{P_WOB} offen offset:{(i&3)*1024} sc1"]
        if i & 3 == 3: g.append(f"s_add_u32 s{P_WOB}, s{P_WOB}, 4096")
        wob.append(g)
    def woa_dma():
        o = []
        for g in range(2):
            o.append([f"s_add_u32 m0, s{P_WOL}, {g*4096}", f"s_add_u32 s{T0+1}, s{P_WOF}, {g*4096}"])
            for i in range(4):
                o.append(f"buffer_load_dwordx4 v1, {s(S_WS,4)}, s{T0+1} offen offset:{i*1024} sc1 lds")
        return o
    if BS == BD:
        spread(BG[CB+3], wob[:4], 30, 60)
        spread(BG[BW], woa_dma(), 2, 60)
        spread(BG[BW+1], wob[4:10], 2, 60)
        spread(BG[BW+2], wob[10:], 2, 60)
        OBS, OBLO, OBHI, PLO, PHI = NS - 2, 4, 60, 4, 40
    else:
        spread(BG[CB+2], wob[:2], 62, 63)
        spread(BG[CB+3], wob[2:7], 28, 60)
        spread(BG[CB+4], wob[7:16], 2, 60)
        spread(BG[CB+5], woa_dma(), 2, 60)
        OBS, OBLO, OBHI, PLO, PHI = NS - 1, 0, 30, 32, 60
    def ob_loads():
        o = [[f"s_add_u32 s{T0}, s{P_OA}, {OBR}", f"s_add_u32 s{T0+1}, s{P_OA}, {OBR+4096}"]]
        for j in range(8):
            o.append(f"buffer_load_dwordx4 {v(OBF+4*j,4)}, v1, {s(S_WS,4)}, s{T0+j//4} offen offset:{(j&3)*1024} sc1")
        return o
    spread(BG[OBS], L(f"""
v_and_b32 v40, 31, v0
v_lshlrev_b32 v40, 2, v40
buffer_load_dword v{GV}, v40, {s(S_WS,4)}, s{P_G} offen sc1
""") + ob_loads(), OBLO, OBHI)
    spread(BG[NS-2], L(f"""
s_and_b32 s{T0+2}, s{S_WAVE}, 3
s_mul_i32 s{T0+3}, s{T0+2}, {EXS}
s_add_u32 s{T0+3}, s{T0+3}, {L_EX}
v_add_u32 v41, s{T0+3}, v1
v_lshlrev_b32 v2, 2, v0
v_add_u32 v42, s{T0+3}, v2
v_and_b32 v2, 12, v2
v_add_u32 v2, {L_FLAG}, v2
s_lshl_b32 s{T0+2}, s{T0+2}, 2
s_add_u32 s{T0+2}, s{T0+2}, {L_FLAG}
v_mov_b32 v43, s{T0+2}
"""), 5, 59)
    XRD = [f"ds_read_b128 {v(NMA,4)}, v41", f"ds_read_b128 {v(NMA+4,4)}, v41 offset:1024", f"ds_read_b32 v{NMA+8}, v42 offset:4096",
           f"ds_read_b128 {v(NMB,4)}, v41 offset:2048", f"ds_read_b128 {v(NMB+4,4)}, v41 offset:3072", f"ds_read_b32 v{NMB+8}, v42 offset:4352"]
    import copy
    BGL = copy.deepcopy(BG[NS-1])
    spread(BGL, [["s_waitcnt vmcnt(9)", "s_barrier"]], P["XB"], P["XB"])
    spread(BGL, XRD, max(P["XB"] + 1, 46), max(P["XB"] + 7, 52))
    bars = sorted(set([BS, BW, NS] + ([] if P["NOBD"] else [BD]) + ([] if P["NOBA"] else [BA])))
    REB = 9
    a(".p2align 6")
    for sl in range(NS):
        a(f"L_slot{sl}:")
        if 1 <= sl - 4 <= 12: stamp(a, sl - 4, 1)
        if sl < 12: stamp(a, sl + 1, 4)
        if sl == BD and BD != BS and not P["NOBD"]:
            a(f"s_cmp_lg_u32 s{KH}, 0")
            a("s_cbranch_scc1 L_nowaitD")
            a("s_waitcnt vmcnt(3)" if P["CLS"] < BD else "s_waitcnt vmcnt(0)")
            a("L_nowaitD:")
            a("s_barrier")
        if sl == BS:
            a("s_waitcnt vmcnt(0)")
            a("s_barrier")
            a(f"""
s_cmp_lg_u32 s{S_WAVE}, 0
s_cbranch_scc1 L_sig2done
s_lshl_b32 s{T0}, s{S_HQ}, 8
s_add_u32 s{T0}, s{T0}, {WS_FL}
v_mov_b32 v38, 1
s_mov_b64 exec, 1
buffer_atomic_add v38, v{VZ}, {s(S_WS,4)}, s{T0} offen sc1
s_mov_b64 exec, -1
L_sig2done:
""")
        if (sl == BW and not P["DIAG"] & 1) or (sl == BA and not P["NOBA"]):
            a("s_barrier")
        if True:
            nb = min(b for b in bars if b > sl)
            r_ = nb - sl - 1
            pb = max([0] + [b for b in bars if b <= sl])
            pr = min(3, r_) if nb - pb <= 5 else {0: 0, 1: 1, 2: 2, 3: 2, 4: 3, 5: 3}[r_]
            if P["PRI"] == 1 and nb - pb > 5: pr = {0: 0, 1: 0, 2: 1, 3: 2, 4: 2, 5: 3}[r_]
            if P["PRI"] == 2 and nb - pb > 5: pr = {0: 0, 1: 1, 2: 1, 3: 2, 4: 2, 5: 3}[r_]
            if P["PRI"] == 3: pr = (r_ & 1) * 2 if True else pr
            if P["PRI"] == 4 and nb - pb > 5: pr = {0: 0, 1: 1, 2: 2, 3: 3, 4: 3, 5: 3}[r_]
            if P["DIAG"] & 1 and sl >= BS: pr = 3 if sl < 10 else 2 if sl < 14 else 1 if sl < 16 else 0
            if P["DIAG"] & 2 and sl >= BW: pr = {12: 3, 13: 2, 14: 2, 15: 1, 16: 0}[sl]
            a(f"s_setprio {pr}")
        if sl == REB:
            a(f"v_add_u32 v{ADDR}, {REB*4096}, v{ADDR}")
        if sl == NS - 1:
            a(f"s_cmp_eq_u32 s{KH}, 0")
            a("s_cbranch_scc1 L_last0")
        a.emit(slot((sl - (REB if sl >= REB else 0)) * 4096, sl == NS - 1, BG[sl]))
    a(f"""
L_tail1:
s_setprio 3
s_nop 0
{sm(OB, VS[1]+4, SB+8)}
""")
    stamp(a, 9)
    a(f"""
ds_write_b128 v41, {v(OA,4)}
ds_write_b128 v41, {v(OA+4,4)} offset:1024
ds_write_b32 v42, v{OA+8} offset:4096
s_nop 8
ds_write_b128 v41, {v(OB,4)} offset:2048
ds_write_b128 v41, {v(OB+4,4)} offset:3072
ds_write_b32 v42, v{OB+8} offset:4352
s_waitcnt lgkmcnt(0) vmcnt(9)
s_barrier
s_waitcnt vmcnt(0)
s_branch L_join
.p2align 3
L_last0:
""")
    a.emit(slot((NS - 1 - REB) * 4096, True, BGL))
    a(f"""
L_tail0:
s_mov_b32 s{T0}, 0x7e800000
s_waitcnt lgkmcnt(0)
{sm(OB, VS[1]+4, SB+8)}
""")
    stamp(a, 9)
    a(f"""
s_add_u32 s{T0+1}, s{P_OF}, 32768
s_mov_b32 s{T0+2}, 0
""")
    def fin(o, x, dst, so, lab, bit):
        a(f"s_bitcmp1_b32 s{MODE}, {bit}")
        a(f"v_add_f32 v{o+8}, v{o+8}, v{x+8}")
        for i in range(0, 8, 2):
            a(f"v_pk_add_f32 {v(o+i,2)}, {v(o+i,2)}, {v(x+i,2)}")
        a(f"v_rcp_f32 v{o+10}, v{o+8}")
        a(f"v_add_f32 v38, abs(v{o}), abs(v{o+8})")
        a(f"v_add_f32 v39, abs(v{o+1}), abs(v{o+2})")
        for i in range(3, 8):
            a(f"v_add_f32 v{38+(i+1)%2}, v{38+(i+1)%2}, abs(v{o+i})")
        a("v_add_f32 v38, v38, v39")
        a(f"v_cmp_ngt_f32 vcc, s{T0}, v38")
        for i in range(0, 8, 2):
            a(f"v_pk_mul_f32 {v(o+i,2)}, {v(o+i,2)}, {v(o+10,2)} op_sel_hi:[1,0]")
        for i in range(4):
            a(f"v_cvt_pk_bf16_f32 v{dst+i}, v{o+2*i}, v{o+2*i+1}")
        for i in range(4):
            a(f"v_min_u32 v{dst+i}, -2, v{dst+i}")
        a(f"""
s_cbranch_scc1 {lab}_no
s_cbranch_vccnz {lab}
{lab}_st:
buffer_store_dwordx4 {v(dst,4)}, v1, {s(S_WS,4)}, s{so} offen sc1
{lab}_no:
""")
    fin(OA, NMA, KACC, P_OF, "L_ova", 0)
    stamp(a, 10)
    fin(OB, NMB, PQ, T0+1, "L_ovb", 1)
    stamp(a, 11)
    a(f"""
v_mov_b32 v45, s{T0+2}
ds_write_b32 v43, v45
s_waitcnt lgkmcnt(0) vmcnt(2)
L_join:
s_barrier
ds_read_b32 v45, v2
s_setprio 0
s_waitcnt lgkmcnt(0)
v_cmp_ne_u32 vcc, 0, v45
s_nop 4
s_cbranch_vccnz L_slow
""")
    OFA = 80
    ACCA = [112, 128]
    ACCB = 48
    a(f"""
s_mov_b32 s{T0+7}, 0
s_add_u32 s{T0+2}, s{P_OA}, 4096
L_obchk:
v_max3_u32 v40, v{OBF}, v{OBF+1}, v{OBF+2}
v_max3_u32 v41, v{OBF+3}, v{OBF+4}, v{OBF+5}
""")
    for i in range(6, 30, 4):
        a(f"v_max3_u32 v40, v40, v{OBF+i}, v{OBF+i+1}")
        a(f"v_max3_u32 v41, v41, v{OBF+i+2}, v{OBF+i+3}")
    a(f"""
v_max3_u32 v40, v40, v{OBF+30}, v{OBF+31}
v_max_u32 v40, v40, v41
v_cmp_eq_u32 vcc, -1, v40
s_bfe_u32 s{T0}, s{S_WAVE}, 0x10001
s_lshl_b32 s{T0}, s{T0}, 14
s_lshr_b32 s{T0+1}, s{S_WAVE}, 2
s_mul_i32 s{T0+1}, s{T0+1}, {R2}
s_add_u32 s{T0}, s{T0}, s{T0+1}
v_add_u32 v39, s{T0}, v1
s_cbranch_vccnz L_obretry
L_obok:
""")
    prep = L(f"""
v_and_b32 v12, 31, v0
v_lshrrev_b32 v13, 5, v0
s_lshl_b32 s{T0}, s{S_WAVE}, 13
v_lshlrev_b32 v4, 8, v12
v_add_u32 v4, s{T0}, v4
v_and_b32 v14, 7, v0
v_lshlrev_b32 v15, 2, v13
v_xor_b32 v14, v14, v15
v_lshl_add_u32 v4, v14, 4, v4
v_xor_b32 v5, 16, v4
v_xor_b32 v6, 32, v4
v_xor_b32 v7, 48, v4
v_lshrrev_b32 v14, 3, v0
v_and_b32 v15, 7, v0
v_lshlrev_b32 v8, 1, v15
v_xor_b32 v8, v8, v14
v_lshlrev_b32 v8, 4, v8
v_lshl_add_u32 v8, v14, 8, v8
s_lshl_b32 s{T0}, s{S_WAVE}, 11
v_add_u32 v8, s{T0}, v8
v_xor_b32 v9, 16, v8
v_lshlrev_b32 v10, 10, v14
v_lshl_add_u32 v10, v15, 4, v10
s_and_b32 s{T0}, s2, 31
s_lshl_b32 s{T0}, s{T0}, 16
s_lshl_b32 s{T0+1}, s{S_WAVE}, 13
s_add_u32 s{T0}, s{T0}, s{T0+1}
s_lshr_b32 s{T0+1}, s2, 5
s_lshl_b32 s{T0+1}, s{T0+1}, 7
s_add_u32 s{T0}, s{T0}, s{T0+1}
v_sub_f32 v38, 1.0, v{GV}
s_mov_b32 s{S_X}, s20
s_mov_b32 s{S_X+1}, s21
s_mov_b32 s{S_X+2}, {2048*512*2}
s_mov_b32 s{S_X+3}, 0x20000
""")
    k = 0
    def oa_load(j):
        return f"buffer_load_dwordx4 {v(OFA+4*j,4)}, v1, {s(S_WS,4)}, s{P_OA if j < 4 else T0+2} offen offset:{(j&3)*1024} sc1"
    nl = 0
    for j in range(8):
        for ct in range(2):
            c = v(ACCB+16*ct,16)
            a(f"v_mfma_f32_32x32x16_bf16 {c}, {v(POOL+8*j+4*ct,4)}, {v(OBF+4*j,4)}, {'0' if j==0 else c}")
            a(f"ds_read_b128 {v(POOL+8*j+4*ct,4)}, v39 offset:{(2*j+ct)*1024}")
            if 2*j + ct >= P["OAP"] and nl < 8:
                a(oa_load(nl)); nl += 1
            a.emit(prep[k:k+3]); k += 3
    while nl < 8:
        a(oa_load(nl)); nl += 1
    a("s_nop 11")
    for i in range(0, 32, 2):
        a(f"v_pk_mul_f32 {v(ACCB+i,2)}, {v(ACCB+i,2)}, v[38:39] op_sel_hi:[1,0]")
    a("s_waitcnt lgkmcnt(0)")
    a("s_barrier")
    for j in range(8):
        f = OFA + 4*j
        a(f"""
L_cons{j}:
s_waitcnt vmcnt({7-j})
v_max3_u32 v38, v{f}, v{f+1}, v{f+2}
v_max_u32 v38, v38, v{f+3}
v_cmp_eq_u32 vcc, -1, v38
s_nop 4
s_cbranch_vccnz L_retry{j}
L_go{j}:
""")
        for ct in range(2):
            c = v(ACCA[ct],16)
            a(f"v_mfma_f32_32x32x16_bf16 {c}, {v(POOL+8*j+4*ct,4)}, {v(f,4)}, {'0' if j==0 else c}")
    stamp(a, 12)
    a("s_nop 10")
    for ct in range(2):
        for i in range(0, 16, 2):
            a(f"v_pk_fma_f32 {v(ACCA[ct]+i,2)}, {v(ACCA[ct]+i,2)}, {v(GV,2)}, {v(ACCB+16*ct+i,2)} op_sel_hi:[1,0,1]")
        for q in range(4):
            a(f"ds_write_b128 v{4+q}, {v(ACCA[ct]+4*q,4)} offset:{ct*128}")
    a(f"""
s_waitcnt lgkmcnt(0)
s_barrier
""")
    for kq in range(4):
        a(f"ds_read_b128 {v(16+8*kq,4)}, v8 offset:{kq*16384}")
        a(f"ds_read_b128 {v(20+8*kq,4)}, v9 offset:{kq*16384}")
    for kq in range(1, 4):
        a(f"s_waitcnt lgkmcnt({6-2*kq})")
        for i in range(0, 8, 2):
            a(f"v_pk_add_f32 {v(16+i,2)}, {v(16+i,2)}, {v(16+8*kq+i,2)}")
    for i in range(4):
        a(f"v_cvt_pk_bf16_f32 v{16+i}, v{16+2*i}, v{17+2*i}")
    a(f"buffer_store_dwordx4 v[16:19], v10, {s(S_X,4)}, s{T0} offen sc1")
    stamp_out(a)
    a("L_end:")
    a("s_endpgm")
    a("L_mark_o:")
    for j in range(8):
        a(f"""
L_retry{j}:
s_add_u32 s{T0+7}, s{T0+7}, 1
s_cmp_ge_u32 s{T0+7}, {SPIN}
s_cbranch_scc1 L_go{j}
""")
        if P["RT"] == 1: a(f"s_sleep {P['RSL']}")
        if P["RT"] < 2:
            for jj in range(j, 8): a(oa_load(jj))
            a(f"s_branch L_cons{j}")
        else:
            f = OFA + 4*j
            if P["RSL"]: a(f"s_sleep {P['RSL']}")
            a(oa_load(j))
            a(f"""
s_waitcnt vmcnt(0)
v_max3_u32 v38, v{f}, v{f+1}, v{f+2}
v_max_u32 v38, v38, v{f+3}
v_cmp_eq_u32 vcc, -1, v38
s_nop 4
s_cbranch_vccnz L_retry{j}
""")
            for jj in range(j + 1, 8): a(oa_load(jj))
            a(f"s_branch L_go{j}")
    for bit, lab in enumerate(("L_ova", "L_ovb")):
        a(f"""
{lab}:
s_cmp_lg_u32 s{MODE}, 0
s_cbranch_scc1 {lab}_st
s_bitset1_b32 s{T0+2}, {bit}
s_branch {lab}_no
""")
    a(f"""
L_obretry:
s_add_u32 s{T0+7}, s{T0+7}, 1
s_cmp_ge_u32 s{T0+7}, {SPIN}
s_cbranch_scc1 L_obok
""")
    for g in ob_loads(): a.emit(g if isinstance(g, list) else [g])
    a(f"""
s_waitcnt vmcnt(0)
s_branch L_obchk
L_pollF1:
s_sleep {P["PSL"]}
buffer_load_dword v40, v41, {s(S_WS,4)}, s{T0} offen sc1
s_add_u32 s{T0+7}, s{T0+7}, 1
s_waitcnt vmcnt(0)
v_cmp_gt_u32 vcc, 16, v40
s_cmp_ge_u32 s{T0+7}, {SPIN}
s_cbranch_scc1 L_pollF1_ok
s_nop 2
s_cbranch_vccnz L_pollF1
s_branch L_pollF1_ok
L_sig1:
s_mov_b32 s{T0+7}, 0
L_initpoll:
s_sleep 4
global_load_dword v10, v{VZ}, s[22:23] sc1
s_add_u32 s{T0+7}, s{T0+7}, 1
s_waitcnt vmcnt(0)
v_readfirstlane_b32 s{T0+6}, v10
s_cmp_lg_u32 s{T0+6}, 0
s_cbranch_scc1 L_initdone
s_cmp_lt_u32 s{T0+7}, {SPIN}
s_cbranch_scc1 L_initpoll
L_initdone:
{TYC}
s_cbranch_scc1 L_initok1
s_branch L_initok0
L_flagspin:
s_mov_b32 s{T0+7}, 0
L_flagspin2:
s_sleep {P['SL1']}
buffer_load_dword v41, v{VZ}, {s(S_WS,4)}, s{P_F2} offen sc1
s_add_u32 s{T0+7}, s{T0+7}, 1
s_waitcnt vmcnt(0)
v_readfirstlane_b32 s{T0+6}, v41
s_cmp_ge_u32 s{T0+6}, 32
s_cbranch_scc1 L_flagok
s_cmp_lt_u32 s{T0+7}, {SPIN}
s_cbranch_scc1 L_flagspin2
s_branch L_flagok
L_flag2spin:
s_mov_b32 s{T0+7}, 0
L_flag2spin2:
s_sleep {P['SL2']}
buffer_load_dword v41, v42, {s(S_WS,4)}, s{T0+5} offen sc1
s_add_u32 s{T0+7}, s{T0+7}, 1
s_waitcnt vmcnt(0)
v_cmp_gt_u32 vcc, 32, v41
s_cmp_ge_u32 s{T0+7}, {SPIN}
s_cbranch_scc1 L_flag2ok
s_nop 2
s_cbranch_vccnz L_flag2spin2
s_branch L_flag2ok
L_ktspin:
s_mov_b32 s{T0+7}, 0
L_ktspin2:
s_sleep 8
""")
    a.emit(ktl)
    a(f"""
s_add_u32 s{T0+7}, s{T0+7}, 1
s_waitcnt vmcnt(0)
""")
    a.emit(ktc)
    a(f"""
s_cmp_ge_u32 s{T0+7}, {SPIN}
s_cbranch_scc1 L_ktok
s_nop 2
s_cbranch_vccnz L_ktspin2
s_branch L_ktok
""")
    a(f"""
L_slow:
s_barrier
s_and_b32 s{MODE}, s{T0+2}, 3
s_xor_b32 s{MODE}, s{MODE}, 7
s_lshl_b32 s{T0+1}, s{S_H}, 17
s_add_u32 s{T0+1}, s{T0+1}, {WS_KV}
s_add_u32 s{T0+1}, s{T0+1}, s{P_WOL}
""")
    for g in range(2):
        a(f"s_add_u32 m0, s{P_WOL}, {g*4096}")
        a(f"s_add_u32 s{T0+1}, s{T0+1}, {g*4096}")
        for i in range(4):
            a(f"buffer_load_dwordx4 v1, {s(S_WS,4)}, s{T0+1} offen offset:{i*1024} sc1 lds")
    a(f"""
s_mov_b32 s{CNT}, 0
v_mov_b32 v{ADDR}, v1
v_mov_b32 v38, 0xff800000
v_mov_b32 v39, 0xff800000
v_mov_b32 v47, v41
s_waitcnt vmcnt(0)
s_barrier
L_mloop:
ds_read_b128 {v(KS[0],4)}, v{ADDR}
s_waitcnt lgkmcnt(0)
v_mfma_f32_32x32x16_bf16 {v(SA,16)}, {v(KS[0],4)}, {v(QA,4)}, 0
v_mfma_f32_32x32x16_bf16 {v(SB,16)}, {v(KS[0],4)}, {v(QB,4)}, 0
s_nop 15
""")
    a.emit(rr(maxtree(38, SA, 1), maxtree(39, SB, 1)))
    a(f"""
v_add_u32 v{ADDR}, 2048, v{ADDR}
s_add_u32 s{CNT}, s{CNT}, 1
s_cmp_lt_u32 s{CNT}, 64
s_cbranch_scc1 L_mloop
""")
    a(NEGM)
    a(f"""
s_lshl_b32 s{T0}, s{KH}, 16
v_add_u32 v{ADDR}, s{T0}, v1
s_mov_b32 s{CNT}, 0
ds_read_b128 {v(KS[0],4)}, v{ADDR}
s_mov_b64 exec, {s(SL+2,2)}
ds_read_b128 {v(VS[0],4)}, v{ADDR} offset:1024
ds_read_b128 {v(VS[0]+4,4)}, v{ADDR} offset:1280
s_mov_b64 exec, -1
""")
    a.emit(fm); a.emit(ZERO_O); a.emit(ZSB)
    a(f"""
s_waitcnt lgkmcnt(0)
v_mfma_f32_32x32x16_bf16 {v(SA,16)}, {v(KS[0],4)}, {v(QA,4)}, {v(NMA,16)}
s_nop 15
L_sloop:
""")
    a.emit(slot(0))
    a(f"""
v_add_u32 v{ADDR}, 4096, v{ADDR}
s_add_u32 s{CNT}, s{CNT}, 1
s_cmp_lt_u32 s{CNT}, 16
s_cbranch_scc1 L_sloop
v_mov_b32 v41, v47
s_barrier
""")
    for g in woa_dma(): a.emit(g if isinstance(g, list) else [g])
    a("s_waitcnt vmcnt(0)")
    a(f"s_cmp_lg_u32 s{KH}, 0")
    a("s_cbranch_scc1 L_tail1")
    a("s_barrier")
    a.emit(XRD)
    a("s_branch L_tail0")
    a("L_codeend:")
    a("s_endpgm")
    return kd(NAME, 256, 102)

HEAD = """; gated mix of softmax attention and hedgehog linear attention -- hand-written gfx950 kernel
; @launch grid=(256,1,1) block=(512,1,1) lds=163840
.amdgcn_target "amdgcn-amd-amdhsa--gfx950"
"""
if __name__ == "__main__":
    rt = False
    for o in sys.argv[2:]:
        if o == "st": P["STAMPS"] = 1
        elif o == "rt": rt = True
        else:
            k_, v_ = o.split("="); assert k_.upper() in P, k_; P[k_.upper()] = int(v_)
    a = Asm()
    k = gen(a)
    ls = a.lines
    c0, c1, o = ls.index("L_mark_c0:"), ls.index("L_mark_c1:"), ls.index("L_mark_o:")
    if P["LAY"]:
        head = ls[:c0-1]
        mid = [x for x in ls[c1+1:o]]
        if mid[0] == ".p2align 6": mid[0] = ".p2align 3"
        ls = head + mid + [".p2align 3"] + ls[c0+1:c1] + ls[o+1:]
    else:
        ls = [x for x in ls if not x.startswith("L_mark")]
    a.lines = ls
    txt = a.text()
    if rt: txt = txt.replace("s_memtime", "s_memrealtime")
    open(sys.argv[1], "w").write(HEAD + txt + k)
```

```python
import sys, struct
from asmlib import *

NAME = "gated_mix__mha_block__linear_kernel_hedgehog__prompt_kernel"
LOG2E = 1.4426950408889634
def f2u(x): return struct.unpack("<I", struct.pack("<f", x))[0]

WS_QF  = 0
WS_KV  = 2 << 20
WS_PHQ = 6 << 20
WS_KVP = 10 << 20
WS_OF  = 14 << 20
WS_G   = 18 << 20
WS_KVT = (18 << 20) + 65536
WS_WOF = (18 << 20) + 131072
WS_FL  = WS_WOF + (1 << 20)
WS_SIZE = WS_FL + 32 * 256
WS_ST = 20 << 20
OBR = 64 * 32 * 1024

P = dict(STAMPS=0, STMODE=0, SPIN=400000, SIGC=1, LOOK=3, RPG=3, LEAD=2, CPF=1, XAH=0, PSL=2,
         KVS=4, PACE=0, PACK=0, TLB=0, WF=0, WBT=0, MIX=1, RT=0, RSL=4, OAP=8, HOLD=0, MPF=0, Q1=56, Q2=10, Q3=30, Q4=40, Q5=24, Q6=22, SH=0, PER2=1, PER1=2, DQ=0, EB=9, HP=6, KVP=3, HELP=0, GM0=80, GM1=120, WO0=90, WO1=140, HB=0, MAPT=1, SIG0=1, SIG1=1, SL1=16, SL2=32, KF=0, QCUT=0, NOPK=0, PV=1, PS=5, PLO=12, PRI=0, LAY=0, SWO=0, EF1=0, SIDEK=13, XB=40, NOBD=1, NOBA=1, RLIM=11, EARLYB=0, QLATE=0, PRE=2, L1=9, RFIRST=1, CLS=3, BS=6, BD=4, BA=8, BW=12, DBG=0, ROTC=1, DIAG=0)

S_X, S_WA, S_WB, S_WS, S_MISC = 28, 32, 36, 40, 44
S_WAVE, S_HQ, S_TB, S_ROT = 48, 49, 50, 51
S_H, S_RB = 26, 27
T0 = 52
SL = 60
CNT, MODE, EVM, TT, PP, SX = 64, 65, 66, 67, 68, 69
P_KVG, P_KVB = 66, 67
P_OF, P_F2, P_KVS, P_KVT, P_PHQ, P_WOF, P_WOB, P_OA, P_G, P_WOL, KH = 4, 5, 6, 7, 8, 9, 10, 11, 0, 1, 3

XL, WL, WSLOT = 0, 65536, 24576
L_QH, L_WOS, L_CMB = 52*1024, 156*1024, 128*1024
L_FLAG, L_EX, EXS = 136*1024, 137*1024, 4608

QA, QB, KS, VS, IDX, ADDR = 4, 8, [12, 16], [20, 28], 36, 37
NMA, NMB, SA, SB, OA, OB = 48, 64, 80, 96, 112, 128
POOL, OBF, KACC, PQ, GV = 144, 208, 240, 244, 252
VZ = 3
L = lambda t: [x.strip() for x in t.strip().split("\n") if x.strip()]

def stamp(a, i, mode=0):
    if P["STAMPS"] and mode == P["STMODE"]:
        a(f"s_memtime s[{70+2*i}:{71+2*i}]")
def stamp_out(a):
    if not P["STAMPS"]:
        return
    a("s_mov_b64 exec, -1")
    a("s_memrealtime s[100:101]")
    a("s_waitcnt lgkmcnt(0) vmcnt(0)")
    a("s_memtime s[96:97]")
    a("s_waitcnt lgkmcnt(0)")
    srd(a, 40, 24, 25, WS_ST + (1 << 20))
    a(f"s_lshl_b32 s3, s2, 3")
    a(f"s_add_u32 s3, s3, s{S_WAVE}")
    a(f"s_lshl_b32 s3, s3, 6")
    a(f"s_add_u32 s3, s3, {WS_ST}")
    a("v_mov_b32 v1, 0")
    for i in range(16):
        a(f"v_mov_b32 v2, s{70+2*i}")
        a(f"buffer_store_dword v2, v1, s[40:43], s3 offen offset:{4*i}")
    a("s_waitcnt vmcnt(0)")

def softmax16(b, t):
    o = [f"v_max3_f32 v{t}, v{b}, v{b+1}, v{b+2}"]
    for i in range(3, 15, 2):
        o.append(f"v_max3_f32 v{t}, v{t}, v{b+i}, v{b+i+1}")
    o.append(f"v_max_f32 v{t}, v{t}, v{b+15}")
    o.append(f"v_mul_f32 v{t}, {f2u(-LOG2E):#x}, v{t}")
    for i in range(0, 16, 2):
        o.append(f"v_pk_fma_f32 {v(b+i,2)}, {v(b+i,2)}, {s(SL,2)}, {v(t,2)} op_sel_hi:[1,0,0]")
    for i in range(16):
        o.append(f"v_exp_f32 v{b+i}, v{b+i}")
    o.append(f"v_pk_add_f32 {v(t+2,2)}, {v(b,2)}, {v(b+2,2)}")
    for i in range(4, 16, 2):
        o.append(f"v_pk_add_f32 {v(t+2,2)}, {v(t+2,2)}, {v(b+i,2)}")
    o.append(f"v_add_f32 v{t}, v{t+2}, v{t+3}")
    o.append(f"v_rcp_f32 v{t}, v{t}")
    o.append("s_nop 0")
    for i in range(0, 16, 2):
        o.append(f"v_pk_mul_f32 {v(b+i,2)}, {v(b+i,2)}, {v(t,2)} op_sel_hi:[1,0]")
    for i in range(8):
        o.append(f"v_cvt_pk_bf16_f32 v{b+i}, v{b+2*i}, v{b+2*i+1}")
    return o

def unpk(x):
    import re
    m = re.match(r"v_pk_fma_f32 v\[(\d+):\d+\], v\[(\d+):\d+\], s\[(\d+):\d+\], v\[(\d+):\d+\]", x)
    if m:
        d, a_, s_, t = map(int, m.groups())
        return f"v_fma_f32 v{d}, v{a_}, s{s_}, v{t}\nv_fma_f32 v{d+1}, v{a_+1}, s{s_}, v{t}"
    m = re.match(r"v_pk_add_f32 v\[(\d+):\d+\], v\[(\d+):\d+\], v\[(\d+):\d+\]", x)
    if m:
        d, a_, b = map(int, m.groups())
        return f"v_add_f32 v{d}, v{a_}, v{b}\nv_add_f32 v{d+1}, v{a_+1}, v{b+1}"
    m = re.match(r"v_pk_mul_f32 v\[(\d+):\d+\], v\[(\d+):\d+\], v\[(\d+):\d+\] op_sel_hi:\[1,0\]", x)
    if m:
        d, a_, b = map(int, m.groups())
        return f"v_mul_f32 v{d}, v{a_}, v{b}\nv_mul_f32 v{d+1}, v{a_+1}, v{b}"
    m = re.match(r"v_mov_b64 v\[(\d+):\d+\], v\[(\d+):\d+\]", x)
    if m:
        d, a_ = map(int, m.groups())
        return f"v_mov_b32 v{d}, v{a_}\nv_mov_b32 v{d+1}, v{a_+1}"
    return x

def tr64_addr(a, dst, tmp, base_sgpr):
    a(f"""
v_bfe_u32 v{tmp}, v0, 2, 2
v_lshlrev_b32 v{dst}, 6, v{tmp}
v_lshrrev_b32 v{tmp}, 5, v0
v_lshl_add_u32 v{dst}, v{tmp}, 8, v{dst}
v_and_b32 v{tmp}, 1, v0
v_lshl_add_u32 v{dst}, v{tmp}, 5, v{dst}
v_bfe_u32 v{tmp}, v0, 4, 1
v_lshl_add_u32 v{dst}, v{tmp}, 4, v{dst}
v_bfe_u32 v{tmp}, v0, 1, 1
v_lshl_add_u32 v{dst}, v{tmp}, 3, v{dst}
v_add_u32 v{dst}, s{base_sgpr}, v{dst}
""")

def persist(a, kh, R2, xkb):
    a(f"""
s_mov_b32 s{KH}, {kh}
s_and_b32 s{T0}, s{S_WAVE}, 3
s_lshl_b32 s{T0+1}, s{S_RB}, 3
s_lshl_b32 s{T0+2}, s{T0}, 1
s_add_u32 s{T0+1}, s{T0+1}, s{T0+2}
s_add_u32 s{T0+1}, s{T0+1}, {kh}
s_lshl_b32 s{P_OF}, s{T0+1}, 5
s_add_u32 s{P_OF}, s{P_OF}, s{S_H}
s_lshl_b32 s{P_OF}, s{P_OF}, 10
s_add_u32 s{P_OF}, s{P_OF}, {WS_OF}
s_lshl_b32 s{P_PHQ}, s{S_H}, 6
s_add_u32 s{P_PHQ}, s{P_PHQ}, s{T0+1}
s_lshl_b32 s{P_PHQ}, s{P_PHQ}, 11
s_add_u32 s{P_PHQ}, s{P_PHQ}, {WS_PHQ}
s_lshr_b32 s{P_F2}, s{S_H}, 2
s_xor_b32 s{P_F2}, s{P_F2}, {xkb}
s_lshl_b32 s{P_F2}, s{P_F2}, 8
s_add_u32 s{P_F2}, s{P_F2}, {WS_FL}
s_lshl_b32 s{P_KVS}, s{S_H}, 17
s_lshl_b32 s{T0+2}, s{T0}, 10
s_add_u32 s{P_KVS}, s{P_KVS}, s{T0+2}
s_lshl_b32 s{T0+2}, s{S_RB}, 7
s_add_u32 s{P_KVS}, s{P_KVS}, s{T0+2}
s_add_u32 s{P_KVS}, s{P_KVS}, {WS_KVP}
s_lshl_b32 s{P_KVT}, s{S_H}, 11
s_add_u32 s{P_KVT}, s{P_KVT}, {WS_KVT}
s_lshr_b32 s{P_WOF}, s2, 5
s_lshl_b32 s{P_WOF}, s{P_WOF}, 17
s_add_u32 s{P_WOF}, s{P_WOF}, {WS_WOF}
s_lshr_b32 s{T0+1}, s{S_WAVE}, 1
s_lshl_b32 s{P_WOB}, s{T0+1}, 14
s_add_u32 s{P_WOB}, s{P_WOB}, s{P_WOF}
s_add_u32 s{P_WOB}, s{P_WOB}, 65536
s_lshl_b32 s{T0+2}, s{S_WAVE}, 13
s_add_u32 s{P_WOF}, s{P_WOF}, s{T0+2}
s_and_b32 s{P_OA}, s2, 31
s_lshl_b32 s{P_OA}, s{P_OA}, 1
s_and_b32 s{T0+2}, s{S_WAVE}, 1
s_add_u32 s{P_OA}, s{P_OA}, s{T0+2}
s_lshl_b32 s{P_G}, s{P_OA}, 7
s_add_u32 s{P_G}, s{P_G}, {WS_G}
s_lshl_b32 s{P_OA}, s{P_OA}, 5
s_lshl_b32 s{T0+1}, s{T0+1}, 3
s_add_u32 s{P_OA}, s{P_OA}, s{T0+1}
s_lshl_b32 s{P_OA}, s{P_OA}, 10
s_add_u32 s{P_OA}, s{P_OA}, {WS_OF}
s_lshl_b32 s{P_WOL}, s{T0}, 13
s_add_u32 s{P_WOL}, s{P_WOL}, {R2 if kh == 0 else 0}
""")

def gen(a):
    SPIN, LEAD = P["SPIN"], P["LEAD"]
    XQA, XKA, XVA, XQB, XKB = (1, 0, 2, 5, 4) if P["MIX"] else (0, 0, 0, 0, 0)
    TYB = 6 if P["MAPT"] == 0 else 5
    TYC = f"s_bitcmp1_b32 s2, {TYB}"
    NS = 16 + LEAD // 2
    R2 = 2 * NS * 2048
    BD, BA, BW, BS = P["BD"], P["BA"], P["BW"], P["BS"]
    C0 = BS
    assert BW >= LEAD + 8 and BW >= 8
    a(f""".text
.globl {NAME}
.p2align 8
.type {NAME},@function
{NAME}:
s_cmp_ge_u32 s2, 256
s_cbranch_scc1 L_end
""")
    if P["STAMPS"]:
        for i in range(70, 102): a(f"s_mov_b32 s{i}, 0")
        a("s_memtime s[70:71]")
        a("s_memrealtime s[98:99]")
    a(f"""
s_load_dwordx16 s[4:19], s[0:1], 0
s_load_dwordx4 s[20:23], s[0:1], 64
s_load_dwordx2 s[24:25], s[0:1], 80
v_lshrrev_b32 v1, 6, v0
v_and_b32 v0, 63, v0
v_readfirstlane_b32 s{S_WAVE}, v1
""")
    if P["MAPT"] == 0:
        a(f"""
s_bfe_u32 s{S_ROT}, s2, 0x30003
s_and_b32 s{S_TB}, s2, 4
s_lshl_b32 s{S_TB}, s{S_TB}, 1
s_add_u32 s{S_TB}, s{S_TB}, s{S_ROT}
s_lshr_b32 s3, s2, 6
s_and_b32 s{S_HQ}, s2, 3
s_lshl_b32 s{S_HQ}, s{S_HQ}, 1
s_lshr_b32 s{S_H}, s3, 1
s_add_u32 s{S_HQ}, s{S_HQ}, s{S_H}
s_lshl_b32 s{S_H}, s3, 1
s_add_u32 s{S_ROT}, s{S_ROT}, s{S_H}
""")
    else:
        a(f"""
s_bfe_u32 s{S_ROT}, s2, 0x20003
s_and_b32 s{S_TB}, s2, 6
s_lshl_b32 s{S_TB}, s{S_TB}, 1
s_add_u32 s{S_TB}, s{S_TB}, s{S_ROT}
s_lshl_b32 s{S_ROT}, s{S_ROT}, 1
s_lshr_b32 s3, s2, 5
s_add_u32 s{S_ROT}, s{S_ROT}, s3
s_lshr_b32 s3, s3, 1
s_and_b32 s{S_HQ}, s2, 1
s_lshl_b32 s{S_HQ}, s{S_HQ}, 2
s_add_u32 s{S_HQ}, s{S_HQ}, s3
""")
    a(f"""
s_lshr_b32 s3, s2, 6
s_and_b32 s{S_H}, s2, 7
s_lshl_b32 s{S_H}, s{S_H}, 2
s_add_u32 s{S_H}, s{S_H}, s3
s_bfe_u32 s{S_RB}, s2, 0x30003
v_mov_b32 v{VZ}, 0
s_cmp_ge_u32 s{S_WAVE}, 4
s_cbranch_scc0 L_compute
""")
    LW, XO, WO, XM, WM = 64, 65, 66, 67, 68
    S0 = 128 * 1024
    X = lambda s_: s_ * 16384
    U = lambda i_: S0 + i_ * 8192
    def plan(ty):
        st = {}; when = {}
        if ty == 0:
            loc = [(U(0), U(1)), (U(2), U(3)), (X(7), X(7) + 8192), (U(0), U(1)), (U(2), U(3)), (X(7), X(7) + 8192), (U(0), U(1)), (U(2), U(3))]
            for t in range(8):
                st[t] = [(S_WA, 1024, XKA, loc[t][0]), (S_WA, 2048, XVA, loc[t][1])]
                for u in range(2): when[("w", t, u)] = -1 if t < 2 else t - 2
            for t in range(8, 16):
                st[t] = [(S_WB, 0, XQB, U(t & 3))]
                when[("w", t, 0)] = {8: 7, 9: 7, 10: 7.5, 11: 7.5}.get(t, t - 3)
            for c in range(8): when[("x", c)] = 6 if c == 7 else max(-1, c - 2 - P["XAH"])
        else:
            l1 = [U(t & 3) for t in range(8)] if P["EB"] == 9 else [U(2), X(6), X(6) + 8192, X(7), X(7) + 8192, U(2), U(3), U(2)]
            for t in range(8):
                st[t] = [(S_WA, 0, XQA, l1[t])]
                when[("w", t, 0)] = -1 if t < 2 else t - 2
            if P["EB"] != 9: when[("w", 7, 0)] = 6
            loc = {8: (U(0), U(1)), 9: (U(2), U(3)), 10: (U(0), U(1)), 11: (X(0), X(0) + 8192), 12: (U(2), U(3)), 13: (X(1), X(1) + 8192), 14: (U(0), U(1)), 15: (U(2), U(3))}
            e8 = 6 if P["EB"] == 9 else P["EB"] - 1
            wh = {8: (e8, e8), 9: (7.5, 7.5), 10: (9, 9), 11: (9, 9), 12: (10, 10), 13: (11, 11), 14: (12, 12), 15: (13, 13)}
            for t in range(8, 16):
                st[t] = [(S_WB, 1024, XKB, loc[t][0]), (S_WB, 2048, XKB, loc[t][1])]
                for u in range(2): when[("w", t, u)] = wh[t][u]
            for c in range(8): when[("x", c)] = max(-1, c - 2 - P["XAH"])
        return st, when
    PLAN = [plan(0), plan(1)]
    a(f"""
s_sub_u32 s{LW}, s{S_WAVE}, 4
v_lshrrev_b32 v1, 3, v0
v_and_b32 v2, 7, v0
v_lshrrev_b32 v8, 4, v0
v_xor_b32 v9, v2, v8
v_lshlrev_b32 v10, 10, v1
v_lshl_add_u32 v4, v9, 4, v10
v_xor_b32 v5, 64, v4
v_add_u32 v5, {8192-1024}, v5
v_mul_u32_u24 v10, 3072, v1
v_and_b32 v8, 1, v8
v_lshlrev_b32 v8, 2, v8
v_xor_b32 v9, v2, v8
v_lshl_add_u32 v6, v9, 4, v10
v_xor_b32 v7, 32, v6
v_add_u32 v7, {8*3072-1024}, v7
s_lshl_b32 s{XO}, s{S_TB}, 17
s_lshl_b32 s{T0}, s{LW}, 15
s_add_u32 s{XO}, s{XO}, s{T0}
s_mul_i32 s{WO}, s{LW}, {16*3072}
s_lshl_b32 s{T0}, s{S_HQ}, 7
s_add_u32 s{WO}, s{WO}, s{T0}
s_lshl_b32 s{XM}, s{LW}, 12
s_lshl_b32 s{WM}, s{LW}, 11
s_mov_b32 s{S_X+2}, {2048*512*2}
s_mov_b32 s{S_X+3}, 0x20000
s_mov_b32 s{S_WA+2}, {512*1536*2}
s_mov_b32 s{S_WA+3}, 0x20000
s_waitcnt lgkmcnt(0)
s_mov_b32 s{S_X}, s4
s_mov_b32 s{S_X+1}, s5
s_mov_b32 s{S_WA}, s6
s_mov_b32 s{S_WA+1}, s7
""")
    stamp(a, 1)
    ISS = [[], []]
    def issx(c, tys):
        a(f"s_add_u32 s{T0}, s{S_ROT}, {c}")
        a(f"s_and_b32 s{T0}, s{T0}, 7")
        a(f"s_lshl_b32 s{T0}, s{T0}, 7")
        for g in range(2):
            a(f"s_add_u32 m0, s{XM}, {X(c) + g*2048}")
            a(f"s_add_u32 s{T0}, s{T0}, " + (f"s{XO}" if g == 0 else "16384"))
            a(f"buffer_load_dwordx4 v4, {s(S_X,4)}, s{T0} offen lds")
            a(f"buffer_load_dwordx4 v5, {s(S_X,4)}, s{T0} offen offset:1024 lds")
        for ty in tys: ISS[ty].append((("x", c), 4))
    def issw(ty, t, us):
        a(f"s_add_u32 s{T0}, s{S_ROT}, {t & 7}")
        a(f"s_and_b32 s{T0}, s{T0}, 7")
        a(f"s_mul_i32 s{T0}, s{T0}, {64*3072}")
        a(f"s_add_u32 s{T0}, s{T0}, s{WO}")
        for u in us:
            W, col, xr_, ad = PLAN[ty][0][t][u]
            a(f"s_xor_b32 s{T0+1}, s{T0}, {xr_*128}")
            a(f"s_add_u32 m0, s{WM}, {ad}")
            a(f"s_add_u32 s{T0+1}, s{T0+1}, {col}")
            a(f"buffer_load_dwordx4 v6, {s(W,4)}, s{T0+1} offen lds")
            a(f"buffer_load_dwordx4 v7, {s(W,4)}, s{T0+1} offen offset:1024 lds")
            ISS[ty].append((("w", t, u), 2))
    issx(0, (0, 1))
    a(TYC)
    a("s_cbranch_scc1 L_i1")
    issw(0, 0, (0, 1))
    a("s_branch L_i2")
    a("L_i1:")
    issw(1, 0, (0,)); issw(1, 1, (0,))
    a("L_i2:")
    issx(1, (0, 1))
    srd(a, S_WB, 12, 13, 512*1536*2)
    srd(a, S_WS, 24, 25, WS_SIZE)
    GO, GX, WSRC, WD, WST = 60, 44, 45, 61, 46
    a(f"""
s_cmp_ge_u32 s2, 128
s_cselect_b32 s12, s16, s8
s_cselect_b32 s13, s17, s9
s_mov_b32 s14, {512*512*2}
s_mov_b32 s15, 0x20000
s_mov_b32 s16, s18
s_mov_b32 s17, s19
s_mov_b32 s18, 1024
s_mov_b32 s19, 0x20000
s_lshl_b32 s{GO}, s{S_TB}, 7
s_lshl_b32 s{T0+1}, s{S_HQ}, 4
s_add_u32 s{GO}, s{GO}, s{T0+1}
s_bfe_u32 s{T0+1}, s2, {0x10000 + TYB}
s_lshl_b32 s{T0+1}, s{T0+1}, 3
s_add_u32 s{GO}, s{GO}, s{T0+1}
s_lshl_b32 s{T0+1}, s{LW}, 1
s_add_u32 s{GO}, s{GO}, s{T0+1}
s_and_b32 s{GX}, s{GO}, 127
s_lshl_b32 s{GO}, s{GO}, 2
s_add_u32 s{GO}, s{GO}, {WS_G}
s_bfe_u32 s{T0+1}, s{GX}, 0x30001
v_xor_b32 v8, s{T0+1}, v2
v_lshlrev_b32 v8, 4, v8
v_lshl_add_u32 v8, v1, 14, v8
s_lshl_b32 s{GX}, s{GX}, 7
v_add_u32 v{POOL+16}, s{GX}, v8
v_add_u32 v8, s{S_ROT}, v1
v_and_b32 v8, 7, v8
v_lshlrev_b32 v8, 7, v8
v_lshl_add_u32 v{POOL+17}, v2, 4, v8
v_mov_b32 v{POOL+13}, 0
v_lshrrev_b32 v8, 2, v0
v_lshlrev_b32 v8, 10, v8
v_and_b32 v9, 3, v0
v_lshl_add_u32 v{POOL+18}, v9, 4, v8
v_lshrrev_b32 v{POOL+19}, 5, v0
v_lshlrev_b32 v{POOL+19}, 2, v{POOL+19}
v_mov_b32 v{POOL+12}, 0
s_lshl_b32 s{T0}, s2, 2
s_add_u32 s{T0}, s{T0}, s{LW}
s_bfe_u32 s{T0+1}, s{T0}, 0x50004
s_and_b32 s{T0+2}, s{T0}, 15
s_lshl_b32 s{WSRC}, s{T0+1}, 14
s_lshl_b32 s{T0+3}, s{T0+2}, 6
s_add_u32 s{WSRC}, s{WSRC}, s{T0+3}
s_lshl_b32 s{WST}, s{LW}, 10
s_add_u32 s{WST}, s{WST}, {L_WOS}
s_lshr_b32 s{T0+3}, s{T0+2}, 1
s_lshl_b32 s{WD}, s{T0+3}, 17
s_lshr_b32 s{T0+3}, s{T0}, 9
s_lshl_b32 s{T0+3}, s{T0+3}, 16
s_add_u32 s{WD}, s{WD}, s{T0+3}
s_lshl_b32 s{T0+3}, s{T0+1}, 11
s_add_u32 s{WD}, s{WD}, s{T0+3}
s_and_b32 s{T0+3}, s{T0+2}, 1
s_lshl_b32 s{T0+3}, s{T0+3}, 10
s_add_u32 s{WD}, s{WD}, s{T0+3}
s_add_u32 s{WD}, s{WD}, {WS_WOF}
""")
    tr64_addr(a, POOL+9, 8, WST)
    if P["TLB"]: a("s_waitcnt lgkmcnt(0)")
    persist(a, 0, R2, XKB)
    VINIT = f"""
v_mov_b32 v{IDX}, 0xdddddddd
v_and_b32 v39, 27, v0
v_cmp_eq_u32 vcc, 16, v39
v_mov_b32 v38, 0x3f803f80
v_mov_b64 v[44:45], -1
v_cndmask_b32 v38, 0, v38, vcc
v_mov_b64 v[46:47], -1
v_mov_b32 v39, v38
""" + "\n".join(f"v_mov_b64 {v(VS[0]+i,2)}, v[38:39]" for i in range(0, 16, 2))
    ZERO_O = [f"v_mov_b64 {v(OA+i,2)}, 0" for i in range(0, 32, 2)]
    a(VINIT)
    a.emit(ZERO_O)
    a(f"""
v_lshlrev_b32 v42, 12, v1
v_lshl_add_u32 v42, v2, 4, v42
s_lshl_b32 s{T0}, s{S_RB}, 7
s_lshr_b32 s{T0+1}, s{LW}, 1
s_lshl_b32 s{T0+1}, s{T0+1}, 10
s_add_u32 s{T0}, s{T0}, s{T0+1}
s_and_b32 s{T0+1}, s{LW}, 1
s_lshl_b32 s{T0+1}, s{T0+1}, 3
s_add_u32 s{T0}, s{T0}, s{T0+1}
v_lshlrev_b32 v43, 4, v2
v_bfe_u32 v8, v0, 4, 1
v_lshl_add_u32 v43, v8, 2, v43
v_add_u32 v43, s{T0}, v43
v_lshlrev_b32 v1, 4, v0
v_mov_b32 v{ADDR}, v1
s_lshl_b32 s{T0}, s{LW}, 9
s_add_u32 s{T0}, s{T0}, {L_QH}
v_lshrrev_b32 v{POOL+11}, 1, v1
v_add_u32 v{POOL+11}, s{T0}, v{POOL+11}
""")
    def gate_math():
        G0 = POOL + 12
        for i in range(4):
            a(f"v_dot2_f32_bf16 v{G0}, v{POOL+20+i}, v{POOL+28+i}, v{G0}")
            a(f"v_dot2_f32_bf16 v{G0+1}, v{POOL+24+i}, v{POOL+28+i}, v{G0+1}")
        a(f"""
s_nop 2
v_permlane32_swap_b32 v{G0}, v{G0+1}
s_nop 1
v_add_f32 v{G0}, v{G0}, v{G0+1}
s_nop 1
v_add_f32_dpp v{G0}, v{G0}, v{G0} quad_perm:[1,0,3,2] row_mask:0xf bank_mask:0xf
s_nop 1
v_add_f32_dpp v{G0}, v{G0}, v{G0} quad_perm:[2,3,0,1] row_mask:0xf bank_mask:0xf
s_nop 1
v_add_f32_dpp v{G0}, v{G0}, v{G0} row_half_mirror row_mask:0xf bank_mask:0xf
s_nop 1
v_add_f32_dpp v{G0}, v{G0}, v{G0} row_mirror row_mask:0xf bank_mask:0xf
v_mov_b32 v{G0+1}, v{G0}
s_nop 1
v_permlane16_swap_b32 v{G0}, v{G0+1}
s_nop 1
v_add_f32 v{G0}, v{G0}, v{G0+1}
v_mul_f32 v{G0}, {f2u(-LOG2E):#x}, v{G0}
v_exp_f32 v{G0}, v{G0}
s_nop 0
v_add_f32 v{G0}, 1.0, v{G0}
v_rcp_f32 v{G0}, v{G0}
""")
    stamp(a, 2)
    a(TYC)
    a("s_cbranch_scc1 L_ld1")
    for ty in range(2):
        a(f"L_ld{ty}:")
        st_, when = PLAN[ty]
        issued = ISS[ty]
        def release(pt):
            done = {t for t, _ in issued}
            todo = [k_ for k_, w_ in when.items() if w_ <= pt and k_ not in done]
            todo.sort(key=lambda k_: (k_[1], 0 if k_[0] == "w" else 1))
            i_ = 0
            while i_ < len(todo):
                k_ = todo[i_]
                if k_[0] == "x": issx(k_[1], (ty,)); i_ += 1
                else:
                    us = [q_[2] for q_ in todo if q_[0] == "w" and q_[1] == k_[1]]
                    issw(ty, k_[1], us); i_ += len(us)
        def cnt_after(tags):
            idx = max(i for i, (t, _) in enumerate(issued) if t in tags)
            return sum(k_ for _, k_ in issued[idx+1:])
        def side(pt):
            if pt == P["HP"] - (0 if P["HP"] == 6 else 1) and ty == 1 and P["HELP"]:
                a(f"""
s_and_b32 s{T0}, s{S_ROT}, 7
s_mul_i32 s{T0}, s{T0}, {64*3072}
s_add_u32 s{T0}, s{T0}, s{WO}
s_xor_b32 s{T0}, s{T0}, {XQB*128}
buffer_load_dwordx4 {v(POOL+40,4)}, v6, {s(S_WB,4)}, s{T0} offen
buffer_load_dwordx4 {v(POOL+40,4)}, v7, {s(S_WB,4)}, s{T0} offen offset:1024
""")
                issued.append(("gw", 2))
            if P[f"WO{ty}"] == pt * 10:
                a(f"buffer_load_dwordx4 {v(POOL+36,4)}, v{POOL+18}, s[12:15], s45 offen")
                issued.append(("gw", 1))
            if pt == 6:
                a(f"buffer_load_dwordx4 {v(POOL+28,4)}, v{POOL+17}, s[16:19], 0 offen")
                issued.append(("gw", 1))
            if pt == 7.5:
                a(f"ds_read_b128 {v(POOL+20,4)}, v{POOL+16}")
                a(f"ds_read_b128 {v(POOL+24,4)}, v{POOL+16} offset:128")
            if P[f"GM{ty}"] == pt * 10:
                gate_math()
        release(-1)
        side(-1)
        for k in range(15):
            a(f"s_waitcnt vmcnt({cnt_after([('x', k), ('w', k, 0), ('w', k, 1)])})" + (" lgkmcnt(0)" if k == 8 else ""))
            if k == 0: stamp(a, 3)
            if k < 12: stamp(a, k + 1, 2)
            a("s_barrier")
            release(k)
            side(k)
            if k == 7:
                a("s_barrier")
                release(7.5)
                side(7.5)
        assert len([1 for t, _ in issued if t != "gw"]) == len(when)
        a(f"s_waitcnt vmcnt({cnt_after([('w', 15, 0), ('w', 15, 1)])})")
        if ty == 0: a("s_branch L_ldj")
    a("L_ldj:")
    a("s_barrier")
    a(f"""
v_add_u32 v{POOL+18}, s{WST}, v1
s_lshr_b32 s{T0}, s{S_H}, 2
s_lshl_b32 s{T0}, s{T0}, 8
s_add_u32 s{T0}, s{T0}, {WS_FL + 2048}
v_min_u32 v41, 2, v0
v_lshlrev_b32 v41, 11, v41
s_sub_u32 s{T0+1}, s{P_PHQ}, {WS_PHQ}
s_lshr_b32 s{T0+1}, s{T0+1}, 1
s_lshl_b32 s{P_KVB}, s{S_H}, 17
s_add_u32 s{P_KVB}, s{P_KVB}, {WS_KV}
s_lshl_b32 s{P_KVG}, s{LW}, 12
s_add_u32 s{T0+3}, s{P_KVG}, {R2 - 4096}
s_cmp_eq_u32 s{LW}, 0
s_cmov_b32 s{T0+3}, 16384
s_mov_b32 s{T0+7}, 0
""")
    a(f"buffer_load_dword v40, v41, {s(S_WS,4)}, s{T0} offen sc1")
    stamp(a, 4)
    def kvgrp(reg, off):
        o = [[f"s_add_u32 m0, s{reg}, {off}", f"s_add_u32 s{T0+4}, m0, s{P_KVB}"]]
        o += [f"buffer_load_dwordx4 v1, {s(S_WS,4)}, s{T0+4} offen offset:{i*1024} sc1 lds" for i in range(4)]
        return o
    def flat(x):
        o = []
        for g in x: o += g if isinstance(g, list) else [g]
        return o
    FIRST = [f"buffer_load_dwordx4 {v(QA,4)}, v1, {s(S_WS,4)}, s{T0+1} offen sc1",
             f"buffer_load_dwordx4 {v(QB,4)}, v1, {s(S_WS,4)}, s{T0+1} offen offset:1024 sc1",
             f"buffer_load_dwordx4 {v(KS[0],4)}, v1, {s(S_WS,4)}, s{P_KVB} offen sc1"] + flat(kvgrp(P_KVG, 0)) + flat(kvgrp(T0+3, 0))
    a(f"""
s_waitcnt vmcnt(0)
v_cmp_gt_u32 vcc, 16, v40
s_nop 4
s_cbranch_vccnz L_pollF1
L_pollF1_ok:
""")
    a.emit(FIRST)
    a("L_first_done:")
    stamp(a, 5); stamp(a, 1, 3)
    G0 = POOL + 12
    a(f"""
s_setprio 3
s_waitcnt vmcnt(8)
v_mfma_f32_32x32x16_bf16 {v(SA,16)}, {v(KS[0],4)}, {v(QA,4)}, 0
v_mfma_f32_32x32x16_bf16 {v(SB,16)}, {v(KS[0],4)}, {v(QB,4)}, 0
""")
    if P["NOBD"]: a.emit(flat(kvgrp(P_KVG, 5*4096) + kvgrp(P_KVG, R2 + 3*4096)))
    else: a("s_nop 9")
    a(f"""
s_mov_b32 s{MODE}, 0
s_mov_b32 s{SL+2}, 0x0000ffff
s_mov_b32 s{SL+3}, 0x0000ffff
""")
    def maxtree(dst, b, init=None):
        o = []
        if init is None:
            o.append(f"v_max3_f32 v{dst}, v{b}, v{b+1}, v{b+2}")
            for i in range(3, 15, 2):
                o.append(f"v_max3_f32 v{dst}, v{dst}, v{b+i}, v{b+i+1}")
            o.append(f"v_max_f32 v{dst}, v{dst}, v{b+15}")
        else:
            for i in range(0, 16, 2):
                o.append(f"v_max3_f32 v{dst}, v{dst}, v{b+i}, v{b+i+1}")
        return o
    a.emit(rr(maxtree(38, SA), maxtree(39, SB)))
    NEGM = f"""
v_permlane32_swap_b32 v38, v39
s_nop 1
v_max_f32 v38, v38, v39
v_sub_f32 v38, 0, v38
v_mov_b32 v39, v38
s_nop 1
v_permlane32_swap_b32 v38, v39
"""
    def fill_nm():
        o = [f"v_mov_b32 v40, v38", f"v_mov_b32 v41, v38"]
        o += [f"v_mov_b64 {v(NMA+i,2)}, v[40:41]" for i in range(0, 16, 2)]
        o += [f"v_mov_b32 v38, v39"]
        o += [f"v_mov_b64 {v(NMB+i,2)}, v[38:39]" for i in range(0, 16, 2)]
        return o
    ZSB = [f"v_mov_b64 {v(SB+i,2)}, 0" for i in range(8, 16, 2)]
    a("s_nop 1")
    a(NEGM)
    a(f"""
s_nop 1
v_mov_b64 {v(POOL+14,2)}, v[38:39]
""")
    fm = fill_nm()
    a.emit(fm[:11])
    a.emit(ZSB)
    a(f"v_mfma_f32_32x32x16_bf16 {v(SA,16)}, {v(KS[0],4)}, {v(QA,4)}, {v(NMA,16)}")
    a.emit(fm[11:])
    stamp(a, 2, 3)
    a("s_setprio 0")
    stamp(a, 3, 3)
    a(f"""
ds_write_b64 v{POOL+11}, {v(POOL+14,2)}
s_waitcnt vmcnt(0) lgkmcnt(0)
""")
    stamp(a, 6); stamp(a, 4, 3)
    a(f"""
s_barrier
s_mov_b64 exec, {s(SL+2,2)}
ds_read_b128 {v(VS[0],4)}, v{ADDR} offset:1024
ds_read_b128 {v(VS[0]+4,4)}, v{ADDR} offset:1280
s_mov_b64 exec, -1
""")
    a("s_waitcnt lgkmcnt(0)")
    stamp(a, 8)
    a("s_branch L_slot0")
    a("L_mark_c0:")
    XA = [4, 5]; WHI, WLO = [8, 6], [9, 7]
    BUF = [112, 176]
    AQK, AV = 48, 80
    def acc(base, t, hd): return base + 16*(t >> 1) + 8*hd + 4*(t & 1)
    WPHI = [248, 252]
    WPK, WPM = 36, 32
    VFLG, VPHI, VSGN, VF1, VONE = 10, 12, 13, 14, 15
    a("L_compute:")
    if P["CPF"]:
        a(f"""
s_getpc_b64 s[{T0}:{T0+1}]
L_pc:
s_sub_u32 s{T0}, s{T0}, L_pc-{NAME}
s_subb_u32 s{T0+1}, s{T0+1}, 0
s_lshr_b32 s{T0+2}, s2, 3
s_lshl_b32 s{T0+2}, s{T0+2}, 2
s_add_u32 s{T0+2}, s{T0+2}, s{S_WAVE}
s_mul_i32 s{T0+2}, s{T0+2}, 320
s_min_u32 s{T0+2}, s{T0+2}, L_codeend-{NAME}-320
s_add_u32 s{T0}, s{T0}, s{T0+2}
s_addc_u32 s{T0+1}, s{T0+1}, 0
s_load_dword s{T0+3}, s[{T0}:{T0+1}], 0
s_load_dword s{T0+4}, s[{T0}:{T0+1}], 64
s_load_dword s{T0+5}, s[{T0}:{T0+1}], 128
s_load_dword s{T0+6}, s[{T0}:{T0+1}], 192
s_load_dword s{T0+7}, s[{T0}:{T0+1}], 256
""")
    a(f"""
s_lshr_b32 s{TT}, s{S_WAVE}, 1
s_and_b32 s{PP}, s{S_WAVE}, 1
v_and_b32 v16, 31, v0
v_lshrrev_b32 v17, 5, v0
v_lshlrev_b32 v1, 4, v0
s_waitcnt lgkmcnt(0)
""")
    srd(a, S_MISC, 14, 15, 32*512)
    srd(a, S_WS, 24, 25, WS_SIZE)
    a(f"""
s_or_b32 s{T0+1}, s2, s{S_WAVE}
s_cmp_lg_u32 s{T0+1}, 0
s_cbranch_scc1 L_noinit
v_lshlrev_b32 v8, 8, v0
s_mov_b32 s{T0+1}, {WS_FL}
buffer_store_dword v{VZ}, v8, {s(S_WS,4)}, s{T0+1} offen sc1
s_waitcnt vmcnt(0)
v_mov_b32 v8, 1
s_mov_b64 exec, 1
global_store_dword v{VZ}, v8, s[22:23] sc1
s_mov_b64 exec, -1
L_noinit:
s_lshr_b32 s{T0+2}, s2, 3
s_lshl_b32 s{T0+2}, s{T0+2}, 2
s_add_u32 s{T0+2}, s{T0+2}, s{S_WAVE}
s_lshl_b32 s{T0+2}, s{T0+2}, 7
s_add_u32 s{T0+3}, s{T0+2}, 64
s_load_dword s38, s[14:15], s{T0+2}
s_load_dword s39, s[14:15], s{T0+3}
s_lshr_b32 s{T0+3}, s{T0+2}, 1
s_and_b32 s{T0+3}, s{T0+3}, 0x3c0
s_load_dword s33, s[18:19], s{T0+3}
s_lshl_b32 s{T0+3}, s{T0+2}, 5
s_load_dword s34, s[8:9], s{T0+3}
s_load_dword s35, s[16:17], s{T0+3}
s_lshl_b32 s{T0}, s{S_HQ}, 1
s_add_u32 s{T0}, s{T0}, s{PP}
s_lshl_b32 s{T0}, s{T0}, 10
{TYC}
s_mov_b32 s{T0+1}, {XQB*2048}
s_cmov_b32 s{T0+1}, {XKB*2048}
s_xor_b32 s{WPK}, s{T0}, s{T0+1}
s_lshl_b32 s{WPM}, s{S_WAVE}, 10
s_add_u32 s{WPM}, s{WPM}, {X(2)}
v_bfe_u32 v18, v0, 2, 2
v_lshlrev_b32 v{VPHI}, 5, v18
v_lshl_add_u32 v{VPHI}, v17, 8, v{VPHI}
v_bfe_u32 v18, v0, 4, 1
v_lshl_add_u32 v{VPHI}, v18, 4, v{VPHI}
v_bfe_u32 v18, v0, 1, 1
v_lshl_add_u32 v{VPHI}, v18, 3, v{VPHI}
v_add_u32 v{VPHI}, s{WPM}, v{VPHI}
s_lshl_b32 s{T0}, s{TT}, 13
v_and_b32 v20, 15, v0
v_lshrrev_b32 v21, 4, v0
v_lshlrev_b32 v19, 7, v20
v_add_u32 v19, s{T0}, v19
v_lshrrev_b32 v18, 1, v20
v_xor_b32 v18, v18, v21
v_lshl_add_u32 v{XA[0]}, v18, 4, v19
v_xor_b32 v{XA[1]}, 64, v{XA[0]}
v_lshlrev_b32 v9, 10, v21
v_bfe_u32 v18, v0, 2, 2
v_lshl_add_u32 v9, v18, 7, v9
v_bfe_u32 v18, v0, 3, 1
v_xor_b32 v18, s{PP}, v18
v_lshl_add_u32 v9, v18, 6, v9
v_bfe_u32 v18, v0, 4, 1
v_lshl_add_u32 v9, v18, 5, v9
v_and_b32 v19, 3, v0
v_lshl_add_u32 v9, v19, 3, v9
v_xor_b32 v7, 32, v9
v_add_u32 v8, {X(6)}, v9
v_add_u32 v6, {X(6)}, v7
s_mov_b32 s{SL}, {f2u(LOG2E):#x}
s_mov_b32 s{SL+1}, {f2u(0.25*LOG2E):#x}
s_mov_b32 s{SL+2}, 0x0000ffff
s_mov_b32 s{SL+3}, 0x0000ffff
s_mov_b32 s{MODE}, 0
s_lshl_b32 s{SX}, s{S_HQ}, 1
s_add_u32 s{SX}, s{SX}, s{PP}
s_lshl_b32 s{SX}, s{SX}, 7
s_lshl_b32 s{T0+1}, s{S_TB}, 2
s_add_u32 s{SX}, s{SX}, s{T0+1}
s_lshl_b32 s{T0+1}, s{TT}, 1
s_add_u32 s{SX}, s{SX}, s{T0+1}
s_lshl_b32 s{T0+1}, s{S_WAVE}, 12
s_add_u32 s{T0+1}, s{T0+1}, {L_CMB}
v_lshlrev_b32 v240, 1, v17
v_bfe_u32 v18, v16, 1, 2
v_xor_b32 v240, v240, v18
v_lshlrev_b32 v240, 4, v240
v_lshl_add_u32 v240, v16, 6, v240
v_add_u32 v240, s{T0+1}, v240
v_xor_b32 v241, 16, v240
""")
    tr64_addr(a, 242, 18, T0+1)
    a(f"""
v_lshl_add_u32 v242, v17, 8, v242
v_bfe_u32 v18, v0, 3, 1
v_lshlrev_b32 v18, 4, v18
v_xor_b32 v242, v242, v18
v_xor_b32 v246, 32, v242
v_mov_b32 v244, 0x3f803f80
v_mov_b32 v245, 0x3f803f80
v_and_b32 v18, {3 if P["MIX"] else 0}, v0
v_xor_b32 v{VF1}, s{S_HQ}, v18
v_lshl_add_u32 v{VF1}, v0, 3, v{VF1}
v_lshlrev_b32 v{VF1}, 8, v{VF1}
v_mov_b32 v{VONE}, 1
v_bfe_u32 v18, v0, 2, 1
s_mov_b32 s{T0+1}, 0x80008000
v_mul_lo_u32 v{VSGN}, v18, s{T0+1}
s_lshl_b32 s{T0}, s{S_WAVE}, 9
s_add_u32 s{T0}, s{T0}, {L_QH}
v_lshrrev_b32 v243, 1, v1
v_add_u32 v243, s{T0}, v243
""")
    assert (XKA, XQA, XVA) in ((0, 1, 2), (0, 0, 0))
    persist(a, 1, R2, XKB)
    rdp = ["s_waitcnt vmcnt(0)", "s_nop 0"]
    for hd in range(2):
        for rd in range(2):
            rdp.append(f"ds_read_b64_tr_b16 {v(WPHI[hd]+2*rd,2)}, v{VPHI} offset:{hd*512+rd*128}")
    xr = [f"v_xor_b32 v{WPHI[0]+i}, v{VSGN}, v{WPHI[0]+i}" for i in range(8)]
    PK = 16
    stamp(a, 1)
    a(TYC)
    a("s_cbranch_scc1 L_cmp1")
    for ty in range(2):
        a(".p2align 3")
        a(f"L_cmp{ty}:")
        st_ = PLAN[ty][0]
        def reads(t):
            o = []
            xo = (t & 3) * 16384
            for step in range(2):
                b = BUF[t & 1] + 32*step
                xs = [f"ds_read_b128 {v(b+4*q,4)}, v{XA[step]} offset:{xo+q*2048}" for q in range(4)]
                ws = []
                for u, (_, _, _, ad) in enumerate(st_[t]):
                    reg, off = (WHI, ad - X(6)) if ad >= X(6) else (WLO, ad)
                    for hd in range(2):
                        for rd in range(2):
                            ws.append(f"ds_read_b64_tr_b16 {v(b+16+8*u+4*hd+2*rd,2)}, v{reg[hd]} offset:{off+step*4096+rd*512}")
                n_ = len(ws) // 4
                for q in range(4):
                    o += [xs[q]] + ws[n_*q:n_*(q+1)]
            return o
        def mfmas(t):
            o = []
            for step in range(2):
                b = BUF[t & 1] + 32*step
                for u in range(len(st_[t])):
                    for hd in range(2):
                        for q in range(4):
                            x = v(b+4*q,4); w = v(b+16+8*u+4*hd,4); d = v(acc((AQK, AV)[u], q, hd),4)
                            cc = "0" if ((t & 7) == 0 and step == 0) else d
                            o.append(f"v_mfma_f32_16x16x32_bf16 {d}, {w}, {x}, {cc}" if u == 0 else f"v_mfma_f32_16x16x32_bf16 {d}, {x}, {w}, {cc}")
            return o
        def xswitch(t):
            if t & 3: return []
            return [f"v_xor_b32 v{r_}, 0x10000, v{r_}" for r_ in XA]
        def weave(m, r_, per, first=()):
            a(m[0]); a.emit(list(first))
            k_ = 0
            if not first:
                a.emit(r_[:per]); k_ = per
            for i in range(1, len(m)):
                a(m[i]); a.emit(r_[k_:k_+per] if i < len(m) - 1 else r_[k_:]); k_ += per
        SIG = 8 + P[f"SIG{ty}"]
        deferred = []
        for ps in range(2):
            a("s_barrier")
            a("s_nop 0")
            a.emit(reads(8*ps))
            nout = len(reads(8*ps))
            def head(t, m):
                if not P["SH"] or P["STAMPS"] and t in (0, 8, SIG + 1): return m
                q_ = len(m) // 4 * P["SH"]
                a(f"s_waitcnt lgkmcnt({min(15, nout - len(reads(t)) // 4 * P['SH'])})")
                a("s_nop 0")
                a.emit(m[:q_])
                return m[q_:]
            for t in range(8*ps, 8*ps + 7):
                m = mfmas(t); big = len(m) == 32
                m = head(t, m)
                a("s_waitcnt lgkmcnt(0)" + (" vmcnt(0)" if t == SIG else ""))
                a("s_barrier")
                if t == SIG:
                    assert t <= 13
                    a(f"""
s_cmp_lg_u32 s{S_WAVE}, 0
s_cbranch_scc1 L_drained{ty}
v_readfirstlane_b32 s{T0+6}, v{VFLG}
s_mov_b32 s{T0}, {WS_FL + 2048}
s_cmp_eq_u32 s{T0+6}, 0
s_cbranch_scc1 L_sig1
L_initok{ty}:
s_mov_b64 exec, {5 if ty == 0 else 2}
buffer_atomic_add v{VONE}, v{VF1}, {s(S_WS,4)}, s{T0} offen sc1
s_mov_b64 exec, -1
s_nop 0
""")
                    stamp(a, 2)
                    a(f"L_drained{ty}:")
                if t == 10:
                    a(f"s_mov_b32 m0, s{WPM}")
                    a("s_nop 0")
                    a(f"buffer_load_dwordx4 v1, {s(S_MISC,4)}, s{WPK} offen lds")
                r_ = reads(t + 1)
                if deferred and t >= 7 + P["DQ"]:
                    assert t < SIG
                    n_ = 2 if len(deferred) > 3 else 3
                    r_ = r_ + ["s_nop 0", "s_nop 0"] + [y for x_ in deferred[:n_] for y in (x_, "s_nop 0", "s_nop 0")][:-2]
                    deferred = deferred[n_:]
                    r_ = [y for y in r_ if y != "s_nop 0"] if False else r_
                if t == 13: r_ = r_ + rdp
                if t == 14: r_ = r_ + xr
                weave(m, r_, P["PER2"] if big else P["PER1"], xswitch(t + 1))
                nout = len([y for y in r_ if y.startswith("ds_")])
            m = mfmas(8*ps + 7); big = len(m) == 32
            m = head(8*ps + 7, m)
            a("s_waitcnt lgkmcnt(0)")
            if ps == 0:
                a("s_barrier")
                offs = L(f"""
s_xor_b32 s{T0+1}, s{SX}, {(XKA if ty == 0 else XQA)*256}
s_lshl_b32 s{T0+1}, s{T0+1}, {11 if ty == 0 else 10}
s_add_u32 s{T0+1}, s{T0+1}, {WS_KV if ty == 0 else WS_QF}
s_add_u32 s{T0+2}, s{T0+1}, {131072 if ty == 0 else 65536}
s_xor_b32 s{T0+5}, s{SX}, {XVA*256}
s_lshl_b32 s{T0+5}, s{T0+5}, 11
s_add_u32 s{T0+5}, s{T0+5}, {WS_KV}
""")
                weave(m, xswitch(8) + offs, 1)
                stamp(a, 3)
                a("s_nop 11" if ty == 1 else "s_nop 3")
                a(f"s_add_u32 s{T0+6}, s{T0+5}, 131072")
                def pack(dst, base):
                    for i in range(8):
                        a(f"v_cvt_pk_bf16_f32 v{dst+i}, v{base+2*i}, v{base+1+2*i}")
                    a(f"v_permlane16_swap_b32 v{dst}, v{dst+2}")
                    a(f"v_permlane16_swap_b32 v{dst+1}, v{dst+3}")
                    a(f"v_permlane16_swap_b32 v{dst+4}, v{dst+6}")
                    a(f"v_permlane16_swap_b32 v{dst+5}, v{dst+7}")
                for tt in range(2):
                    if ty == 1:
                        for i in range(0, 16, 2):
                            a(f"v_pk_mul_f32 {v(AQK+16*tt+i,2)}, {v(AQK+16*tt+i,2)}, {s(SL,2)} op_sel:[0,1] op_sel_hi:[1,1]")
                    pack(PK+8*tt, AQK+16*tt)
                    for hd in range(2):
                        a(f"buffer_store_dwordx4 {v(PK+8*tt+4*hd,4)}, v1, {s(S_WS,4)}, s{T0+1+hd} offen offset:{tt*(2048 if ty == 0 else 1024)} sc1")
                if ty == 0:
                    for tt in range(2):
                        pack(PK+16+8*tt, AV+16*tt)
                        for hd in range(2):
                            a(f"buffer_store_dwordx4 {v(PK+16+8*tt+4*hd,4)}, v1, {s(S_WS,4)}, s{T0+5+hd} offen offset:{tt*2048+1024} sc1")
                x_ = f"global_load_dword v{VFLG}, v{VZ}, s[22:23] sc1"
                if deferred: deferred.append(x_)
                else: a(x_)
                stamp(a, 4)
                a(".p2align 3")
            else:
                a("s_nop 0")
                fill = L(VINIT) + ZERO_O + [f"v_add_u32 v{ADDR}, {R2}, v1", "v_mov_b64 v[42:43], 0"]
                weave(m, fill, 2)
        if ty == 0: a("s_branch L_epiB")
    a("L_epiB:")
    stamp(a, 5); stamp(a, 1, 3)
    PB, PV = 224, 144
    FB = {(0,0): 160, (0,1): 176, (1,0): 192, (1,1): 208}
    a(f"""
s_xor_b32 s{T0+3}, s{SX}, {XQB*256}
s_lshl_b32 s{T0+3}, s{T0+3}, 11
s_add_u32 s{T0+3}, s{T0+3}, {WS_PHQ}
s_add_u32 s{T0+4}, s{T0+3}, 131072
s_xor_b32 s{T0+1}, s{S_HQ}, {XKB}
s_lshl_b32 s{T0+1}, s{T0+1}, 1
s_add_u32 s{T0+1}, s{T0+1}, s{PP}
s_lshl_b32 s{T0+1}, s{T0+1}, 5
s_add_u32 s{T0+1}, s{T0+1}, s{S_TB}
s_lshl_b32 s{T0+1}, s{T0+1}, 1
s_add_u32 s{T0+1}, s{T0+1}, s{TT}
s_lshl_b32 s{T0+1}, s{T0+1}, 12
s_add_u32 s{T0+1}, s{T0+1}, {WS_KVP}
s_add_u32 s{T0+5}, s{T0+1}, 131072
""")
    def packl(dst, base):
        o = [f"v_cvt_pk_bf16_f32 v{dst+i}, v{base+2*i}, v{base+1+2*i}" for i in range(8)]
        o += [f"v_permlane16_swap_b32 v{dst+i}, v{dst+i+2}" for i in (0, 1, 4, 5)]
        return o
    fmm = lambda tt, hd: f"v_mfma_f32_32x32x16_bf16 {v(FB[(tt,hd)],16)}, {v(WPHI[hd],4)}, {v(PB+8*tt+4*hd,4)}, 0"
    a.emit(packl(PB, AQK))
    p_ = packl(PB+8, AQK+16)
    a.emit(p_[:2]); a(fmm(0, 0)); a.emit(p_[2:8]); a(fmm(0, 1)); a.emit(p_[8:])
    p_ = packl(PV, AV)
    a.emit(p_[:2]); a(fmm(1, 0)); a.emit(p_[2:8]); a(fmm(1, 1)); a.emit(p_[8:])
    a.emit(packl(PV+8, AV+16))
    a.emit(ZSB)
    a.emit([f"v_mov_b64 {v(PB+i,2)}, v[244:245]" for i in range(0, 16, 2)])
    stamp(a, 2, 3)
    a.emit(rr(*[[x for x in softmax16(FB[k_], 48 + 4*i) if x != "s_nop 0"] for i, k_ in enumerate(((0,0), (0,1), (1,0), (1,1)))]))
    stamp(a, 3, 3)
    a(f"""
s_sub_u32 s{T0+2}, s{P_PHQ}, {WS_PHQ + 2048}
s_lshr_b32 s{T0+2}, s{T0+2}, 1
s_lshl_b32 s{P_KVB}, s{S_H}, 17
s_add_u32 s{P_KVB}, s{P_KVB}, {WS_KV}
s_lshl_b32 s{P_KVG}, s{S_WAVE}, 12
s_add_u32 s{P_KVG}, s{P_KVG}, {R2 - LEAD*4096}
""")
    stamp(a, 6); stamp(a, 4, 3)
    a(f"""
s_barrier
s_setprio 3
buffer_load_dwordx4 {v(QA,4)}, v1, {s(S_WS,4)}, s{T0+2} offen sc1
buffer_load_dwordx4 {v(QB,4)}, v1, {s(S_WS,4)}, s{T0+2} offen offset:1024 sc1
ds_read_b64 v[38:39], v243
ds_read_b128 {v(KS[0],4)}, v{ADDR}
s_mov_b64 exec, {s(SL+2,2)}
ds_read_b128 {v(VS[0],4)}, v{ADDR} offset:1024
ds_read_b128 {v(VS[0]+4,4)}, v{ADDR} offset:1280
s_mov_b64 exec, -1
v_subrev_u32 v{ADDR}, {2*LEAD*2048}, v{ADDR}
{TYC}
s_cbranch_scc1 L_kv
s_waitcnt lgkmcnt(0)
""")
    a.emit(fm)
    a("s_waitcnt vmcnt(0)")
    a(f"v_mfma_f32_32x32x16_bf16 {v(SA,16)}, {v(KS[0],4)}, {v(QA,4)}, {v(NMA,16)}")
    stamp(a, 7)
    for hd in range(2):
        for tt in range(2):
            a(f"buffer_store_dwordx4 {v(FB[(tt,hd)],4)}, v1, {s(S_WS,4)}, s{T0+3+hd} offen offset:{tt*2048} sc1")
            a(f"buffer_store_dwordx4 {v(FB[(tt,hd)]+4,4)}, v1, {s(S_WS,4)}, s{T0+3+hd} offen offset:{tt*2048+1024} sc1")
    a("s_nop 1")
    stamp(a, 8)
    a(f"s_branch L_slot{LEAD}")
    a("L_kv:")
    V0 = PB
    KVA = [SA, FB[(0,0)]]
    for hd in range(2):
        for tt in range(2):
            a(f"ds_write_b128 v240, {v(FB[(tt,hd)],4)} offset:{tt*2048}")
            a(f"ds_write_b128 v241, {v(FB[(tt,hd)]+4,4)} offset:{tt*2048}")
        for tt in range(2):
            for sx in range(2):
                for rd in range(2):
                    a(f"ds_read_b64_tr_b16 {v(FB[(tt,hd)]+8+4*sx+2*rd,2)}, v{(242, 246)[rd]} offset:{tt*2048+(16*sx+4*rd)*64}")
        for i in range(8*hd, 8*hd + 8):
            a(f"v_permlane16_swap_b32 v{PV+i}, v{V0+i}")
    a("s_waitcnt lgkmcnt(0)")
    if P["KVP"] < 3: a(f"s_setprio {P['KVP']}")
    k_ = 0
    for hd in range(2):
        for tt in range(2):
            for sx in range(2):
                c = "0" if (tt == 0 and sx == 0) else v(KVA[hd],16)
                a(f"v_mfma_f32_32x32x16_bf16 {v(KVA[hd],16)}, {v(FB[(tt,hd)]+8+4*sx,4)}, {v((PV, V0)[sx]+8*tt+4*hd,4)}, {c}")
                a.emit(fm[k_:k_+3]); k_ += 3
    for q in range(4):
        a(f"buffer_store_dwordx4 {v(KVA[0]+4*q,4)}, v1, {s(S_WS,4)}, s{T0+1} offen offset:{q*1024} sc1")
    a("s_waitcnt vmcnt(4)")
    a("s_nop 0")
    a(f"v_mfma_f32_32x32x16_bf16 {v(SA,16)}, {v(KS[0],4)}, {v(QA,4)}, {v(NMA,16)}")
    stamp(a, 7)
    a("s_nop 4")
    for q in range(4):
        a(f"buffer_store_dwordx4 {v(KVA[1]+4*q,4)}, v1, {s(S_WS,4)}, s{T0+5} offen offset:{q*1024} sc1")
    a("s_nop 1")
    stamp(a, 8)
    a(f"s_branch L_slot{LEAD}")
    a("L_mark_c1:")

    def e(b, i): return f"v_exp_f32 v{b+i}, v{b+i}"
    def sm(o, vv, p): return f"v_smfmac_f32_32x32x32_bf16 {v(o,16)}, {v(vv,4)}, {v(p,8)}, v{IDX}"
    def slot(base, last=False, bg=None):
        bg = bg or {}
        o = []
        k = [0]
        def ex(b, i):
            o.append(e(b, i))
            o.extend(bg.get(k[0], []))
            k[0] += 1
        for c in range(2):
            n = c ^ 1
            off = base + (c + 1) * 2048
            pf = not (last and c == 1)
            if pf: o.append(f"ds_read_b128 {v(KS[n],4)}, v{ADDR} offset:{off}")
            ex(SA,0); ex(SA,1)
            o.append(sm(OB, VS[n]+4, SB+8))
            vr = [f"s_mov_b64 exec, {s(SL+2,2)}", f"ds_read_b128 {v(VS[n],4)}, v{ADDR} offset:{off+1024}",
                  f"ds_read_b128 {v(VS[n]+4,4)}, v{ADDR} offset:{off+1280}", "s_mov_b64 exec, -1"] if pf else []
            if P["PV"] == 0: o.extend(vr)
            PS, PL = P["PS"], P["PLO"]
            for i in range(2, PS): ex(SA,i)
            o.append(f"v_mfma_f32_32x32x16_bf16 {v(SB,16)}, {v(KS[c],4)}, {v(QB,4)}, {v(NMB,16)}")
            if P["PV"] == 1: o.extend(vr)
            for i in range(PS, PL): ex(SA,i)
            o.append(sm(OA, VS[c], SA))
            for i in range(PL, 16): ex(SA,i)
            ex(SB,0); ex(SB,1)
            o.append(sm(OA, VS[c]+4, SA+8))
            for i in range(2, PS): ex(SB,i)
            if pf:
                o.append("s_waitcnt lgkmcnt(0)")
                o.append(f"v_mfma_f32_32x32x16_bf16 {v(SA,16)}, {v(KS[n],4)}, {v(QA,4)}, {v(NMA,16)}")
            for i in range(PS, PL): ex(SB,i)
            o.append(sm(OB, VS[c], SB))
            for i in range(PL, 16): ex(SB,i)
        return o
    def spread(bg, items, lo, hi):
        n = len(items)
        for i, it in enumerate(items):
            pos = lo + (i * (hi - lo + 1)) // n
            bg.setdefault(pos, []).extend(it if isinstance(it, list) else [it])
    BG = {sl: {} for sl in range(NS)}
    M16 = "0x00ff00ff"
    assert LEAD == 2 and (BD, BA, BW) == (4, 8, 12) and P["NOBD"]
    G0 = POOL + 12
    spread(BG[1], [f"ds_write_b128 v{POOL+18}, {v(POOL+36,4)}"], 30, 30)
    spread(BG[1], [[f"ds_read_b64_tr_b16 {v(POOL,2)}, v{POOL+9}", f"ds_read_b64_tr_b16 {v(POOL+2,2)}, v{POOL+9} offset:512"]], 40, 40)
    spread(BG[1], [f"buffer_store_dwordx4 {v(POOL,4)}, v1, {s(S_WS,4)}, s{WD} offen sc1",
        ["s_mov_b32 exec_lo, 1", "s_mov_b32 exec_hi, 1", f"buffer_store_dword v{G0}, v{POOL+19}, {s(S_WS,4)}, s{GO} offen sc1", "s_mov_b64 exec, -1"]], 58, 62)
    if not P["NOBD"]: spread(BG[0], kvgrp(P_KVG, 5*4096) + kvgrp(P_KVG, R2 + 3*4096), 0, 19)
    spread(BG[P["CLS"]], [f"buffer_store_dwordx4 v[44:47], v1, {s(S_WS,4)}, s{P_OF} offen sc1",
        [f"s_add_u32 s{T0}, s{P_OF}, {OBR}", f"buffer_store_dwordx4 v[44:47], v1, {s(S_WS,4)}, s{T0} offen sc1"],
        [f"s_cmp_lg_u32 s{KH}, 0", f"s_cselect_b32 exec_lo, 0, {M16}", "s_mov_b32 exec_hi, 0", f"buffer_store_dword v44, v43, {s(S_WS,4)}, s{P_KVT} offen sc1", "s_mov_b64 exec, -1"]], 10, 56)
    spread(BG[BD], kvgrp(P_KVG, 9*4096), 8, 56)
    spread(BG[BA], kvgrp(P_KVG, 13*4096), 14, 38)
    spread(BG[C0+1], [[f"s_cmp_lg_u32 s{KH}, 0", "s_cbranch_scc1 L_skipA", f"buffer_load_dword v41, v{VZ}, {s(S_WS,4)}, s{P_F2} offen sc1", "L_skipA:"]], P["Q1"], P["Q1"])
    l1a = [f"s_cmp_lg_u32 s{KH}, 0", "s_cbranch_scc1 L_skipB", "s_waitcnt vmcnt(0)", f"v_readfirstlane_b32 s{T0+6}, v41",
           f"s_add_u32 s{T0}, s{P_KVS}, 32768", f"s_add_u32 s{T0+1}, s{P_KVS}, 65536", f"s_add_u32 s{T0+2}, s{P_KVS}, 98304",
           f"s_cmp_lt_u32 s{T0+6}, 32", "s_cbranch_scc1 L_flagspin", "L_flagok:"]
    for p in range(4):
        l1a.append(f"buffer_load_dwordx4 {v(POOL+4*p,4)}, v42, {s(S_WS,4)}, s{P_KVS if p == 0 else T0+p-1} offen sc1")
    l1a.append("L_skipB:")
    spread(BG[C0+2], [l1a], P["Q2"], P["Q2"])
    l1b = ["s_waitcnt vmcnt(0)", f"s_cmp_lg_u32 s{KH}, 0", "s_cbranch_scc1 L_skipC"]
    for i in range(4): l1b.append(f"v_add_f32 v{POOL+i}, v{POOL+i}, v{POOL+4+i}")
    for i in range(4): l1b.append(f"v_add_f32 v{POOL+8+i}, v{POOL+8+i}, v{POOL+12+i}")
    for i in range(4): l1b.append(f"v_add_f32 v{POOL+i}, v{POOL+i}, v{POOL+8+i}")
    l1b += L(f"""
v_permlane32_swap_b32 v{POOL}, v{POOL+1}
s_nop 0
v_permlane32_swap_b32 v{POOL+2}, v{POOL+3}
v_add_f32 v{POOL}, v{POOL}, v{POOL+1}
s_nop 0
v_add_f32 v{POOL+2}, v{POOL+2}, v{POOL+3}
s_nop 1
v_permlane16_swap_b32 v{POOL}, v{POOL+2}
s_nop 1
v_add_f32 v{POOL}, v{POOL}, v{POOL+2}
s_nop 1
v_add_f32_dpp v{POOL}, v{POOL}, v{POOL} row_ror:8 row_mask:0xf bank_mask:0xf
v_mov_b32 v{POOL+1}, v{POOL}
s_nop 1
v_permlane32_swap_b32 v{POOL}, v{POOL+1}
s_nop 1
v_cvt_pk_bf16_f32 v40, v{POOL}, v{POOL+1}
v_min_u32 v40, -2, v40
s_mov_b32 exec_lo, {M16}
s_mov_b32 exec_hi, 0
buffer_store_dword v40, v43, {s(S_WS,4)}, s{P_KVT} offen sc1
s_mov_b64 exec, -1
L_skipC:
""")
    spread(BG[C0+3], [l1b], P["Q3"], P["Q3"])
    if BS == BD: assert C0 + 3 < BA
    CB = C0 + 4
    spread(BG[CB], L(f"""
v_and_b32 v42, 7, v0
v_lshlrev_b32 v42, 8, v42
s_mov_b32 s{T0+5}, {WS_FL}
buffer_load_dword v41, v42, {s(S_WS,4)}, s{T0+5} offen sc1
"""), P["Q4"], P["Q4"] + 16)
    KT = OBF
    R = OBF + 16
    ktl = [f"buffer_load_dwordx4 {v(KT,4)}, v1, {s(S_WS,4)}, s{P_KVT} offen sc1",
           f"buffer_load_dwordx4 {v(KT+4,4)}, v1, {s(S_WS,4)}, s{P_KVT} offen offset:1024 sc1"]
    spread(BG[CB+1], [["s_waitcnt vmcnt(0)", "v_cmp_gt_u32 vcc, 32, v41"]], P["Q5"], P["Q5"])
    spread(BG[CB+1], [["s_cbranch_vccnz L_flag2spin", "L_flag2ok:"],
                      f"buffer_load_dwordx4 {v(PQ,4)}, v1, {s(S_WS,4)}, s{P_PHQ} offen sc1",
                      f"buffer_load_dwordx4 {v(PQ+4,4)}, v1, {s(S_WS,4)}, s{P_PHQ} offen offset:1024 sc1"] + ktl, P["Q5"] + 4, 60)
    ktc = L(f"""
v_max3_u32 v40, v{KT}, v{KT+1}, v{KT+2}
v_max3_u32 v41, v{KT+3}, v{KT+4}, v{KT+5}
v_max3_u32 v40, v40, v{KT+6}, v{KT+7}
v_max_u32 v40, v40, v41
v_cmp_eq_u32 vcc, -1, v40
""")
    q6 = P["Q6"]
    spread(BG[CB+2], [["s_waitcnt vmcnt(0)", ktc[0]]] + ktc[1:], q6, q6 + 5)
    spread(BG[CB+2], [["s_cbranch_vccnz L_ktspin", "L_ktok:", f"v_mfma_f32_32x32x16_bf16 {v(R,16)}, {v(KT,4)}, {v(PQ,4)}, 0"]], q6 + 8, q6 + 8)
    m2 = q6 + 23
    spread(BG[CB+2 + m2 // 64], [f"v_mfma_f32_32x32x16_bf16 {v(R,16)}, {v(KT+4,4)}, {v(PQ+4,4)}, {v(R,16)}"], m2 % 64, m2 % 64)
    o0 = max(0, m2 + 13 - 64)
    ob = [f"v_add_f32 v40, {f2u(1e-6):#x}, v{R+8}", "v_rcp_f32 v40, v40"]
    ob += [f"v_mul_f32 v{R+i}, v{R+i}, v40" for i in range(8)]
    ob += [f"v_cvt_pk_bf16_f32 v{KACC+i}, v{R+2*i}, v{R+2*i+1}" for i in range(4)]
    ob += [f"v_min_u32 v{KACC+i}, -2, v{KACC+i}" for i in range(4)]
    ob += [[f"s_add_u32 s{T0}, s{P_OF}, {OBR}", f"buffer_store_dwordx4 {v(KACC,4)}, v1, {s(S_WS,4)}, s{T0} offen sc1"]]
    spread(BG[CB+3], ob, o0, o0 + 24)
    wob = []
    for i in range(16):
        g = [f"buffer_load_dwordx4 {v(POOL+4*i,4)}, v1, {s(S_WS,4)}, s{P_WOB} offen offset:{(i&3)*1024} sc1"]
        if i & 3 == 3: g.append(f"s_add_u32 s{P_WOB}, s{P_WOB}, 4096")
        wob.append(g)
    def woa_dma():
        o = []
        for g in range(2):
            o.append([f"s_add_u32 m0, s{P_WOL}, {g*4096}", f"s_add_u32 s{T0+1}, s{P_WOF}, {g*4096}"])
            for i in range(4):
                o.append(f"buffer_load_dwordx4 v1, {s(S_WS,4)}, s{T0+1} offen offset:{i*1024} sc1 lds")
        return o
    if BS == BD:
        spread(BG[CB+3], wob[:4], 30, 60)
        spread(BG[BW], woa_dma(), 2, 60)
        spread(BG[BW+1], wob[4:10], 2, 60)
        spread(BG[BW+2], wob[10:], 2, 60)
        OBS, OBLO, OBHI, PLO, PHI = NS - 2, 4, 60, 4, 40
    else:
        spread(BG[CB+2], wob[:2], 62, 63)
        spread(BG[CB+3], wob[2:7], 28, 60)
        spread(BG[CB+4], wob[7:16], 2, 60)
        spread(BG[CB+5], woa_dma(), 2, 60)
        OBS, OBLO, OBHI, PLO, PHI = NS - 1, 0, 30, 32, 60
    def ob_loads():
        o = [[f"s_add_u32 s{T0}, s{P_OA}, {OBR}", f"s_add_u32 s{T0+1}, s{P_OA}, {OBR+4096}"]]
        for j in range(8):
            o.append(f"buffer_load_dwordx4 {v(OBF+4*j,4)}, v1, {s(S_WS,4)}, s{T0+j//4} offen offset:{(j&3)*1024} sc1")
        return o
    spread(BG[OBS], L(f"""
v_and_b32 v40, 31, v0
v_lshlrev_b32 v40, 2, v40
buffer_load_dword v{GV}, v40, {s(S_WS,4)}, s{P_G} offen sc1
""") + ob_loads(), OBLO, OBHI)
    spread(BG[NS-2], L(f"""
s_and_b32 s{T0+2}, s{S_WAVE}, 3
s_mul_i32 s{T0+3}, s{T0+2}, {EXS}
s_add_u32 s{T0+3}, s{T0+3}, {L_EX}
v_add_u32 v41, s{T0+3}, v1
v_lshlrev_b32 v2, 2, v0
v_add_u32 v42, s{T0+3}, v2
v_and_b32 v2, 12, v2
v_add_u32 v2, {L_FLAG}, v2
s_lshl_b32 s{T0+2}, s{T0+2}, 2
s_add_u32 s{T0+2}, s{T0+2}, {L_FLAG}
v_mov_b32 v43, s{T0+2}
"""), 5, 59)
    XRD = [f"ds_read_b128 {v(NMA,4)}, v41", f"ds_read_b128 {v(NMA+4,4)}, v41 offset:1024", f"ds_read_b32 v{NMA+8}, v42 offset:4096",
           f"ds_read_b128 {v(NMB,4)}, v41 offset:2048", f"ds_read_b128 {v(NMB+4,4)}, v41 offset:3072", f"ds_read_b32 v{NMB+8}, v42 offset:4352"]
    import copy
    BGL = copy.deepcopy(BG[NS-1])
    spread(BGL, [["s_waitcnt vmcnt(9)", "s_barrier"]], P["XB"], P["XB"])
    spread(BGL, XRD, max(P["XB"] + 1, 46), max(P["XB"] + 7, 52))
    bars = sorted(set([BS, BW, NS] + ([] if P["NOBD"] else [BD]) + ([] if P["NOBA"] else [BA])))
    REB = 9
    a(".p2align 6")
    for sl in range(NS):
        a(f"L_slot{sl}:")
        if 1 <= sl - 4 <= 12: stamp(a, sl - 4, 1)
        if sl < 12: stamp(a, sl + 1, 4)
        if sl == BD and BD != BS and not P["NOBD"]:
            a(f"s_cmp_lg_u32 s{KH}, 0")
            a("s_cbranch_scc1 L_nowaitD")
            a("s_waitcnt vmcnt(3)" if P["CLS"] < BD else "s_waitcnt vmcnt(0)")
            a("L_nowaitD:")
            a("s_barrier")
        if sl == BS:
            a("s_waitcnt vmcnt(0)")
            a("s_barrier")
            a(f"""
s_cmp_lg_u32 s{S_WAVE}, 0
s_cbranch_scc1 L_sig2done
s_lshl_b32 s{T0}, s{S_HQ}, 8
s_add_u32 s{T0}, s{T0}, {WS_FL}
v_mov_b32 v38, 1
s_mov_b64 exec, 1
buffer_atomic_add v38, v{VZ}, {s(S_WS,4)}, s{T0} offen sc1
s_mov_b64 exec, -1
L_sig2done:
""")
        if (sl == BW and not P["DIAG"] & 1) or (sl == BA and not P["NOBA"]):
            a("s_barrier")
        if True:
            nb = min(b for b in bars if b > sl)
            r_ = nb - sl - 1
            pb = max([0] + [b for b in bars if b <= sl])
            pr = min(3, r_) if nb - pb <= 5 else {0: 0, 1: 1, 2: 2, 3: 2, 4: 3, 5: 3}[r_]
            if P["PRI"] == 1 and nb - pb > 5: pr = {0: 0, 1: 0, 2: 1, 3: 2, 4: 2, 5: 3}[r_]
            if P["PRI"] == 2 and nb - pb > 5: pr = {0: 0, 1: 1, 2: 1, 3: 2, 4: 2, 5: 3}[r_]
            if P["PRI"] == 3: pr = (r_ & 1) * 2 if True else pr
            if P["PRI"] == 4 and nb - pb > 5: pr = {0: 0, 1: 1, 2: 2, 3: 3, 4: 3, 5: 3}[r_]
            if P["DIAG"] & 1 and sl >= BS: pr = 3 if sl < 10 else 2 if sl < 14 else 1 if sl < 16 else 0
            if P["DIAG"] & 2 and sl >= BW: pr = {12: 3, 13: 2, 14: 2, 15: 1, 16: 0}[sl]
            a(f"s_setprio {pr}")
        if sl == REB:
            a(f"v_add_u32 v{ADDR}, {REB*4096}, v{ADDR}")
        if sl == NS - 1:
            a(f"s_cmp_eq_u32 s{KH}, 0")
            a("s_cbranch_scc1 L_last0")
        a.emit(slot((sl - (REB if sl >= REB else 0)) * 4096, sl == NS - 1, BG[sl]))
    a(f"""
L_tail1:
s_setprio 3
s_nop 0
{sm(OB, VS[1]+4, SB+8)}
""")
    stamp(a, 9)
    a(f"""
ds_write_b128 v41, {v(OA,4)}
ds_write_b128 v41, {v(OA+4,4)} offset:1024
ds_write_b32 v42, v{OA+8} offset:4096
s_nop 8
ds_write_b128 v41, {v(OB,4)} offset:2048
ds_write_b128 v41, {v(OB+4,4)} offset:3072
ds_write_b32 v42, v{OB+8} offset:4352
s_waitcnt lgkmcnt(0) vmcnt(9)
s_barrier
s_waitcnt vmcnt(0)
s_branch L_join
.p2align 3
L_last0:
""")
    a.emit(slot((NS - 1 - REB) * 4096, True, BGL))
    a(f"""
L_tail0:
s_mov_b32 s{T0}, 0x7e800000
s_waitcnt lgkmcnt(0)
{sm(OB, VS[1]+4, SB+8)}
""")
    stamp(a, 9)
    a(f"""
s_add_u32 s{T0+1}, s{P_OF}, 32768
s_mov_b32 s{T0+2}, 0
""")
    def fin(o, x, dst, so, lab, bit):
        a(f"s_bitcmp1_b32 s{MODE}, {bit}")
        a(f"v_add_f32 v{o+8}, v{o+8}, v{x+8}")
        for i in range(0, 8, 2):
            a(f"v_pk_add_f32 {v(o+i,2)}, {v(o+i,2)}, {v(x+i,2)}")
        a(f"v_rcp_f32 v{o+10}, v{o+8}")
        a(f"v_add_f32 v38, abs(v{o}), abs(v{o+8})")
        a(f"v_add_f32 v39, abs(v{o+1}), abs(v{o+2})")
        for i in range(3, 8):
            a(f"v_add_f32 v{38+(i+1)%2}, v{38+(i+1)%2}, abs(v{o+i})")
        a("v_add_f32 v38, v38, v39")
        a(f"v_cmp_ngt_f32 vcc, s{T0}, v38")
        for i in range(0, 8, 2):
            a(f"v_pk_mul_f32 {v(o+i,2)}, {v(o+i,2)}, {v(o+10,2)} op_sel_hi:[1,0]")
        for i in range(4):
            a(f"v_cvt_pk_bf16_f32 v{dst+i}, v{o+2*i}, v{o+2*i+1}")
        for i in range(4):
            a(f"v_min_u32 v{dst+i}, -2, v{dst+i}")
        a(f"""
s_cbranch_scc1 {lab}_no
s_cbranch_vccnz {lab}
{lab}_st:
buffer_store_dwordx4 {v(dst,4)}, v1, {s(S_WS,4)}, s{so} offen sc1
{lab}_no:
""")
    fin(OA, NMA, KACC, P_OF, "L_ova", 0)
    stamp(a, 10)
    fin(OB, NMB, PQ, T0+1, "L_ovb", 1)
    stamp(a, 11)
    a(f"""
v_mov_b32 v45, s{T0+2}
ds_write_b32 v43, v45
s_waitcnt lgkmcnt(0) vmcnt(2)
L_join:
s_barrier
ds_read_b32 v45, v2
s_setprio 0
s_waitcnt lgkmcnt(0)
v_cmp_ne_u32 vcc, 0, v45
s_nop 4
s_cbranch_vccnz L_slow
""")
    OFA = 80
    ACCA = [112, 128]
    ACCB = 48
    a(f"""
s_mov_b32 s{T0+7}, 0
s_add_u32 s{T0+2}, s{P_OA}, 4096
L_obchk:
v_max3_u32 v40, v{OBF}, v{OBF+1}, v{OBF+2}
v_max3_u32 v41, v{OBF+3}, v{OBF+4}, v{OBF+5}
""")
    for i in range(6, 30, 4):
        a(f"v_max3_u32 v40, v40, v{OBF+i}, v{OBF+i+1}")
        a(f"v_max3_u32 v41, v41, v{OBF+i+2}, v{OBF+i+3}")
    a(f"""
v_max3_u32 v40, v40, v{OBF+30}, v{OBF+31}
v_max_u32 v40, v40, v41
v_cmp_eq_u32 vcc, -1, v40
s_bfe_u32 s{T0}, s{S_WAVE}, 0x10001
s_lshl_b32 s{T0}, s{T0}, 14
s_lshr_b32 s{T0+1}, s{S_WAVE}, 2
s_mul_i32 s{T0+1}, s{T0+1}, {R2}
s_add_u32 s{T0}, s{T0}, s{T0+1}
v_add_u32 v39, s{T0}, v1
s_cbranch_vccnz L_obretry
L_obok:
""")
    prep = L(f"""
v_and_b32 v12, 31, v0
v_lshrrev_b32 v13, 5, v0
s_lshl_b32 s{T0}, s{S_WAVE}, 13
v_lshlrev_b32 v4, 8, v12
v_add_u32 v4, s{T0}, v4
v_and_b32 v14, 7, v0
v_lshlrev_b32 v15, 2, v13
v_xor_b32 v14, v14, v15
v_lshl_add_u32 v4, v14, 4, v4
v_xor_b32 v5, 16, v4
v_xor_b32 v6, 32, v4
v_xor_b32 v7, 48, v4
v_lshrrev_b32 v14, 3, v0
v_and_b32 v15, 7, v0
v_lshlrev_b32 v8, 1, v15
v_xor_b32 v8, v8, v14
v_lshlrev_b32 v8, 4, v8
v_lshl_add_u32 v8, v14, 8, v8
s_lshl_b32 s{T0}, s{S_WAVE}, 11
v_add_u32 v8, s{T0}, v8
v_xor_b32 v9, 16, v8
v_lshlrev_b32 v10, 10, v14
v_lshl_add_u32 v10, v15, 4, v10
s_and_b32 s{T0}, s2, 31
s_lshl_b32 s{T0}, s{T0}, 16
s_lshl_b32 s{T0+1}, s{S_WAVE}, 13
s_add_u32 s{T0}, s{T0}, s{T0+1}
s_lshr_b32 s{T0+1}, s2, 5
s_lshl_b32 s{T0+1}, s{T0+1}, 7
s_add_u32 s{T0}, s{T0}, s{T0+1}
v_sub_f32 v38, 1.0, v{GV}
s_mov_b32 s{S_X}, s20
s_mov_b32 s{S_X+1}, s21
s_mov_b32 s{S_X+2}, {2048*512*2}
s_mov_b32 s{S_X+3}, 0x20000
""")
    k = 0
    def oa_load(j):
        return f"buffer_load_dwordx4 {v(OFA+4*j,4)}, v1, {s(S_WS,4)}, s{P_OA if j < 4 else T0+2} offen offset:{(j&3)*1024} sc1"
    nl = 0
    for j in range(8):
        for ct in range(2):
            c = v(ACCB+16*ct,16)
            a(f"v_mfma_f32_32x32x16_bf16 {c}, {v(POOL+8*j+4*ct,4)}, {v(OBF+4*j,4)}, {'0' if j==0 else c}")
            a(f"ds_read_b128 {v(POOL+8*j+4*ct,4)}, v39 offset:{(2*j+ct)*1024}")
            if 2*j + ct >= P["OAP"] and nl < 8:
                a(oa_load(nl)); nl += 1
            a.emit(prep[k:k+3]); k += 3
    while nl < 8:
        a(oa_load(nl)); nl += 1
    a("s_nop 11")
    for i in range(0, 32, 2):
        a(f"v_pk_mul_f32 {v(ACCB+i,2)}, {v(ACCB+i,2)}, v[38:39] op_sel_hi:[1,0]")
    a("s_waitcnt lgkmcnt(0)")
    a("s_barrier")
    for j in range(8):
        f = OFA + 4*j
        a(f"""
L_cons{j}:
s_waitcnt vmcnt({7-j})
v_max3_u32 v38, v{f}, v{f+1}, v{f+2}
v_max_u32 v38, v38, v{f+3}
v_cmp_eq_u32 vcc, -1, v38
s_nop 4
s_cbranch_vccnz L_retry{j}
L_go{j}:
""")
        for ct in range(2):
            c = v(ACCA[ct],16)
            a(f"v_mfma_f32_32x32x16_bf16 {c}, {v(POOL+8*j+4*ct,4)}, {v(f,4)}, {'0' if j==0 else c}")
    stamp(a, 12)
    a("s_nop 10")
    for ct in range(2):
        for i in range(0, 16, 2):
            a(f"v_pk_fma_f32 {v(ACCA[ct]+i,2)}, {v(ACCA[ct]+i,2)}, {v(GV,2)}, {v(ACCB+16*ct+i,2)} op_sel_hi:[1,0,1]")
        for q in range(4):
            a(f"ds_write_b128 v{4+q}, {v(ACCA[ct]+4*q,4)} offset:{ct*128}")
    a(f"""
s_waitcnt lgkmcnt(0)
s_barrier
""")
    for kq in range(4):
        a(f"ds_read_b128 {v(16+8*kq,4)}, v8 offset:{kq*16384}")
        a(f"ds_read_b128 {v(20+8*kq,4)}, v9 offset:{kq*16384}")
    for kq in range(1, 4):
        a(f"s_waitcnt lgkmcnt({6-2*kq})")
        for i in range(0, 8, 2):
            a(f"v_pk_add_f32 {v(16+i,2)}, {v(16+i,2)}, {v(16+8*kq+i,2)}")
    for i in range(4):
        a(f"v_cvt_pk_bf16_f32 v{16+i}, v{16+2*i}, v{17+2*i}")
    a(f"buffer_store_dwordx4 v[16:19], v10, {s(S_X,4)}, s{T0} offen sc1")
    stamp_out(a)
    a("L_end:")
    a("s_endpgm")
    a("L_mark_o:")
    for j in range(8):
        a(f"""
L_retry{j}:
s_add_u32 s{T0+7}, s{T0+7}, 1
s_cmp_ge_u32 s{T0+7}, {SPIN}
s_cbranch_scc1 L_go{j}
""")
        if P["RT"] == 1: a(f"s_sleep {P['RSL']}")
        if P["RT"] < 2:
            for jj in range(j, 8): a(oa_load(jj))
            a(f"s_branch L_cons{j}")
        else:
            f = OFA + 4*j
            if P["RSL"]: a(f"s_sleep {P['RSL']}")
            a(oa_load(j))
            a(f"""
s_waitcnt vmcnt(0)
v_max3_u32 v38, v{f}, v{f+1}, v{f+2}
v_max_u32 v38, v38, v{f+3}
v_cmp_eq_u32 vcc, -1, v38
s_nop 4
s_cbranch_vccnz L_retry{j}
""")
            for jj in range(j + 1, 8): a(oa_load(jj))
            a(f"s_branch L_go{j}")
    for bit, lab in enumerate(("L_ova", "L_ovb")):
        a(f"""
{lab}:
s_cmp_lg_u32 s{MODE}, 0
s_cbranch_scc1 {lab}_st
s_bitset1_b32 s{T0+2}, {bit}
s_branch {lab}_no
""")
    a(f"""
L_obretry:
s_add_u32 s{T0+7}, s{T0+7}, 1
s_cmp_ge_u32 s{T0+7}, {SPIN}
s_cbranch_scc1 L_obok
""")
    for g in ob_loads(): a.emit(g if isinstance(g, list) else [g])
    a(f"""
s_waitcnt vmcnt(0)
s_branch L_obchk
L_pollF1:
s_sleep {P["PSL"]}
buffer_load_dword v40, v41, {s(S_WS,4)}, s{T0} offen sc1
s_add_u32 s{T0+7}, s{T0+7}, 1
s_waitcnt vmcnt(0)
v_cmp_gt_u32 vcc, 16, v40
s_cmp_ge_u32 s{T0+7}, {SPIN}
s_cbranch_scc1 L_pollF1_ok
s_nop 2
s_cbranch_vccnz L_pollF1
s_branch L_pollF1_ok
L_sig1:
s_mov_b32 s{T0+7}, 0
L_initpoll:
s_sleep 4
global_load_dword v10, v{VZ}, s[22:23] sc1
s_add_u32 s{T0+7}, s{T0+7}, 1
s_waitcnt vmcnt(0)
v_readfirstlane_b32 s{T0+6}, v10
s_cmp_lg_u32 s{T0+6}, 0
s_cbranch_scc1 L_initdone
s_cmp_lt_u32 s{T0+7}, {SPIN}
s_cbranch_scc1 L_initpoll
L_initdone:
{TYC}
s_cbranch_scc1 L_initok1
s_branch L_initok0
L_flagspin:
s_mov_b32 s{T0+7}, 0
L_flagspin2:
s_sleep {P['SL1']}
buffer_load_dword v41, v{VZ}, {s(S_WS,4)}, s{P_F2} offen sc1
s_add_u32 s{T0+7}, s{T0+7}, 1
s_waitcnt vmcnt(0)
v_readfirstlane_b32 s{T0+6}, v41
s_cmp_ge_u32 s{T0+6}, 32
s_cbranch_scc1 L_flagok
s_cmp_lt_u32 s{T0+7}, {SPIN}
s_cbranch_scc1 L_flagspin2
s_branch L_flagok
L_flag2spin:
s_mov_b32 s{T0+7}, 0
L_flag2spin2:
s_sleep {P['SL2']}
buffer_load_dword v41, v42, {s(S_WS,4)}, s{T0+5} offen sc1
s_add_u32 s{T0+7}, s{T0+7}, 1
s_waitcnt vmcnt(0)
v_cmp_gt_u32 vcc, 32, v41
s_cmp_ge_u32 s{T0+7}, {SPIN}
s_cbranch_scc1 L_flag2ok
s_nop 2
s_cbranch_vccnz L_flag2spin2
s_branch L_flag2ok
L_ktspin:
s_mov_b32 s{T0+7}, 0
L_ktspin2:
s_sleep 8
""")
    a.emit(ktl)
    a(f"""
s_add_u32 s{T0+7}, s{T0+7}, 1
s_waitcnt vmcnt(0)
""")
    a.emit(ktc)
    a(f"""
s_cmp_ge_u32 s{T0+7}, {SPIN}
s_cbranch_scc1 L_ktok
s_nop 2
s_cbranch_vccnz L_ktspin2
s_branch L_ktok
""")
    a(f"""
L_slow:
s_barrier
s_and_b32 s{MODE}, s{T0+2}, 3
s_xor_b32 s{MODE}, s{MODE}, 7
s_lshl_b32 s{T0+1}, s{S_H}, 17
s_add_u32 s{T0+1}, s{T0+1}, {WS_KV}
s_add_u32 s{T0+1}, s{T0+1}, s{P_WOL}
""")
    for g in range(2):
        a(f"s_add_u32 m0, s{P_WOL}, {g*4096}")
        a(f"s_add_u32 s{T0+1}, s{T0+1}, {g*4096}")
        for i in range(4):
            a(f"buffer_load_dwordx4 v1, {s(S_WS,4)}, s{T0+1} offen offset:{i*1024} sc1 lds")
    a(f"""
s_mov_b32 s{CNT}, 0
v_mov_b32 v{ADDR}, v1
v_mov_b32 v38, 0xff800000
v_mov_b32 v39, 0xff800000
v_mov_b32 v47, v41
s_waitcnt vmcnt(0)
s_barrier
L_mloop:
ds_read_b128 {v(KS[0],4)}, v{ADDR}
s_waitcnt lgkmcnt(0)
v_mfma_f32_32x32x16_bf16 {v(SA,16)}, {v(KS[0],4)}, {v(QA,4)}, 0
v_mfma_f32_32x32x16_bf16 {v(SB,16)}, {v(KS[0],4)}, {v(QB,4)}, 0
s_nop 15
""")
    a.emit(rr(maxtree(38, SA, 1), maxtree(39, SB, 1)))
    a(f"""
v_add_u32 v{ADDR}, 2048, v{ADDR}
s_add_u32 s{CNT}, s{CNT}, 1
s_cmp_lt_u32 s{CNT}, 64
s_cbranch_scc1 L_mloop
""")
    a(NEGM)
    a(f"""
s_lshl_b32 s{T0}, s{KH}, 16
v_add_u32 v{ADDR}, s{T0}, v1
s_mov_b32 s{CNT}, 0
ds_read_b128 {v(KS[0],4)}, v{ADDR}
s_mov_b64 exec, {s(SL+2,2)}
ds_read_b128 {v(VS[0],4)}, v{ADDR} offset:1024
ds_read_b128 {v(VS[0]+4,4)}, v{ADDR} offset:1280
s_mov_b64 exec, -1
""")
    a.emit(fm); a.emit(ZERO_O); a.emit(ZSB)
    a(f"""
s_waitcnt lgkmcnt(0)
v_mfma_f32_32x32x16_bf16 {v(SA,16)}, {v(KS[0],4)}, {v(QA,4)}, {v(NMA,16)}
s_nop 15
L_sloop:
""")
    a.emit(slot(0))
    a(f"""
v_add_u32 v{ADDR}, 4096, v{ADDR}
s_add_u32 s{CNT}, s{CNT}, 1
s_cmp_lt_u32 s{CNT}, 16
s_cbranch_scc1 L_sloop
v_mov_b32 v41, v47
s_barrier
""")
    for g in woa_dma(): a.emit(g if isinstance(g, list) else [g])
    a("s_waitcnt vmcnt(0)")
    a(f"s_cmp_lg_u32 s{KH}, 0")
    a("s_cbranch_scc1 L_tail1")
    a("s_barrier")
    a.emit(XRD)
    a("s_branch L_tail0")
    a("L_codeend:")
    a("s_endpgm")
    return kd(NAME, 256, 102)

HEAD = """; out = g * MHA(x) + (1 - g) * HedgehogLinearAttention(x),  S=2048 D=512 H=32 Dh=16, bf16 in/out.
; One persistent launch, 256 workgroups x 8 waves (one per CU), written with a generator script.
; @launch grid=(256,1,1) block=(512,1,1) lds=163840
;
; Phase 1  projections: a workgroup owns 128 tokens x 3 weight column blocks (4 heads each). x stays in LDS,
;          weights stream through LDS-DMA (waves 4-7), waves 0-3 run the MFMAs. The softmax-branch blocks go
;          first and are published (Q pre-scaled by log2(e)/4); the hedgehog blocks, their two feature
;          softmaxes (true max subtracted) and the kv/z partial sums follow while that hand-off travels.
;          P = exp2(S^T) stays in f32 and feeds a 2:4 sparse MFMA that picks the bf16 halves; a ones row gives
;          the row sums. m is the row maximum over the first key tile, so the sum is >= 1 and only overflow is
; Hand-offs use write-through stores plus counters (zeroed by workgroup 0 each launch, confirmed through
.amdgcn_target "amdgcn-amd-amdhsa--gfx950"
"""
if __name__ == "__main__":
    rt = False
    for o in sys.argv[2:]:
        if o == "st": P["STAMPS"] = 1
        elif o == "rt": rt = True
        else:
            k_, v_ = o.split("="); assert k_.upper() in P, k_; P[k_.upper()] = int(v_)
    a = Asm()
    k = gen(a)
    ls = a.lines
    c0, c1, o = ls.index("L_mark_c0:"), ls.index("L_mark_c1:"), ls.index("L_mark_o:")
    if P["LAY"]:
        head = ls[:c0-1]
        mid = [x for x in ls[c1+1:o]]
        if mid[0] == ".p2align 6": mid[0] = ".p2align 3"
        ls = head + mid + [".p2align 3"] + ls[c0+1:c1] + ls[o+1:]
    else:
        ls = [x for x in ls if not x.startswith("L_mark")]
    a.lines = ls
    txt = a.text()
    if rt: txt = txt.replace("s_memtime", "s_memrealtime")
    open(sys.argv[1], "w").write(HEAD + txt + k)
```

```python
import sys, struct
from asmlib import *

NAME = "gated_mix__mha_block__linear_kernel_hedgehog__prompt_kernel"
LOG2E = 1.4426950408889634
def f2u(x): return struct.unpack("<I", struct.pack("<f", x))[0]

WS_QF  = 0
WS_KV  = 2 << 20
WS_PHQ = 6 << 20
WS_KVP = 10 << 20
WS_OF  = 14 << 20
WS_G   = 18 << 20
WS_KVT = (18 << 20) + 65536
WS_WOF = (18 << 20) + 131072
WS_FL  = WS_WOF + (1 << 20)
WS_SIZE = WS_FL + 32 * 256
WS_ST = 20 << 20
OBR = 64 * 32 * 1024

P = dict(STAMPS=0, STMODE=0, SPIN=400000, SIGC=1, LOOK=3, RPG=3, LEAD=2, CPF=1, XAH=0, PSL=2,
         KVS=4, PACE=0, PACK=0, TLB=0, WF=0, WBT=0, MIX=1, RT=0, RSL=4, OAP=8, HOLD=0, MPF=0, Q1=56, Q2=10, Q3=30, Q4=40, Q5=24, Q6=22, ONEP=1, SH=0, PER2=1, PER1=2, DQ=0, EB=9, HP=6, KVP=3, HELP=0, GM0=80, GM1=120, WO0=90, WO1=140, HB=0, MAPT=1, SIG0=1, SIG1=1, SL1=16, SL2=32, KF=0, QCUT=0, NOPK=0, PV=1, PS=5, PLO=12, PRI=0, LAY=0, SWO=0, EF1=0, SIDEK=13, XB=40, NOBD=1, NOBA=1, RLIM=11, EARLYB=0, QLATE=0, PRE=2, L1=9, RFIRST=1, CLS=3, BS=6, BD=4, BA=8, BW=12, DBG=0, ROTC=1, DIAG=0)

S_X, S_WA, S_WB, S_WS, S_MISC = 28, 32, 36, 40, 44
S_WAVE, S_HQ, S_TB, S_ROT = 48, 49, 50, 51
S_H, S_RB = 26, 27
T0 = 52
SL = 60
CNT, MODE, EVM, TT, PP, SX = 64, 65, 66, 67, 68, 69
P_KVG, P_KVB = 66, 67
P_OF, P_F2, P_KVS, P_KVT, P_PHQ, P_WOF, P_WOB, P_OA, P_G, P_WOL, KH = 4, 5, 6, 7, 8, 9, 10, 11, 0, 1, 3

XL, WL, WSLOT = 0, 65536, 24576
L_QH, L_WOS, L_CMB = 52*1024, 156*1024, 128*1024
L_FLAG, L_EX, EXS = 136*1024, 137*1024, 4608

QA, QB, KS, VS, IDX, ADDR = 4, 8, [12, 16], [20, 28], 36, 37
NMA, NMB, SA, SB, OA, OB = 48, 64, 80, 96, 112, 128
POOL, OBF, KACC, PQ, GV = 144, 208, 240, 244, 252
VZ = 3
L = lambda t: [x.strip() for x in t.strip().split("\n") if x.strip()]

def stamp(a, i, mode=0):
    if P["STAMPS"] and mode == P["STMODE"]:
        a(f"s_memtime s[{70+2*i}:{71+2*i}]")
def stamp_out(a):
    if not P["STAMPS"]:
        return
    a("s_mov_b64 exec, -1")
    a("s_memrealtime s[100:101]")
    a("s_waitcnt lgkmcnt(0) vmcnt(0)")
    a("s_memtime s[96:97]")
    a("s_waitcnt lgkmcnt(0)")
    srd(a, 40, 24, 25, WS_ST + (1 << 20))
    a(f"s_lshl_b32 s3, s2, 3")
    a(f"s_add_u32 s3, s3, s{S_WAVE}")
    a(f"s_lshl_b32 s3, s3, 6")
    a(f"s_add_u32 s3, s3, {WS_ST}")
    a("v_mov_b32 v1, 0")
    for i in range(16):
        a(f"v_mov_b32 v2, s{70+2*i}")
        a(f"buffer_store_dword v2, v1, s[40:43], s3 offen offset:{4*i}")
    a("s_waitcnt vmcnt(0)")

def softmax16(b, t):
    o = [f"v_max3_f32 v{t}, v{b}, v{b+1}, v{b+2}"]
    for i in range(3, 15, 2):
        o.append(f"v_max3_f32 v{t}, v{t}, v{b+i}, v{b+i+1}")
    o.append(f"v_max_f32 v{t}, v{t}, v{b+15}")
    o.append(f"v_mul_f32 v{t}, {f2u(-LOG2E):#x}, v{t}")
    for i in range(0, 16, 2):
        o.append(f"v_pk_fma_f32 {v(b+i,2)}, {v(b+i,2)}, {s(SL,2)}, {v(t,2)} op_sel_hi:[1,0,0]")
    for i in range(16):
        o.append(f"v_exp_f32 v{b+i}, v{b+i}")
    o.append(f"v_pk_add_f32 {v(t+2,2)}, {v(b,2)}, {v(b+2,2)}")
    for i in range(4, 16, 2):
        o.append(f"v_pk_add_f32 {v(t+2,2)}, {v(t+2,2)}, {v(b+i,2)}")
    o.append(f"v_add_f32 v{t}, v{t+2}, v{t+3}")
    o.append(f"v_rcp_f32 v{t}, v{t}")
    o.append("s_nop 0")
    for i in range(0, 16, 2):
        o.append(f"v_pk_mul_f32 {v(b+i,2)}, {v(b+i,2)}, {v(t,2)} op_sel_hi:[1,0]")
    for i in range(8):
        o.append(f"v_cvt_pk_bf16_f32 v{b+i}, v{b+2*i}, v{b+2*i+1}")
    return o

def unpk(x):
    import re
    m = re.match(r"v_pk_fma_f32 v\[(\d+):\d+\], v\[(\d+):\d+\], s\[(\d+):\d+\], v\[(\d+):\d+\]", x)
    if m:
        d, a_, s_, t = map(int, m.groups())
        return f"v_fma_f32 v{d}, v{a_}, s{s_}, v{t}\nv_fma_f32 v{d+1}, v{a_+1}, s{s_}, v{t}"
    m = re.match(r"v_pk_add_f32 v\[(\d+):\d+\], v\[(\d+):\d+\], v\[(\d+):\d+\]", x)
    if m:
        d, a_, b = map(int, m.groups())
        return f"v_add_f32 v{d}, v{a_}, v{b}\nv_add_f32 v{d+1}, v{a_+1}, v{b+1}"
    m = re.match(r"v_pk_mul_f32 v\[(\d+):\d+\], v\[(\d+):\d+\], v\[(\d+):\d+\] op_sel_hi:\[1,0\]", x)
    if m:
        d, a_, b = map(int, m.groups())
        return f"v_mul_f32 v{d}, v{a_}, v{b}\nv_mul_f32 v{d+1}, v{a_+1}, v{b}"
    m = re.match(r"v_mov_b64 v\[(\d+):\d+\], v\[(\d+):\d+\]", x)
    if m:
        d, a_ = map(int, m.groups())
        return f"v_mov_b32 v{d}, v{a_}\nv_mov_b32 v{d+1}, v{a_+1}"
    return x

def tr64_addr(a, dst, tmp, base_sgpr):
    a(f"""
v_bfe_u32 v{tmp}, v0, 2, 2
v_lshlrev_b32 v{dst}, 6, v{tmp}
v_lshrrev_b32 v{tmp}, 5, v0
v_lshl_add_u32 v{dst}, v{tmp}, 8, v{dst}
v_and_b32 v{tmp}, 1, v0
v_lshl_add_u32 v{dst}, v{tmp}, 5, v{dst}
v_bfe_u32 v{tmp}, v0, 4, 1
v_lshl_add_u32 v{dst}, v{tmp}, 4, v{dst}
v_bfe_u32 v{tmp}, v0, 1, 1
v_lshl_add_u32 v{dst}, v{tmp}, 3, v{dst}
v_add_u32 v{dst}, s{base_sgpr}, v{dst}
""")

def persist(a, kh, R2, xkb):
    a(f"""
s_mov_b32 s{KH}, {kh}
s_and_b32 s{T0}, s{S_WAVE}, 3
s_lshl_b32 s{T0+1}, s{S_RB}, 3
s_lshl_b32 s{T0+2}, s{T0}, 1
s_add_u32 s{T0+1}, s{T0+1}, s{T0+2}
s_add_u32 s{T0+1}, s{T0+1}, {kh}
s_lshl_b32 s{P_OF}, s{T0+1}, 5
s_add_u32 s{P_OF}, s{P_OF}, s{S_H}
s_lshl_b32 s{P_OF}, s{P_OF}, 10
s_add_u32 s{P_OF}, s{P_OF}, {WS_OF}
s_lshl_b32 s{P_PHQ}, s{S_H}, 6
s_add_u32 s{P_PHQ}, s{P_PHQ}, s{T0+1}
s_lshl_b32 s{P_PHQ}, s{P_PHQ}, 11
s_add_u32 s{P_PHQ}, s{P_PHQ}, {WS_PHQ}
s_lshr_b32 s{P_F2}, s{S_H}, 2
s_xor_b32 s{P_F2}, s{P_F2}, {xkb}
s_lshl_b32 s{P_F2}, s{P_F2}, 8
s_add_u32 s{P_F2}, s{P_F2}, {WS_FL}
s_lshl_b32 s{P_KVS}, s{S_H}, 17
s_lshl_b32 s{T0+2}, s{T0}, 10
s_add_u32 s{P_KVS}, s{P_KVS}, s{T0+2}
s_lshl_b32 s{T0+2}, s{S_RB}, 7
s_add_u32 s{P_KVS}, s{P_KVS}, s{T0+2}
s_add_u32 s{P_KVS}, s{P_KVS}, {WS_KVP}
s_lshl_b32 s{P_KVT}, s{S_H}, 11
s_add_u32 s{P_KVT}, s{P_KVT}, {WS_KVT}
s_lshr_b32 s{P_WOF}, s2, 5
s_lshl_b32 s{P_WOF}, s{P_WOF}, 17
s_add_u32 s{P_WOF}, s{P_WOF}, {WS_WOF}
s_lshr_b32 s{T0+1}, s{S_WAVE}, 1
s_lshl_b32 s{P_WOB}, s{T0+1}, 14
s_add_u32 s{P_WOB}, s{P_WOB}, s{P_WOF}
s_add_u32 s{P_WOB}, s{P_WOB}, 65536
s_lshl_b32 s{T0+2}, s{S_WAVE}, 13
s_add_u32 s{P_WOF}, s{P_WOF}, s{T0+2}
s_and_b32 s{P_OA}, s2, 31
s_lshl_b32 s{P_OA}, s{P_OA}, 1
s_and_b32 s{T0+2}, s{S_WAVE}, 1
s_add_u32 s{P_OA}, s{P_OA}, s{T0+2}
s_lshl_b32 s{P_G}, s{P_OA}, 7
s_add_u32 s{P_G}, s{P_G}, {WS_G}
s_lshl_b32 s{P_OA}, s{P_OA}, 5
s_lshl_b32 s{T0+1}, s{T0+1}, 3
s_add_u32 s{P_OA}, s{P_OA}, s{T0+1}
s_lshl_b32 s{P_OA}, s{P_OA}, 10
s_add_u32 s{P_OA}, s{P_OA}, {WS_OF}
s_lshl_b32 s{P_WOL}, s{T0}, 13
s_add_u32 s{P_WOL}, s{P_WOL}, {R2 if kh == 0 else 0}
""")

def gen(a):
    SPIN, LEAD = P["SPIN"], P["LEAD"]
    XQA, XKA, XVA, XQB, XKB = (1, 0, 2, 5, 4) if P["MIX"] else (0, 0, 0, 0, 0)
    TYB = 6 if P["MAPT"] == 0 else 5
    TYC = f"s_bitcmp1_b32 s2, {TYB}"
    NS = 16 + LEAD // 2
    R2 = 2 * NS * 2048
    BD, BA, BW, BS = P["BD"], P["BA"], P["BW"], P["BS"]
    C0 = BS
    assert BW >= LEAD + 8 and BW >= 8
    a(f""".text
.globl {NAME}
.p2align 8
.type {NAME},@function
{NAME}:
s_cmp_ge_u32 s2, 256
s_cbranch_scc1 L_end
""")
    if P["STAMPS"]:
        for i in range(70, 102): a(f"s_mov_b32 s{i}, 0")
        a("s_memtime s[70:71]")
        a("s_memrealtime s[98:99]")
    a(f"""
s_load_dwordx16 s[4:19], s[0:1], 0
s_load_dwordx4 s[20:23], s[0:1], 64
s_load_dwordx2 s[24:25], s[0:1], 80
v_lshrrev_b32 v1, 6, v0
v_and_b32 v0, 63, v0
v_readfirstlane_b32 s{S_WAVE}, v1
""")
    if P["MAPT"] == 0:
        a(f"""
s_bfe_u32 s{S_ROT}, s2, 0x30003
s_and_b32 s{S_TB}, s2, 4
s_lshl_b32 s{S_TB}, s{S_TB}, 1
s_add_u32 s{S_TB}, s{S_TB}, s{S_ROT}
s_lshr_b32 s3, s2, 6
s_and_b32 s{S_HQ}, s2, 3
s_lshl_b32 s{S_HQ}, s{S_HQ}, 1
s_lshr_b32 s{S_H}, s3, 1
s_add_u32 s{S_HQ}, s{S_HQ}, s{S_H}
s_lshl_b32 s{S_H}, s3, 1
s_add_u32 s{S_ROT}, s{S_ROT}, s{S_H}
""")
    else:
        a(f"""
s_bfe_u32 s{S_ROT}, s2, 0x20003
s_and_b32 s{S_TB}, s2, 6
s_lshl_b32 s{S_TB}, s{S_TB}, 1
s_add_u32 s{S_TB}, s{S_TB}, s{S_ROT}
s_lshl_b32 s{S_ROT}, s{S_ROT}, 1
s_lshr_b32 s3, s2, 5
s_add_u32 s{S_ROT}, s{S_ROT}, s3
s_lshr_b32 s3, s3, 1
s_and_b32 s{S_HQ}, s2, 1
s_lshl_b32 s{S_HQ}, s{S_HQ}, 2
s_add_u32 s{S_HQ}, s{S_HQ}, s3
""")
    a(f"""
s_lshr_b32 s3, s2, 6
s_and_b32 s{S_H}, s2, 7
s_lshl_b32 s{S_H}, s{S_H}, 2
s_add_u32 s{S_H}, s{S_H}, s3
s_bfe_u32 s{S_RB}, s2, 0x30003
v_mov_b32 v{VZ}, 0
s_cmp_ge_u32 s{S_WAVE}, 4
s_cbranch_scc0 L_compute
""")
    LW, XO, WO, XM, WM = 64, 65, 66, 67, 68
    S0 = 128 * 1024
    X = lambda s_: s_ * 16384
    U = lambda i_: S0 + i_ * 8192
    def plan(ty):
        st = {}; when = {}
        if ty == 0:
            loc = [(U(0), U(1)), (U(2), U(3)), (X(7), X(7) + 8192), (U(0), U(1)), (U(2), U(3)), (X(7), X(7) + 8192), (U(0), U(1)), (U(2), U(3))]
            for t in range(8):
                st[t] = [(S_WA, 1024, XKA, loc[t][0]), (S_WA, 2048, XVA, loc[t][1])]
                for u in range(2): when[("w", t, u)] = -1 if t < 2 else t - 2
            for t in range(8, 16):
                st[t] = [(S_WB, 0, XQB, U(t & 3))]
                when[("w", t, 0)] = {8: 7, 9: 7, 10: 7.5, 11: 7.5}.get(t, t - 3)
            for c in range(8): when[("x", c)] = 6 if c == 7 else max(-1, c - 2 - P["XAH"])
        else:
            l1 = [U(t & 3) for t in range(8)] if P["EB"] == 9 else [U(2), X(6), X(6) + 8192, X(7), X(7) + 8192, U(2), U(3), U(2)]
            for t in range(8):
                st[t] = [(S_WA, 0, XQA, l1[t])]
                when[("w", t, 0)] = -1 if t < 2 else t - 2
            if P["EB"] != 9: when[("w", 7, 0)] = 6
            loc = {8: (U(0), U(1)), 9: (U(2), U(3)), 10: (U(0), U(1)), 11: (X(0), X(0) + 8192), 12: (U(2), U(3)), 13: (X(1), X(1) + 8192), 14: (U(0), U(1)), 15: (U(2), U(3))}
            e8 = 6 if P["EB"] == 9 else P["EB"] - 1
            wh = {8: (e8, e8), 9: (7.5, 7.5), 10: (9, 9), 11: (9, 9), 12: (10, 10), 13: (11, 11), 14: (12, 12), 15: (13, 13)}
            for t in range(8, 16):
                st[t] = [(S_WB, 1024, XKB, loc[t][0]), (S_WB, 2048, XKB, loc[t][1])]
                for u in range(2): when[("w", t, u)] = wh[t][u]
            for c in range(8): when[("x", c)] = max(-1, c - 2 - P["XAH"])
        return st, when
    PLAN = [plan(0), plan(1)]
    a(f"""
s_sub_u32 s{LW}, s{S_WAVE}, 4
v_lshrrev_b32 v1, 3, v0
v_and_b32 v2, 7, v0
v_lshrrev_b32 v8, 4, v0
v_xor_b32 v9, v2, v8
v_lshlrev_b32 v10, 10, v1
v_lshl_add_u32 v4, v9, 4, v10
v_xor_b32 v5, 64, v4
v_add_u32 v5, {8192-1024}, v5
v_mul_u32_u24 v10, 3072, v1
v_and_b32 v8, 1, v8
v_lshlrev_b32 v8, 2, v8
v_xor_b32 v9, v2, v8
v_lshl_add_u32 v6, v9, 4, v10
v_xor_b32 v7, 32, v6
v_add_u32 v7, {8*3072-1024}, v7
s_lshl_b32 s{XO}, s{S_TB}, 17
s_lshl_b32 s{T0}, s{LW}, 15
s_add_u32 s{XO}, s{XO}, s{T0}
s_mul_i32 s{WO}, s{LW}, {16*3072}
s_lshl_b32 s{T0}, s{S_HQ}, 7
s_add_u32 s{WO}, s{WO}, s{T0}
s_lshl_b32 s{XM}, s{LW}, 12
s_lshl_b32 s{WM}, s{LW}, 11
s_mov_b32 s{S_X+2}, {2048*512*2}
s_mov_b32 s{S_X+3}, 0x20000
s_mov_b32 s{S_WA+2}, {512*1536*2}
s_mov_b32 s{S_WA+3}, 0x20000
s_waitcnt lgkmcnt(0)
s_mov_b32 s{S_X}, s4
s_mov_b32 s{S_X+1}, s5
s_mov_b32 s{S_WA}, s6
s_mov_b32 s{S_WA+1}, s7
""")
    stamp(a, 1)
    ISS = [[], []]
    def issx(c, tys):
        a(f"s_add_u32 s{T0}, s{S_ROT}, {c}")
        a(f"s_and_b32 s{T0}, s{T0}, 7")
        a(f"s_lshl_b32 s{T0}, s{T0}, 7")
        for g in range(2):
            a(f"s_add_u32 m0, s{XM}, {X(c) + g*2048}")
            a(f"s_add_u32 s{T0}, s{T0}, " + (f"s{XO}" if g == 0 else "16384"))
            a(f"buffer_load_dwordx4 v4, {s(S_X,4)}, s{T0} offen lds")
            a(f"buffer_load_dwordx4 v5, {s(S_X,4)}, s{T0} offen offset:1024 lds")
        for ty in tys: ISS[ty].append((("x", c), 4))
    def issw(ty, t, us):
        a(f"s_add_u32 s{T0}, s{S_ROT}, {t & 7}")
        a(f"s_and_b32 s{T0}, s{T0}, 7")
        a(f"s_mul_i32 s{T0}, s{T0}, {64*3072}")
        a(f"s_add_u32 s{T0}, s{T0}, s{WO}")
        for u in us:
            W, col, xr_, ad = PLAN[ty][0][t][u]
            a(f"s_xor_b32 s{T0+1}, s{T0}, {xr_*128}")
            a(f"s_add_u32 m0, s{WM}, {ad}")
            a(f"s_add_u32 s{T0+1}, s{T0+1}, {col}")
            a(f"buffer_load_dwordx4 v6, {s(W,4)}, s{T0+1} offen lds")
            a(f"buffer_load_dwordx4 v7, {s(W,4)}, s{T0+1} offen offset:1024 lds")
            ISS[ty].append((("w", t, u), 2))
    issx(0, (0, 1))
    a(TYC)
    a("s_cbranch_scc1 L_i1")
    issw(0, 0, (0, 1))
    a("s_branch L_i2")
    a("L_i1:")
    issw(1, 0, (0,)); issw(1, 1, (0,))
    a("L_i2:")
    issx(1, (0, 1))
    srd(a, S_WB, 12, 13, 512*1536*2)
    srd(a, S_WS, 24, 25, WS_SIZE)
    GO, GX, WSRC, WD, WST = 60, 44, 45, 61, 46
    a(f"""
s_cmp_ge_u32 s2, 128
s_cselect_b32 s12, s16, s8
s_cselect_b32 s13, s17, s9
s_mov_b32 s14, {512*512*2}
s_mov_b32 s15, 0x20000
s_mov_b32 s16, s18
s_mov_b32 s17, s19
s_mov_b32 s18, 1024
s_mov_b32 s19, 0x20000
s_lshl_b32 s{GO}, s{S_TB}, 7
s_lshl_b32 s{T0+1}, s{S_HQ}, 4
s_add_u32 s{GO}, s{GO}, s{T0+1}
s_bfe_u32 s{T0+1}, s2, {0x10000 + TYB}
s_lshl_b32 s{T0+1}, s{T0+1}, 3
s_add_u32 s{GO}, s{GO}, s{T0+1}
s_lshl_b32 s{T0+1}, s{LW}, 1
s_add_u32 s{GO}, s{GO}, s{T0+1}
s_and_b32 s{GX}, s{GO}, 127
s_lshl_b32 s{GO}, s{GO}, 2
s_add_u32 s{GO}, s{GO}, {WS_G}
s_bfe_u32 s{T0+1}, s{GX}, 0x30001
v_xor_b32 v8, s{T0+1}, v2
v_lshlrev_b32 v8, 4, v8
v_lshl_add_u32 v8, v1, 14, v8
s_lshl_b32 s{GX}, s{GX}, 7
v_add_u32 v{POOL+16}, s{GX}, v8
v_add_u32 v8, s{S_ROT}, v1
v_and_b32 v8, 7, v8
v_lshlrev_b32 v8, 7, v8
v_lshl_add_u32 v{POOL+17}, v2, 4, v8
v_mov_b32 v{POOL+13}, 0
v_lshrrev_b32 v8, 2, v0
v_lshlrev_b32 v8, 10, v8
v_and_b32 v9, 3, v0
v_lshl_add_u32 v{POOL+18}, v9, 4, v8
v_lshrrev_b32 v{POOL+19}, 5, v0
v_lshlrev_b32 v{POOL+19}, 2, v{POOL+19}
v_mov_b32 v{POOL+12}, 0
s_lshl_b32 s{T0}, s2, 2
s_add_u32 s{T0}, s{T0}, s{LW}
s_bfe_u32 s{T0+1}, s{T0}, 0x50004
s_and_b32 s{T0+2}, s{T0}, 15
s_lshl_b32 s{WSRC}, s{T0+1}, 14
s_lshl_b32 s{T0+3}, s{T0+2}, 6
s_add_u32 s{WSRC}, s{WSRC}, s{T0+3}
s_lshl_b32 s{WST}, s{LW}, 10
s_add_u32 s{WST}, s{WST}, {L_WOS}
s_lshr_b32 s{T0+3}, s{T0+2}, 1
s_lshl_b32 s{WD}, s{T0+3}, 17
s_lshr_b32 s{T0+3}, s{T0}, 9
s_lshl_b32 s{T0+3}, s{T0+3}, 16
s_add_u32 s{WD}, s{WD}, s{T0+3}
s_lshl_b32 s{T0+3}, s{T0+1}, 11
s_add_u32 s{WD}, s{WD}, s{T0+3}
s_and_b32 s{T0+3}, s{T0+2}, 1
s_lshl_b32 s{T0+3}, s{T0+3}, 10
s_add_u32 s{WD}, s{WD}, s{T0+3}
s_add_u32 s{WD}, s{WD}, {WS_WOF}
""")
    tr64_addr(a, POOL+9, 8, WST)
    if P["TLB"]: a("s_waitcnt lgkmcnt(0)")
    persist(a, 0, R2, XKB)
    VINIT = f"""
v_mov_b32 v{IDX}, 0xdddddddd
v_and_b32 v39, 27, v0
v_cmp_eq_u32 vcc, 16, v39
v_mov_b32 v38, 0x3f803f80
v_mov_b64 v[44:45], -1
v_cndmask_b32 v38, 0, v38, vcc
v_mov_b64 v[46:47], -1
v_mov_b32 v39, v38
""" + "\n".join(f"v_mov_b64 {v(VS[0]+i,2)}, v[38:39]" for i in range(0, 16, 2))
    ZERO_O = [f"v_mov_b64 {v(OA+i,2)}, 0" for i in range(0, 32, 2)]
    a(VINIT)
    a.emit(ZERO_O)
    a(f"""
v_lshlrev_b32 v42, 12, v1
v_lshl_add_u32 v42, v2, 4, v42
s_lshl_b32 s{T0}, s{S_RB}, 7
s_lshr_b32 s{T0+1}, s{LW}, 1
s_lshl_b32 s{T0+1}, s{T0+1}, 10
s_add_u32 s{T0}, s{T0}, s{T0+1}
s_and_b32 s{T0+1}, s{LW}, 1
s_lshl_b32 s{T0+1}, s{T0+1}, 3
s_add_u32 s{T0}, s{T0}, s{T0+1}
v_lshlrev_b32 v43, 4, v2
v_bfe_u32 v8, v0, 4, 1
v_lshl_add_u32 v43, v8, 2, v43
v_add_u32 v43, s{T0}, v43
v_lshlrev_b32 v1, 4, v0
v_mov_b32 v{ADDR}, v1
s_lshl_b32 s{T0}, s{LW}, 9
s_add_u32 s{T0}, s{T0}, {L_QH}
v_lshrrev_b32 v{POOL+11}, 1, v1
v_add_u32 v{POOL+11}, s{T0}, v{POOL+11}
""")
    def gate_math():
        G0 = POOL + 12
        for i in range(4):
            a(f"v_dot2_f32_bf16 v{G0}, v{POOL+20+i}, v{POOL+28+i}, v{G0}")
            a(f"v_dot2_f32_bf16 v{G0+1}, v{POOL+24+i}, v{POOL+28+i}, v{G0+1}")
        a(f"""
s_nop 2
v_permlane32_swap_b32 v{G0}, v{G0+1}
s_nop 1
v_add_f32 v{G0}, v{G0}, v{G0+1}
s_nop 1
v_add_f32_dpp v{G0}, v{G0}, v{G0} quad_perm:[1,0,3,2] row_mask:0xf bank_mask:0xf
s_nop 1
v_add_f32_dpp v{G0}, v{G0}, v{G0} quad_perm:[2,3,0,1] row_mask:0xf bank_mask:0xf
s_nop 1
v_add_f32_dpp v{G0}, v{G0}, v{G0} row_half_mirror row_mask:0xf bank_mask:0xf
s_nop 1
v_add_f32_dpp v{G0}, v{G0}, v{G0} row_mirror row_mask:0xf bank_mask:0xf
v_mov_b32 v{G0+1}, v{G0}
s_nop 1
v_permlane16_swap_b32 v{G0}, v{G0+1}
s_nop 1
v_add_f32 v{G0}, v{G0}, v{G0+1}
v_mul_f32 v{G0}, {f2u(-LOG2E):#x}, v{G0}
v_exp_f32 v{G0}, v{G0}
s_nop 0
v_add_f32 v{G0}, 1.0, v{G0}
v_rcp_f32 v{G0}, v{G0}
""")
    stamp(a, 2)
    a(TYC)
    a("s_cbranch_scc1 L_ld1")
    for ty in range(2):
        a(f"L_ld{ty}:")
        st_, when = PLAN[ty]
        issued = ISS[ty]
        def release(pt):
            done = {t for t, _ in issued}
            todo = [k_ for k_, w_ in when.items() if w_ <= pt and k_ not in done]
            todo.sort(key=lambda k_: (k_[1], 0 if k_[0] == "w" else 1))
            i_ = 0
            while i_ < len(todo):
                k_ = todo[i_]
                if k_[0] == "x": issx(k_[1], (ty,)); i_ += 1
                else:
                    us = [q_[2] for q_ in todo if q_[0] == "w" and q_[1] == k_[1]]
                    issw(ty, k_[1], us); i_ += len(us)
        def cnt_after(tags):
            idx = max(i for i, (t, _) in enumerate(issued) if t in tags)
            return sum(k_ for _, k_ in issued[idx+1:])
        def side(pt):
            if pt == P["HP"] - (0 if P["HP"] == 6 else 1) and ty == 1 and P["HELP"]:
                a(f"""
s_and_b32 s{T0}, s{S_ROT}, 7
s_mul_i32 s{T0}, s{T0}, {64*3072}
s_add_u32 s{T0}, s{T0}, s{WO}
s_xor_b32 s{T0}, s{T0}, {XQB*128}
buffer_load_dwordx4 {v(POOL+40,4)}, v6, {s(S_WB,4)}, s{T0} offen
buffer_load_dwordx4 {v(POOL+40,4)}, v7, {s(S_WB,4)}, s{T0} offen offset:1024
""")
                issued.append(("gw", 2))
            if P[f"WO{ty}"] == pt * 10:
                a(f"buffer_load_dwordx4 {v(POOL+36,4)}, v{POOL+18}, s[12:15], s45 offen")
                issued.append(("gw", 1))
            if pt == 6:
                a(f"buffer_load_dwordx4 {v(POOL+28,4)}, v{POOL+17}, s[16:19], 0 offen")
                issued.append(("gw", 1))
            if pt == 7.5:
                a(f"ds_read_b128 {v(POOL+20,4)}, v{POOL+16}")
                a(f"ds_read_b128 {v(POOL+24,4)}, v{POOL+16} offset:128")
            if pt == 12 and P["ONEP"]:
                a(f"v_mov_b32 v{POOL+10}, {L_QH + 2048}")
                a(f"ds_write_b32 v{POOL+10}, v{VZ}")
            if P[f"GM{ty}"] == pt * 10:
                gate_math()
        release(-1)
        side(-1)
        for k in range(15):
            a(f"s_waitcnt vmcnt({cnt_after([('x', k), ('w', k, 0), ('w', k, 1)])})" + (" lgkmcnt(0)" if k in (8, 14) else ""))
            if k == 0: stamp(a, 3)
            if k < 12: stamp(a, k + 1, 2)
            a("s_barrier")
            release(k)
            side(k)
            if k == 7:
                a("s_barrier")
                release(7.5)
                side(7.5)
        assert len([1 for t, _ in issued if t != "gw"]) == len(when)
        a(f"s_waitcnt vmcnt({cnt_after([('w', 15, 0), ('w', 15, 1)])})")
        if ty == 0: a("s_branch L_ldj")
    a("L_ldj:")
    a("s_setprio 3")
    a("s_barrier")
    a(f"""
v_add_u32 v{POOL+18}, s{WST}, v1
s_lshr_b32 s{T0}, s{S_H}, 2
s_lshl_b32 s{T0}, s{T0}, 8
s_add_u32 s{T0}, s{T0}, {WS_FL + 2048}
v_min_u32 v41, 2, v0
v_lshlrev_b32 v41, 11, v41
s_sub_u32 s{T0+1}, s{P_PHQ}, {WS_PHQ}
s_lshr_b32 s{T0+1}, s{T0+1}, 1
s_lshl_b32 s{P_KVB}, s{S_H}, 17
s_add_u32 s{P_KVB}, s{P_KVB}, {WS_KV}
s_lshl_b32 s{P_KVG}, s{LW}, 12
s_add_u32 s{T0+3}, s{P_KVG}, {R2 - 4096}
s_cmp_eq_u32 s{LW}, 0
s_cmov_b32 s{T0+3}, 16384
s_mov_b32 s{T0+7}, 0
""")
    if P["ONEP"]:
        a(f"s_cmp_lg_u32 s{LW}, 0")
        a("s_cbranch_scc1 L_mbox")
    a(f"buffer_load_dword v40, v41, {s(S_WS,4)}, s{T0} offen sc1")
    stamp(a, 4)
    def kvgrp(reg, off):
        o = [[f"s_add_u32 m0, s{reg}, {off}", f"s_add_u32 s{T0+4}, m0, s{P_KVB}"]]
        o += [f"buffer_load_dwordx4 v1, {s(S_WS,4)}, s{T0+4} offen offset:{i*1024} sc1 lds" for i in range(4)]
        return o
    def flat(x):
        o = []
        for g in x: o += g if isinstance(g, list) else [g]
        return o
    FIRST = [f"buffer_load_dwordx4 {v(QA,4)}, v1, {s(S_WS,4)}, s{T0+1} offen sc1",
             f"buffer_load_dwordx4 {v(QB,4)}, v1, {s(S_WS,4)}, s{T0+1} offen offset:1024 sc1",
             f"buffer_load_dwordx4 {v(KS[0],4)}, v1, {s(S_WS,4)}, s{P_KVB} offen sc1"] + flat(kvgrp(P_KVG, 0)) + flat(kvgrp(T0+3, 0))
    a(f"""
s_waitcnt vmcnt(0)
v_cmp_gt_u32 vcc, 16, v40
s_nop 4
s_cbranch_vccnz L_pollF1
L_pollF1_ok:
""")
    if P["ONEP"]:
        a(f"ds_write_b32 v{POOL+10}, v44")
        a("L_mbox_ok:")
    a.emit(FIRST)
    a("L_first_done:")
    stamp(a, 5); stamp(a, 1, 3)
    G0 = POOL + 12
    a(f"""
s_setprio 3
s_waitcnt vmcnt(8)
v_mfma_f32_32x32x16_bf16 {v(SA,16)}, {v(KS[0],4)}, {v(QA,4)}, 0
v_mfma_f32_32x32x16_bf16 {v(SB,16)}, {v(KS[0],4)}, {v(QB,4)}, 0
""")
    if P["NOBD"]: a.emit(flat(kvgrp(P_KVG, 5*4096) + kvgrp(P_KVG, R2 + 3*4096)))
    else: a("s_nop 9")
    a(f"""
s_mov_b32 s{MODE}, 0
s_mov_b32 s{SL+2}, 0x0000ffff
s_mov_b32 s{SL+3}, 0x0000ffff
""")
    def maxtree(dst, b, init=None):
        o = []
        if init is None:
            o.append(f"v_max3_f32 v{dst}, v{b}, v{b+1}, v{b+2}")
            for i in range(3, 15, 2):
                o.append(f"v_max3_f32 v{dst}, v{dst}, v{b+i}, v{b+i+1}")
            o.append(f"v_max_f32 v{dst}, v{dst}, v{b+15}")
        else:
            for i in range(0, 16, 2):
                o.append(f"v_max3_f32 v{dst}, v{dst}, v{b+i}, v{b+i+1}")
        return o
    a.emit(rr(maxtree(38, SA), maxtree(39, SB)))
    NEGM = f"""
v_permlane32_swap_b32 v38, v39
s_nop 1
v_max_f32 v38, v38, v39
v_sub_f32 v38, 0, v38
v_mov_b32 v39, v38
s_nop 1
v_permlane32_swap_b32 v38, v39
"""
    def fill_nm():
        o = [f"v_mov_b32 v40, v38", f"v_mov_b32 v41, v38"]
        o += [f"v_mov_b64 {v(NMA+i,2)}, v[40:41]" for i in range(0, 16, 2)]
        o += [f"v_mov_b32 v38, v39"]
        o += [f"v_mov_b64 {v(NMB+i,2)}, v[38:39]" for i in range(0, 16, 2)]
        return o
    ZSB = [f"v_mov_b64 {v(SB+i,2)}, 0" for i in range(8, 16, 2)]
    a("s_nop 1")
    a(NEGM)
    a(f"""
s_nop 1
v_mov_b64 {v(POOL+14,2)}, v[38:39]
""")
    fm = fill_nm()
    a.emit(fm[:11])
    a.emit(ZSB)
    a(f"v_mfma_f32_32x32x16_bf16 {v(SA,16)}, {v(KS[0],4)}, {v(QA,4)}, {v(NMA,16)}")
    a.emit(fm[11:])
    stamp(a, 2, 3)
    stamp(a, 3, 3)
    a(f"""
ds_write_b64 v{POOL+11}, {v(POOL+14,2)}
s_waitcnt vmcnt(0) lgkmcnt(0)
""")
    stamp(a, 6); stamp(a, 4, 3)
    a(f"""
s_barrier
s_mov_b64 exec, {s(SL+2,2)}
ds_read_b128 {v(VS[0],4)}, v{ADDR} offset:1024
ds_read_b128 {v(VS[0]+4,4)}, v{ADDR} offset:1280
s_mov_b64 exec, -1
""")
    a("s_waitcnt lgkmcnt(0)")
    stamp(a, 8)
    a("s_branch L_slot0")
    a("L_mark_c0:")
    XA = [4, 5]; WHI, WLO = [8, 6], [9, 7]
    BUF = [112, 176]
    AQK, AV = 48, 80
    def acc(base, t, hd): return base + 16*(t >> 1) + 8*hd + 4*(t & 1)
    WPHI = [248, 252]
    WPK, WPM = 36, 32
    VFLG, VPHI, VSGN, VF1, VONE = 10, 12, 13, 14, 15
    a("L_compute:")
    if P["CPF"]:
        a(f"""
s_getpc_b64 s[{T0}:{T0+1}]
L_pc:
s_sub_u32 s{T0}, s{T0}, L_pc-{NAME}
s_subb_u32 s{T0+1}, s{T0+1}, 0
s_lshr_b32 s{T0+2}, s2, 3
s_lshl_b32 s{T0+2}, s{T0+2}, 2
s_add_u32 s{T0+2}, s{T0+2}, s{S_WAVE}
s_mul_i32 s{T0+2}, s{T0+2}, 320
s_min_u32 s{T0+2}, s{T0+2}, L_codeend-{NAME}-320
s_add_u32 s{T0}, s{T0}, s{T0+2}
s_addc_u32 s{T0+1}, s{T0+1}, 0
s_load_dword s{T0+3}, s[{T0}:{T0+1}], 0
s_load_dword s{T0+4}, s[{T0}:{T0+1}], 64
s_load_dword s{T0+5}, s[{T0}:{T0+1}], 128
s_load_dword s{T0+6}, s[{T0}:{T0+1}], 192
s_load_dword s{T0+7}, s[{T0}:{T0+1}], 256
""")
    a(f"""
s_lshr_b32 s{TT}, s{S_WAVE}, 1
s_and_b32 s{PP}, s{S_WAVE}, 1
v_and_b32 v16, 31, v0
v_lshrrev_b32 v17, 5, v0
v_lshlrev_b32 v1, 4, v0
s_waitcnt lgkmcnt(0)
""")
    srd(a, S_MISC, 14, 15, 32*512)
    srd(a, S_WS, 24, 25, WS_SIZE)
    a(f"""
s_or_b32 s{T0+1}, s2, s{S_WAVE}
s_cmp_lg_u32 s{T0+1}, 0
s_cbranch_scc1 L_noinit
v_lshlrev_b32 v8, 8, v0
s_mov_b32 s{T0+1}, {WS_FL}
buffer_store_dword v{VZ}, v8, {s(S_WS,4)}, s{T0+1} offen sc1
s_waitcnt vmcnt(0)
v_mov_b32 v8, 1
s_mov_b64 exec, 1
global_store_dword v{VZ}, v8, s[22:23] sc1
s_mov_b64 exec, -1
L_noinit:
s_lshr_b32 s{T0+2}, s2, 3
s_lshl_b32 s{T0+2}, s{T0+2}, 2
s_add_u32 s{T0+2}, s{T0+2}, s{S_WAVE}
s_lshl_b32 s{T0+2}, s{T0+2}, 7
s_add_u32 s{T0+3}, s{T0+2}, 64
s_load_dword s38, s[14:15], s{T0+2}
s_load_dword s39, s[14:15], s{T0+3}
s_lshr_b32 s{T0+3}, s{T0+2}, 1
s_and_b32 s{T0+3}, s{T0+3}, 0x3c0
s_load_dword s33, s[18:19], s{T0+3}
s_lshl_b32 s{T0+3}, s{T0+2}, 5
s_load_dword s34, s[8:9], s{T0+3}
s_load_dword s35, s[16:17], s{T0+3}
s_lshl_b32 s{T0}, s{S_HQ}, 1
s_add_u32 s{T0}, s{T0}, s{PP}
s_lshl_b32 s{T0}, s{T0}, 10
{TYC}
s_mov_b32 s{T0+1}, {XQB*2048}
s_cmov_b32 s{T0+1}, {XKB*2048}
s_xor_b32 s{WPK}, s{T0}, s{T0+1}
s_lshl_b32 s{WPM}, s{S_WAVE}, 10
s_add_u32 s{WPM}, s{WPM}, {X(2)}
v_bfe_u32 v18, v0, 2, 2
v_lshlrev_b32 v{VPHI}, 5, v18
v_lshl_add_u32 v{VPHI}, v17, 8, v{VPHI}
v_bfe_u32 v18, v0, 4, 1
v_lshl_add_u32 v{VPHI}, v18, 4, v{VPHI}
v_bfe_u32 v18, v0, 1, 1
v_lshl_add_u32 v{VPHI}, v18, 3, v{VPHI}
v_add_u32 v{VPHI}, s{WPM}, v{VPHI}
s_lshl_b32 s{T0}, s{TT}, 13
v_and_b32 v20, 15, v0
v_lshrrev_b32 v21, 4, v0
v_lshlrev_b32 v19, 7, v20
v_add_u32 v19, s{T0}, v19
v_lshrrev_b32 v18, 1, v20
v_xor_b32 v18, v18, v21
v_lshl_add_u32 v{XA[0]}, v18, 4, v19
v_xor_b32 v{XA[1]}, 64, v{XA[0]}
v_lshlrev_b32 v9, 10, v21
v_bfe_u32 v18, v0, 2, 2
v_lshl_add_u32 v9, v18, 7, v9
v_bfe_u32 v18, v0, 3, 1
v_xor_b32 v18, s{PP}, v18
v_lshl_add_u32 v9, v18, 6, v9
v_bfe_u32 v18, v0, 4, 1
v_lshl_add_u32 v9, v18, 5, v9
v_and_b32 v19, 3, v0
v_lshl_add_u32 v9, v19, 3, v9
v_xor_b32 v7, 32, v9
v_add_u32 v8, {X(6)}, v9
v_add_u32 v6, {X(6)}, v7
s_mov_b32 s{SL}, {f2u(LOG2E):#x}
s_mov_b32 s{SL+1}, {f2u(0.25*LOG2E):#x}
s_mov_b32 s{SL+2}, 0x0000ffff
s_mov_b32 s{SL+3}, 0x0000ffff
s_mov_b32 s{MODE}, 0
s_lshl_b32 s{SX}, s{S_HQ}, 1
s_add_u32 s{SX}, s{SX}, s{PP}
s_lshl_b32 s{SX}, s{SX}, 7
s_lshl_b32 s{T0+1}, s{S_TB}, 2
s_add_u32 s{SX}, s{SX}, s{T0+1}
s_lshl_b32 s{T0+1}, s{TT}, 1
s_add_u32 s{SX}, s{SX}, s{T0+1}
s_lshl_b32 s{T0+1}, s{S_WAVE}, 12
s_add_u32 s{T0+1}, s{T0+1}, {L_CMB}
v_lshlrev_b32 v240, 1, v17
v_bfe_u32 v18, v16, 1, 2
v_xor_b32 v240, v240, v18
v_lshlrev_b32 v240, 4, v240
v_lshl_add_u32 v240, v16, 6, v240
v_add_u32 v240, s{T0+1}, v240
v_xor_b32 v241, 16, v240
""")
    tr64_addr(a, 242, 18, T0+1)
    a(f"""
v_lshl_add_u32 v242, v17, 8, v242
v_bfe_u32 v18, v0, 3, 1
v_lshlrev_b32 v18, 4, v18
v_xor_b32 v242, v242, v18
v_xor_b32 v246, 32, v242
v_mov_b32 v244, 0x3f803f80
v_mov_b32 v245, 0x3f803f80
v_and_b32 v18, {3 if P["MIX"] else 0}, v0
v_xor_b32 v{VF1}, s{S_HQ}, v18
v_lshl_add_u32 v{VF1}, v0, 3, v{VF1}
v_lshlrev_b32 v{VF1}, 8, v{VF1}
v_mov_b32 v{VONE}, 1
v_bfe_u32 v18, v0, 2, 1
s_mov_b32 s{T0+1}, 0x80008000
v_mul_lo_u32 v{VSGN}, v18, s{T0+1}
s_lshl_b32 s{T0}, s{S_WAVE}, 9
s_add_u32 s{T0}, s{T0}, {L_QH}
v_lshrrev_b32 v243, 1, v1
v_add_u32 v243, s{T0}, v243
""")
    assert (XKA, XQA, XVA) in ((0, 1, 2), (0, 0, 0))
    persist(a, 1, R2, XKB)
    rdp = ["s_waitcnt vmcnt(0)", "s_nop 0"]
    for hd in range(2):
        for rd in range(2):
            rdp.append(f"ds_read_b64_tr_b16 {v(WPHI[hd]+2*rd,2)}, v{VPHI} offset:{hd*512+rd*128}")
    xr = [f"v_xor_b32 v{WPHI[0]+i}, v{VSGN}, v{WPHI[0]+i}" for i in range(8)]
    PK = 16
    stamp(a, 1)
    a(TYC)
    a("s_cbranch_scc1 L_cmp1")
    for ty in range(2):
        a(".p2align 3")
        a(f"L_cmp{ty}:")
        st_ = PLAN[ty][0]
        def reads(t):
            o = []
            xo = (t & 3) * 16384
            for step in range(2):
                b = BUF[t & 1] + 32*step
                xs = [f"ds_read_b128 {v(b+4*q,4)}, v{XA[step]} offset:{xo+q*2048}" for q in range(4)]
                ws = []
                for u, (_, _, _, ad) in enumerate(st_[t]):
                    reg, off = (WHI, ad - X(6)) if ad >= X(6) else (WLO, ad)
                    for hd in range(2):
                        for rd in range(2):
                            ws.append(f"ds_read_b64_tr_b16 {v(b+16+8*u+4*hd+2*rd,2)}, v{reg[hd]} offset:{off+step*4096+rd*512}")
                n_ = len(ws) // 4
                for q in range(4):
                    o += [xs[q]] + ws[n_*q:n_*(q+1)]
            return o
        def mfmas(t):
            o = []
            for step in range(2):
                b = BUF[t & 1] + 32*step
                for u in range(len(st_[t])):
                    for hd in range(2):
                        for q in range(4):
                            x = v(b+4*q,4); w = v(b+16+8*u+4*hd,4); d = v(acc((AQK, AV)[u], q, hd),4)
                            cc = "0" if ((t & 7) == 0 and step == 0) else d
                            o.append(f"v_mfma_f32_16x16x32_bf16 {d}, {w}, {x}, {cc}" if u == 0 else f"v_mfma_f32_16x16x32_bf16 {d}, {x}, {w}, {cc}")
            return o
        def xswitch(t):
            if t & 3: return []
            return [f"v_xor_b32 v{r_}, 0x10000, v{r_}" for r_ in XA]
        def weave(m, r_, per, first=()):
            a(m[0]); a.emit(list(first))
            k_ = 0
            if not first:
                a.emit(r_[:per]); k_ = per
            for i in range(1, len(m)):
                a(m[i]); a.emit(r_[k_:k_+per] if i < len(m) - 1 else r_[k_:]); k_ += per
        SIG = 8 + P[f"SIG{ty}"]
        deferred = []
        for ps in range(2):
            a("s_barrier")
            a("s_nop 0")
            a.emit(reads(8*ps))
            nout = len(reads(8*ps))
            def head(t, m):
                if not P["SH"] or P["STAMPS"] and t in (0, 8, SIG + 1): return m
                q_ = len(m) // 4 * P["SH"]
                a(f"s_waitcnt lgkmcnt({min(15, nout - len(reads(t)) // 4 * P['SH'])})")
                a("s_nop 0")
                a.emit(m[:q_])
                return m[q_:]
            for t in range(8*ps, 8*ps + 7):
                m = mfmas(t); big = len(m) == 32
                m = head(t, m)
                a("s_waitcnt lgkmcnt(0)" + (" vmcnt(0)" if t == SIG else ""))
                a("s_barrier")
                if t == SIG:
                    assert t <= 13
                    a(f"""
s_cmp_lg_u32 s{S_WAVE}, 0
s_cbranch_scc1 L_drained{ty}
v_readfirstlane_b32 s{T0+6}, v{VFLG}
s_mov_b32 s{T0}, {WS_FL + 2048}
s_cmp_eq_u32 s{T0+6}, 0
s_cbranch_scc1 L_sig1
L_initok{ty}:
s_mov_b64 exec, {5 if ty == 0 else 2}
buffer_atomic_add v{VONE}, v{VF1}, {s(S_WS,4)}, s{T0} offen sc1
s_mov_b64 exec, -1
s_nop 0
""")
                    stamp(a, 2)
                    a(f"L_drained{ty}:")
                if t == 10:
                    a(f"s_mov_b32 m0, s{WPM}")
                    a("s_nop 0")
                    a(f"buffer_load_dwordx4 v1, {s(S_MISC,4)}, s{WPK} offen lds")
                r_ = reads(t + 1)
                if deferred and t >= 7 + P["DQ"]:
                    assert t < SIG
                    n_ = 2 if len(deferred) > 3 else 3
                    r_ = r_ + ["s_nop 0", "s_nop 0"] + [y for x_ in deferred[:n_] for y in (x_, "s_nop 0", "s_nop 0")][:-2]
                    deferred = deferred[n_:]
                    r_ = [y for y in r_ if y != "s_nop 0"] if False else r_
                if t == 13: r_ = r_ + rdp
                if t == 14: r_ = r_ + xr
                weave(m, r_, P["PER2"] if big else P["PER1"], xswitch(t + 1))
                nout = len([y for y in r_ if y.startswith("ds_")])
            m = mfmas(8*ps + 7); big = len(m) == 32
            m = head(8*ps + 7, m)
            a("s_waitcnt lgkmcnt(0)")
            if ps == 0:
                a("s_barrier")
                offs = L(f"""
s_xor_b32 s{T0+1}, s{SX}, {(XKA if ty == 0 else XQA)*256}
s_lshl_b32 s{T0+1}, s{T0+1}, {11 if ty == 0 else 10}
s_add_u32 s{T0+1}, s{T0+1}, {WS_KV if ty == 0 else WS_QF}
s_add_u32 s{T0+2}, s{T0+1}, {131072 if ty == 0 else 65536}
s_xor_b32 s{T0+5}, s{SX}, {XVA*256}
s_lshl_b32 s{T0+5}, s{T0+5}, 11
s_add_u32 s{T0+5}, s{T0+5}, {WS_KV}
""")
                weave(m, xswitch(8) + offs, 1)
                stamp(a, 3)
                a("s_nop 11" if ty == 1 else "s_nop 3")
                a(f"s_add_u32 s{T0+6}, s{T0+5}, 131072")
                def pack(dst, base):
                    for i in range(8):
                        a(f"v_cvt_pk_bf16_f32 v{dst+i}, v{base+2*i}, v{base+1+2*i}")
                    a(f"v_permlane16_swap_b32 v{dst}, v{dst+2}")
                    a(f"v_permlane16_swap_b32 v{dst+1}, v{dst+3}")
                    a(f"v_permlane16_swap_b32 v{dst+4}, v{dst+6}")
                    a(f"v_permlane16_swap_b32 v{dst+5}, v{dst+7}")
                for tt in range(2):
                    if ty == 1:
                        for i in range(0, 16, 2):
                            a(f"v_pk_mul_f32 {v(AQK+16*tt+i,2)}, {v(AQK+16*tt+i,2)}, {s(SL,2)} op_sel:[0,1] op_sel_hi:[1,1]")
                    pack(PK+8*tt, AQK+16*tt)
                    for hd in range(2):
                        a(f"buffer_store_dwordx4 {v(PK+8*tt+4*hd,4)}, v1, {s(S_WS,4)}, s{T0+1+hd} offen offset:{tt*(2048 if ty == 0 else 1024)} sc1")
                if ty == 0:
                    for tt in range(2):
                        pack(PK+16+8*tt, AV+16*tt)
                        for hd in range(2):
                            a(f"buffer_store_dwordx4 {v(PK+16+8*tt+4*hd,4)}, v1, {s(S_WS,4)}, s{T0+5+hd} offen offset:{tt*2048+1024} sc1")
                x_ = f"global_load_dword v{VFLG}, v{VZ}, s[22:23] sc1"
                if deferred: deferred.append(x_)
                else: a(x_)
                stamp(a, 4)
                a(".p2align 3")
            else:
                a("s_nop 0")
                fill = L(VINIT) + ZERO_O + [f"v_add_u32 v{ADDR}, {R2}, v1", "v_mov_b64 v[42:43], 0"]
                weave(m, fill, 2)
        if ty == 0: a("s_branch L_epiB")
    a("L_epiB:")
    stamp(a, 5); stamp(a, 1, 3)
    PB, PV = 224, 144
    FB = {(0,0): 160, (0,1): 176, (1,0): 192, (1,1): 208}
    a(f"""
s_xor_b32 s{T0+3}, s{SX}, {XQB*256}
s_lshl_b32 s{T0+3}, s{T0+3}, 11
s_add_u32 s{T0+3}, s{T0+3}, {WS_PHQ}
s_add_u32 s{T0+4}, s{T0+3}, 131072
s_xor_b32 s{T0+1}, s{S_HQ}, {XKB}
s_lshl_b32 s{T0+1}, s{T0+1}, 1
s_add_u32 s{T0+1}, s{T0+1}, s{PP}
s_lshl_b32 s{T0+1}, s{T0+1}, 5
s_add_u32 s{T0+1}, s{T0+1}, s{S_TB}
s_lshl_b32 s{T0+1}, s{T0+1}, 1
s_add_u32 s{T0+1}, s{T0+1}, s{TT}
s_lshl_b32 s{T0+1}, s{T0+1}, 12
s_add_u32 s{T0+1}, s{T0+1}, {WS_KVP}
s_add_u32 s{T0+5}, s{T0+1}, 131072
""")
    def packl(dst, base):
        o = [f"v_cvt_pk_bf16_f32 v{dst+i}, v{base+2*i}, v{base+1+2*i}" for i in range(8)]
        o += [f"v_permlane16_swap_b32 v{dst+i}, v{dst+i+2}" for i in (0, 1, 4, 5)]
        return o
    fmm = lambda tt, hd: f"v_mfma_f32_32x32x16_bf16 {v(FB[(tt,hd)],16)}, {v(WPHI[hd],4)}, {v(PB+8*tt+4*hd,4)}, 0"
    a.emit(packl(PB, AQK))
    p_ = packl(PB+8, AQK+16)
    a.emit(p_[:2]); a(fmm(0, 0)); a.emit(p_[2:8]); a(fmm(0, 1)); a.emit(p_[8:])
    p_ = packl(PV, AV)
    a.emit(p_[:2]); a(fmm(1, 0)); a.emit(p_[2:8]); a(fmm(1, 1)); a.emit(p_[8:])
    a.emit(packl(PV+8, AV+16))
    a.emit(ZSB)
    a.emit([f"v_mov_b64 {v(PB+i,2)}, v[244:245]" for i in range(0, 16, 2)])
    stamp(a, 2, 3)
    a.emit(rr(*[[x for x in softmax16(FB[k_], 48 + 4*i) if x != "s_nop 0"] for i, k_ in enumerate(((0,0), (0,1), (1,0), (1,1)))]))
    stamp(a, 3, 3)
    a(f"""
s_sub_u32 s{T0+2}, s{P_PHQ}, {WS_PHQ + 2048}
s_lshr_b32 s{T0+2}, s{T0+2}, 1
s_lshl_b32 s{P_KVB}, s{S_H}, 17
s_add_u32 s{P_KVB}, s{P_KVB}, {WS_KV}
s_lshl_b32 s{P_KVG}, s{S_WAVE}, 12
s_add_u32 s{P_KVG}, s{P_KVG}, {R2 - LEAD*4096}
""")
    stamp(a, 6); stamp(a, 4, 3)
    a(f"""
s_barrier
s_setprio 3
buffer_load_dwordx4 {v(QA,4)}, v1, {s(S_WS,4)}, s{T0+2} offen sc1
buffer_load_dwordx4 {v(QB,4)}, v1, {s(S_WS,4)}, s{T0+2} offen offset:1024 sc1
ds_read_b64 v[38:39], v243
ds_read_b128 {v(KS[0],4)}, v{ADDR}
s_mov_b64 exec, {s(SL+2,2)}
ds_read_b128 {v(VS[0],4)}, v{ADDR} offset:1024
ds_read_b128 {v(VS[0]+4,4)}, v{ADDR} offset:1280
s_mov_b64 exec, -1
v_subrev_u32 v{ADDR}, {2*LEAD*2048}, v{ADDR}
{TYC}
s_cbranch_scc1 L_kv
s_waitcnt lgkmcnt(0)
""")
    a.emit(fm)
    a("s_waitcnt vmcnt(0)")
    a(f"v_mfma_f32_32x32x16_bf16 {v(SA,16)}, {v(KS[0],4)}, {v(QA,4)}, {v(NMA,16)}")
    stamp(a, 7)
    for hd in range(2):
        for tt in range(2):
            a(f"buffer_store_dwordx4 {v(FB[(tt,hd)],4)}, v1, {s(S_WS,4)}, s{T0+3+hd} offen offset:{tt*2048} sc1")
            a(f"buffer_store_dwordx4 {v(FB[(tt,hd)]+4,4)}, v1, {s(S_WS,4)}, s{T0+3+hd} offen offset:{tt*2048+1024} sc1")
    a("s_nop 1")
    stamp(a, 8)
    a(f"s_branch L_slot{LEAD}")
    a("L_kv:")
    V0 = PB
    KVA = [SA, FB[(0,0)]]
    for hd in range(2):
        for tt in range(2):
            a(f"ds_write_b128 v240, {v(FB[(tt,hd)],4)} offset:{tt*2048}")
            a(f"ds_write_b128 v241, {v(FB[(tt,hd)]+4,4)} offset:{tt*2048}")
        for tt in range(2):
            for sx in range(2):
                for rd in range(2):
                    a(f"ds_read_b64_tr_b16 {v(FB[(tt,hd)]+8+4*sx+2*rd,2)}, v{(242, 246)[rd]} offset:{tt*2048+(16*sx+4*rd)*64}")
        for i in range(8*hd, 8*hd + 8):
            a(f"v_permlane16_swap_b32 v{PV+i}, v{V0+i}")
    a("s_waitcnt lgkmcnt(0)")
    if P["KVP"] < 3: a(f"s_setprio {P['KVP']}")
    k_ = 0
    for hd in range(2):
        for tt in range(2):
            for sx in range(2):
                c = "0" if (tt == 0 and sx == 0) else v(KVA[hd],16)
                a(f"v_mfma_f32_32x32x16_bf16 {v(KVA[hd],16)}, {v(FB[(tt,hd)]+8+4*sx,4)}, {v((PV, V0)[sx]+8*tt+4*hd,4)}, {c}")
                a.emit(fm[k_:k_+3]); k_ += 3
    for q in range(4):
        a(f"buffer_store_dwordx4 {v(KVA[0]+4*q,4)}, v1, {s(S_WS,4)}, s{T0+1} offen offset:{q*1024} sc1")
    a("s_waitcnt vmcnt(4)")
    a("s_nop 0")
    a(f"v_mfma_f32_32x32x16_bf16 {v(SA,16)}, {v(KS[0],4)}, {v(QA,4)}, {v(NMA,16)}")
    stamp(a, 7)
    a("s_nop 4")
    for q in range(4):
        a(f"buffer_store_dwordx4 {v(KVA[1]+4*q,4)}, v1, {s(S_WS,4)}, s{T0+5} offen offset:{q*1024} sc1")
    a("s_nop 1")
    stamp(a, 8)
    a(f"s_branch L_slot{LEAD}")
    a("L_mark_c1:")

    def e(b, i): return f"v_exp_f32 v{b+i}, v{b+i}"
    def sm(o, vv, p): return f"v_smfmac_f32_32x32x32_bf16 {v(o,16)}, {v(vv,4)}, {v(p,8)}, v{IDX}"
    def slot(base, last=False, bg=None):
        bg = bg or {}
        o = []
        k = [0]
        def ex(b, i):
            o.append(e(b, i))
            o.extend(bg.get(k[0], []))
            k[0] += 1
        for c in range(2):
            n = c ^ 1
            off = base + (c + 1) * 2048
            pf = not (last and c == 1)
            if pf: o.append(f"ds_read_b128 {v(KS[n],4)}, v{ADDR} offset:{off}")
            ex(SA,0); ex(SA,1)
            o.append(sm(OB, VS[n]+4, SB+8))
            vr = [f"s_mov_b64 exec, {s(SL+2,2)}", f"ds_read_b128 {v(VS[n],4)}, v{ADDR} offset:{off+1024}",
                  f"ds_read_b128 {v(VS[n]+4,4)}, v{ADDR} offset:{off+1280}", "s_mov_b64 exec, -1"] if pf else []
            if P["PV"] == 0: o.extend(vr)
            PS, PL = P["PS"], P["PLO"]
            for i in range(2, PS): ex(SA,i)
            o.append(f"v_mfma_f32_32x32x16_bf16 {v(SB,16)}, {v(KS[c],4)}, {v(QB,4)}, {v(NMB,16)}")
            if P["PV"] == 1: o.extend(vr)
            for i in range(PS, PL): ex(SA,i)
            o.append(sm(OA, VS[c], SA))
            for i in range(PL, 16): ex(SA,i)
            ex(SB,0); ex(SB,1)
            o.append(sm(OA, VS[c]+4, SA+8))
            for i in range(2, PS): ex(SB,i)
            if pf:
                o.append("s_waitcnt lgkmcnt(0)")
                o.append(f"v_mfma_f32_32x32x16_bf16 {v(SA,16)}, {v(KS[n],4)}, {v(QA,4)}, {v(NMA,16)}")
            for i in range(PS, PL): ex(SB,i)
            o.append(sm(OB, VS[c], SB))
            for i in range(PL, 16): ex(SB,i)
        return o
    def spread(bg, items, lo, hi):
        n = len(items)
        for i, it in enumerate(items):
            pos = lo + (i * (hi - lo + 1)) // n
            bg.setdefault(pos, []).extend(it if isinstance(it, list) else [it])
    BG = {sl: {} for sl in range(NS)}
    M16 = "0x00ff00ff"
    assert LEAD == 2 and (BD, BA, BW) == (4, 8, 12) and P["NOBD"]
    G0 = POOL + 12
    spread(BG[1], [f"ds_write_b128 v{POOL+18}, {v(POOL+36,4)}"], 30, 30)
    spread(BG[1], [[f"ds_read_b64_tr_b16 {v(POOL,2)}, v{POOL+9}", f"ds_read_b64_tr_b16 {v(POOL+2,2)}, v{POOL+9} offset:512"]], 40, 40)
    spread(BG[1], [f"buffer_store_dwordx4 {v(POOL,4)}, v1, {s(S_WS,4)}, s{WD} offen sc1",
        ["s_mov_b32 exec_lo, 1", "s_mov_b32 exec_hi, 1", f"buffer_store_dword v{G0}, v{POOL+19}, {s(S_WS,4)}, s{GO} offen sc1", "s_mov_b64 exec, -1"]], 58, 62)
    if not P["NOBD"]: spread(BG[0], kvgrp(P_KVG, 5*4096) + kvgrp(P_KVG, R2 + 3*4096), 0, 19)
    spread(BG[P["CLS"]], [f"buffer_store_dwordx4 v[44:47], v1, {s(S_WS,4)}, s{P_OF} offen sc1",
        [f"s_add_u32 s{T0}, s{P_OF}, {OBR}", f"buffer_store_dwordx4 v[44:47], v1, {s(S_WS,4)}, s{T0} offen sc1"],
        [f"s_cmp_lg_u32 s{KH}, 0", f"s_cselect_b32 exec_lo, 0, {M16}", "s_mov_b32 exec_hi, 0", f"buffer_store_dword v44, v43, {s(S_WS,4)}, s{P_KVT} offen sc1", "s_mov_b64 exec, -1"]], 10, 56)
    spread(BG[BD], kvgrp(P_KVG, 9*4096), 8, 56)
    spread(BG[BA], kvgrp(P_KVG, 13*4096), 14, 38)
    spread(BG[C0+1], [[f"s_cmp_lg_u32 s{KH}, 0", "s_cbranch_scc1 L_skipA", f"buffer_load_dword v41, v{VZ}, {s(S_WS,4)}, s{P_F2} offen sc1", "L_skipA:"]], P["Q1"], P["Q1"])
    l1a = [f"s_cmp_lg_u32 s{KH}, 0", "s_cbranch_scc1 L_skipB", "s_waitcnt vmcnt(0)", f"v_readfirstlane_b32 s{T0+6}, v41",
           f"s_add_u32 s{T0}, s{P_KVS}, 32768", f"s_add_u32 s{T0+1}, s{P_KVS}, 65536", f"s_add_u32 s{T0+2}, s{P_KVS}, 98304",
           f"s_cmp_lt_u32 s{T0+6}, 32", "s_cbranch_scc1 L_flagspin", "L_flagok:"]
    for p in range(4):
        l1a.append(f"buffer_load_dwordx4 {v(POOL+4*p,4)}, v42, {s(S_WS,4)}, s{P_KVS if p == 0 else T0+p-1} offen sc1")
    l1a.append("L_skipB:")
    spread(BG[C0+2], [l1a], P["Q2"], P["Q2"])
    l1b = ["s_waitcnt vmcnt(0)", f"s_cmp_lg_u32 s{KH}, 0", "s_cbranch_scc1 L_skipC"]
    for i in range(4): l1b.append(f"v_add_f32 v{POOL+i}, v{POOL+i}, v{POOL+4+i}")
    for i in range(4): l1b.append(f"v_add_f32 v{POOL+8+i}, v{POOL+8+i}, v{POOL+12+i}")
    for i in range(4): l1b.append(f"v_add_f32 v{POOL+i}, v{POOL+i}, v{POOL+8+i}")
    l1b += L(f"""
v_permlane32_swap_b32 v{POOL}, v{POOL+1}
s_nop 0
v_permlane32_swap_b32 v{POOL+2}, v{POOL+3}
v_add_f32 v{POOL}, v{POOL}, v{POOL+1}
s_nop 0
v_add_f32 v{POOL+2}, v{POOL+2}, v{POOL+3}
s_nop 1
v_permlane16_swap_b32 v{POOL}, v{POOL+2}
s_nop 1
v_add_f32 v{POOL}, v{POOL}, v{POOL+2}
s_nop 1
v_add_f32_dpp v{POOL}, v{POOL}, v{POOL} row_ror:8 row_mask:0xf bank_mask:0xf
v_mov_b32 v{POOL+1}, v{POOL}
s_nop 1
v_permlane32_swap_b32 v{POOL}, v{POOL+1}
s_nop 1
v_cvt_pk_bf16_f32 v40, v{POOL}, v{POOL+1}
v_min_u32 v40, -2, v40
s_mov_b32 exec_lo, {M16}
s_mov_b32 exec_hi, 0
buffer_store_dword v40, v43, {s(S_WS,4)}, s{P_KVT} offen sc1
s_mov_b64 exec, -1
L_skipC:
""")
    spread(BG[C0+3], [l1b], P["Q3"], P["Q3"])
    if BS == BD: assert C0 + 3 < BA
    CB = C0 + 4
    spread(BG[CB], L(f"""
v_and_b32 v42, 7, v0
v_lshlrev_b32 v42, 8, v42
s_mov_b32 s{T0+5}, {WS_FL}
buffer_load_dword v41, v42, {s(S_WS,4)}, s{T0+5} offen sc1
"""), P["Q4"], P["Q4"] + 16)
    KT = OBF
    R = OBF + 16
    ktl = [f"buffer_load_dwordx4 {v(KT,4)}, v1, {s(S_WS,4)}, s{P_KVT} offen sc1",
           f"buffer_load_dwordx4 {v(KT+4,4)}, v1, {s(S_WS,4)}, s{P_KVT} offen offset:1024 sc1"]
    spread(BG[CB+1], [["s_waitcnt vmcnt(0)", "v_cmp_gt_u32 vcc, 32, v41"]], P["Q5"], P["Q5"])
    spread(BG[CB+1], [["s_cbranch_vccnz L_flag2spin", "L_flag2ok:"],
                      f"buffer_load_dwordx4 {v(PQ,4)}, v1, {s(S_WS,4)}, s{P_PHQ} offen sc1",
                      f"buffer_load_dwordx4 {v(PQ+4,4)}, v1, {s(S_WS,4)}, s{P_PHQ} offen offset:1024 sc1"] + ktl, P["Q5"] + 4, 60)
    ktc = L(f"""
v_max3_u32 v40, v{KT}, v{KT+1}, v{KT+2}
v_max3_u32 v41, v{KT+3}, v{KT+4}, v{KT+5}
v_max3_u32 v40, v40, v{KT+6}, v{KT+7}
v_max_u32 v40, v40, v41
v_cmp_eq_u32 vcc, -1, v40
""")
    q6 = P["Q6"]
    spread(BG[CB+2], [["s_waitcnt vmcnt(0)", ktc[0]]] + ktc[1:], q6, q6 + 5)
    spread(BG[CB+2], [["s_cbranch_vccnz L_ktspin", "L_ktok:", f"v_mfma_f32_32x32x16_bf16 {v(R,16)}, {v(KT,4)}, {v(PQ,4)}, 0"]], q6 + 8, q6 + 8)
    m2 = q6 + 23
    spread(BG[CB+2 + m2 // 64], [f"v_mfma_f32_32x32x16_bf16 {v(R,16)}, {v(KT+4,4)}, {v(PQ+4,4)}, {v(R,16)}"], m2 % 64, m2 % 64)
    o0 = max(0, m2 + 13 - 64)
    ob = [f"v_add_f32 v40, {f2u(1e-6):#x}, v{R+8}", "v_rcp_f32 v40, v40"]
    ob += [f"v_mul_f32 v{R+i}, v{R+i}, v40" for i in range(8)]
    ob += [f"v_cvt_pk_bf16_f32 v{KACC+i}, v{R+2*i}, v{R+2*i+1}" for i in range(4)]
    ob += [f"v_min_u32 v{KACC+i}, -2, v{KACC+i}" for i in range(4)]
    ob += [[f"s_add_u32 s{T0}, s{P_OF}, {OBR}", f"buffer_store_dwordx4 {v(KACC,4)}, v1, {s(S_WS,4)}, s{T0} offen sc1"]]
    spread(BG[CB+3], ob, o0, o0 + 24)
    wob = []
    for i in range(16):
        g = [f"buffer_load_dwordx4 {v(POOL+4*i,4)}, v1, {s(S_WS,4)}, s{P_WOB} offen offset:{(i&3)*1024} sc1"]
        if i & 3 == 3: g.append(f"s_add_u32 s{P_WOB}, s{P_WOB}, 4096")
        wob.append(g)
    def woa_dma():
        o = []
        for g in range(2):
            o.append([f"s_add_u32 m0, s{P_WOL}, {g*4096}", f"s_add_u32 s{T0+1}, s{P_WOF}, {g*4096}"])
            for i in range(4):
                o.append(f"buffer_load_dwordx4 v1, {s(S_WS,4)}, s{T0+1} offen offset:{i*1024} sc1 lds")
        return o
    if BS == BD:
        spread(BG[CB+3], wob[:4], 30, 60)
        spread(BG[BW], woa_dma(), 2, 60)
        spread(BG[BW+1], wob[4:10], 2, 60)
        spread(BG[BW+2], wob[10:], 2, 60)
        OBS, OBLO, OBHI, PLO, PHI = NS - 2, 4, 60, 4, 40
    else:
        spread(BG[CB+2], wob[:2], 62, 63)
        spread(BG[CB+3], wob[2:7], 28, 60)
        spread(BG[CB+4], wob[7:16], 2, 60)
        spread(BG[CB+5], woa_dma(), 2, 60)
        OBS, OBLO, OBHI, PLO, PHI = NS - 1, 0, 30, 32, 60
    def ob_loads():
        o = [[f"s_add_u32 s{T0}, s{P_OA}, {OBR}", f"s_add_u32 s{T0+1}, s{P_OA}, {OBR+4096}"]]
        for j in range(8):
            o.append(f"buffer_load_dwordx4 {v(OBF+4*j,4)}, v1, {s(S_WS,4)}, s{T0+j//4} offen offset:{(j&3)*1024} sc1")
        return o
    spread(BG[OBS], L(f"""
v_and_b32 v40, 31, v0
v_lshlrev_b32 v40, 2, v40
buffer_load_dword v{GV}, v40, {s(S_WS,4)}, s{P_G} offen sc1
""") + ob_loads(), OBLO, OBHI)
    spread(BG[NS-2], L(f"""
s_and_b32 s{T0+2}, s{S_WAVE}, 3
s_mul_i32 s{T0+3}, s{T0+2}, {EXS}
s_add_u32 s{T0+3}, s{T0+3}, {L_EX}
v_add_u32 v41, s{T0+3}, v1
v_lshlrev_b32 v2, 2, v0
v_add_u32 v42, s{T0+3}, v2
v_and_b32 v2, 12, v2
v_add_u32 v2, {L_FLAG}, v2
s_lshl_b32 s{T0+2}, s{T0+2}, 2
s_add_u32 s{T0+2}, s{T0+2}, {L_FLAG}
v_mov_b32 v43, s{T0+2}
"""), 5, 59)
    XRD = [f"ds_read_b128 {v(NMA,4)}, v41", f"ds_read_b128 {v(NMA+4,4)}, v41 offset:1024", f"ds_read_b32 v{NMA+8}, v42 offset:4096",
           f"ds_read_b128 {v(NMB,4)}, v41 offset:2048", f"ds_read_b128 {v(NMB+4,4)}, v41 offset:3072", f"ds_read_b32 v{NMB+8}, v42 offset:4352"]
    import copy
    BGL = copy.deepcopy(BG[NS-1])
    spread(BGL, [["s_waitcnt vmcnt(9)", "s_barrier"]], P["XB"], P["XB"])
    spread(BGL, XRD, max(P["XB"] + 1, 46), max(P["XB"] + 7, 52))
    bars = sorted(set([BS, BW, NS] + ([] if P["NOBD"] else [BD]) + ([] if P["NOBA"] else [BA])))
    REB = 9
    a(".p2align 6")
    for sl in range(NS):
        a(f"L_slot{sl}:")
        if 1 <= sl - 4 <= 12: stamp(a, sl - 4, 1)
        if sl < 12: stamp(a, sl + 1, 4)
        if sl == BD and BD != BS and not P["NOBD"]:
            a(f"s_cmp_lg_u32 s{KH}, 0")
            a("s_cbranch_scc1 L_nowaitD")
            a("s_waitcnt vmcnt(3)" if P["CLS"] < BD else "s_waitcnt vmcnt(0)")
            a("L_nowaitD:")
            a("s_barrier")
        if sl == BS:
            a("s_waitcnt vmcnt(0)")
            a("s_barrier")
            a(f"""
s_cmp_lg_u32 s{S_WAVE}, 0
s_cbranch_scc1 L_sig2done
s_lshl_b32 s{T0}, s{S_HQ}, 8
s_add_u32 s{T0}, s{T0}, {WS_FL}
v_mov_b32 v38, 1
s_mov_b64 exec, 1
buffer_atomic_add v38, v{VZ}, {s(S_WS,4)}, s{T0} offen sc1
s_mov_b64 exec, -1
L_sig2done:
""")
        if (sl == BW and not P["DIAG"] & 1) or (sl == BA and not P["NOBA"]):
            a("s_barrier")
        if True:
            nb = min(b for b in bars if b > sl)
            r_ = nb - sl - 1
            pb = max([0] + [b for b in bars if b <= sl])
            pr = min(3, r_) if nb - pb <= 5 else {0: 0, 1: 1, 2: 2, 3: 2, 4: 3, 5: 3}[r_]
            if P["PRI"] == 1 and nb - pb > 5: pr = {0: 0, 1: 0, 2: 1, 3: 2, 4: 2, 5: 3}[r_]
            if P["PRI"] == 2 and nb - pb > 5: pr = {0: 0, 1: 1, 2: 1, 3: 2, 4: 2, 5: 3}[r_]
            if P["PRI"] == 3: pr = (r_ & 1) * 2 if True else pr
            if P["PRI"] == 4 and nb - pb > 5: pr = {0: 0, 1: 1, 2: 2, 3: 3, 4: 3, 5: 3}[r_]
            if P["DIAG"] & 1 and sl >= BS: pr = 3 if sl < 10 else 2 if sl < 14 else 1 if sl < 16 else 0
            if P["DIAG"] & 2 and sl >= BW: pr = {12: 3, 13: 2, 14: 2, 15: 1, 16: 0}[sl]
            a(f"s_setprio {pr}")
        if sl == REB:
            a(f"v_add_u32 v{ADDR}, {REB*4096}, v{ADDR}")
        if sl == NS - 1:
            a(f"s_cmp_eq_u32 s{KH}, 0")
            a("s_cbranch_scc1 L_last0")
        a.emit(slot((sl - (REB if sl >= REB else 0)) * 4096, sl == NS - 1, BG[sl]))
    a(f"""
L_tail1:
s_setprio 3
s_nop 0
{sm(OB, VS[1]+4, SB+8)}
""")
    stamp(a, 9)
    a(f"""
ds_write_b128 v41, {v(OA,4)}
ds_write_b128 v41, {v(OA+4,4)} offset:1024
ds_write_b32 v42, v{OA+8} offset:4096
s_nop 8
ds_write_b128 v41, {v(OB,4)} offset:2048
ds_write_b128 v41, {v(OB+4,4)} offset:3072
ds_write_b32 v42, v{OB+8} offset:4352
s_waitcnt lgkmcnt(0) vmcnt(9)
s_barrier
s_waitcnt vmcnt(0)
s_branch L_join
.p2align 3
L_last0:
""")
    a.emit(slot((NS - 1 - REB) * 4096, True, BGL))
    a(f"""
L_tail0:
s_mov_b32 s{T0}, 0x7e800000
s_waitcnt lgkmcnt(0)
{sm(OB, VS[1]+4, SB+8)}
""")
    stamp(a, 9)
    a(f"""
s_add_u32 s{T0+1}, s{P_OF}, 32768
s_mov_b32 s{T0+2}, 0
""")
    def fin(o, x, dst, so, lab, bit):
        a(f"s_bitcmp1_b32 s{MODE}, {bit}")
        a(f"v_add_f32 v{o+8}, v{o+8}, v{x+8}")
        for i in range(0, 8, 2):
            a(f"v_pk_add_f32 {v(o+i,2)}, {v(o+i,2)}, {v(x+i,2)}")
        a(f"v_rcp_f32 v{o+10}, v{o+8}")
        a(f"v_add_f32 v38, abs(v{o}), abs(v{o+8})")
        a(f"v_add_f32 v39, abs(v{o+1}), abs(v{o+2})")
        for i in range(3, 8):
            a(f"v_add_f32 v{38+(i+1)%2}, v{38+(i+1)%2}, abs(v{o+i})")
        a("v_add_f32 v38, v38, v39")
        a(f"v_cmp_ngt_f32 vcc, s{T0}, v38")
        for i in range(0, 8, 2):
            a(f"v_pk_mul_f32 {v(o+i,2)}, {v(o+i,2)}, {v(o+10,2)} op_sel_hi:[1,0]")
        for i in range(4):
            a(f"v_cvt_pk_bf16_f32 v{dst+i}, v{o+2*i}, v{o+2*i+1}")
        for i in range(4):
            a(f"v_min_u32 v{dst+i}, -2, v{dst+i}")
        a(f"""
s_cbranch_scc1 {lab}_no
s_cbranch_vccnz {lab}
{lab}_st:
buffer_store_dwordx4 {v(dst,4)}, v1, {s(S_WS,4)}, s{so} offen sc1
{lab}_no:
""")
    fin(OA, NMA, KACC, P_OF, "L_ova", 0)
    stamp(a, 10)
    fin(OB, NMB, PQ, T0+1, "L_ovb", 1)
    stamp(a, 11)
    a(f"""
v_mov_b32 v45, s{T0+2}
ds_write_b32 v43, v45
s_waitcnt lgkmcnt(0) vmcnt(2)
L_join:
s_barrier
ds_read_b32 v45, v2
s_setprio 0
s_waitcnt lgkmcnt(0)
v_cmp_ne_u32 vcc, 0, v45
s_nop 4
s_cbranch_vccnz L_slow
""")
    OFA = 80
    ACCA = [112, 128]
    ACCB = 48
    a(f"""
s_mov_b32 s{T0+7}, 0
s_add_u32 s{T0+2}, s{P_OA}, 4096
L_obchk:
v_max3_u32 v40, v{OBF}, v{OBF+1}, v{OBF+2}
v_max3_u32 v41, v{OBF+3}, v{OBF+4}, v{OBF+5}
""")
    for i in range(6, 30, 4):
        a(f"v_max3_u32 v40, v40, v{OBF+i}, v{OBF+i+1}")
        a(f"v_max3_u32 v41, v41, v{OBF+i+2}, v{OBF+i+3}")
    a(f"""
v_max3_u32 v40, v40, v{OBF+30}, v{OBF+31}
v_max_u32 v40, v40, v41
v_cmp_eq_u32 vcc, -1, v40
s_bfe_u32 s{T0}, s{S_WAVE}, 0x10001
s_lshl_b32 s{T0}, s{T0}, 14
s_lshr_b32 s{T0+1}, s{S_WAVE}, 2
s_mul_i32 s{T0+1}, s{T0+1}, {R2}
s_add_u32 s{T0}, s{T0}, s{T0+1}
v_add_u32 v39, s{T0}, v1
s_cbranch_vccnz L_obretry
L_obok:
""")
    prep = L(f"""
v_and_b32 v12, 31, v0
v_lshrrev_b32 v13, 5, v0
s_lshl_b32 s{T0}, s{S_WAVE}, 13
v_lshlrev_b32 v4, 8, v12
v_add_u32 v4, s{T0}, v4
v_and_b32 v14, 7, v0
v_lshlrev_b32 v15, 2, v13
v_xor_b32 v14, v14, v15
v_lshl_add_u32 v4, v14, 4, v4
v_xor_b32 v5, 16, v4
v_xor_b32 v6, 32, v4
v_xor_b32 v7, 48, v4
v_lshrrev_b32 v14, 3, v0
v_and_b32 v15, 7, v0
v_lshlrev_b32 v8, 1, v15
v_xor_b32 v8, v8, v14
v_lshlrev_b32 v8, 4, v8
v_lshl_add_u32 v8, v14, 8, v8
s_lshl_b32 s{T0}, s{S_WAVE}, 11
v_add_u32 v8, s{T0}, v8
v_xor_b32 v9, 16, v8
v_lshlrev_b32 v10, 10, v14
v_lshl_add_u32 v10, v15, 4, v10
s_and_b32 s{T0}, s2, 31
s_lshl_b32 s{T0}, s{T0}, 16
s_lshl_b32 s{T0+1}, s{S_WAVE}, 13
s_add_u32 s{T0}, s{T0}, s{T0+1}
s_lshr_b32 s{T0+1}, s2, 5
s_lshl_b32 s{T0+1}, s{T0+1}, 7
s_add_u32 s{T0}, s{T0}, s{T0+1}
v_sub_f32 v38, 1.0, v{GV}
s_mov_b32 s{S_X}, s20
s_mov_b32 s{S_X+1}, s21
s_mov_b32 s{S_X+2}, {2048*512*2}
s_mov_b32 s{S_X+3}, 0x20000
""")
    k = 0
    def oa_load(j):
        return f"buffer_load_dwordx4 {v(OFA+4*j,4)}, v1, {s(S_WS,4)}, s{P_OA if j < 4 else T0+2} offen offset:{(j&3)*1024} sc1"
    nl = 0
    for j in range(8):
        for ct in range(2):
            c = v(ACCB+16*ct,16)
            a(f"v_mfma_f32_32x32x16_bf16 {c}, {v(POOL+8*j+4*ct,4)}, {v(OBF+4*j,4)}, {'0' if j==0 else c}")
            a(f"ds_read_b128 {v(POOL+8*j+4*ct,4)}, v39 offset:{(2*j+ct)*1024}")
            if 2*j + ct >= P["OAP"] and nl < 8:
                a(oa_load(nl)); nl += 1
            a.emit(prep[k:k+3]); k += 3
    while nl < 8:
        a(oa_load(nl)); nl += 1
    a("s_nop 11")
    for i in range(0, 32, 2):
        a(f"v_pk_mul_f32 {v(ACCB+i,2)}, {v(ACCB+i,2)}, v[38:39] op_sel_hi:[1,0]")
    a("s_waitcnt lgkmcnt(0)")
    a("s_barrier")
    for j in range(8):
        f = OFA + 4*j
        a(f"""
L_cons{j}:
s_waitcnt vmcnt({7-j})
v_max3_u32 v38, v{f}, v{f+1}, v{f+2}
v_max_u32 v38, v38, v{f+3}
v_cmp_eq_u32 vcc, -1, v38
s_nop 4
s_cbranch_vccnz L_retry{j}
L_go{j}:
""")
        for ct in range(2):
            c = v(ACCA[ct],16)
            a(f"v_mfma_f32_32x32x16_bf16 {c}, {v(POOL+8*j+4*ct,4)}, {v(f,4)}, {'0' if j==0 else c}")
    stamp(a, 12)
    a("s_nop 10")
    for ct in range(2):
        for i in range(0, 16, 2):
            a(f"v_pk_fma_f32 {v(ACCA[ct]+i,2)}, {v(ACCA[ct]+i,2)}, {v(GV,2)}, {v(ACCB+16*ct+i,2)} op_sel_hi:[1,0,1]")
        for q in range(4):
            a(f"ds_write_b128 v{4+q}, {v(ACCA[ct]+4*q,4)} offset:{ct*128}")
    a(f"""
s_waitcnt lgkmcnt(0)
s_barrier
""")
    for kq in range(4):
        a(f"ds_read_b128 {v(16+8*kq,4)}, v8 offset:{kq*16384}")
        a(f"ds_read_b128 {v(20+8*kq,4)}, v9 offset:{kq*16384}")
    for kq in range(1, 4):
        a(f"s_waitcnt lgkmcnt({6-2*kq})")
        for i in range(0, 8, 2):
            a(f"v_pk_add_f32 {v(16+i,2)}, {v(16+i,2)}, {v(16+8*kq+i,2)}")
    for i in range(4):
        a(f"v_cvt_pk_bf16_f32 v{16+i}, v{16+2*i}, v{17+2*i}")
    a(f"buffer_store_dwordx4 v[16:19], v10, {s(S_X,4)}, s{T0} offen sc1")
    stamp_out(a)
    a("L_end:")
    a("s_endpgm")
    a("L_mark_o:")
    for j in range(8):
        a(f"""
L_retry{j}:
s_add_u32 s{T0+7}, s{T0+7}, 1
s_cmp_ge_u32 s{T0+7}, {SPIN}
s_cbranch_scc1 L_go{j}
""")
        if P["RT"] == 1: a(f"s_sleep {P['RSL']}")
        if P["RT"] < 2:
            for jj in range(j, 8): a(oa_load(jj))
            a(f"s_branch L_cons{j}")
        else:
            f = OFA + 4*j
            if P["RSL"]: a(f"s_sleep {P['RSL']}")
            a(oa_load(j))
            a(f"""
s_waitcnt vmcnt(0)
v_max3_u32 v38, v{f}, v{f+1}, v{f+2}
v_max_u32 v38, v38, v{f+3}
v_cmp_eq_u32 vcc, -1, v38
s_nop 4
s_cbranch_vccnz L_retry{j}
""")
            for jj in range(j + 1, 8): a(oa_load(jj))
            a(f"s_branch L_go{j}")
    for bit, lab in enumerate(("L_ova", "L_ovb")):
        a(f"""
{lab}:
s_cmp_lg_u32 s{MODE}, 0
s_cbranch_scc1 {lab}_st
s_bitset1_b32 s{T0+2}, {bit}
s_branch {lab}_no
""")
    a(f"""
L_obretry:
s_add_u32 s{T0+7}, s{T0+7}, 1
s_cmp_ge_u32 s{T0+7}, {SPIN}
s_cbranch_scc1 L_obok
""")
    for g in ob_loads(): a.emit(g if isinstance(g, list) else [g])
    a(f"""
s_waitcnt vmcnt(0)
s_branch L_obchk
L_pollF1:
s_sleep {P["PSL"]}
buffer_load_dword v40, v41, {s(S_WS,4)}, s{T0} offen sc1
s_add_u32 s{T0+7}, s{T0+7}, 1
s_waitcnt vmcnt(0)
v_cmp_gt_u32 vcc, 16, v40
s_cmp_ge_u32 s{T0+7}, {SPIN}
s_cbranch_scc1 L_pollF1_ok
s_nop 2
s_cbranch_vccnz L_pollF1
s_branch L_pollF1_ok
L_mbox:
ds_read_b32 v40, v{POOL+10}
s_add_u32 s{T0+7}, s{T0+7}, 1
s_waitcnt lgkmcnt(0)
v_readfirstlane_b32 s{T0+6}, v40
s_cmp_lg_u32 s{T0+6}, 0
s_cbranch_scc1 {"L_mbox_ok" if P["ONEP"] else "L_end"}
s_sleep 1
s_cmp_lt_u32 s{T0+7}, {SPIN * 8}
s_cbranch_scc1 L_mbox
s_branch {"L_mbox_ok" if P["ONEP"] else "L_end"}
L_sig1:
s_mov_b32 s{T0+7}, 0
L_initpoll:
s_sleep 4
global_load_dword v10, v{VZ}, s[22:23] sc1
s_add_u32 s{T0+7}, s{T0+7}, 1
s_waitcnt vmcnt(0)
v_readfirstlane_b32 s{T0+6}, v10
s_cmp_lg_u32 s{T0+6}, 0
s_cbranch_scc1 L_initdone
s_cmp_lt_u32 s{T0+7}, {SPIN}
s_cbranch_scc1 L_initpoll
L_initdone:
{TYC}
s_cbranch_scc1 L_initok1
s_branch L_initok0
L_flagspin:
s_mov_b32 s{T0+7}, 0
L_flagspin2:
s_sleep {P['SL1']}
buffer_load_dword v41, v{VZ}, {s(S_WS,4)}, s{P_F2} offen sc1
s_add_u32 s{T0+7}, s{T0+7}, 1
s_waitcnt vmcnt(0)
v_readfirstlane_b32 s{T0+6}, v41
s_cmp_ge_u32 s{T0+6}, 32
s_cbranch_scc1 L_flagok
s_cmp_lt_u32 s{T0+7}, {SPIN}
s_cbranch_scc1 L_flagspin2
s_branch L_flagok
L_flag2spin:
s_mov_b32 s{T0+7}, 0
L_flag2spin2:
s_sleep {P['SL2']}
buffer_load_dword v41, v42, {s(S_WS,4)}, s{T0+5} offen sc1
s_add_u32 s{T0+7}, s{T0+7}, 1
s_waitcnt vmcnt(0)
v_cmp_gt_u32 vcc, 32, v41
s_cmp_ge_u32 s{T0+7}, {SPIN}
s_cbranch_scc1 L_flag2ok
s_nop 2
s_cbranch_vccnz L_flag2spin2
s_branch L_flag2ok
L_ktspin:
s_mov_b32 s{T0+7}, 0
L_ktspin2:
s_sleep 8
""")
    a.emit(ktl)
    a(f"""
s_add_u32 s{T0+7}, s{T0+7}, 1
s_waitcnt vmcnt(0)
""")
    a.emit(ktc)
    a(f"""
s_cmp_ge_u32 s{T0+7}, {SPIN}
s_cbranch_scc1 L_ktok
s_nop 2
s_cbranch_vccnz L_ktspin2
s_branch L_ktok
""")
    a(f"""
L_slow:
s_barrier
s_and_b32 s{MODE}, s{T0+2}, 3
s_xor_b32 s{MODE}, s{MODE}, 7
s_lshl_b32 s{T0+1}, s{S_H}, 17
s_add_u32 s{T0+1}, s{T0+1}, {WS_KV}
s_add_u32 s{T0+1}, s{T0+1}, s{P_WOL}
""")
    for g in range(2):
        a(f"s_add_u32 m0, s{P_WOL}, {g*4096}")
        a(f"s_add_u32 s{T0+1}, s{T0+1}, {g*4096}")
        for i in range(4):
            a(f"buffer_load_dwordx4 v1, {s(S_WS,4)}, s{T0+1} offen offset:{i*1024} sc1 lds")
    a(f"""
s_mov_b32 s{CNT}, 0
v_mov_b32 v{ADDR}, v1
v_mov_b32 v38, 0xff800000
v_mov_b32 v39, 0xff800000
v_mov_b32 v47, v41
s_waitcnt vmcnt(0)
s_barrier
L_mloop:
ds_read_b128 {v(KS[0],4)}, v{ADDR}
s_waitcnt lgkmcnt(0)
v_mfma_f32_32x32x16_bf16 {v(SA,16)}, {v(KS[0],4)}, {v(QA,4)}, 0
v_mfma_f32_32x32x16_bf16 {v(SB,16)}, {v(KS[0],4)}, {v(QB,4)}, 0
s_nop 15
""")
    a.emit(rr(maxtree(38, SA, 1), maxtree(39, SB, 1)))
    a(f"""
v_add_u32 v{ADDR}, 2048, v{ADDR}
s_add_u32 s{CNT}, s{CNT}, 1
s_cmp_lt_u32 s{CNT}, 64
s_cbranch_scc1 L_mloop
""")
    a(NEGM)
    a(f"""
s_lshl_b32 s{T0}, s{KH}, 16
v_add_u32 v{ADDR}, s{T0}, v1
s_mov_b32 s{CNT}, 0
ds_read_b128 {v(KS[0],4)}, v{ADDR}
s_mov_b64 exec, {s(SL+2,2)}
ds_read_b128 {v(VS[0],4)}, v{ADDR} offset:1024
ds_read_b128 {v(VS[0]+4,4)}, v{ADDR} offset:1280
s_mov_b64 exec, -1
""")
    a.emit(fm); a.emit(ZERO_O); a.emit(ZSB)
    a(f"""
s_waitcnt lgkmcnt(0)
v_mfma_f32_32x32x16_bf16 {v(SA,16)}, {v(KS[0],4)}, {v(QA,4)}, {v(NMA,16)}
s_nop 15
L_sloop:
""")
    a.emit(slot(0))
    a(f"""
v_add_u32 v{ADDR}, 4096, v{ADDR}
s_add_u32 s{CNT}, s{CNT}, 1
s_cmp_lt_u32 s{CNT}, 16
s_cbranch_scc1 L_sloop
v_mov_b32 v41, v47
s_barrier
""")
    for g in woa_dma(): a.emit(g if isinstance(g, list) else [g])
    a("s_waitcnt vmcnt(0)")
    a(f"s_cmp_lg_u32 s{KH}, 0")
    a("s_cbranch_scc1 L_tail1")
    a("s_barrier")
    a.emit(XRD)
    a("s_branch L_tail0")
    a("L_codeend:")
    a("s_endpgm")
    return kd(NAME, 256, 102)

HEAD = """; out = g * MHA(x) + (1 - g) * HedgehogLinearAttention(x),  S=2048 D=512 H=32 Dh=16, bf16 in/out.
; One persistent launch, 256 workgroups x 8 waves (one per CU), written with a generator script.
; @launch grid=(256,1,1) block=(512,1,1) lds=163840
;
; Phase 1  projections: a workgroup owns 128 tokens x 3 weight column blocks (4 heads each). x stays in LDS,
;          weights stream through LDS-DMA (waves 4-7), waves 0-3 run the MFMAs. The softmax-branch blocks go
;          first and are published (Q pre-scaled by log2(e)/4); the hedgehog blocks, their two feature
;          softmaxes (true max subtracted) and the kv/z partial sums follow while that hand-off travels.
;          P = exp2(S^T) stays in f32 and feeds a 2:4 sparse MFMA that picks the bf16 halves; a ones row gives
;          the row sums. m is the row maximum over the first key tile, so the sum is >= 1 and only overflow is
; Hand-offs use write-through stores plus counters (zeroed by workgroup 0 each launch, confirmed through
.amdgcn_target "amdgcn-amd-amdhsa--gfx950"
"""
if __name__ == "__main__":
    rt = False
    for o in sys.argv[2:]:
        if o == "st": P["STAMPS"] = 1
        elif o == "rt": rt = True
        else:
            k_, v_ = o.split("="); assert k_.upper() in P, k_; P[k_.upper()] = int(v_)
    a = Asm()
    k = gen(a)
    ls = a.lines
    c0, c1, o = ls.index("L_mark_c0:"), ls.index("L_mark_c1:"), ls.index("L_mark_o:")
    if P["LAY"]:
        head = ls[:c0-1]
        mid = [x for x in ls[c1+1:o]]
        if mid[0] == ".p2align 6": mid[0] = ".p2align 3"
        ls = head + mid + [".p2align 3"] + ls[c0+1:c1] + ls[o+1:]
    else:
        ls = [x for x in ls if not x.startswith("L_mark")]
    a.lines = ls
    txt = a.text()
    if rt: txt = txt.replace("s_memtime", "s_memrealtime")
    open(sys.argv[1], "w").write(HEAD + txt + k)
```
